```python
import torch

def _softmax(x, axis=-1):
    return torch.softmax(x, dim=axis)
def _gelu(x):
    return torch.nn.functional.gelu(x, approximate="tanh")
def _silu(x):
    return torch.nn.functional.silu(x)
def _sigmoid(x):
    return torch.sigmoid(x)
def _layernorm(x, axis=-1, eps=1e-5):
    m = x.mean(dim=axis, keepdim=True)
    v = x.var(dim=axis, keepdim=True, unbiased=False)
    return (x - m) / torch.sqrt(v + eps)
def _scatter_add(tgt, idx, src, axis=0):
    return tgt.clone().index_add_(axis, idx, src)
def _segment_sum(src, seg, n):
    out = torch.zeros((n,) + src.shape[1:], dtype=src.dtype)
    return out.index_add_(0, seg, src)
def _pad(x, pw):
    flat = tuple(v for pair in reversed(pw) for v in pair)
    return torch.nn.functional.pad(x, flat)

kernel_name = 'standalone__cheap_equivariant_egnn__graph'

def setup_inputs():

    _w = (lambda a: (lambda t: t.to(torch.bfloat16) if t.is_floating_point() else t)(torch.as_tensor(a)))
    N, deg, D, De = 10000, 16, 256, max(4, 1)
    E = N * deg
    return {
        "h": _w((lambda *s: torch.randn(*s, dtype=torch.bfloat16) * 0.2)(N, D)),
        "pos": _w((lambda *s: torch.randn(*s, dtype=torch.bfloat16) * 0.4)(N, 3)),
        "e_attr": _w((lambda *s: torch.randn(*s, dtype=torch.bfloat16) * 0.4)(E, De)),
        "src": _w((lambda lo, hi, *s: torch.randint(lo, hi, s))(0, N, E).to(torch.int64)),
        "dst": _w((lambda lo, hi, *s: torch.randint(lo, hi, s))(0, N, E).to(torch.int64)),
        "w_e": _w(0.1 * (lambda *s: torch.randn(*s, dtype=torch.bfloat16) * 0.4)(2 * D + 1 + De, D)),
        "w_x": _w(0.1 * (lambda *s: torch.randn(*s, dtype=torch.bfloat16) * 0.2)(D, 1)),
        "w_h": _w(0.1 * (lambda *s: torch.randn(*s, dtype=torch.bfloat16) * 0.2)(2 * D, D)),
    }

def reference(h, pos, e_attr, src, dst, w_e, w_x, w_h):
    N, D = h.shape[0], h.shape[1]
    diff = pos[dst] - pos[src]
    dist2 = torch.sum(diff * diff, axis=-1, keepdims=True)
    e_in = torch.concatenate([h[dst], h[src], dist2, e_attr], axis=-1)
    m_ij = _silu(e_in @ w_e)
    coord_scale = m_ij @ w_x
    pos_new = pos + _segment_sum(diff * coord_scale, dst, N)
    m_i = _segment_sum(m_ij, dst, N)
    h_new = h + _silu(torch.concatenate([h, m_i], axis=-1) @ w_h)
    return h_new, pos_new
```

```python
import re

def v(i, n=1):
    return f"v{i}" if n == 1 else f"v[{i}:{i+n-1}]"
def s(i, n=1):
    return f"s{i}" if n == 1 else f"s[{i}:{i+n-1}]"

class Asm:
    def __init__(self):
        self.L = []
        self.lds = []
        self.vm = []
    def __call__(self, text):
        for line in text.split("\n"):
            line = line.strip()
            if line:
                self.L.append(line)
    def label(self, name):
        self.L.append(name + ":")
    def comment(self, text):
        self.L.append("; " + text)
    def ds(self, text, tag=None):
        self(text); self.lds.append(tag)
    def mem(self, text, tag=None):
        self(text); self.vm.append(tag)
    def wait_lds(self, tag):
        idx = max(i for i, t in enumerate(self.lds) if t == tag)
        n = len(self.lds) - 1 - idx
        assert n <= 14, n
        self(f"s_waitcnt lgkmcnt({n})")
        self.lds = self.lds[idx + 1:]
    def wait_lds_if(self, tag):
        if tag in self.lds:
            self.wait_lds(tag)
    def wait_vm(self, tag):
        idx = max(i for i, t in enumerate(self.vm) if t == tag)
        n = len(self.vm) - 1 - idx
        assert n <= 62, n
        self(f"s_waitcnt vmcnt({n})")
        self.vm = self.vm[idx + 1:]
    def wait_all(self, vm=True, lds=True):
        parts = []
        if vm: parts.append("vmcnt(0)"); self.vm = []
        if lds: parts.append("lgkmcnt(0)"); self.lds = []
        self("s_waitcnt " + " ".join(parts))
    def text(self):
        out = []
        for l in self.L:
            if l.endswith(":") or l.startswith(".") or l.startswith(";"):
                out.append(l)
            else:
                out.append("    " + l)
        return "\n".join(out) + "\n"

TRANS = ("v_exp_", "v_log_", "v_rcp_", "v_rsq_", "v_sqrt_", "v_sin_", "v_cos_")
def regs(op):
    op = op.strip()
    neg = op.lstrip("-|").rstrip("|")
    m = re.fullmatch(r"([vsa])(\d+)", neg)
    if m: return {(m.group(1), int(m.group(2)))}
    m = re.fullmatch(r"([vsa])\[(\d+):(\d+)\]", neg)
    if m: return {(m.group(1), i) for i in range(int(m.group(2)), int(m.group(3)) + 1)}
    if neg in ("vcc", "vcc_lo", "vcc_hi"): return {("s", "vcc")}
    if neg in ("exec", "exec_lo", "exec_hi"): return {("s", "exec")}
    if neg == "m0": return {("s", "m0")}
    return set()

class Ins:
    def __init__(self, text, idx):
        self.text = text; self.idx = idx
        t = text.split(";")[0].strip()
        parts = t.split(None, 1)
        self.mn = parts[0]
        rest = parts[1] if len(parts) > 1 else ""
        ops = [o.strip() for o in re.split(r",(?![^\[]*\])", rest)] if rest else []
        if ops:
            last = ops[-1].split()
            self.mods = " ".join(last[1:])
            ops[-1] = last[0] if last else ""
        else:
            self.mods = ""
        self.ops = ops
        mn = self.mn
        self.is_mfma = mn.startswith("v_mfma")
        self.is_valu = mn.startswith("v_") and not self.is_mfma
        self.is_trans = mn.startswith(TRANS)
        self.is_ds = mn.startswith("ds_")
        self.is_vmem = mn.startswith(("buffer_", "global_"))
        self.is_salu = mn.startswith("s_")
        self.is_dpp = bool(re.search(r"row_|quad_perm|wave_|bcast", self.mods)) or mn.endswith("_dpp")
        self.w = set(); self.r = set(); self.ra = set(); self.rb = set(); self.rc = set()
        self.store_data = set(); self.ldst = set()
        R = [regs(o) for o in ops]
        if self.is_mfma:
            self.w = R[0]; self.ra = R[1]; self.rb = R[2]; self.rc = R[3]
            self.r = self.ra | self.rb | self.rc
            self.passes = 8 if "32x32" in mn else 4
        elif self.is_valu:
            if mn.startswith("v_cmp"):
                self.w = R[0]; self.r = set().union(*R[1:])
            elif mn.startswith(("v_add_co", "v_sub_co", "v_addc_co", "v_subb_co")):
                self.w = R[0] | R[1]; self.r = set().union(*R[2:])
            elif mn.startswith("v_permlane"):
                self.w = R[0] | R[1]; self.r = R[0] | R[1]
            else:
                self.w = R[0]; self.r = set().union(*R[1:]) if len(R) > 1 else set()
                if mn.startswith(("v_fmac", "v_mac", "v_writelane", "v_pk_fmac")) or self.is_dpp:
                    self.r |= R[0]
                if mn.startswith("v_cndmask") and len(R) == 3:
                    self.r |= {("s", "vcc")}
        elif self.is_ds:
            if mn.startswith("ds_read") or "_rtn" in mn or mn.startswith(("ds_bpermute", "ds_permute", "ds_swizzle")):
                self.ldst = R[0]; self.r = set().union(*R[1:])
            else:
                self.r = set().union(*R)
                self.store_data = set().union(*R[1:])
        elif self.is_vmem:
            lds = " lds" in (" " + self.mods)
            if "load" in mn and not lds:
                self.ldst = R[0]; self.r = set().union(*R[1:])
            elif "load" in mn and lds:
                self.r = set().union(*R) | {("s", "m0")}
                self.dma = True
            else:
                self.r = set().union(*R)
                self.store_data = R[0] if mn.startswith("buffer_") else R[1]
        elif self.is_salu:
            if mn.startswith(("s_cmp", "s_waitcnt", "s_nop", "s_barrier", "s_branch", "s_cbranch", "s_endpgm", "s_setprio", "s_sleep")):
                self.r = set().union(*R) if R else set()
            else:
                self.w = R[0] if R else set(); self.r = set().union(*R[1:]) if len(R) > 1 else set()
                if "saveexec" in mn: self.w |= {("s", "exec")}
        self.states = 1
        if mn == "s_nop": self.states = int(ops[0], 0) + 1

def check_hazards(text):
    ins = []; labels = {}
    for line in text.split("\n"):
        t = line.split(";")[0].strip()
        if not t or t.startswith("."):
            continue
        if t.endswith(":"):
            labels[t[:-1]] = len(ins); continue
        ins.append(Ins(t, len(ins)))
    def succ(i):
        x = ins[i]
        if x.mn == "s_endpgm": return []
        if x.mn == "s_branch": return [labels[x.ops[0]]]
        out = [i + 1] if i + 1 < len(ins) else []
        if x.mn.startswith("s_cbranch"): out.append(labels[x.ops[0]])
        return out
    problems = []
    def need(p, c):
        n = 0
        vw = {r for r in p.w if r[0] in "va"}
        sw = {r for r in p.w if r[0] == "s"}
        if p.is_valu:
            if c.is_mfma and vw & c.r: n = max(n, 2)
            if p.is_trans and c.is_valu and not c.is_trans and vw & c.r: n = max(n, 1)
            if c.is_valu and c.is_dpp and vw & c.r: n = max(n, 2)
            if c.mn.startswith(("v_readlane", "v_readfirstlane")) and vw & c.r: n = max(n, 1)
            if c.mn.startswith("v_permlane") and vw & c.r: n = max(n, 2)
            if sw:
                if c.is_valu and sw & c.r: n = max(n, 4 if c.mn.startswith(("v_readlane", "v_writelane")) else 2)
                if c.is_vmem and sw & c.r: n = max(n, 5)
        if p.is_mfma:
            big = p.passes == 8
            if c.is_mfma:
                if p.w & (c.ra | c.rb): n = max(n, 12 if big else 8)
                if p.w & c.rc and not (p.w == c.rc and p.passes == c.passes): n = max(n, 10 if big else 6)
                if p.w & c.w and not (p.w & c.rc) : n = max(n, 0)
            else:
                if (c.is_valu and p.w & (c.r | c.w)) or ((c.is_ds or c.is_vmem) and p.w & (c.r | c.ldst)):
                    n = max(n, 12 if big else 8)
            if c.is_valu and p.rc & c.w and not (p.rc & p.w): n = max(n, 7 if big else 3)
        if (p.is_vmem or p.is_ds) and p.store_data and len(p.store_data) >= 3:
            if c.is_valu and p.store_data & c.w: n = max(n, 2)
            if (c.is_ds or c.is_vmem) and p.store_data & c.ldst: n = max(n, 1)
        if p.is_salu and ("s", "m0") in p.w and getattr(c, "dma", False): n = max(n, 1)
        return n
    MAXD = 12
    for p in ins:
        if not (p.w or p.store_data or p.is_mfma): continue
        stack = [(j, 0) for j in succ(p.idx)]
        seen = set()
        while stack:
            j, d = stack.pop()
            if (j, d) in seen or d >= MAXD or j >= len(ins): continue
            seen.add((j, d))
            c = ins[j]
            n = need(p, c)
            if n > d:
                problems.append(f"need {n} have {d}: [{p.idx}] {p.text}  ->  [{c.idx}] {c.text}")
            for k in succ(j): stack.append((k, d + c.states))
    return problems
```

```python
N_NODES = 10000
WS_Q    = 0
WS_P    = 0x500000
WS_R    = 0xA00000
WS_RECA = 0xF00000
WS_RECB = 0x1200000
WS_TAB  = 0x1300000
WS_WHP  = 0x1400000
WS_WX   = 0x1420000
WS_WXP  = 0x1421000
WS_USED = 0x1430000
MAT_BYTES = 5120000
NCH = 64
CH_E = 2500
CH_STRIDE = 2560
TAB_STRIDE = 2560
NLOG2E = 0xBFB8AA3B
NLN2 = 0xBF317218
SRD3 = 0x00020000

def srd(a, d, base, off, size):
    if off:
        a(f"s_add_u32 s{d}, s{base}, {off}")
        a(f"s_addc_u32 s{d+1}, s{base+1}, 0")
    else:
        a(f"s_mov_b32 s{d}, s{base}")
        a(f"s_mov_b32 s{d+1}, s{base+1}")
    a(f"s_mov_b32 s{d+2}, {size}")
    a(f"s_mov_b32 s{d+3}, {SRD3:#x}")

def kernel_desc(name, nvgpr, nsgpr):
    return f""".section .rodata,"a"
.p2align 6
.amdhsa_kernel {name}
  .amdhsa_next_free_vgpr {nvgpr}
  .amdhsa_next_free_sgpr {nsgpr}
  .amdhsa_accum_offset {(nvgpr + 3) // 4 * 4}
  .amdhsa_group_segment_fixed_size 0
  .amdhsa_kernarg_size 88
  .amdhsa_user_sgpr_count 2
  .amdhsa_user_sgpr_kernarg_segment_ptr 1
  .amdhsa_system_sgpr_workgroup_id_x 1
  .amdhsa_float_denorm_mode_32 3
.end_amdhsa_kernel
"""
```

```python
from asmlib import *
from common import *

NAME = "egnn_prep_kernel"
N_RANGE = 63
WG_SORT0 = 3 * N_RANGE
WG_PACK0 = WG_SORT0 + NCH
GRID1 = WG_PACK0 + 2
LDS1 = 163840

S_H, S_POS, S_EA, S_SRC, S_DST, S_WE, S_WX, S_WH, S_WS = 4, 6, 8, 10, 12, 14, 16, 18, 20
S_WAVE = 22
SA, SB, SC, SD, SE = 24, 28, 32, 36, 40

def w_dma(a, srdw):
    a("v_lshrrev_b32 v2, 2, v1")
    a("v_lshlrev_b32 v2, 9, v2")
    a("v_and_b32 v3, 3, v1")
    a("v_lshl_add_u32 v2, v3, 4, v2")
    a(f"s_lshl_b32 s44, s{S_WAVE}, 6")
    a("v_add_u32 v2, s44, v2")
    a(f"s_lshl_b32 s45, s{S_WAVE}, 14")
    for i in range(16):
        a(f"s_add_u32 m0, s45, {i*1024}")
        a(f"s_mov_b32 s46, {i*8192}")
        a.mem(f"buffer_load_dwordx4 v2, s[{srdw}:{srdw+3}], s46 offen lds", "W")

def gemm(a, mat):
    nm = "PQR"[mat]
    VW, VF, ACC, PK = 64, 128, (192, 208), 224
    VA = 8
    vH = (3, 4)
    a.label(f"L1_gemm_{nm}")
    if mat == 0: srd(a, SA, S_WE, 0, 131072)
    if mat == 1: srd(a, SA, S_WE, 131072, 131072)
    if mat == 2: srd(a, SA, S_WH, 0, 131072)
    srd(a, SB, S_H, 0, MAT_BYTES)
    srd(a, SC, S_WS, (WS_P, WS_Q, WS_R)[mat], MAT_BYTES)
    w_dma(a, SA)
    a("v_lshrrev_b32 v5, 5, v1")
    a(f"s_lshl_b32 s44, s{S_WAVE}, 2")
    a("v_and_b32 v6, 31, v1")
    for i in range(2):
        a(f"v_add_u32 v7, s44, v5")
        if i: a("v_add_u32 v7, 2, v7")
        a("v_and_b32 v16, 15, v7")
        a("v_xor_b32 v16, v16, v6")
        a("v_lshlrev_b32 v16, 4, v16")
        a(f"v_lshl_add_u32 v{vH[i]}, v7, 9, v16")
    a("s_mul_i32 s51, s50, 81920")
    a(f"s_lshl_b32 s52, s{S_WAVE}, 11")
    def h_dma(T, ldsbase):
        for i in range(2):
            a(f"s_add_u32 m0, s52, {ldsbase + i*1024}")
            a(f"s_add_u32 s46, s51, {T*16384}")
            a.mem(f"buffer_load_dwordx4 v{vH[i]}, s[{SB}:{SB+3}], s46 offen lds", "H")
    h_dma(0, 131072)
    h_dma(1, 147456)
    a("v_lshrrev_b32 v5, 5, v1")
    a("v_bfe_u32 v6, v1, 2, 2")
    a("v_lshl_add_u32 v6, v5, 3, v6")
    a("v_lshlrev_b32 v6, 6, v6")
    a("v_bfe_u32 v7, v1, 4, 1")
    a("v_and_b32 v16, 3, v1")
    a("v_lshl_add_u32 v7, v7, 2, v16")
    if mat == 0:
        a("v_lshlrev_b32 v7, 3, v7")
    else:
        a("v_and_b32 v16, 1, v7")
        a("v_lshlrev_b32 v16, 5, v16")
        a("v_lshrrev_b32 v7, 1, v7")
        a("v_lshl_add_u32 v7, v7, 3, v16")
    a("v_add_u32 v5, v6, v7")
    a(f"s_lshl_b32 s45, s{S_WAVE}, 14")
    a("v_add_u32 v5, s45, v5")
    a("v_and_b32 v6, 31, v1")
    a("v_lshrrev_b32 v7, 5, v1")
    a("v_and_b32 v16, 15, v6")
    a("v_xor_b32 v7, v7, v16")
    a("v_lshlrev_b32 v6, 9, v6")
    a("v_add_u32 v6, 0x20000, v6")
    for k in range(8):
        a(f"v_xor_b32 v16, {2*k}, v7")
        a(f"v_lshl_add_u32 v{VA+k}, v16, 4, v6")
    a("v_and_b32 v6, 31, v1")
    a("v_lshrrev_b32 v7, 5, v1")
    if mat == 0:
        a(f"s_lshl_b32 s44, s{S_WAVE}, 9")
        a("v_lshlrev_b32 v17, 4, v6")
        a("v_lshl_add_u32 v17, v7, 3, v17")
        a("v_add_u32 v17, s44, v17")
        a("s_mul_i32 s53, s50, 81920")
    elif mat == 2:
        a(f"s_lshl_b32 s44, s{S_WAVE}, 9")
        a("v_lshrrev_b32 v17, 3, v6")
        a("v_lshlrev_b32 v17, 12, v17")
        a("v_lshl_add_u32 v17, v7, 8, v17")
        a("v_and_b32 v16, 7, v6")
        a("v_lshl_add_u32 v17, v16, 4, v17")
        a("v_add_u32 v17, s44, v17")
        a("s_mul_i32 s53, s50, 81920")
    else:
        a(f"s_lshl_b32 s44, s{S_WAVE}, 11")
        a("s_add_u32 s44, s44, 65536")
        a("v_bfe_u32 v16, v6, 1, 2")
        a("v_lshlrev_b32 v19, 1, v7")
        a("v_xor_b32 v19, v19, v16")
        a("v_lshlrev_b32 v20, 6, v6")
        a("v_add_u32 v20, s44, v20")
        a("v_lshl_add_u32 v17, v19, 4, v20")
        a("v_xor_b32 v19, 1, v19")
        a("v_lshl_add_u32 v18, v19, 4, v20")
        a("v_lshrrev_b32 v6, 2, v1")
        a("v_bfe_u32 v16, v1, 3, 2")
        a("v_and_b32 v7, 3, v1")
        a("v_xor_b32 v16, v16, v7")
        a("v_lshlrev_b32 v19, 6, v6")
        a("v_lshl_add_u32 v19, v16, 4, v19")
        a("v_add_u32 v19, s44, v19")
        a(f"s_lshl_b32 s44, s{S_WAVE}, 6")
        a("v_lshlrev_b32 v20, 9, v6")
        a("v_lshl_add_u32 v20, v7, 4, v20")
        a("v_add_u32 v20, s44, v20")
        a("s_mul_i32 s53, s50, 81920")
    a(f"s_mov_b32 s48, {NLOG2E:#x}")
    a.wait_vm("W")
    for st in range(16):
        for i in range(2):
            a(f"ds_read_b64_tr_b16 v[{VW+4*st+2*i}:{VW+4*st+2*i+1}], v5 offset:{st*1024+i*256}")
            if (st * 2 + i) % 12 == 11: a("s_waitcnt lgkmcnt(4)")
    a.wait_all()
    a("s_barrier")
    for T in (2, 3, 4):
        h_dma(T, (T - 2) * 16384)

    def fread(u):
        T, st = divmod(u, 16)
        base = T * 16384 if T < 2 else (T - 2) * 16384
        q = VF + 4 * (u % 16)
        a.ds(f"ds_read_b128 v[{q}:{q+3}], v{VA + (st & 7)} offset:{base + 256*(st >> 3)}", ("F", u))
    def mfma(u):
        T, st = divmod(u, 16)
        q = VF + 4 * (u % 16); w = VW + 4 * st; acc = ACC[T & 1]
        c = "0" if st == 0 else f"v[{acc}:{acc+15}]"
        A, B = (q, w) if mat == 0 else (w, q)
        a(f"v_mfma_f32_32x32x16_bf16 v[{acc}:{acc+15}], v[{A}:{A+3}], v[{B}:{B+3}], {c}")
    def epi(T):
        acc = ACC[T & 1]
        ops = []
        for j in range(8):
            ops.append(f"v_mul_f32 v{acc+2*j}, s48, v{acc+2*j}")
            ops.append(f"v_mul_f32 v{acc+2*j+1}, s48, v{acc+2*j+1}")
        for j in range(8):
            ops.append(f"v_cvt_pk_bf16_f32 v{PK+j}, v{acc+2*j}, v{acc+2*j+1}")
        if mat == 0:
            for q in range(4):
                ops.append(f"s_add_u32 s46, s53, {T*16384 + q*4096}")
                ops.append(("vm", f"buffer_store_dwordx2 v[{PK+2*q}:{PK+2*q+1}], v17, s[{SC}:{SC+3}], s46 offen", ("S", T)))
        elif mat == 2:
            ops.append(f"s_add_u32 s46, s53, {T*16384}")
            for i in range(2):
                ops.append(("vm", f"buffer_store_dwordx4 v[{PK+4*i}:{PK+4*i+3}], v17, s[{SC}:{SC+3}], s46 offen offset:{i*128}", ("S", T)))
        else:
            ops.append(("ds", f"ds_write_b128 v17, v[{PK}:{PK+3}]", ("QW", T)))
            ops.append(("ds", f"ds_write_b128 v18, v[{PK+4}:{PK+7}]", ("QW", T)))
            ops.append(("waitlds", ("QW", T)))
            ops.append(("ds", f"ds_read_b128 v[232:235], v19", ("QR0", T)))
            ops.append(("ds", f"ds_read_b128 v[236:239], v19 offset:1024", ("QR1", T)))
            ops.append(("gap",))
            ops.append(f"s_add_u32 s46, s53, {T*16384}")
            ops.append(("waitlds", ("QR0", T)))
            ops.append(("vm", f"buffer_store_dwordx4 v[232:235], v20, s[{SC}:{SC+3}], s46 offen", ("S", T)))
            ops.append(f"s_add_u32 s46, s53, {T*16384 + 8192}")
            ops.append(("waitlds", ("QR1", T)))
            ops.append(("vm", f"buffer_store_dwordx4 v[236:239], v20, s[{SC}:{SC+3}], s46 offen", ("S", T)))
        return ops
    def emit(op):
        if isinstance(op, str): a(op)
        elif op[0] == "vm": a.mem(op[1], op[2])
        elif op[0] == "ds": a.ds(op[1], op[2])
        elif op[0] == "waitlds": a.wait_lds_if(op[1])
        elif op[0] == "gap": pass
    PD = 8
    def stream(tiles, pend):
        u0, u1 = tiles[0] * 16, (tiles[-1] + 1) * 16
        for u in range(u0, u0 + PD): fread(u)
        for u in range(u0, u1):
            T, st = divmod(u, 16)
            if st == 0 and u > u0:
                assert not pend
                pend = epi(T - 1)
            a.wait_lds_if(("F", u))
            mfma(u)
            if u + PD < u1: fread(u + PD)
            if st >= 5 and pend:
                k = -(-len(pend) // (16 - st))
                for op in pend[:k]: emit(op)
                pend = pend[k:]
        assert not pend
        return epi(tiles[-1])
    pend = stream([0, 1], [])
    for k in range(8): a(f"v_add_u32 v{VA+k}, 0xfffe0000, v{VA+k}")
    a.wait_vm("H")
    a("s_barrier")
    pend = stream([2, 3, 4], pend)
    a("s_nop 7"); a("s_nop 3")
    for op in pend: emit(op)
    a("s_endpgm")

def sort(a):
    POS, HIST, WSUM, RECA, RECB = 0, 65536, 70656, 71680, 112640
    D, SX, EA = 8, 13, 18
    RA, RB, BA, RK = 32, 52, 57, 62
    T0 = 70
    a.label("L1_sort")
    a(f"s_sub_u32 s50, s2, {WG_SORT0}")
    srd(a, SA, S_DST, 0, 640000)
    srd(a, SB, S_SRC, 0, 640000)
    srd(a, SC, S_EA, 0, 1280000)
    srd(a, SD, S_POS, 0, 60000)
    srd(a, SE, S_WS, 0, WS_USED)
    a("s_mul_i32 s51, s50, 10000")
    a("s_mul_i32 s52, s50, 20000")
    a("v_lshlrev_b32 v2, 2, v0")
    a("v_lshlrev_b32 v3, 3, v0")
    for i in range(5):
        a(f"s_add_u32 s46, s51, {i*2048}")
        a(f"buffer_load_dword v{D+i}, v2, s[{SA}:{SA+3}], s46 offen")
    for i in range(5):
        a(f"s_add_u32 s46, s51, {i*2048}")
        a(f"buffer_load_dword v{SX+i}, v2, s[{SB}:{SB+3}], s46 offen")
    a("v_lshlrev_b32 v4, 4, v1")
    for j in range(8):
        a(f"s_lshl_b32 s44, s{S_WAVE}, 10")
        a(f"s_add_u32 s44, s44, {j*8192}")
        a(f"s_mov_b32 m0, s44")
        a("s_nop 0")
        a(f"buffer_load_dwordx4 v4, s[{SD}:{SD+3}], s44 offen lds")
    for i in range(5):
        a(f"s_add_u32 s46, s52, {i*4096}")
        a(f"buffer_load_dwordx2 v[{EA+2*i}:{EA+2*i+1}], v3, s[{SC}:{SC+3}], s46 offen")
    for k in range(4): a(f"v_mov_b32 v{T0+k}, 0")
    a("v_lshlrev_b32 v5, 4, v0")
    a(f"v_add_u32 v5, {HIST}, v5")
    a(f"s_cmp_ge_u32 s{S_WAVE}, 5")
    a("s_cbranch_scc1 L1_sort_z")
    a(f"ds_write_b128 v5, v[{T0}:{T0+3}]")
    a.label("L1_sort_z")
    a("v_mov_b32 v6, 1")
    a("s_waitcnt vmcnt(0) lgkmcnt(0)")
    a("s_barrier")
    a("s_movk_i32 s44, 452")
    a("v_cmp_gt_u32 s[54:55], s44, v0")
    for i in range(5):
        if i == 4: a("s_mov_b64 exec, s[54:55]")
        a(f"v_lshrrev_b32 v{T0}, 3, v{D+i}")
        a(f"v_lshlrev_b32 v{BA+i}, 2, v{T0}")
        a(f"v_add_u32 v{BA+i}, {HIST}, v{BA+i}")
        a(f"ds_add_rtn_u32 v{RK+i}, v{BA+i}, v6")
    a("s_mov_b64 exec, -1")
    a(f"s_mov_b32 s47, 0xffff0000")
    for i in range(5):
        t = T0
        PD_, PS_ = t, t + 2
        for (P, X) in ((PD_, D + i), (PS_, SX + i)):
            a(f"v_mul_u32_u24 v{t+4}, 6, v{X}")
            a(f"v_and_b32 v{t+4}, -4, v{t+4}")
            a(f"ds_read2_b32 v[{P}:{P+1}], v{t+4} offset0:0 offset1:1")
        a(f"v_and_b32 v{t+5}, 7, v{D+i}")
        a(f"v_lshl_or_b32 v{RB+i}, v{t+5}, 14, v{SX+i}")
        a(f"v_lshrrev_b32 v{t+5}, 3, v{D+i}")
        a(f"v_lshl_or_b32 v{RB+i}, v{t+5}, 17, v{RB+i}")
        a(f"v_and_b32 v{t+6}, 1, v{D+i}")
        a(f"v_lshlrev_b32 v{t+6}, 4, v{t+6}")
        a(f"v_and_b32 v{t+7}, 1, v{SX+i}")
        a(f"v_lshlrev_b32 v{t+7}, 4, v{t+7}")
        a("s_waitcnt lgkmcnt(0)")
        for (P, sh) in ((PD_, t + 6), (PS_, t + 7)):
            a(f"v_alignbit_b32 v{P}, v{P+1}, v{P}, v{sh}")
            a(f"v_lshrrev_b32 v{P+1}, v{sh}, v{P+1}")
        a(f"v_lshlrev_b32 v{t+8}, 16, v{PD_}")
        a(f"v_lshlrev_b32 v{t+9}, 16, v{PS_}")
        a(f"v_sub_f32 v{t+8}, v{t+8}, v{t+9}")
        a(f"v_and_b32 v{t+9}, s47, v{PD_}")
        a(f"v_and_b32 v{t+10}, s47, v{PS_}")
        a(f"v_sub_f32 v{t+9}, v{t+9}, v{t+10}")
        a(f"v_lshlrev_b32 v{t+10}, 16, v{PD_+1}")
        a(f"v_lshlrev_b32 v{t+11}, 16, v{PS_+1}")
        a(f"v_sub_f32 v{t+10}, v{t+10}, v{t+11}")
        a(f"v_mov_b32 v{t+11}, 0")
        a(f"v_cvt_pk_bf16_f32 v{t+12}, v{t+8}, v{t+9}")
        a(f"v_cvt_pk_bf16_f32 v{t+13}, v{t+10}, v{t+11}")
        a(f"v_lshlrev_b32 v{t+8}, 16, v{t+12}")
        a(f"v_and_b32 v{t+9}, s47, v{t+12}")
        a(f"v_lshlrev_b32 v{t+10}, 16, v{t+13}")
        a(f"v_mul_f32 v{t+8}, v{t+8}, v{t+8}")
        a(f"v_mul_f32 v{t+9}, v{t+9}, v{t+9}")
        a(f"v_mul_f32 v{t+10}, v{t+10}, v{t+10}")
        a(f"v_cvt_pk_bf16_f32 v{t+14}, v{t+8}, v{t+9}")
        a(f"v_cvt_pk_bf16_f32 v{t+15}, v{t+10}, v{t+11}")
        a(f"v_lshlrev_b32 v{t+8}, 16, v{t+14}")
        a(f"v_and_b32 v{t+9}, s47, v{t+14}")
        a(f"v_lshlrev_b32 v{t+10}, 16, v{t+15}")
        a(f"v_add_f32 v{t+8}, v{t+8}, v{t+9}")
        a(f"v_add_f32 v{t+8}, v{t+8}, v{t+10}")
        a(f"v_cvt_pk_bf16_f32 v{t+8}, v{t+8}, v{t+11}")
        r = RA + 4 * i
        a(f"v_lshl_or_b32 v{r}, v{EA+2*i}, 16, v{t+8}")
        a(f"v_alignbit_b32 v{r+1}, v{EA+2*i+1}, v{EA+2*i}, 16")
        a(f"v_alignbit_b32 v{r+2}, v{t+12}, v{EA+2*i+1}, 16")
        a(f"v_alignbit_b32 v{r+3}, v{t+13}, v{t+12}, 16")
    a("s_waitcnt lgkmcnt(0)")
    a("s_barrier")
    t = T0
    a(f"s_cmp_ge_u32 s{S_WAVE}, 5")
    a("s_cbranch_scc1 L1_sort_s1")
    a(f"ds_read_b128 v[{t}:{t+3}], v5")
    a("s_waitcnt lgkmcnt(0)")
    a(f"v_add_u32 v{t+5}, v{t}, v{t+1}")
    a(f"v_add_u32 v{t+6}, v{t+5}, v{t+2}")
    a(f"v_add_u32 v{t+7}, v{t+6}, v{t+3}")
    a(f"v_mov_b32 v{t+8}, v{t+7}")
    for sh in (1, 2, 4, 8):
        a("s_nop 1")
        a(f"v_add_u32_dpp v{t+8}, v{t+8}, v{t+8} row_shr:{sh} row_mask:0xf bank_mask:0xf")
    a("s_nop 1")
    a(f"v_add_u32_dpp v{t+8}, v{t+8}, v{t+8} row_bcast:15 row_mask:0xa bank_mask:0xf")
    a("s_nop 1")
    a(f"v_add_u32_dpp v{t+8}, v{t+8}, v{t+8} row_bcast:31 row_mask:0xc bank_mask:0xf")
    a(f"s_lshl_b32 s44, s{S_WAVE}, 2")
    a(f"s_add_u32 s44, s44, {WSUM}")
    a(f"v_mov_b32 v{t+9}, s44")
    a("s_mov_b32 exec_lo, 0")
    a("s_mov_b32 exec_hi, 0x80000000")
    a(f"ds_write_b32 v{t+9}, v{t+8}")
    a("s_mov_b64 exec, -1")
    a.label("L1_sort_s1")
    a("s_waitcnt lgkmcnt(0)")
    a("s_barrier")
    a(f"s_cmp_ge_u32 s{S_WAVE}, 5")
    a("s_cbranch_scc1 L1_sort_s2")
    a(f"v_mov_b32 v{t+9}, {WSUM}")
    a(f"ds_read_b128 v[{t+10}:{t+13}], v{t+9}")
    a(f"v_sub_u32 v{t+8}, v{t+8}, v{t+7}")
    a("s_waitcnt lgkmcnt(0)")
    for k in range(4):
        a(f"v_readfirstlane_b32 s{56+k}, v{t+10+k}")
    a("s_mov_b32 s44, 0")
    for k in range(4):
        a(f"s_cmp_gt_u32 s{S_WAVE}, {k}")
        a(f"s_cselect_b32 s45, s{56+k}, 0")
        a("s_add_u32 s44, s44, s45")
    a(f"v_add_u32 v{t+8}, s44, v{t+8}")
    a(f"v_add_u32 v{t+9}, v{t+8}, v{t}")
    a(f"v_add_u32 v{t+10}, v{t+8}, v{t+5}")
    a(f"v_add_u32 v{t+11}, v{t+8}, v{t+6}")
    a(f"ds_write_b128 v5, v[{t+8}:{t+11}]")
    a(f"v_lshl_or_b32 v{t+12}, v{t+9}, 16, v{t+8}")
    a(f"v_lshl_or_b32 v{t+13}, v{t+11}, 16, v{t+10}")
    a(f"s_mul_i32 s44, s50, {TAB_STRIDE}")
    a(f"s_add_u32 s44, s44, {WS_TAB}")
    a(f"buffer_store_dwordx2 v[{t+12}:{t+13}], v3, s[{SE}:{SE+3}], s44 offen")
    a.label("L1_sort_s2")
    a("s_waitcnt lgkmcnt(0)")
    a("s_barrier")
    for i in range(5):
        if i == 4: a("s_mov_b64 exec, s[54:55]")
        a(f"ds_read_b32 v{t+i}, v{BA+i}")
    a("s_mov_b64 exec, -1")
    a("s_waitcnt lgkmcnt(0)")
    for i in range(5):
        if i == 4: a("s_mov_b64 exec, s[54:55]")
        a(f"v_add_u32 v{t+i}, v{t+i}, v{RK+i}")
        a(f"v_lshlrev_b32 v{t+5}, 4, v{t+i}")
        a(f"v_add_u32 v{t+5}, {RECA}, v{t+5}")
        a(f"ds_write_b128 v{t+5}, v[{RA+4*i}:{RA+4*i+3}]")
        a(f"v_lshlrev_b32 v{t+6}, 2, v{t+i}")
        a(f"v_add_u32 v{t+6}, {RECB}, v{t+6}")
        a(f"ds_write_b32 v{t+6}, v{RB+i}")
    a("s_mov_b64 exec, -1")
    a("s_waitcnt lgkmcnt(0)")
    a("s_barrier")
    a("v_lshlrev_b32 v4, 4, v0")
    a(f"v_add_u32 v5, {RECA}, v4")
    for i in range(5):
        a(f"ds_read_b128 v[{RA+4*i}:{RA+4*i+3}], v5 offset:{i*8192}")
    a(f"v_add_u32 v7, {RECB}, v4")
    a(f"ds_read_b128 v[{t}:{t+3}], v7")
    a(f"ds_read_b128 v[{t+4}:{t+7}], v7 offset:8192")
    a(f"s_mul_i32 s44, s50, {CH_STRIDE*16}")
    a(f"s_add_u32 s44, s44, {WS_RECA}")
    a(f"s_mul_i32 s45, s50, {CH_STRIDE*4}")
    a(f"s_add_u32 s45, s45, {WS_RECB}")
    a("s_waitcnt lgkmcnt(0)")
    for i in range(5):
        a(f"buffer_store_dwordx4 v[{RA+4*i}:{RA+4*i+3}], v4, s[{SE}:{SE+3}], s44 offen")
        a("s_add_u32 s44, s44, 8192")
    a(f"buffer_store_dwordx4 v[{t}:{t+3}], v4, s[{SE}:{SE+3}], s45 offen")
    a(f"s_cmp_ge_u32 s{S_WAVE}, 2")
    a("s_cbranch_scc1 L1_sort_end")
    a("s_add_u32 s45, s45, 8192")
    a(f"buffer_store_dwordx4 v[{t+4}:{t+7}], v4, s[{SE}:{SE+3}], s45 offen")
    a.label("L1_sort_end")
    a("s_endpgm")

def pack0(a):
    a.label("L1_pack0")
    srd(a, SA, S_WH, 131072, 131072)
    srd(a, SC, S_WS, WS_WHP, 131072)
    w_dma(a, SA)
    a("v_lshrrev_b32 v5, 4, v1")
    a("v_and_b32 v6, 1, v5")
    a("v_lshlrev_b32 v6, 4, v6")
    a("v_lshrrev_b32 v7, 1, v5")
    a("v_lshl_add_u32 v6, v7, 2, v6")
    a("v_bfe_u32 v7, v1, 2, 2")
    a("v_add_u32 v6, v6, v7")
    a("v_lshlrev_b32 v6, 6, v6")
    a("v_and_b32 v7, 3, v1")
    a("v_lshl_add_u32 v6, v7, 4, v6")
    a(f"s_lshl_b32 s45, s{S_WAVE}, 14")
    a("v_add_u32 v5, s45, v6")
    a("v_lshlrev_b32 v8, 4, v1")
    a.wait_vm("W")
    for cb in range(2):
        for ks in range(8):
            q = 64 + 4 * (cb * 8 + ks)
            for i in range(2):
                a(f"ds_read_b64_tr_b16 v[{q+2*i}:{q+2*i+1}], v5 offset:{ks*2048 + i*512 + cb*8}")
            if ks % 4 == 3: a("s_waitcnt lgkmcnt(0)")
    for cb in range(2):
        for ks in range(8):
            q = 64 + 4 * (cb * 8 + ks)
            a(f"s_add_u32 s46, s45, {(cb*8+ks)*1024}")
            a(f"buffer_store_dwordx4 v[{q}:{q+3}], v8, s[{SC}:{SC+3}], s46 offen")
    a("s_endpgm")

def pack1(a):
    a.label("L1_pack1")
    srd(a, SA, S_WE, 0, 517 * 512)
    srd(a, SB, S_WX, 0, 512)
    srd(a, SE, S_WS, 0, WS_USED)
    a(f"s_cmp_ge_u32 s{S_WAVE}, 4")
    a("s_cbranch_scc1 L1_pack1_b")
    a("v_lshlrev_b32 v2, 1, v0")
    a("s_mov_b32 s44, 0x40000")
    for k in range(5):
        a(f"buffer_load_ushort v{8+k}, v2, s[{SA}:{SA+3}], s44 offen offset:{k*512}")
    a(f"s_mov_b32 s48, {NLOG2E:#x}")
    a("s_waitcnt vmcnt(0)")
    for k in range(5):
        a(f"v_lshlrev_b32 v{8+k}, 16, v{8+k}")
        a(f"v_mul_f32 v{8+k}, s48, v{8+k}")
    a("v_mov_b32 v13, 0")
    a("v_cvt_pk_bf16_f32 v16, v8, v9")
    a("v_cvt_pk_bf16_f32 v17, v10, v11")
    a("v_cvt_pk_bf16_f32 v18, v12, v13")
    a("v_mov_b32 v19, 0")
    a("v_lshlrev_b32 v3, 4, v0")
    a(f"s_mov_b32 s44, {WS_WX}")
    a(f"buffer_store_dwordx4 v[16:19], v3, s[{SE}:{SE+3}], s44 offen")
    a("s_endpgm")
    a.label("L1_pack1_b")
    a(f"s_cmp_gt_u32 s{S_WAVE}, 4")
    a("s_cbranch_scc1 L1_exit")
    a("v_lshrrev_b32 v2, 2, v1")
    a("v_lshlrev_b32 v2, 5, v2")
    a("v_bfe_u32 v3, v1, 1, 1")
    a("v_lshl_add_u32 v2, v3, 4, v2")
    a("v_and_b32 v3, 1, v1")
    a("v_lshl_add_u32 v2, v3, 2, v2")
    a("v_lshlrev_b32 v2, 1, v2")
    a(f"buffer_load_dwordx2 v[8:9], v2, s[{SB}:{SB+3}], 0 offen")
    a(f"buffer_load_dwordx2 v[10:11], v2, s[{SB}:{SB+3}], 0 offen offset:16")
    a("v_lshlrev_b32 v3, 4, v1")
    a(f"s_mov_b32 s44, {WS_WXP}")
    a("s_mov_b32 exec_hi, 0")
    a("s_waitcnt vmcnt(0)")
    a(f"buffer_store_dwordx4 v[8:11], v3, s[{SE}:{SE+3}], s44 offen")
    a("s_endpgm")

def build():
    a = Asm()
    a(".text"); a(f".globl {NAME}"); a(".p2align 8"); a(f".type {NAME},@function")
    a.label(NAME)
    a(f"s_cmp_ge_u32 s2, {GRID1}")
    a("s_cbranch_scc1 L1_exit")
    a("s_load_dwordx4 s[4:7], s[0:1], 0")
    a("s_load_dwordx4 s[8:11], s[0:1], 16")
    a("s_load_dwordx4 s[12:15], s[0:1], 32")
    a("s_load_dwordx4 s[16:19], s[0:1], 48")
    a("s_load_dwordx2 s[20:21], s[0:1], 80")
    a("v_and_b32 v1, 63, v0")
    a("v_lshrrev_b32 v2, 6, v0")
    a("s_nop 0")
    a(f"v_readfirstlane_b32 s{S_WAVE}, v2")
    a("s_mul_hi_u32 s50, s2, 0x55555556")
    a("s_mul_i32 s44, s50, 3")
    a("s_sub_u32 s49, s2, s44")
    a("s_waitcnt lgkmcnt(0)")
    a(f"s_cmp_ge_u32 s2, {WG_PACK0+1}")
    a("s_cbranch_scc1 L1_pack1")
    a(f"s_cmp_ge_u32 s2, {WG_PACK0}")
    a("s_cbranch_scc1 L1_pack0")
    a(f"s_cmp_ge_u32 s2, {WG_SORT0}")
    a("s_cbranch_scc1 L1_sort")
    a("s_cmp_eq_u32 s49, 1")
    a("s_cbranch_scc1 L1_gemm_Q")
    a("s_cmp_eq_u32 s49, 2")
    a("s_cbranch_scc1 L1_gemm_R")
    for mat in range(3):
        a.lds = []; a.vm = []
        gemm(a, mat)
    a.lds = []; a.vm = []
    sort(a)
    a.lds = []; a.vm = []
    pack0(a)
    a.lds = []; a.vm = []
    pack1(a)
    a.label("L1_exit")
    a("s_endpgm")
    return a.text() + kernel_desc(NAME, 248, 64)

if __name__ == "__main__":
    t = build()
    for p in check_hazards(t): print(p)
    open("k1.s", "w").write(t)
```

```python
from asmlib import *
from common import *

NAME = "egnn_edge_kernel"
GRID2 = 250
CAP = 27
TILE = 2560
L_TILES = 0
L_SRC = CAP * TILE
L_STAGE = L_SRC + 32 * 128
L_S = L_STAGE + 65536
S_ROW = 544
L_T = L_S + 40 * S_ROW
L_REL = L_T + 640
L_NG = L_REL + 1280
L_TB = L_NG + 32
LDS2 = 162816

S_H, S_POS, S_OUT, S_WS, S_WAVE = 4, 6, 8, 10, 12
SWS, SQ, SH, SO, SP, SPO = 16, 20, 24, 28, 32, 36
S_T, S_N, S_TG0, S_NT, S_WIN, S_WLIM, S_TG = 48, 49, 50, 51, 52, 53, 47
ZB, FB = 54, 59
S_STG, S_M8, S_G5, S_IB = 64, 66, 68, 69
S_MK = 70
S_FIRST = 78

Z = (16, 32); E = 48; ACC = 64; M = 80; A0 = 88; A1 = 92; A2 = 96; BP = 100
I0 = 108; I1 = 112; B2 = 116; B2Q = 120; WXA = 136; WH = 144
ONE2 = 208; SR = 210; DV = 212
vA0, vA1, vA2, vB0, vB1, vSR, vLC, vS, vT = 214, 215, 216, 217, 218, 219, 220, 221, 222
vOS, vSL = 223, 224
cA2, cB0, cB1 = 225, 226, 227
NV = 228

def zero_fill(a):
    for k in range(4): a(f"v_mov_b32 v{36+k}, 0")
    a("v_lshlrev_b32 v40, 4, v0")
    a("v_add_u32 v41, 0x10000, v40")
    for k in range(8): a(f"ds_write_b128 v40, v[36:39] offset:{k*8192}")
    a("ds_write_b128 v41, v[36:39]")

def mf32(d, x, y, c): return f"v_mfma_f32_32x32x16_bf16 v[{d}:{d+15}], v[{x}:{x+3}], v[{y}:{y+3}], {c}"
def z_mfmas(zn):
    return [mf32(zn, A0, I0, "0"), mf32(zn, A1, I1, f"v[{zn}:{zn+15}]"), mf32(zn, A2, B2, f"v[{zn}:{zn+15}]")]

def dma(a, slot):
    a(f"v_add_u32 v{DV}, v{SR}, v{vLC}")
    a(f"v_add_u32 v{DV+1}, v{SR+1}, v{vLC}")
    a(f"s_add_u32 m0, s{S_STG}, {slot*2048}")
    a("s_nop 0")
    a(f"buffer_load_dwordx4 v{DV}, s[{SQ}:{SQ+3}], 0 offen lds")
    a(f"s_add_u32 m0, s{S_STG}, {slot*2048+1024}")
    a("s_nop 0")
    a(f"buffer_load_dwordx4 v{DV+1}, s[{SQ}:{SQ+3}], 0 offen lds")

def flush(a, tmp):
    for q in range(8): a(f"v_cvt_pk_bf16_f32 v{M+q}, v{ACC+2*q}, v{ACC+2*q+1}")
    a(f"s_mov_b64 exec, s[{S_M8}:{S_M8+1}]")
    a(f"ds_write_b128 v{vS}, v[{M}:{M+3}]")
    a(f"ds_write_b128 v{vS}, v[{M+4}:{M+7}] offset:16")
    a("s_mov_b64 exec, -1")
    a(mf32(tmp, WXA, M, "0"))
    a(mf32(tmp, WXA + 4, M + 4, f"v[{tmp}:{tmp+15}]"))
    for q in range(16): a(f"v_mov_b32 v{ACC+q}, 0")
    a(f"v_add_u32 v{vS}, {8*S_ROW}, v{vS}")
    a("s_mov_b32 exec_hi, 0")
    a(f"ds_add_f32 v{vT}, v{tmp}")
    a("s_mov_b64 exec, -1")
    a(f"v_add_u32 v{vT}, 128, v{vT}")

def rotate_b2(a):
    for q in range(4): a(f"v_mov_b32 v{B2+q}, v{B2Q+q}")
    for q in range(12): a(f"v_mov_b32 v{B2Q+q}, v{B2Q+4+q}")

def shift_q(a, base):
    for k in range(4): a(f"s_mov_b32 s{base+k}, s{base+k+1}")

def rec_loads(a, lbl):
    for it in range(4):
        a(f"s_add_u32 s40, s{S_IB}, s{S_WAVE}")
        if it: a(f"s_add_u32 s40, s40, {8*it}")
        a(f"v_cmp_lt_u32 s[{S_MK+2*it}:{S_MK+2*it+1}], s40, v{vSL}")
        a(f"v_add_u32 v36, s40, v{vOS}")
        a(f"v_lshlrev_b32 v37, 4, v36")
        a(f"v_add_u32 v37, v37, v42")
        a(f"v_lshlrev_b32 v38, 2, v36")
        a(f"v_add_u32 v38, v38, v43")
        a(f"s_and_b64 exec, exec, s[{S_MK+2*it}:{S_MK+2*it+1}]")
        a(f"s_cbranch_execz {lbl}_{it}")
        a(f"buffer_load_dwordx4 v[{16+4*it}:{19+4*it}], v37, s[{SWS}:{SWS+3}], s79 offen")
        a(f"buffer_load_dword v{32+it}, v38, s[{SWS}:{SWS+3}], s80 offen")
        a.label(f"{lbl}_{it}")
        a("s_mov_b64 exec, -1")

def rec_consts(a):
    a("s_mov_b32 s40, 40960")
    a("v_mul_lo_u32 v42, s40, v1")
    a("s_movk_i32 s40, 10240")
    a("v_mul_lo_u32 v43, s40, v1")
    a(f"s_mov_b32 s79, {WS_RECA}")
    a(f"s_mov_b32 s80, {WS_RECB}")

def build_recs(a, lbl):
    a("s_waitcnt vmcnt(0)")
    a("v_mov_b32 v58, 0x3f80")
    for it in range(4):
        RA, RB = 16 + 4 * it, 32 + it
        a(f"s_mov_b64 exec, s[{S_MK+2*it}:{S_MK+2*it+1}]")
        a(f"s_cbranch_execz {lbl}_{it}")
        a(f"v_lshrrev_b32 v44, 17, v{RB}")
        a(f"v_subrev_u32 v44, s{S_G5}, v44")
        a(f"v_lshlrev_b32 v45, 8, v44")
        a(f"v_lshl_add_u32 v45, v1, 2, v45")
        a(f"v_add_u32 v45, {L_REL}, v45")
        a(f"ds_read_b32 v46, v45")
        a(f"v_lshl_add_u32 v47, v44, 2, v59")
        a(f"ds_read_b32 v48, v47")
        a(f"s_add_u32 s40, s{S_IB}, s{S_WAVE}")
        if it: a(f"s_add_u32 s40, s40, {8*it}")
        a(f"s_sub_u32 s40, s40, s{S_WIN}")
        a(f"v_add_u32 v49, s40, v{vOS}")
        a(f"s_movk_i32 s41, {CAP*32}")
        a("s_waitcnt lgkmcnt(0)")
        a("v_add3_u32 v49, v49, v46, v48")
        a("v_cmp_gt_u32 vcc, s41, v49")
        a("s_and_b64 exec, exec, vcc")
        a(f"s_cbranch_execz {lbl}_{it}")
        a(f"v_and_b32 v50, 0x3fff, v{RB}")
        a("v_lshlrev_b32 v50, 9, v50")
        a("v_add_u32 v50, 512, v50")
        a("v_lshlrev_b32 v51, 2, v49")
        a(f"v_add_u32 v51, {L_SRC}, v51")
        a("ds_write_b32 v51, v50")
        a("v_lshrrev_b32 v52, 5, v49")
        a(f"v_mul_u32_u24 v52, {TILE}, v52")
        a("v_and_b32 v53, 31, v49")
        a("v_lshl_add_u32 v54, v53, 4, v52")
        a(f"ds_write_b128 v54, v[{RA}:{RA+3}] offset:2048")
        a("v_lshl_add_u32 v52, v53, 6, v52")
        a(f"v_bfe_u32 v54, v{RB}, 14, 3")
        a("v_lshl_add_u32 v52, v54, 1, v52")
        a("v_bfe_u32 v53, v53, 2, 2")
        a("v_lshl_add_u32 v54, v53, 4, v52")
        a("ds_write_b16 v54, v58")
        a("v_xor_b32 v55, 1, v53")
        a("v_lshl_add_u32 v55, v55, 4, v52")
        a(f"ds_write_b16_d16_hi v55, v{RA+2}")
        a("v_xor_b32 v56, 2, v53")
        a("v_lshl_add_u32 v56, v56, 4, v52")
        a(f"ds_write_b16 v56, v{RA+3}")
        a("v_xor_b32 v57, 3, v53")
        a("v_lshl_add_u32 v57, v57, 4, v52")
        a(f"ds_write_b16_d16_hi v57, v{RA+3}")
        a.label(f"{lbl}_{it}")
    a("s_mov_b64 exec, -1")

def iteration(a, u):
    zc, zn = Z[u & 1], Z[(u + 1) & 1]
    sl = (u + 1) % 4
    if u < 3:
        a(f"s_cmp_lt_u32 s{S_T}, s{S_WLIM}")
        a(f"s_cbranch_scc0 L2_w6_{u}")
        a("s_waitcnt vmcnt(22)")
        a(f"s_branch L2_wd_{u}")
        a.label(f"L2_w6_{u}")
        a("s_waitcnt vmcnt(6)")
        a.label(f"L2_wd_{u}")
    else:
        a("s_waitcnt vmcnt(6)")
    a(f"ds_read_b128 v[{A0}:{A0+3}], v{vA0} offset:{sl*2048}")
    a(f"ds_read_b128 v[{A1}:{A1+3}], v{vA1} offset:{sl*2048}")
    a(f"ds_read_b128 v[{A2}:{A2+3}], v{vA2} offset:{(u+1)*TILE}")
    a(f"ds_read_b64_tr_b16 v[{BP}:{BP+1}], v{vB0} offset:{u*TILE}")
    a(f"ds_read_b64_tr_b16 v[{BP+2}:{BP+3}], v{vB1} offset:{u*TILE}")
    a(f"ds_read_b64_tr_b16 v[{BP+4}:{BP+5}], v{vB0} offset:{u*TILE+1024}")
    a(f"ds_read_b64_tr_b16 v[{BP+6}:{BP+7}], v{vB1} offset:{u*TILE+1024}")
    a(f"ds_read2_b32 v[{SR}:{SR+1}], v{vSR} offset0:{u*32} offset1:{u*32+16}")
    for k in range(8): a(f"v_exp_f32 v{E+k}, v{zc+k}")
    a("s_waitcnt lgkmcnt(0)")
    a(f"s_cmp_eq_u32 s{S_TG}, s{FB}")
    a(f"s_cbranch_scc0 L2_nf_{u}")
    flush(a, zn)
    shift_q(a, FB)
    a.label(f"L2_nf_{u}")
    dma(a, sl)
    a(f"s_add_u32 s{S_TG}, s{S_TG}, 1")
    a(f"s_cmp_eq_u32 s{S_TG}, s{ZB}")
    a(f"s_cbranch_scc0 L2_nr_{u}")
    rotate_b2(a)
    shift_q(a, ZB)
    a.label(f"L2_nr_{u}")
    for k in range(8, 16): a(f"v_exp_f32 v{E+k}, v{zc+k}")
    for k in range(8): a(f"v_pk_add_f32 v[{E+2*k}:{E+2*k+1}], v[{E+2*k}:{E+2*k+1}], v[{ONE2}:{ONE2+1}]")
    zm = z_mfmas(zn)
    for k in range(16):
        if k in (0, 5, 10): a(zm[k // 5])
        a(f"v_rcp_f32 v{E+k}, v{E+k}")
    for k in range(8): a(f"v_pk_mul_f32 v[{E+2*k}:{E+2*k+1}], v[{E+2*k}:{E+2*k+1}], v[{zc+2*k}:{zc+2*k+1}]")
    for k in range(8): a(f"v_cvt_pk_bf16_f32 v{M+k}, v{E+2*k}, v{E+2*k+1}")
    a(f"s_add_u32 s{S_T}, s{S_T}, 1")
    a(mf32(ACC, M, BP, f"v[{ACC}:{ACC+15}]"))
    a(f"s_cmp_eq_u32 s{S_T}, s{S_N}")
    a(mf32(ACC, M + 4, BP + 4, f"v[{ACC}:{ACC+15}]"))
    a("s_cbranch_scc1 L2_win_end")

def build():
    a = Asm()
    a(".text"); a(f".globl {NAME}"); a(".p2align 8"); a(f".type {NAME},@function")
    a.label(NAME)
    a(f"s_cmp_ge_u32 s2, {GRID2}")
    a("s_cbranch_scc1 L2_exit")
    a("s_load_dwordx4 s[4:7], s[0:1], 0")
    a("s_load_dwordx2 s[8:9], s[0:1], 64")
    a("s_load_dwordx2 s[10:11], s[0:1], 80")
    a("v_and_b32 v1, 63, v0")
    a("v_lshrrev_b32 v2, 6, v0")
    a("s_mul_i32 s68, s2, 5")
    a(f"v_readfirstlane_b32 s{S_WAVE}, v2")
    a(f"v_mul_u32_u24 v2, {TAB_STRIDE}, v1")
    a("s_mul_i32 s40, s2, 10")
    a(f"s_add_u32 s40, s40, {WS_TAB}")
    a(f"s_lshl_b32 s41, s{S_WAVE}, 1")
    a("s_add_u32 s41, s41, s40")
    a("s_waitcnt lgkmcnt(0)")
    srd(a, SWS, S_WS, 0, WS_USED)
    a(f"buffer_load_ushort v{vOS}, v2, s[{SWS}:{SWS+3}], s40 offen")
    a(f"buffer_load_ushort v{vSL}, v2, s[{SWS}:{SWS+3}], s40 offen offset:10")
    a(f"buffer_load_ushort v60, v2, s[{SWS}:{SWS+3}], s41 offen")
    a(f"buffer_load_ushort v61, v2, s[{SWS}:{SWS+3}], s41 offen offset:2")
    srd(a, SQ, S_WS, WS_Q, MAT_BYTES)
    srd(a, SH, S_H, 0, MAT_BYTES)
    srd(a, SO, S_OUT, 0, MAT_BYTES)
    srd(a, SP, S_POS, 0, 60000)
    srd(a, SPO, S_OUT, MAT_BYTES, 60000)
    a("v_and_b32 v3, 31, v1")
    a("v_lshrrev_b32 v4, 5, v1")
    a(f"s_lshl_b32 s42, s{S_WAVE}, 9")
    a("v_lshlrev_b32 v5, 4, v3")
    a("v_add_u32 v5, s42, v5")
    a(f"s_lshl_b32 s43, s{S_G5}, 12")
    a(f"s_add_u32 s43, s43, {WS_P}")
    a(f"s_sub_u32 s43, s43, {WS_WX}")
    a("v_mul_lo_u32 v6, s43, v4")
    a("v_add_u32 v5, v5, v6")
    a(f"v_add_u32 v5, {WS_WX}, v5")
    a("v_lshlrev_b32 v6, 12, v4")
    for g in range(5):
        d = B2 if g == 0 else B2Q + 4 * (g - 1)
        a(f"buffer_load_dwordx4 v[{d}:{d+3}], v5, s[{SWS}:{SWS+3}], 0 offen")
        if g < 4: a("v_add_u32 v5, v5, v6")
    a(f"s_lshl_b32 s42, s{S_WAVE}, 6")
    a(f"s_add_u32 s42, s42, {WS_WXP}")
    a("v_lshlrev_b32 v7, 4, v4")
    a(f"buffer_load_dwordx4 v[{WXA}:{WXA+3}], v7, s[{SWS}:{SWS+3}], s42 offen")
    a(f"buffer_load_dwordx4 v[{WXA+4}:{WXA+7}], v7, s[{SWS}:{SWS+3}], s42 offen offset:32")
    zero_fill(a)
    a(f"v_add_u32 v41, {L_T}, v40")
    a("s_movk_i32 s42, 40")
    a("v_cmp_gt_u32 vcc, s42, v0")
    a("s_and_b64 exec, exec, vcc")
    a("s_cbranch_execz L2_tz")
    a("ds_write_b128 v41, v[36:39]")
    a.label("L2_tz")
    a("s_mov_b64 exec, -1")
    a(f"v_mov_b32 v{ONE2}, 1.0")
    a(f"v_mov_b32 v{ONE2+1}, 1.0")
    for q in range(16): a(f"v_mov_b32 v{ACC+q}, 0")
    a(f"s_mov_b32 s{S_M8}, 0xff")
    a(f"s_mov_b32 s{S_M8+1}, 0xff")
    a(f"s_lshl_b32 s{S_STG}, s{S_WAVE}, 13")
    a(f"s_add_u32 s{S_STG}, s{S_STG}, {L_STAGE}")
    a("v_lshlrev_b32 v5, 3, v4")
    a("v_sub_u32 v5, v3, v5")
    a("v_mov_b32 v8, 0x3f80")
    a("v_mov_b32 v9, 0x3f800000")
    for st, I in enumerate((I0, I1)):
        if st: a("v_add_u32 v5, -16, v5")
        a("v_and_b32 v6, 1, v5")
        a("v_cmp_eq_u32 vcc, 1, v6")
        a("v_lshrrev_b32 v7, 1, v5")
        a("s_nop 0")
        a("v_cndmask_b32 v6, v8, v9, vcc")
        for q in range(4):
            a(f"v_cmp_eq_u32 vcc, {q}, v7")
            a("s_nop 1")
            a(f"v_cndmask_b32 v{I+q}, 0, v6, vcc")
    a("v_bfe_u32 v5, v3, 2, 2")
    a("v_xor_b32 v6, v4, v5")
    a("v_lshlrev_b32 v7, 6, v3")
    a(f"v_add_u32 v7, s{S_STG}, v7")
    a(f"v_lshl_add_u32 v{vA0}, v6, 4, v7")
    a("v_xor_b32 v6, 2, v6")
    a(f"v_lshl_add_u32 v{vA1}, v6, 4, v7")
    a("v_lshlrev_b32 v6, 4, v3")
    a("v_add_u32 v6, 2048, v6")
    a("v_lshlrev_b32 v7, 6, v3")
    a("v_lshl_add_u32 v7, v5, 4, v7")
    a("v_cmp_eq_u32 vcc, 1, v4")
    a("s_nop 1")
    a(f"v_cndmask_b32 v{cA2}, v6, v7, vcc")
    a("v_bfe_u32 v5, v1, 2, 2")
    a("v_lshl_add_u32 v5, v4, 2, v5")
    a("v_lshlrev_b32 v5, 6, v5")
    a("v_and_b32 v6, 1, v1")
    a("v_lshl_add_u32 v5, v6, 3, v5")
    a("v_bfe_u32 v6, v1, 4, 1")
    a("v_lshlrev_b32 v6, 1, v6")
    a("v_bfe_u32 v7, v1, 1, 1")
    a("v_or_b32 v6, v6, v7")
    a("v_xor_b32 v6, v6, v4")
    a(f"v_lshl_add_u32 v{cB0}, v6, 4, v5")
    a("v_xor_b32 v6, 2, v6")
    a("v_lshl_add_u32 v7, v6, 4, v5")
    a(f"v_add_u32 v{cB1}, 512, v7")
    a("v_and_b32 v5, 3, v1")
    a("v_bfe_u32 v6, v1, 4, 2")
    a("v_xor_b32 v5, v5, v6")
    a("v_lshlrev_b32 v5, 4, v5")
    a(f"s_lshl_b32 s42, s{S_WAVE}, 6")
    a("s_sub_u32 s42, s42, 512")
    a(f"v_add_u32 v{vLC}, s42, v5")
    a("v_and_b32 v5, 7, v1")
    a(f"v_mul_u32_u24 v5, {S_ROW}, v5")
    a("v_lshl_add_u32 v5, v4, 5, v5")
    a(f"s_lshl_b32 s42, s{S_WAVE}, 6")
    a(f"s_add_u32 s42, s42, {L_S}")
    a(f"v_add_u32 v{vS}, s42, v5")
    a("v_lshlrev_b32 v5, 2, v3")
    a(f"v_add_u32 v{vT}, {L_T}, v5")
    a("s_waitcnt vmcnt(7)")
    a(f"v_sub_u32 v{vSL}, v{vSL}, v{vOS}")
    a(f"s_mov_b32 s{S_IB}, 0")
    a(f"s_mov_b32 s{S_WIN}, 0")
    a(f"s_mov_b32 s{S_TG0}, 0")
    a(f"s_mov_b32 s{S_FIRST}, 1")
    rec_consts(a)
    rec_loads(a, "L2_ld0")
    a(f"s_cmp_ge_u32 s{S_WAVE}, 5")
    a("s_cbranch_scc1 L2_noscan")
    a("v_sub_u32 v62, v61, v60")
    a("v_mov_b32 v63, v62")
    for sh in (1, 2, 4, 8):
        a("s_nop 1")
        a(f"v_add_u32_dpp v63, v63, v63 row_shr:{sh} row_mask:0xf bank_mask:0xf")
    a("s_nop 1")
    a("v_add_u32_dpp v63, v63, v63 row_bcast:15 row_mask:0xa bank_mask:0xf")
    a("s_nop 1")
    a("v_add_u32_dpp v63, v63, v63 row_bcast:31 row_mask:0xc bank_mask:0xf")
    a("v_sub_u32 v62, v63, v62")
    a("v_sub_u32 v62, v62, v60")
    a(f"s_lshl_b32 s42, s{S_WAVE}, 8")
    a(f"s_add_u32 s42, s42, {L_REL}")
    a("v_lshlrev_b32 v45, 2, v1")
    a("v_add_u32 v45, s42, v45")
    a("ds_write_b32 v45, v62")
    a(f"s_lshl_b32 s42, s{S_WAVE}, 2")
    a(f"s_add_u32 s42, s42, {L_NG}")
    a("v_mov_b32 v45, s42")
    a("s_mov_b32 exec_lo, 0")
    a("s_mov_b32 exec_hi, 0x80000000")
    a("ds_write_b32 v45, v63")
    a("s_mov_b64 exec, -1")
    a.label("L2_noscan")
    a.label("L2_round_bar")
    a("s_waitcnt lgkmcnt(0)")
    a("s_barrier")
    a(f"s_cmp_eq_u32 s{S_FIRST}, 0")
    a("s_cbranch_scc1 L2_have_tb")
    a("v_lshlrev_b32 v45, 2, v1")
    a(f"v_add_u32 v45, {L_NG}, v45")
    a("s_mov_b32 exec_lo, 0xff")
    a("s_mov_b32 exec_hi, 0")
    a("ds_read_b32 v46, v45")
    a("s_waitcnt lgkmcnt(0)")
    a("v_add_u32 v46, 31, v46")
    a("v_lshrrev_b32 v46, 5, v46")
    a("v_max_u32 v46, 1, v46")
    a("s_nop 0")
    for g in range(5): a(f"v_readlane_b32 s{40+g}, v46, {g}")
    a(f"s_mov_b32 s{ZB}, s40")
    a(f"s_add_u32 s{ZB+1}, s{ZB}, s41")
    a(f"s_add_u32 s{ZB+2}, s{ZB+1}, s42")
    a(f"s_add_u32 s{ZB+3}, s{ZB+2}, s43")
    a(f"s_add_u32 s{S_NT}, s{ZB+3}, s44")
    a(f"s_mov_b32 s{ZB+4}, 0x7fffffff")
    for k in range(5): a(f"s_mov_b32 s{FB+k}, s{ZB+k}")
    a("v_mov_b32 v46, 0")
    for g in range(1, 5):
        a(f"s_lshl_b32 s40, s{ZB+g-1}, 5")
        a(f"v_writelane_b32 v46, s40, {g}")
    a(f"s_lshl_b32 s40, s{S_WAVE}, 5")
    a(f"s_add_u32 s40, s40, {L_TB}")
    a("v_lshlrev_b32 v45, 2, v1")
    a("v_add_u32 v45, s40, v45")
    a("ds_write_b32 v45, v46")
    a("s_mov_b64 exec, -1")
    a.label("L2_have_tb")
    a(f"s_lshl_b32 s40, s{S_WAVE}, 5")
    a(f"s_add_u32 s40, s40, {L_TB}")
    a("v_mov_b32 v59, s40")
    a("s_waitcnt lgkmcnt(0)")
    build_recs(a, "L2_b0")
    a.label("L2_more")
    a(f"s_add_u32 s{S_IB}, s{S_IB}, 32")
    a(f"v_cmp_lt_u32 vcc, s{S_IB}, v{vSL}")
    a("s_cbranch_vccz L2_built")
    rec_loads(a, "L2_ld1")
    build_recs(a, "L2_b1")
    a("s_branch L2_more")
    a.label("L2_built")
    a("s_waitcnt lgkmcnt(0)")
    a("s_barrier")
    a(f"s_sub_u32 s{S_N}, s{S_NT}, s{S_TG0}")
    a(f"s_min_u32 s{S_N}, s{S_N}, {CAP}")
    a(f"s_mov_b32 s{S_T}, 0")
    a(f"s_mov_b32 s{S_TG}, s{S_TG0}")
    a(f"v_mov_b32 v{vA2}, v{cA2}")
    a(f"v_mov_b32 v{vB0}, v{cB0}")
    a(f"v_mov_b32 v{vB1}, v{cB1}")
    a("v_lshrrev_b32 v5, 2, v1")
    a("v_lshlrev_b32 v5, 2, v5")
    a(f"v_add_u32 v{vSR}, {L_SRC}, v5")
    for k in range(4):
        a(f"ds_read2_b32 v[{E+2*k}:{E+2*k+1}], v{vSR} offset0:{k*32} offset1:{k*32+16}")
    a(f"ds_read2_b32 v[{SR}:{SR+1}], v{vSR} offset0:128 offset1:144")
    a(f"v_add_u32 v{vSR}, 640, v{vSR}")
    a("s_waitcnt lgkmcnt(1)")
    for k in range(8):
        a(f"v_add_u32 v{E+k}, v{E+k}, v{vLC}")
        a(f"s_add_u32 m0, s{S_STG}, {k*1024}")
        a("s_nop 0")
        a(f"buffer_load_dwordx4 v{E+k}, s[{SQ}:{SQ+3}], 0 offen lds")
    a(f"s_cmp_eq_u32 s{S_FIRST}, 0")
    a("s_cbranch_scc1 L2_now")
    a("v_lshlrev_b32 v5, 4, v1")
    a(f"s_lshl_b32 s40, s{S_WAVE}, 14")
    a(f"s_add_u32 s40, s40, {WS_WHP}")
    for q in range(16):
        a(f"buffer_load_dwordx4 v[{WH+4*q}:{WH+4*q+3}], v5, s[{SWS}:{SWS+3}], s40 offen")
        a("s_add_u32 s40, s40, 1024")
    a(f"s_mov_b32 s{S_WLIM}, 3")
    a("s_waitcnt vmcnt(22)")
    a("s_branch L2_pro2")
    a.label("L2_now")
    a(f"s_mov_b32 s{S_WLIM}, 0")
    a("s_waitcnt vmcnt(6)")
    a.label("L2_pro2")
    a(f"s_mov_b32 s{S_FIRST}, 0")
    a(f"ds_read_b128 v[{A0}:{A0+3}], v{vA0}")
    a(f"ds_read_b128 v[{A1}:{A1+3}], v{vA1}")
    a(f"ds_read_b128 v[{A2}:{A2+3}], v{vA2}")
    a("s_waitcnt lgkmcnt(0)")
    dma(a, 0)
    for m in z_mfmas(Z[0]): a(m)
    a("s_nop 7")
    a("s_nop 3")
    a.label("L2_loop")
    for u in range(4): iteration(a, u)
    a(f"v_add_u32 v{vA2}, {4*TILE}, v{vA2}")
    a(f"v_add_u32 v{vB0}, {4*TILE}, v{vB0}")
    a(f"v_add_u32 v{vB1}, {4*TILE}, v{vB1}")
    a(f"v_add_u32 v{vSR}, 512, v{vSR}")
    a("s_branch L2_loop")
    a.label("L2_win_end")
    a(f"s_add_u32 s{S_TG0}, s{S_TG0}, s{S_N}")
    a(f"s_cmp_ge_u32 s{S_TG0}, s{S_NT}")
    a("s_cbranch_scc1 L2_final")
    a("s_waitcnt vmcnt(0) lgkmcnt(0)")
    a("s_barrier")
    a(f"s_lshl_b32 s{S_WIN}, s{S_TG0}, 5")
    a(f"s_mov_b32 s{S_IB}, 0")
    zero_fill(a)
    rec_consts(a)
    rec_loads(a, "L2_ld2")
    a("s_branch L2_round_bar")

    a.label("L2_final")
    RQ, HQ, O, BR = 88, 100, 16, 48
    a("v_and_b32 v3, 15, v1")
    a("v_lshrrev_b32 v4, 4, v1")
    a("v_lshrrev_b32 v5, 3, v3")
    a("v_lshlrev_b32 v5, 12, v5")
    a("v_and_b32 v6, 7, v3")
    a("v_lshl_add_u32 v5, v6, 4, v5")
    a("v_lshl_add_u32 v5, v4, 7, v5")
    a(f"s_lshl_b32 s40, s{S_WAVE}, 9")
    a("v_add_u32 v5, s40, v5")
    a(f"s_lshl_b32 s41, s{S_G5}, 12")
    a(f"s_add_u32 s41, s41, {WS_R}")
    a("v_lshlrev_b32 v6, 9, v3")
    a("v_lshl_add_u32 v6, v4, 4, v6")
    a(f"s_lshl_b32 s40, s{S_WAVE}, 6")
    a("v_add_u32 v6, s40, v6")
    a("s_mul_i32 s42, s2, 20480")
    for nb in range(3):
        a(f"buffer_load_dwordx4 v[{RQ+4*nb}:{RQ+4*nb+3}], v5, s[{SWS}:{SWS+3}], s41 offen")
        a("s_add_u32 s41, s41, 8192")
    for nb in range(3):
        a(f"s_add_u32 s43, s42, {nb*8192}")
        a(f"buffer_load_dwordx4 v[{HQ+4*nb}:{HQ+4*nb+3}], v6, s[{SH}:{SH+3}], s43 offen")
    a("v_lshlrev_b32 v7, 2, v1")
    a("s_mul_i32 s46, s2, 240")
    a(f"buffer_load_dword v8, v7, s[{SP}:{SP+3}], s46 offen")
    flush(a, Z[1])
    a(f"v_mul_u32_u24 v9, {S_ROW}, v3")
    a("v_lshl_add_u32 v9, v4, 4, v9")
    a(f"v_add_u32 v9, {L_S}, v9")
    a("s_waitcnt lgkmcnt(0)")
    a("s_barrier")
    a.lds = []
    seq = [(nb, ks) for nb in range(3) for ks in range(8)]
    def bread(i):
        nb, ks = seq[i]; q = BR + 4 * (i % 8)
        a.ds(f"ds_read_b128 v[{q}:{q+3}], v9 offset:{nb*16*S_ROW + ks*64}", ("B", i))
    for i in range(6): bread(i)
    for i, (nb, ks) in enumerate(seq):
        q = BR + 4 * (i % 8)
        a.wait_lds(("B", i))
        for cb in range(2):
            o = O + 8 * nb + 4 * cb; w = WH + 4 * (cb * 8 + ks)
            c = "0" if ks == 0 else f"v[{o}:{o+3}]"
            a(f"v_mfma_f32_16x16x32_bf16 v[{o}:{o+3}], v[{w}:{w+3}], v[{q}:{q+3}], {c}")
        if i + 6 < len(seq): bread(i + 6)
    a(f"s_mov_b32 s44, 0xffff0000")
    a(f"s_mov_b32 s45, {NLN2:#x}")
    a("s_waitcnt vmcnt(0)")
    X, EE = 48, 56
    for nb in range(3):
        o = O + 8 * nb
        if nb == 2:
            a("s_nop 1")
            a("s_mov_b32 exec_lo, 0x00ff00ff")
            a("s_mov_b32 exec_hi, 0x00ff00ff")
        for i in range(4):
            a(f"v_lshlrev_b32 v{X+2*i}, 16, v{RQ+4*nb+i}")
            a(f"v_and_b32 v{X+2*i+1}, s44, v{RQ+4*nb+i}")
        for k in range(8): a(f"v_add_f32 v{X+k}, v{X+k}, v{o+k}")
        for k in range(8): a(f"v_exp_f32 v{EE+k}, v{X+k}")
        for k in range(8): a(f"v_add_f32 v{EE+k}, 1.0, v{EE+k}")
        for k in range(8): a(f"v_rcp_f32 v{EE+k}, v{EE+k}")
        for k in range(8): a(f"v_mul_f32 v{X+k}, v{X+k}, v{EE+k}" if k else f"s_nop 0\nv_mul_f32 v{X+k}, v{X+k}, v{EE+k}")
        for i in range(4):
            a(f"v_lshlrev_b32 v{EE+2*i}, 16, v{HQ+4*nb+i}")
            a(f"v_and_b32 v{EE+2*i+1}, s44, v{HQ+4*nb+i}")
        for k in range(8): a(f"v_fma_f32 v{X+k}, v{X+k}, s45, v{EE+k}")
        d = 64 + 4 * nb
        for i in range(4): a(f"v_cvt_pk_bf16_f32 v{d+i}, v{X+2*i}, v{X+2*i+1}")
        a(f"s_add_u32 s43, s42, {nb*8192}")
        a(f"buffer_store_dwordx4 v[{d}:{d+3}], v6, s[{SO}:{SO+3}], s43 offen")
    a("s_mov_b64 exec, -1")
    a(f"s_cmp_lg_u32 s{S_WAVE}, 0")
    a("s_cbranch_scc1 L2_exit")
    a("s_mov_b32 exec_hi, 0x0fffffff")
    for k in range(2):
        a(f"v_lshlrev_b32 v10, 1, v1")
        if k: a("v_add_u32 v10, 1, v10")
        a("v_mul_u32_u24 v11, 171, v10")
        a("v_lshrrev_b32 v11, 9, v11")
        a("v_mul_u32_u24 v12, 3, v11")
        a("v_sub_u32 v12, v10, v12")
        a("v_lshrrev_b32 v13, 3, v11")
        a("v_lshlrev_b32 v13, 5, v13")
        a("v_lshl_add_u32 v13, v12, 3, v13")
        a("v_and_b32 v11, 7, v11")
        a("v_add3_u32 v13, v13, v11, 8")
        a("v_lshlrev_b32 v13, 2, v13")
        a(f"v_add_u32 v13, {L_T}, v13")
        a(f"ds_read_b32 v{14+k}, v13")
    a("v_lshlrev_b32 v10, 16, v8")
    a("v_and_b32 v11, s44, v8")
    a("s_waitcnt lgkmcnt(0)")
    a("v_fma_f32 v10, v14, s45, v10")
    a("v_fma_f32 v11, v15, s45, v11")
    a("v_cvt_pk_bf16_f32 v10, v10, v11")
    a(f"buffer_store_dword v10, v7, s[{SPO}:{SPO+3}], s46 offen")
    a.label("L2_exit")
    a("s_endpgm")
    return a.text() + kernel_desc(NAME, NV, 82)

if __name__ == "__main__":
    t = build()
    for p in check_hazards(t): print(p)
```

```python
import sys
from asmlib import check_hazards
import k1
from common import *
def build(which="12"):
    head = """; EGNN layer in two launches:
;   launch 1: P/Q/R = h @ {w_e[0:256], w_e[256:512], w_h[0:256]} (scaled by -log2 e), edge binning by destination
"""
    parts = []
    if "1" in which:
        head += f"; @launch kernel={k1.NAME} grid=({k1.GRID1},1,1) block=(512,1,1) lds={k1.LDS1}\n"
        parts.append(k1.build())
    if "2" in which:
        import k2
        head += f"; @launch kernel={k2.NAME} grid=({k2.GRID2},1,1) block=(512,1,1) lds={k2.LDS2}\n"
        parts.append(k2.build())
    txt = head + '.amdgcn_target "amdgcn-amd-amdhsa--gfx950"\n' + "".join(parts)
    probs = check_hazards(txt)
    for p in probs: print("HAZARD", p)
    return txt
if __name__ == "__main__":
    which = sys.argv[1] if len(sys.argv) > 1 else "12"
    out = sys.argv[2] if len(sys.argv) > 2 else "../cdna_kernels/standalone__cheap_equivariant_egnn__graph.s"
    open(out, "w").write(build(which))
    print("wrote", out)
```

```python
import re

def v(i, n=1):
    return f"v{i}" if n == 1 else f"v[{i}:{i+n-1}]"
def s(i, n=1):
    return f"s{i}" if n == 1 else f"s[{i}:{i+n-1}]"

class Asm:
    def __init__(self):
        self.L = []
        self.lds = []
        self.vm = []
    def __call__(self, text):
        for line in text.split("\n"):
            line = line.strip()
            if line:
                self.L.append(line)
    def label(self, name):
        self.L.append(name + ":")
    def comment(self, text):
        self.L.append("; " + text)
    diag = False
    def stamp(self, i):
        if self.diag:
            self(f"s_memrealtime s[{84+2*i}:{85+2*i}]")
            self("s_waitcnt lgkmcnt(0)")
            self.lds = []
    def cstamp(self, i):
        if self.diag:
            self(f"s_memtime s[{84+2*i}:{85+2*i}]")
            self("s_waitcnt lgkmcnt(0)")
            self.lds = []
    def dump_stamps(self, ws_sgpr, off, wave_sgpr, tag):
        if not self.diag: return
        self("s_mov_b64 exec, -1")
        self(f"s_add_u32 s80, s{ws_sgpr}, {off}")
        self(f"s_addc_u32 s81, s{ws_sgpr+1}, 0")
        self("s_mov_b32 s82, 0x100000")
        self("s_mov_b32 s83, 0x00020000")
        self("v_mov_b32 v250, 0")
        for i in range(9):
            self(f"v_writelane_b32 v250, s{84+2*i}, {i}")
        self("v_and_b32 v251, 63, v0")
        self("v_lshlrev_b32 v251, 2, v251")
        self("s_lshl_b32 s79, s2, 3")
        self(f"s_add_u32 s79, s79, s{wave_sgpr}")
        self("s_lshl_b32 s79, s79, 6")
        self("v_add_u32 v251, s79, v251")
        self("s_mov_b32 exec_lo, 0xffff")
        self("s_mov_b32 exec_hi, 0")
        self("buffer_store_dword v250, v251, s[80:83], 0 offen")
        self("s_waitcnt vmcnt(0)")
    def ds(self, text, tag=None):
        self(text); self.lds.append(tag)
    def mem(self, text, tag=None):
        self(text); self.vm.append(tag)
    def wait_lds(self, tag):
        idx = max(i for i, t in enumerate(self.lds) if t == tag)
        n = len(self.lds) - 1 - idx
        assert n <= 14, n
        self(f"s_waitcnt lgkmcnt({n})")
        self.lds = self.lds[idx + 1:]
    def wait_lds_if(self, tag):
        if tag in self.lds:
            self.wait_lds(tag)
    def wait_vm(self, tag):
        idx = max(i for i, t in enumerate(self.vm) if t == tag)
        n = len(self.vm) - 1 - idx
        assert n <= 62, n
        self(f"s_waitcnt vmcnt({n})")
        self.vm = self.vm[idx + 1:]
    def wait_all(self, vm=True, lds=True):
        parts = []
        if vm: parts.append("vmcnt(0)"); self.vm = []
        if lds: parts.append("lgkmcnt(0)"); self.lds = []
        self("s_waitcnt " + " ".join(parts))
    def text(self):
        out = []
        for l in self.L:
            if l.endswith(":") or l.startswith(".") or l.startswith(";"):
                out.append(l)
            else:
                out.append("    " + l)
        return "\n".join(out) + "\n"

TRANS = ("v_exp_", "v_log_", "v_rcp_", "v_rsq_", "v_sqrt_", "v_sin_", "v_cos_")
def regs(op):
    op = op.strip()
    neg = op.lstrip("-|").rstrip("|")
    m = re.fullmatch(r"([vsa])(\d+)", neg)
    if m: return {(m.group(1), int(m.group(2)))}
    m = re.fullmatch(r"([vsa])\[(\d+):(\d+)\]", neg)
    if m: return {(m.group(1), i) for i in range(int(m.group(2)), int(m.group(3)) + 1)}
    if neg in ("vcc", "vcc_lo", "vcc_hi"): return {("s", "vcc")}
    if neg in ("exec", "exec_lo", "exec_hi"): return {("s", "exec")}
    if neg == "m0": return {("s", "m0")}
    return set()

class Ins:
    def __init__(self, text, idx):
        self.text = text; self.idx = idx
        t = text.split(";")[0].strip()
        parts = t.split(None, 1)
        self.mn = parts[0]
        rest = parts[1] if len(parts) > 1 else ""
        ops = [o.strip() for o in re.split(r",(?![^\[]*\])", rest)] if rest else []
        if ops:
            last = ops[-1].split()
            self.mods = " ".join(last[1:])
            ops[-1] = last[0] if last else ""
        else:
            self.mods = ""
        self.ops = ops
        mn = self.mn
        self.is_mfma = mn.startswith("v_mfma")
        self.is_valu = mn.startswith("v_") and not self.is_mfma
        self.is_trans = mn.startswith(TRANS)
        self.is_ds = mn.startswith("ds_")
        self.is_vmem = mn.startswith(("buffer_", "global_"))
        self.is_salu = mn.startswith("s_")
        self.is_dpp = bool(re.search(r"row_|quad_perm|wave_|bcast", self.mods)) or mn.endswith("_dpp")
        self.w = set(); self.r = set(); self.ra = set(); self.rb = set(); self.rc = set()
        self.store_data = set(); self.ldst = set()
        R = [regs(o) for o in ops]
        if self.is_mfma:
            self.w = R[0]; self.ra = R[1]; self.rb = R[2]; self.rc = R[3]
            self.r = self.ra | self.rb | self.rc
            self.passes = 8 if "32x32" in mn else 4
        elif self.is_valu:
            if mn.startswith("v_cmp"):
                self.w = R[0]; self.r = set().union(*R[1:])
            elif mn.startswith(("v_add_co", "v_sub_co", "v_addc_co", "v_subb_co")):
                self.w = R[0] | R[1]; self.r = set().union(*R[2:])
            elif mn.startswith("v_permlane"):
                self.w = R[0] | R[1]; self.r = R[0] | R[1]
            else:
                self.w = R[0]; self.r = set().union(*R[1:]) if len(R) > 1 else set()
                if mn.startswith(("v_fmac", "v_mac", "v_writelane", "v_pk_fmac")) or self.is_dpp:
                    self.r |= R[0]
                if mn.startswith("v_cndmask") and len(R) == 3:
                    self.r |= {("s", "vcc")}
        elif self.is_ds:
            if mn.startswith("ds_read") or "_rtn" in mn or mn.startswith(("ds_bpermute", "ds_permute", "ds_swizzle")):
                self.ldst = R[0]; self.r = set().union(*R[1:])
            else:
                self.r = set().union(*R)
                self.store_data = set().union(*R[1:])
        elif self.is_vmem:
            lds = " lds" in (" " + self.mods)
            if "load" in mn and not lds:
                self.ldst = R[0]; self.r = set().union(*R[1:])
            elif "load" in mn and lds:
                self.r = set().union(*R) | {("s", "m0")}
                self.dma = True
            else:
                self.r = set().union(*R)
                self.store_data = R[0] if mn.startswith("buffer_") else R[1]
        elif self.is_salu:
            if mn.startswith(("s_cmp", "s_waitcnt", "s_nop", "s_barrier", "s_branch", "s_cbranch", "s_endpgm", "s_setprio", "s_sleep")):
                self.r = set().union(*R) if R else set()
            else:
                self.w = R[0] if R else set(); self.r = set().union(*R[1:]) if len(R) > 1 else set()
                if "saveexec" in mn: self.w |= {("s", "exec")}
        self.states = 1
        if mn == "s_nop": self.states = int(ops[0], 0) + 1

def check_hazards(text):
    ins = []; labels = {}
    for line in text.split("\n"):
        t = line.split(";")[0].strip()
        if not t or t.startswith("."):
            continue
        if t.endswith(":"):
            labels[t[:-1]] = len(ins); continue
        ins.append(Ins(t, len(ins)))
    def succ(i):
        x = ins[i]
        if x.mn == "s_endpgm": return []
        if x.mn == "s_branch": return [labels[x.ops[0]]]
        out = [i + 1] if i + 1 < len(ins) else []
        if x.mn.startswith("s_cbranch"): out.append(labels[x.ops[0]])
        return out
    problems = []
    def need(p, c):
        n = 0
        vw = {r for r in p.w if r[0] in "va"}
        sw = {r for r in p.w if r[0] == "s"}
        if p.is_valu:
            if c.is_mfma and vw & c.r: n = max(n, 2)
            if p.is_trans and c.is_valu and not c.is_trans and vw & c.r: n = max(n, 1)
            if c.is_valu and c.is_dpp and vw & c.r: n = max(n, 2)
            if c.mn.startswith(("v_readlane", "v_readfirstlane")) and vw & c.r: n = max(n, 1)
            if c.mn.startswith("v_permlane") and vw & c.r: n = max(n, 2)
            if sw:
                if c.is_valu and sw & c.r: n = max(n, 4 if c.mn.startswith(("v_readlane", "v_writelane")) else 2)
                if c.is_vmem and sw & c.r: n = max(n, 5)
        if p.is_mfma:
            big = p.passes == 8
            if c.is_mfma:
                if p.w & (c.ra | c.rb): n = max(n, 12 if big else 8)
                if p.w & c.rc and not (p.w == c.rc and p.passes == c.passes): n = max(n, 10 if big else 6)
                if p.w & c.w and not (p.w & c.rc) : n = max(n, 0)
            else:
                if (c.is_valu and p.w & (c.r | c.w)) or ((c.is_ds or c.is_vmem) and p.w & (c.r | c.ldst)):
                    n = max(n, 12 if big else 8)
            if c.is_valu and p.rc & c.w and not (p.rc & p.w): n = max(n, 7 if big else 3)
        if (p.is_vmem or p.is_ds) and p.store_data and len(p.store_data) >= 3:
            if c.is_valu and p.store_data & c.w: n = max(n, 2)
            if (c.is_ds or c.is_vmem) and p.store_data & c.ldst: n = max(n, 1)
        if p.is_salu and ("s", "m0") in p.w and getattr(c, "dma", False): n = max(n, 1)
        return n
    MAXD = 12
    for p in ins:
        if not (p.w or p.store_data or p.is_mfma): continue
        stack = [(j, 0) for j in succ(p.idx)]
        seen = set()
        while stack:
            j, d = stack.pop()
            if (j, d) in seen or d >= MAXD or j >= len(ins): continue
            seen.add((j, d))
            c = ins[j]
            n = need(p, c)
            if n > d:
                problems.append(f"need {n} have {d}: [{p.idx}] {p.text}  ->  [{c.idx}] {c.text}")
            for k in succ(j): stack.append((k, d + c.states))
    return problems
```

```python
N_NODES = 10000
WS_Q    = 0
WS_P    = 0x500000
WS_R    = 0xA00000
WS_RECA = 0xF00000
WS_RECB = 0x1200000
WS_TAB  = 0x1300000
WS_WHP  = 0x1400000
WS_WX   = 0x1420000
WS_WXP  = 0x1421000
WS_USED = 0x1430000
MAT_BYTES = 5120000
NCH = 64
CH_E = 2500
CH_STRIDE = 2560
TAB_STRIDE = 2560
NLOG2E = 0xBFB8AA3B
NLN2 = 0xBF317218
SRD3 = 0x00020000

def srd(a, d, base, off, size):
    if off:
        a(f"s_add_u32 s{d}, s{base}, {off}")
        a(f"s_addc_u32 s{d+1}, s{base+1}, 0")
    else:
        a(f"s_mov_b32 s{d}, s{base}")
        a(f"s_mov_b32 s{d+1}, s{base+1}")
    a(f"s_mov_b32 s{d+2}, {size}")
    a(f"s_mov_b32 s{d+3}, {SRD3:#x}")

WS_DIAG1 = 0x1500000
WS_DIAG2 = 0x1600000
def kernel_desc(name, nvgpr, nsgpr, diag=False):
    if diag: nvgpr, nsgpr = 256, 102
    return f""".section .rodata,"a"
.p2align 6
.amdhsa_kernel {name}
  .amdhsa_next_free_vgpr {nvgpr}
  .amdhsa_next_free_sgpr {nsgpr}
  .amdhsa_accum_offset {(nvgpr + 3) // 4 * 4}
  .amdhsa_group_segment_fixed_size 0
  .amdhsa_kernarg_size 88
  .amdhsa_user_sgpr_count 2
  .amdhsa_user_sgpr_kernarg_segment_ptr 1
  .amdhsa_system_sgpr_workgroup_id_x 1
  .amdhsa_float_denorm_mode_32 3
.end_amdhsa_kernel
"""
```

```python
from asmlib import *
from common import *

NAME = "egnn_prep_kernel"
N_RANGE = 63
WG_SORT0 = 3 * N_RANGE
WG_PACK0 = WG_SORT0 + NCH
GRID1 = WG_PACK0 + 2
LDS1 = 163840

S_H, S_POS, S_EA, S_SRC, S_DST, S_WE, S_WX, S_WH, S_WS = 4, 6, 8, 10, 12, 14, 16, 18, 20
S_WAVE = 22
SA, SB, SC, SD, SE = 24, 28, 32, 36, 40

def w_dma(a, srdw):
    a("v_lshrrev_b32 v2, 2, v1")
    a("v_lshlrev_b32 v2, 9, v2")
    a("v_and_b32 v3, 3, v1")
    a("v_lshl_add_u32 v2, v3, 4, v2")
    a(f"s_lshl_b32 s44, s{S_WAVE}, 6")
    a("v_add_u32 v2, s44, v2")
    a(f"s_lshl_b32 s45, s{S_WAVE}, 14")
    for i in range(16):
        a(f"s_add_u32 m0, s45, {i*1024}")
        a(f"s_mov_b32 s46, {i*8192}")
        a.mem(f"buffer_load_dwordx4 v2, s[{srdw}:{srdw+3}], s46 offen lds", "W")

def gemm(a, mat):
    nm = "PQR"[mat]
    VW, VF, ACC, PK = 64, 128, (192, 208), 224
    VA = 8
    vH = (3, 4)
    a.label(f"L1_gemm_{nm}")
    if mat == 0: srd(a, SA, S_WE, 0, 131072)
    if mat == 1: srd(a, SA, S_WE, 131072, 131072)
    if mat == 2: srd(a, SA, S_WH, 0, 131072)
    srd(a, SB, S_H, 0, MAT_BYTES)
    srd(a, SC, S_WS, (WS_P, WS_Q, WS_R)[mat], MAT_BYTES)
    w_dma(a, SA)
    a("v_lshrrev_b32 v5, 5, v1")
    a(f"s_lshl_b32 s44, s{S_WAVE}, 2")
    a("v_and_b32 v6, 31, v1")
    for i in range(2):
        a(f"v_add_u32 v7, s44, v5")
        if i: a("v_add_u32 v7, 2, v7")
        a("v_and_b32 v16, 15, v7")
        a("v_xor_b32 v16, v16, v6")
        a("v_lshlrev_b32 v16, 4, v16")
        a(f"v_lshl_add_u32 v{vH[i]}, v7, 9, v16")
    a("s_mul_i32 s51, s50, 81920")
    a(f"s_lshl_b32 s52, s{S_WAVE}, 11")
    def h_dma(T, ldsbase):
        for i in range(2):
            a(f"s_add_u32 m0, s52, {ldsbase + i*1024}")
            a(f"s_add_u32 s46, s51, {T*16384}")
            a.mem(f"buffer_load_dwordx4 v{vH[i]}, s[{SB}:{SB+3}], s46 offen lds", "H")
    h_dma(0, 131072)
    h_dma(1, 147456)
    a("v_lshrrev_b32 v5, 5, v1")
    a("v_bfe_u32 v6, v1, 2, 2")
    a("v_lshl_add_u32 v6, v5, 3, v6")
    a("v_lshlrev_b32 v6, 6, v6")
    a("v_bfe_u32 v7, v1, 4, 1")
    a("v_and_b32 v16, 3, v1")
    a("v_lshl_add_u32 v7, v7, 2, v16")
    if mat == 0:
        a("v_lshlrev_b32 v7, 3, v7")
    else:
        a("v_and_b32 v16, 1, v7")
        a("v_lshlrev_b32 v16, 5, v16")
        a("v_lshrrev_b32 v7, 1, v7")
        a("v_lshl_add_u32 v7, v7, 3, v16")
    a("v_add_u32 v5, v6, v7")
    a(f"s_lshl_b32 s45, s{S_WAVE}, 14")
    a("v_add_u32 v5, s45, v5")
    a("v_and_b32 v6, 31, v1")
    a("v_lshrrev_b32 v7, 5, v1")
    a("v_and_b32 v16, 15, v6")
    a("v_xor_b32 v7, v7, v16")
    a("v_lshlrev_b32 v6, 9, v6")
    a("v_add_u32 v6, 0x20000, v6")
    for k in range(8):
        a(f"v_xor_b32 v16, {2*k}, v7")
        a(f"v_lshl_add_u32 v{VA+k}, v16, 4, v6")
    a("v_and_b32 v6, 31, v1")
    a("v_lshrrev_b32 v7, 5, v1")
    if mat == 0:
        a(f"s_lshl_b32 s44, s{S_WAVE}, 9")
        a("v_lshlrev_b32 v17, 4, v6")
        a("v_lshl_add_u32 v17, v7, 3, v17")
        a("v_add_u32 v17, s44, v17")
        a("s_mul_i32 s53, s50, 81920")
    elif mat == 2:
        a(f"s_lshl_b32 s44, s{S_WAVE}, 9")
        a("v_lshrrev_b32 v17, 3, v6")
        a("v_lshlrev_b32 v17, 12, v17")
        a("v_lshl_add_u32 v17, v7, 8, v17")
        a("v_and_b32 v16, 7, v6")
        a("v_lshl_add_u32 v17, v16, 4, v17")
        a("v_add_u32 v17, s44, v17")
        a("s_mul_i32 s53, s50, 81920")
    else:
        a(f"s_lshl_b32 s44, s{S_WAVE}, 11")
        a("s_add_u32 s44, s44, 65536")
        a("v_bfe_u32 v16, v6, 1, 2")
        a("v_lshlrev_b32 v19, 1, v7")
        a("v_xor_b32 v19, v19, v16")
        a("v_lshlrev_b32 v20, 6, v6")
        a("v_add_u32 v20, s44, v20")
        a("v_lshl_add_u32 v17, v19, 4, v20")
        a("v_xor_b32 v19, 1, v19")
        a("v_lshl_add_u32 v18, v19, 4, v20")
        a("v_lshrrev_b32 v6, 2, v1")
        a("v_bfe_u32 v16, v1, 3, 2")
        a("v_and_b32 v7, 3, v1")
        a("v_xor_b32 v16, v16, v7")
        a("v_lshlrev_b32 v19, 6, v6")
        a("v_lshl_add_u32 v19, v16, 4, v19")
        a("v_add_u32 v19, s44, v19")
        a(f"s_lshl_b32 s44, s{S_WAVE}, 6")
        a("v_lshlrev_b32 v20, 9, v6")
        a("v_lshl_add_u32 v20, v7, 4, v20")
        a("v_add_u32 v20, s44, v20")
        a("s_mul_i32 s53, s50, 81920")
    a(f"s_mov_b32 s48, {NLOG2E:#x}")
    a.stamp(2)
    a.wait_vm("W")
    a.stamp(3)
    for st in range(16):
        for i in range(2):
            a(f"ds_read_b64_tr_b16 v[{VW+4*st+2*i}:{VW+4*st+2*i+1}], v5 offset:{st*1024+i*256}")
            if (st * 2 + i) % 12 == 11: a("s_waitcnt lgkmcnt(4)")
    a.wait_all()
    a("s_barrier")
    a.stamp(4)
    for T in (2, 3, 4):
        h_dma(T, (T - 2) * 16384)

    def fread(u):
        T, st = divmod(u, 16)
        base = T * 16384 if T < 2 else (T - 2) * 16384
        q = VF + 4 * (u % 16)
        a.ds(f"ds_read_b128 v[{q}:{q+3}], v{VA + (st & 7)} offset:{base + 256*(st >> 3)}", ("F", u))
    def mfma(u):
        T, st = divmod(u, 16)
        q = VF + 4 * (u % 16); w = VW + 4 * st; acc = ACC[T & 1]
        c = "0" if st == 0 else f"v[{acc}:{acc+15}]"
        A, B = (q, w) if mat == 0 else (w, q)
        a(f"v_mfma_f32_32x32x16_bf16 v[{acc}:{acc+15}], v[{A}:{A+3}], v[{B}:{B+3}], {c}")
    def epi(T):
        acc = ACC[T & 1]
        ops = []
        for j in range(8):
            ops.append(f"v_mul_f32 v{acc+2*j}, s48, v{acc+2*j}")
            ops.append(f"v_mul_f32 v{acc+2*j+1}, s48, v{acc+2*j+1}")
        for j in range(8):
            ops.append(f"v_cvt_pk_bf16_f32 v{PK+j}, v{acc+2*j}, v{acc+2*j+1}")
        if mat == 0:
            for q in range(4):
                ops.append(f"s_add_u32 s46, s53, {T*16384 + q*4096}")
                ops.append(("vm", f"buffer_store_dwordx2 v[{PK+2*q}:{PK+2*q+1}], v17, s[{SC}:{SC+3}], s46 offen", ("S", T)))
        elif mat == 2:
            ops.append(f"s_add_u32 s46, s53, {T*16384}")
            for i in range(2):
                ops.append(("vm", f"buffer_store_dwordx4 v[{PK+4*i}:{PK+4*i+3}], v17, s[{SC}:{SC+3}], s46 offen offset:{i*128}", ("S", T)))
        else:
            ops.append(("ds", f"ds_write_b128 v17, v[{PK}:{PK+3}]", ("QW", T)))
            ops.append(("ds", f"ds_write_b128 v18, v[{PK+4}:{PK+7}]", ("QW", T)))
            ops.append(("waitlds", ("QW", T)))
            ops.append(("ds", f"ds_read_b128 v[232:235], v19", ("QR0", T)))
            ops.append(("ds", f"ds_read_b128 v[236:239], v19 offset:1024", ("QR1", T)))
            ops.append(("gap",))
            ops.append(f"s_add_u32 s46, s53, {T*16384}")
            ops.append(("waitlds", ("QR0", T)))
            ops.append(("vm", f"buffer_store_dwordx4 v[232:235], v20, s[{SC}:{SC+3}], s46 offen", ("S", T)))
            ops.append(f"s_add_u32 s46, s53, {T*16384 + 8192}")
            ops.append(("waitlds", ("QR1", T)))
            ops.append(("vm", f"buffer_store_dwordx4 v[236:239], v20, s[{SC}:{SC+3}], s46 offen", ("S", T)))
        return ops
    def emit(op):
        if isinstance(op, str): a(op)
        elif op[0] == "vm": a.mem(op[1], op[2])
        elif op[0] == "ds": a.ds(op[1], op[2])
        elif op[0] == "waitlds": a.wait_lds_if(op[1])
        elif op[0] == "gap": pass
    PD = 8
    def stream(tiles, pend):
        u0, u1 = tiles[0] * 16, (tiles[-1] + 1) * 16
        for u in range(u0, u0 + PD): fread(u)
        for u in range(u0, u1):
            T, st = divmod(u, 16)
            if st == 0 and u > u0:
                assert not pend
                pend = epi(T - 1)
            a.wait_lds_if(("F", u))
            mfma(u)
            if u + PD < u1: fread(u + PD)
            if st >= 5 and pend:
                k = -(-len(pend) // (16 - st))
                for op in pend[:k]: emit(op)
                pend = pend[k:]
        assert not pend
        return epi(tiles[-1])
    pend = stream([0, 1], [])
    for k in range(8): a(f"v_add_u32 v{VA+k}, 0xfffe0000, v{VA+k}")
    a.wait_vm("H")
    a("s_barrier")
    a.stamp(5)
    pend = stream([2, 3, 4], pend)
    a("s_nop 7"); a("s_nop 3")
    a.stamp(6)
    for op in pend: emit(op)
    if a.diag:
        a("s_waitcnt vmcnt(0)")
        a.stamp(7)
        a.dump_stamps(S_WS, WS_DIAG1, S_WAVE, f"g{mat}")
    a("s_endpgm")

def sort(a):
    POS, HIST, WSUM, RECA, RECB = 0, 65536, 70656, 71680, 112640
    D, SX, EA = 8, 13, 18
    RA, RB, BA, RK = 32, 52, 57, 62
    T0 = 70
    a.label("L1_sort")
    a(f"s_sub_u32 s50, s2, {WG_SORT0}")
    srd(a, SA, S_DST, 0, 640000)
    srd(a, SB, S_SRC, 0, 640000)
    srd(a, SC, S_EA, 0, 1280000)
    srd(a, SD, S_POS, 0, 60000)
    srd(a, SE, S_WS, 0, WS_USED)
    a("s_mul_i32 s51, s50, 10000")
    a("s_mul_i32 s52, s50, 20000")
    a("v_lshlrev_b32 v2, 2, v0")
    a("v_lshlrev_b32 v3, 3, v0")
    for i in range(5):
        a(f"s_add_u32 s46, s51, {i*2048}")
        a(f"buffer_load_dword v{D+i}, v2, s[{SA}:{SA+3}], s46 offen")
    for i in range(5):
        a(f"s_add_u32 s46, s51, {i*2048}")
        a(f"buffer_load_dword v{SX+i}, v2, s[{SB}:{SB+3}], s46 offen")
    a("v_lshlrev_b32 v4, 4, v1")
    for j in range(8):
        a(f"s_lshl_b32 s44, s{S_WAVE}, 10")
        a(f"s_add_u32 s44, s44, {j*8192}")
        a(f"s_mov_b32 m0, s44")
        a("s_nop 0")
        a(f"buffer_load_dwordx4 v4, s[{SD}:{SD+3}], s44 offen lds")
    for i in range(5):
        a(f"s_add_u32 s46, s52, {i*4096}")
        a(f"buffer_load_dwordx2 v[{EA+2*i}:{EA+2*i+1}], v3, s[{SC}:{SC+3}], s46 offen")
    for k in range(4): a(f"v_mov_b32 v{T0+k}, 0")
    a("v_lshlrev_b32 v5, 4, v0")
    a(f"v_add_u32 v5, {HIST}, v5")
    a(f"s_cmp_ge_u32 s{S_WAVE}, 5")
    a("s_cbranch_scc1 L1_sort_z")
    a(f"ds_write_b128 v5, v[{T0}:{T0+3}]")
    a.label("L1_sort_z")
    a("v_mov_b32 v6, 1")
    a.stamp(2)
    a("s_waitcnt vmcnt(0) lgkmcnt(0)")
    a("s_barrier")
    a.stamp(3)
    a("s_movk_i32 s44, 452")
    a("v_cmp_gt_u32 s[54:55], s44, v0")
    for i in range(5):
        if i == 4: a("s_mov_b64 exec, s[54:55]")
        a(f"v_lshrrev_b32 v{T0}, 3, v{D+i}")
        a(f"v_lshlrev_b32 v{BA+i}, 2, v{T0}")
        a(f"v_add_u32 v{BA+i}, {HIST}, v{BA+i}")
        a(f"ds_add_rtn_u32 v{RK+i}, v{BA+i}, v6")
    a("s_mov_b64 exec, -1")
    a(f"s_mov_b32 s47, 0xffff0000")
    for i in range(5):
        t = T0
        PD_, PS_ = t, t + 2
        for (P, X) in ((PD_, D + i), (PS_, SX + i)):
            a(f"v_mul_u32_u24 v{t+4}, 6, v{X}")
            a(f"v_and_b32 v{t+4}, -4, v{t+4}")
            a(f"ds_read2_b32 v[{P}:{P+1}], v{t+4} offset0:0 offset1:1")
        a(f"v_and_b32 v{t+5}, 7, v{D+i}")
        a(f"v_lshl_or_b32 v{RB+i}, v{t+5}, 14, v{SX+i}")
        a(f"v_lshrrev_b32 v{t+5}, 3, v{D+i}")
        a(f"v_lshl_or_b32 v{RB+i}, v{t+5}, 17, v{RB+i}")
        a(f"v_and_b32 v{t+6}, 1, v{D+i}")
        a(f"v_lshlrev_b32 v{t+6}, 4, v{t+6}")
        a(f"v_and_b32 v{t+7}, 1, v{SX+i}")
        a(f"v_lshlrev_b32 v{t+7}, 4, v{t+7}")
        a("s_waitcnt lgkmcnt(0)")
        for (P, sh) in ((PD_, t + 6), (PS_, t + 7)):
            a(f"v_alignbit_b32 v{P}, v{P+1}, v{P}, v{sh}")
            a(f"v_lshrrev_b32 v{P+1}, v{sh}, v{P+1}")
        a(f"v_lshlrev_b32 v{t+8}, 16, v{PD_}")
        a(f"v_lshlrev_b32 v{t+9}, 16, v{PS_}")
        a(f"v_sub_f32 v{t+8}, v{t+8}, v{t+9}")
        a(f"v_and_b32 v{t+9}, s47, v{PD_}")
        a(f"v_and_b32 v{t+10}, s47, v{PS_}")
        a(f"v_sub_f32 v{t+9}, v{t+9}, v{t+10}")
        a(f"v_lshlrev_b32 v{t+10}, 16, v{PD_+1}")
        a(f"v_lshlrev_b32 v{t+11}, 16, v{PS_+1}")
        a(f"v_sub_f32 v{t+10}, v{t+10}, v{t+11}")
        a(f"v_mov_b32 v{t+11}, 0")
        a(f"v_cvt_pk_bf16_f32 v{t+12}, v{t+8}, v{t+9}")
        a(f"v_cvt_pk_bf16_f32 v{t+13}, v{t+10}, v{t+11}")
        a(f"v_lshlrev_b32 v{t+8}, 16, v{t+12}")
        a(f"v_and_b32 v{t+9}, s47, v{t+12}")
        a(f"v_lshlrev_b32 v{t+10}, 16, v{t+13}")
        a(f"v_mul_f32 v{t+8}, v{t+8}, v{t+8}")
        a(f"v_mul_f32 v{t+9}, v{t+9}, v{t+9}")
        a(f"v_mul_f32 v{t+10}, v{t+10}, v{t+10}")
        a(f"v_cvt_pk_bf16_f32 v{t+14}, v{t+8}, v{t+9}")
        a(f"v_cvt_pk_bf16_f32 v{t+15}, v{t+10}, v{t+11}")
        a(f"v_lshlrev_b32 v{t+8}, 16, v{t+14}")
        a(f"v_and_b32 v{t+9}, s47, v{t+14}")
        a(f"v_lshlrev_b32 v{t+10}, 16, v{t+15}")
        a(f"v_add_f32 v{t+8}, v{t+8}, v{t+9}")
        a(f"v_add_f32 v{t+8}, v{t+8}, v{t+10}")
        a(f"v_cvt_pk_bf16_f32 v{t+8}, v{t+8}, v{t+11}")
        r = RA + 4 * i
        a(f"v_lshl_or_b32 v{r}, v{EA+2*i}, 16, v{t+8}")
        a(f"v_alignbit_b32 v{r+1}, v{EA+2*i+1}, v{EA+2*i}, 16")
        a(f"v_alignbit_b32 v{r+2}, v{t+12}, v{EA+2*i+1}, 16")
        a(f"v_alignbit_b32 v{r+3}, v{t+13}, v{t+12}, 16")
    a("s_waitcnt lgkmcnt(0)")
    a("s_barrier")
    a.stamp(4)
    t = T0
    a(f"s_cmp_ge_u32 s{S_WAVE}, 5")
    a("s_cbranch_scc1 L1_sort_s1")
    a(f"ds_read_b128 v[{t}:{t+3}], v5")
    a("s_waitcnt lgkmcnt(0)")
    a(f"v_add_u32 v{t+5}, v{t}, v{t+1}")
    a(f"v_add_u32 v{t+6}, v{t+5}, v{t+2}")
    a(f"v_add_u32 v{t+7}, v{t+6}, v{t+3}")
    a(f"v_mov_b32 v{t+8}, v{t+7}")
    for sh in (1, 2, 4, 8):
        a("s_nop 1")
        a(f"v_add_u32_dpp v{t+8}, v{t+8}, v{t+8} row_shr:{sh} row_mask:0xf bank_mask:0xf")
    a("s_nop 1")
    a(f"v_add_u32_dpp v{t+8}, v{t+8}, v{t+8} row_bcast:15 row_mask:0xa bank_mask:0xf")
    a("s_nop 1")
    a(f"v_add_u32_dpp v{t+8}, v{t+8}, v{t+8} row_bcast:31 row_mask:0xc bank_mask:0xf")
    a(f"s_lshl_b32 s44, s{S_WAVE}, 2")
    a(f"s_add_u32 s44, s44, {WSUM}")
    a(f"v_mov_b32 v{t+9}, s44")
    a("s_mov_b32 exec_lo, 0")
    a("s_mov_b32 exec_hi, 0x80000000")
    a(f"ds_write_b32 v{t+9}, v{t+8}")
    a("s_mov_b64 exec, -1")
    a.label("L1_sort_s1")
    a("s_waitcnt lgkmcnt(0)")
    a("s_barrier")
    a(f"s_cmp_ge_u32 s{S_WAVE}, 5")
    a("s_cbranch_scc1 L1_sort_s2")
    a(f"v_mov_b32 v{t+9}, {WSUM}")
    a(f"ds_read_b128 v[{t+10}:{t+13}], v{t+9}")
    a(f"v_sub_u32 v{t+8}, v{t+8}, v{t+7}")
    a("s_waitcnt lgkmcnt(0)")
    for k in range(4):
        a(f"v_readfirstlane_b32 s{56+k}, v{t+10+k}")
    a("s_mov_b32 s44, 0")
    for k in range(4):
        a(f"s_cmp_gt_u32 s{S_WAVE}, {k}")
        a(f"s_cselect_b32 s45, s{56+k}, 0")
        a("s_add_u32 s44, s44, s45")
    a(f"v_add_u32 v{t+8}, s44, v{t+8}")
    a(f"v_add_u32 v{t+9}, v{t+8}, v{t}")
    a(f"v_add_u32 v{t+10}, v{t+8}, v{t+5}")
    a(f"v_add_u32 v{t+11}, v{t+8}, v{t+6}")
    a(f"ds_write_b128 v5, v[{t+8}:{t+11}]")
    a(f"v_lshl_or_b32 v{t+12}, v{t+9}, 16, v{t+8}")
    a(f"v_lshl_or_b32 v{t+13}, v{t+11}, 16, v{t+10}")
    a(f"s_mul_i32 s44, s50, {TAB_STRIDE}")
    a(f"s_add_u32 s44, s44, {WS_TAB}")
    a(f"buffer_store_dwordx2 v[{t+12}:{t+13}], v3, s[{SE}:{SE+3}], s44 offen")
    a.label("L1_sort_s2")
    a("s_waitcnt lgkmcnt(0)")
    a("s_barrier")
    a.stamp(5)
    for i in range(5):
        if i == 4: a("s_mov_b64 exec, s[54:55]")
        a(f"ds_read_b32 v{t+i}, v{BA+i}")
    a("s_mov_b64 exec, -1")
    a("s_waitcnt lgkmcnt(0)")
    for i in range(5):
        if i == 4: a("s_mov_b64 exec, s[54:55]")
        a(f"v_add_u32 v{t+i}, v{t+i}, v{RK+i}")
        a(f"v_lshlrev_b32 v{t+5}, 4, v{t+i}")
        a(f"v_add_u32 v{t+5}, {RECA}, v{t+5}")
        a(f"ds_write_b128 v{t+5}, v[{RA+4*i}:{RA+4*i+3}]")
        a(f"v_lshlrev_b32 v{t+6}, 2, v{t+i}")
        a(f"v_add_u32 v{t+6}, {RECB}, v{t+6}")
        a(f"ds_write_b32 v{t+6}, v{RB+i}")
    a("s_mov_b64 exec, -1")
    a("s_waitcnt lgkmcnt(0)")
    a("s_barrier")
    a.stamp(6)
    a("v_lshlrev_b32 v4, 4, v0")
    a(f"v_add_u32 v5, {RECA}, v4")
    for i in range(5):
        a(f"ds_read_b128 v[{RA+4*i}:{RA+4*i+3}], v5 offset:{i*8192}")
    a(f"v_add_u32 v7, {RECB}, v4")
    a(f"ds_read_b128 v[{t}:{t+3}], v7")
    a(f"ds_read_b128 v[{t+4}:{t+7}], v7 offset:8192")
    a(f"s_mul_i32 s44, s50, {CH_STRIDE*16}")
    a(f"s_add_u32 s44, s44, {WS_RECA}")
    a(f"s_mul_i32 s45, s50, {CH_STRIDE*4}")
    a(f"s_add_u32 s45, s45, {WS_RECB}")
    a("s_waitcnt lgkmcnt(0)")
    for i in range(5):
        a(f"buffer_store_dwordx4 v[{RA+4*i}:{RA+4*i+3}], v4, s[{SE}:{SE+3}], s44 offen")
        a("s_add_u32 s44, s44, 8192")
    a(f"buffer_store_dwordx4 v[{t}:{t+3}], v4, s[{SE}:{SE+3}], s45 offen")
    a(f"s_cmp_ge_u32 s{S_WAVE}, 2")
    a("s_cbranch_scc1 L1_sort_end")
    a("s_add_u32 s45, s45, 8192")
    a(f"buffer_store_dwordx4 v[{t+4}:{t+7}], v4, s[{SE}:{SE+3}], s45 offen")
    a.label("L1_sort_end")
    if a.diag:
        a("s_waitcnt vmcnt(0)")
        a.stamp(7)
        a.dump_stamps(S_WS, WS_DIAG1, S_WAVE, "s")
    a("s_endpgm")

def pack0(a):
    a.label("L1_pack0")
    srd(a, SA, S_WH, 131072, 131072)
    srd(a, SC, S_WS, WS_WHP, 131072)
    w_dma(a, SA)
    a("v_lshrrev_b32 v5, 4, v1")
    a("v_and_b32 v6, 1, v5")
    a("v_lshlrev_b32 v6, 4, v6")
    a("v_lshrrev_b32 v7, 1, v5")
    a("v_lshl_add_u32 v6, v7, 2, v6")
    a("v_bfe_u32 v7, v1, 2, 2")
    a("v_add_u32 v6, v6, v7")
    a("v_lshlrev_b32 v6, 6, v6")
    a("v_and_b32 v7, 3, v1")
    a("v_lshl_add_u32 v6, v7, 4, v6")
    a(f"s_lshl_b32 s45, s{S_WAVE}, 14")
    a("v_add_u32 v5, s45, v6")
    a("v_lshlrev_b32 v8, 4, v1")
    a.wait_vm("W")
    for cb in range(2):
        for ks in range(8):
            q = 64 + 4 * (cb * 8 + ks)
            for i in range(2):
                a(f"ds_read_b64_tr_b16 v[{q+2*i}:{q+2*i+1}], v5 offset:{ks*2048 + i*512 + cb*8}")
            if ks % 4 == 3: a("s_waitcnt lgkmcnt(0)")
    for cb in range(2):
        for ks in range(8):
            q = 64 + 4 * (cb * 8 + ks)
            a(f"s_add_u32 s46, s45, {(cb*8+ks)*1024}")
            a(f"buffer_store_dwordx4 v[{q}:{q+3}], v8, s[{SC}:{SC+3}], s46 offen")
    a("s_endpgm")

def pack1(a):
    a.label("L1_pack1")
    srd(a, SA, S_WE, 0, 517 * 512)
    srd(a, SB, S_WX, 0, 512)
    srd(a, SE, S_WS, 0, WS_USED)
    a(f"s_cmp_ge_u32 s{S_WAVE}, 4")
    a("s_cbranch_scc1 L1_pack1_b")
    a("v_lshlrev_b32 v2, 1, v0")
    a("s_mov_b32 s44, 0x40000")
    for k in range(5):
        a(f"buffer_load_ushort v{8+k}, v2, s[{SA}:{SA+3}], s44 offen offset:{k*512}")
    a(f"s_mov_b32 s48, {NLOG2E:#x}")
    a("s_waitcnt vmcnt(0)")
    for k in range(5):
        a(f"v_lshlrev_b32 v{8+k}, 16, v{8+k}")
        a(f"v_mul_f32 v{8+k}, s48, v{8+k}")
    a("v_mov_b32 v13, 0")
    a("v_cvt_pk_bf16_f32 v16, v8, v9")
    a("v_cvt_pk_bf16_f32 v17, v10, v11")
    a("v_cvt_pk_bf16_f32 v18, v12, v13")
    a("v_mov_b32 v19, 0")
    a("v_lshlrev_b32 v3, 4, v0")
    a(f"s_mov_b32 s44, {WS_WX}")
    a(f"buffer_store_dwordx4 v[16:19], v3, s[{SE}:{SE+3}], s44 offen")
    a("s_endpgm")
    a.label("L1_pack1_b")
    a(f"s_cmp_gt_u32 s{S_WAVE}, 4")
    a("s_cbranch_scc1 L1_exit")
    a("v_lshrrev_b32 v2, 2, v1")
    a("v_lshlrev_b32 v2, 5, v2")
    a("v_bfe_u32 v3, v1, 1, 1")
    a("v_lshl_add_u32 v2, v3, 4, v2")
    a("v_and_b32 v3, 1, v1")
    a("v_lshl_add_u32 v2, v3, 2, v2")
    a("v_lshlrev_b32 v2, 1, v2")
    a(f"buffer_load_dwordx2 v[8:9], v2, s[{SB}:{SB+3}], 0 offen")
    a(f"buffer_load_dwordx2 v[10:11], v2, s[{SB}:{SB+3}], 0 offen offset:16")
    a("v_lshlrev_b32 v3, 4, v1")
    a(f"s_mov_b32 s44, {WS_WXP}")
    a("s_mov_b32 exec_hi, 0")
    a("s_waitcnt vmcnt(0)")
    a(f"buffer_store_dwordx4 v[8:11], v3, s[{SE}:{SE+3}], s44 offen")
    a("s_endpgm")

def build(diag=False):
    a = Asm(); a.diag = diag
    a(".text"); a(f".globl {NAME}"); a(".p2align 8"); a(f".type {NAME},@function")
    a.label(NAME)
    a(f"s_cmp_ge_u32 s2, {GRID1}")
    a("s_cbranch_scc1 L1_exit")
    a.stamp(0)
    a("s_load_dwordx4 s[4:7], s[0:1], 0")
    a("s_load_dwordx4 s[8:11], s[0:1], 16")
    a("s_load_dwordx4 s[12:15], s[0:1], 32")
    a("s_load_dwordx4 s[16:19], s[0:1], 48")
    a("s_load_dwordx2 s[20:21], s[0:1], 80")
    a("v_and_b32 v1, 63, v0")
    a("v_lshrrev_b32 v2, 6, v0")
    a("s_nop 0")
    a(f"v_readfirstlane_b32 s{S_WAVE}, v2")
    a("s_mul_hi_u32 s50, s2, 0x55555556")
    a("s_mul_i32 s44, s50, 3")
    a("s_sub_u32 s49, s2, s44")
    a("s_waitcnt lgkmcnt(0)")
    a.stamp(1)
    a(f"s_cmp_ge_u32 s2, {WG_PACK0+1}")
    a("s_cbranch_scc1 L1_pack1")
    a(f"s_cmp_ge_u32 s2, {WG_PACK0}")
    a("s_cbranch_scc1 L1_pack0")
    a(f"s_cmp_ge_u32 s2, {WG_SORT0}")
    a("s_cbranch_scc1 L1_sort")
    a("s_cmp_eq_u32 s49, 1")
    a("s_cbranch_scc1 L1_gemm_Q")
    a("s_cmp_eq_u32 s49, 2")
    a("s_cbranch_scc1 L1_gemm_R")
    for mat in range(3):
        a.lds = []; a.vm = []
        gemm(a, mat)
    a.lds = []; a.vm = []
    sort(a)
    a.lds = []; a.vm = []
    pack0(a)
    a.lds = []; a.vm = []
    pack1(a)
    a.label("L1_exit")
    a("s_endpgm")
    return a.text() + kernel_desc(NAME, 248, 64, diag)

if __name__ == "__main__":
    t = build()
    for p in check_hazards(t): print(p)
    open("k1.s", "w").write(t)
```

```python
from asmlib import *
from common import *

NAME = "egnn_edge_kernel"
EXP = set()
GRID2 = 250
CAP = 27
TILE = 2560
L_TILES = 0
L_SRC = CAP * TILE
L_STAGE = L_SRC + 32 * 128
L_S = L_STAGE + 65536
S_ROW = 544
L_T = L_S + 40 * S_ROW
L_REL = L_T + 640
L_NG = L_REL + 1280
L_TB = L_NG + 32
LDS2 = 162816

S_H, S_POS, S_OUT, S_WS, S_WAVE = 4, 6, 8, 10, 12
SWS, SQ, SH, SO, SP, SPO = 16, 20, 24, 28, 32, 36
S_T, S_N, S_TG0, S_NT, S_WIN, S_WLIM, S_TG = 48, 49, 50, 51, 52, 53, 47
ZB, FB = 54, 59
S_STG, S_M8, S_G5, S_IB = 64, 66, 68, 69
S_MK = 70
S_FIRST = 78

Z = (16, 32); E = 48; ACC = 64; M = 80; A0 = 88; A1 = 92; A2 = 96; BP = 100
I0 = 108; I1 = 112; B2 = 116; B2Q = 120; WXA = 136; WH = 144
ONE2 = 208; SR = 210; DV = 212
vA0, vA1, vA2, vB0, vB1, vSR, vLC, vS, vT = 214, 215, 216, 217, 218, 219, 220, 221, 222
vOS, vSL = 223, 224
cA2, cB0, cB1 = 225, 226, 227
FL = 228
NV = 236
S_WPH = 81

def zero_fill(a):
    for k in range(4): a(f"v_mov_b32 v{36+k}, 0")
    a("v_lshlrev_b32 v40, 4, v0")
    a("v_add_u32 v41, 0x10000, v40")
    for k in range(8): a(f"ds_write_b128 v40, v[36:39] offset:{k*8192}")
    a("ds_write_b128 v41, v[36:39]")

def mf32(d, x, y, c): return f"v_mfma_f32_32x32x16_bf16 v[{d}:{d+15}], v[{x}:{x+3}], v[{y}:{y+3}], {c}"
def z_mfmas(zn):
    return [mf32(zn, A0, I0, "0"), mf32(zn, A1, I1, f"v[{zn}:{zn+15}]"), mf32(zn, A2, B2, f"v[{zn}:{zn+15}]")]

def dma(a, slot):
    if "nodma" in EXP: return
    if "m255" in EXP:
        a(f"v_and_b32 v{SR}, 0x1ffff, v{SR}")
        a(f"v_and_b32 v{SR+1}, 0x1ffff, v{SR+1}")
    a(f"v_add_u32 v{DV}, v{SR}, v{vLC}")
    a(f"v_add_u32 v{DV+1}, v{SR+1}, v{vLC}")
    a(f"s_add_u32 m0, s{S_STG}, {slot*2048}")
    a("s_nop 0")
    a(f"buffer_load_dwordx4 v{DV}, s[{SQ}:{SQ+3}], 0 offen lds")
    a(f"s_add_u32 m0, s{S_STG}, {slot*2048+1024}")
    a("s_nop 0")
    a(f"buffer_load_dwordx4 v{DV+1}, s[{SQ}:{SQ+3}], 0 offen lds")

def flush(a, tmp):
    for q in range(8): a(f"v_cvt_pk_bf16_f32 v{FL+q}, v{ACC+2*q}, v{ACC+2*q+1}")
    a(f"s_mov_b64 exec, s[{S_M8}:{S_M8+1}]")
    a(f"ds_write_b128 v{vS}, v[{FL}:{FL+3}]")
    a(f"ds_write_b128 v{vS}, v[{FL+4}:{FL+7}] offset:16")
    a("s_mov_b64 exec, -1")
    a(mf32(tmp, WXA, FL, "0"))
    a(mf32(tmp, WXA + 4, FL + 4, f"v[{tmp}:{tmp+15}]"))
    for q in range(16): a(f"v_mov_b32 v{ACC+q}, 0")
    a(f"v_add_u32 v{vS}, {8*S_ROW}, v{vS}")
    a("s_mov_b32 exec_hi, 0")
    a(f"ds_add_f32 v{vT}, v{tmp}")
    a("s_mov_b64 exec, -1")
    a(f"v_add_u32 v{vT}, 128, v{vT}")
    shift_q(a, FB)

def rotate_b2(a):
    for q in range(4): a(f"v_mov_b32 v{B2+q}, v{B2Q+q}")
    for q in range(12): a(f"v_mov_b32 v{B2Q+q}, v{B2Q+4+q}")

def shift_q(a, base):
    for k in range(4): a(f"s_mov_b32 s{base+k}, s{base+k+1}")

def rec_loads(a, lbl):
    for it in range(4):
        a(f"s_add_u32 s40, s{S_IB}, s{S_WAVE}")
        if it: a(f"s_add_u32 s40, s40, {8*it}")
        a(f"v_cmp_lt_u32 s[{S_MK+2*it}:{S_MK+2*it+1}], s40, v{vSL}")
        a(f"v_add_u32 v36, s40, v{vOS}")
        a(f"v_lshlrev_b32 v37, 4, v36")
        a(f"v_add_u32 v37, v37, v42")
        a(f"v_lshlrev_b32 v38, 2, v36")
        a(f"v_add_u32 v38, v38, v43")
        a(f"s_and_b64 exec, exec, s[{S_MK+2*it}:{S_MK+2*it+1}]")
        a(f"s_cbranch_execz {lbl}_{it}")
        a(f"buffer_load_dwordx4 v[{16+4*it}:{19+4*it}], v37, s[{SWS}:{SWS+3}], s79 offen")
        a(f"buffer_load_dword v{32+it}, v38, s[{SWS}:{SWS+3}], s80 offen")
        a.label(f"{lbl}_{it}")
        a("s_mov_b64 exec, -1")

def rec_consts(a):
    a("s_mov_b32 s40, 40960")
    a("v_mul_lo_u32 v42, s40, v1")
    a("s_movk_i32 s40, 10240")
    a("v_mul_lo_u32 v43, s40, v1")
    a(f"s_mov_b32 s79, {WS_RECA}")
    a(f"s_mov_b32 s80, {WS_RECB}")

def build_recs(a, lbl):
    a("s_waitcnt vmcnt(0)")
    a("v_mov_b32 v58, 0x3f80")
    for it in range(4):
        RA, RB = 16 + 4 * it, 32 + it
        a(f"s_mov_b64 exec, s[{S_MK+2*it}:{S_MK+2*it+1}]")
        a(f"s_cbranch_execz {lbl}_{it}")
        a(f"v_lshrrev_b32 v44, 17, v{RB}")
        a(f"v_subrev_u32 v44, s{S_G5}, v44")
        a(f"v_lshlrev_b32 v45, 8, v44")
        a(f"v_lshl_add_u32 v45, v1, 2, v45")
        a(f"v_add_u32 v45, {L_REL}, v45")
        a(f"ds_read_b32 v46, v45")
        a(f"v_lshl_add_u32 v47, v44, 2, v59")
        a(f"ds_read_b32 v48, v47")
        a(f"s_add_u32 s40, s{S_IB}, s{S_WAVE}")
        if it: a(f"s_add_u32 s40, s40, {8*it}")
        a(f"s_sub_u32 s40, s40, s{S_WIN}")
        a(f"v_add_u32 v49, s40, v{vOS}")
        a(f"s_movk_i32 s41, {CAP*32}")
        a("s_waitcnt lgkmcnt(0)")
        a("v_add3_u32 v49, v49, v46, v48")
        a("v_cmp_gt_u32 vcc, s41, v49")
        a("s_and_b64 exec, exec, vcc")
        a(f"s_cbranch_execz {lbl}_{it}")
        a(f"v_and_b32 v50, 0x3fff, v{RB}")
        a("v_lshlrev_b32 v50, 9, v50")
        a("v_add_u32 v50, 512, v50")
        a("v_lshlrev_b32 v51, 2, v49")
        a(f"v_add_u32 v51, {L_SRC}, v51")
        a("ds_write_b32 v51, v50")
        a("v_lshrrev_b32 v52, 5, v49")
        a(f"v_mul_u32_u24 v52, {TILE}, v52")
        a("v_and_b32 v53, 31, v49")
        a("v_lshl_add_u32 v54, v53, 4, v52")
        a(f"ds_write_b128 v54, v[{RA}:{RA+3}] offset:2048")
        a("v_lshl_add_u32 v52, v53, 6, v52")
        a(f"v_bfe_u32 v54, v{RB}, 14, 3")
        a("v_lshl_add_u32 v52, v54, 1, v52")
        a("v_bfe_u32 v53, v53, 2, 2")
        a("v_lshl_add_u32 v54, v53, 4, v52")
        a("ds_write_b16 v54, v58")
        a("v_xor_b32 v55, 1, v53")
        a("v_lshl_add_u32 v55, v55, 4, v52")
        a(f"ds_write_b16_d16_hi v55, v{RA+2}")
        a("v_xor_b32 v56, 2, v53")
        a("v_lshl_add_u32 v56, v56, 4, v52")
        a(f"ds_write_b16 v56, v{RA+3}")
        a("v_xor_b32 v57, 3, v53")
        a("v_lshl_add_u32 v57, v57, 4, v52")
        a(f"ds_write_b16_d16_hi v57, v{RA+3}")
        a.label(f"{lbl}_{it}")
    a("s_mov_b64 exec, -1")

def a_reads(u1):
    sl = u1 % 4
    return [f"ds_read_b128 v[{A0}:{A0+3}], v{vA0} offset:{sl*2048}",
            f"ds_read_b128 v[{A1}:{A1+3}], v{vA1} offset:{sl*2048}",
            f"ds_read_b128 v[{A2}:{A2+3}], v{vA2} offset:{u1*TILE}"]
def bp_reads(u):
    return [f"ds_read_b64_tr_b16 v[{BP}:{BP+1}], v{vB0} offset:{u*TILE}",
            f"ds_read_b64_tr_b16 v[{BP+2}:{BP+3}], v{vB1} offset:{u*TILE}",
            f"ds_read_b64_tr_b16 v[{BP+4}:{BP+5}], v{vB0} offset:{u*TILE+1024}",
            f"ds_read_b64_tr_b16 v[{BP+6}:{BP+7}], v{vB1} offset:{u*TILE+1024}"]
def seg_mfmas():
    return [mf32(ACC, M, BP, f"v[{ACC}:{ACC+15}]"), mf32(ACC, M + 4, BP + 4, f"v[{ACC}:{ACC+15}]")]

OOL = []

def iteration(a, u):
    zc, zn = Z[u & 1], Z[(u + 1) & 1]
    sl = (u + 1) % 4
    att = {k: [] for k in range(16)}
    if "noprio" not in EXP: a(f"s_setprio {3-u}")
    if "nolw" not in EXP: a("s_waitcnt lgkmcnt(0)")
    a(f"s_cmp_eq_u32 s{S_TG}, s{FB}")
    a(f"s_cbranch_scc1 L2_fl_{u}")
    a.label(f"L2_fl_{u}_r")
    OOL.append((f"L2_fl_{u}", lambda a, zn=zn, u=u: (flush(a, zn), a(f"s_branch L2_fl_{u}_r"))))
    a(f"s_cmp_eq_u32 s{S_TG}, s{ZB}")
    a(f"s_cbranch_scc1 L2_rt_{u}")
    a.label(f"L2_rt_{u}_r")
    OOL.append((f"L2_rt_{u}", lambda a, u=u: (rotate_b2(a), shift_q(a, ZB), a(f"s_branch L2_rt_{u}_r"))))
    zm = z_mfmas(zn)
    nodma = "nodma" in EXP
    if "nomf" not in EXP: att[0].append(zm[0]); att[4].append(zm[1]); att[8].append(zm[2])
    if not nodma:
        if "m255" in EXP:
            att[0].append(f"v_and_b32 v{SR}, 0x1ffff, v{SR}")
            att[0].append(f"v_and_b32 v{SR+1}, 0x1ffff, v{SR+1}")
        att[1].append(f"v_add_u32 v{DV}, v{SR}, v{vLC}")
        att[1].append(f"s_add_u32 m0, s{S_STG}, {sl*2048}")
        att[2].append(f"v_add_u32 v{DV+1}, v{SR+1}, v{vLC}")
        att[2].append(f"buffer_load_dwordx4 v{DV}, s[{SQ}:{SQ+3}], 0 offen lds")
        att[5].append(f"s_add_u32 m0, s{S_STG}, {sl*2048+1024}")
        att[6].append(f"buffer_load_dwordx4 v{DV+1}, s[{SQ}:{SQ+3}], 0 offen lds")
    att[9].append(f"s_cmp_eq_u32 s{S_WPH}, 0")
    att[9].append(f"s_cbranch_scc1 L2_wl_{u}")
    att[9].append(f"L2_wl_{u}_r:")
    def wl(a, u=u):
        a("v_lshlrev_b32 v5, 4, v1")
        a(f"s_lshl_b32 s40, s{S_WAVE}, 14")
        a(f"s_add_u32 s40, s40, {WS_WHP + u*4096}")
        for q in range(4 * u, 4 * u + 4):
            a(f"buffer_load_dwordx4 v[{WH+4*q}:{WH+4*q+3}], v5, s[{SWS}:{SWS+3}], s40 offen offset:{(q%4)*1024}")
        a(f"s_branch L2_wl_{u}_r")
    OOL.append((f"L2_wl_{u}", wl))
    for k in range(16):
        a(f"v_exp_f32 v{E+k}, v{zc+k}")
        for x in att[k]: a(x)
    for k in range(8): a(f"v_pk_add_f32 v[{E+2*k}:{E+2*k+1}], v[{E+2*k}:{E+2*k+1}], v[{ONE2}:{ONE2+1}]")
    att = {k: [] for k in range(16)}
    sm = seg_mfmas()
    if "nomf" not in EXP: att[0].append(sm[0]); att[4].append(sm[1])
    if "nobp" not in EXP:
        for i, x in enumerate(bp_reads(u)): att[5 + i].append(x)
    att[9].append(f"s_cmp_lt_u32 s{S_WPH}, 2")
    att[9].append(f"s_cbranch_scc1 L2_wv_{u}")
    if not nodma and "novw" not in EXP: att[9].append("s_waitcnt vmcnt(6)")
    att[9].append(f"L2_wv_{u}_r:")
    def wv(a, u=u):
        a(f"s_cmp_eq_u32 s{S_WPH}, 0")
        a(f"s_cbranch_scc1 L2_wv_{u}_0")
        a(f"s_waitcnt vmcnt({(18, 14, 10, 6)[u]})")
        a(f"s_branch L2_wv_{u}_r")
        a.label(f"L2_wv_{u}_0")
        a(f"s_waitcnt vmcnt({(10, 14, 18, 22)[u]})")
        a(f"s_branch L2_wv_{u}_r")
    OOL.append((f"L2_wv_{u}", wv))
    if "noa" not in EXP:
        for i, x in enumerate(a_reads(u + 2)): att[10 + i].append(x)
    att[13].append(f"ds_read2_b32 v[{SR}:{SR+1}], v{vSR} offset0:{u*32} offset1:{u*32+16}")
    att[14].append(f"s_add_u32 s{S_T}, s{S_T}, 1")
    att[14].append(f"s_add_u32 s{S_TG}, s{S_TG}, 1")
    for k in range(16):
        a(f"v_rcp_f32 v{E+k}, v{E+k}")
        for x in att[k]: a(x)
    a(f"s_cmp_eq_u32 s{S_T}, s{S_N}")
    for k in range(8): a(f"v_pk_mul_f32 v[{E+2*k}:{E+2*k+1}], v[{E+2*k}:{E+2*k+1}], v[{zc+2*k}:{zc+2*k+1}]")
    for k in range(8): a(f"v_cvt_pk_bf16_f32 v{M+k}, v{E+2*k}, v{E+2*k+1}")
    a("s_cbranch_scc1 L2_win_end")

def build(diag=False):
    a = Asm(); a.diag = diag
    a(".text"); a(f".globl {NAME}"); a(".p2align 8"); a(f".type {NAME},@function")
    a.label(NAME)
    a(f"s_cmp_ge_u32 s2, {GRID2}")
    a("s_cbranch_scc1 L2_exit")
    a.stamp(0)
    a("s_load_dwordx4 s[4:7], s[0:1], 0")
    a("s_load_dwordx2 s[8:9], s[0:1], 64")
    a("s_load_dwordx2 s[10:11], s[0:1], 80")
    a("v_and_b32 v1, 63, v0")
    a("v_lshrrev_b32 v2, 6, v0")
    a("s_mul_i32 s68, s2, 5")
    a(f"v_readfirstlane_b32 s{S_WAVE}, v2")
    a(f"v_mul_u32_u24 v2, {TAB_STRIDE}, v1")
    a("s_mul_i32 s40, s2, 10")
    a(f"s_add_u32 s40, s40, {WS_TAB}")
    a(f"s_lshl_b32 s41, s{S_WAVE}, 1")
    a("s_add_u32 s41, s41, s40")
    a("s_waitcnt lgkmcnt(0)")
    srd(a, SWS, S_WS, 0, WS_USED)
    a(f"buffer_load_ushort v{vOS}, v2, s[{SWS}:{SWS+3}], s40 offen")
    a(f"buffer_load_ushort v{vSL}, v2, s[{SWS}:{SWS+3}], s40 offen offset:10")
    a(f"buffer_load_ushort v60, v2, s[{SWS}:{SWS+3}], s41 offen")
    a(f"buffer_load_ushort v61, v2, s[{SWS}:{SWS+3}], s41 offen offset:2")
    srd(a, SQ, S_WS, WS_Q, MAT_BYTES)
    srd(a, SH, S_H, 0, MAT_BYTES)
    srd(a, SO, S_OUT, 0, MAT_BYTES)
    srd(a, SP, S_POS, 0, 60000)
    srd(a, SPO, S_OUT, MAT_BYTES, 60000)
    a("v_and_b32 v3, 31, v1")
    a("v_lshrrev_b32 v4, 5, v1")
    a(f"s_lshl_b32 s42, s{S_WAVE}, 9")
    a("v_lshlrev_b32 v5, 4, v3")
    a("v_add_u32 v5, s42, v5")
    a(f"s_lshl_b32 s43, s{S_G5}, 12")
    a(f"s_add_u32 s43, s43, {WS_P}")
    a(f"s_sub_u32 s43, s43, {WS_WX}")
    a("v_mul_lo_u32 v6, s43, v4")
    a("v_add_u32 v5, v5, v6")
    a(f"v_add_u32 v5, {WS_WX}, v5")
    a("v_lshlrev_b32 v6, 12, v4")
    for g in range(5):
        d = B2 if g == 0 else B2Q + 4 * (g - 1)
        a(f"buffer_load_dwordx4 v[{d}:{d+3}], v5, s[{SWS}:{SWS+3}], 0 offen")
        if g < 4: a("v_add_u32 v5, v5, v6")
    a(f"s_lshl_b32 s42, s{S_WAVE}, 6")
    a(f"s_add_u32 s42, s42, {WS_WXP}")
    a("v_lshlrev_b32 v7, 4, v4")
    a(f"buffer_load_dwordx4 v[{WXA}:{WXA+3}], v7, s[{SWS}:{SWS+3}], s42 offen")
    a(f"buffer_load_dwordx4 v[{WXA+4}:{WXA+7}], v7, s[{SWS}:{SWS+3}], s42 offen offset:32")
    zero_fill(a)
    a(f"v_add_u32 v41, {L_T}, v40")
    a("s_movk_i32 s42, 40")
    a("v_cmp_gt_u32 vcc, s42, v0")
    a("s_and_b64 exec, exec, vcc")
    a("s_cbranch_execz L2_tz")
    a("ds_write_b128 v41, v[36:39]")
    a.label("L2_tz")
    a("s_mov_b64 exec, -1")
    a(f"v_mov_b32 v{ONE2}, 1.0")
    a(f"v_mov_b32 v{ONE2+1}, 1.0")
    for q in range(16): a(f"v_mov_b32 v{ACC+q}, 0")
    a(f"s_mov_b32 s{S_M8}, 0xff")
    a(f"s_mov_b32 s{S_M8+1}, 0xff")
    a(f"s_lshl_b32 s{S_STG}, s{S_WAVE}, 13")
    a(f"s_add_u32 s{S_STG}, s{S_STG}, {L_STAGE}")
    a("v_lshlrev_b32 v5, 3, v4")
    a("v_sub_u32 v5, v3, v5")
    a("v_mov_b32 v8, 0x3f80")
    a("v_mov_b32 v9, 0x3f800000")
    for st, I in enumerate((I0, I1)):
        if st: a("v_add_u32 v5, -16, v5")
        a("v_and_b32 v6, 1, v5")
        a("v_cmp_eq_u32 vcc, 1, v6")
        a("v_lshrrev_b32 v7, 1, v5")
        a("s_nop 0")
        a("v_cndmask_b32 v6, v8, v9, vcc")
        for q in range(4):
            a(f"v_cmp_eq_u32 vcc, {q}, v7")
            a("s_nop 1")
            a(f"v_cndmask_b32 v{I+q}, 0, v6, vcc")
    a("v_bfe_u32 v5, v3, 2, 2")
    a("v_xor_b32 v6, v4, v5")
    a("v_lshlrev_b32 v7, 6, v3")
    a(f"v_add_u32 v7, s{S_STG}, v7")
    a(f"v_lshl_add_u32 v{vA0}, v6, 4, v7")
    a("v_xor_b32 v6, 2, v6")
    a(f"v_lshl_add_u32 v{vA1}, v6, 4, v7")
    a("v_lshlrev_b32 v6, 4, v3")
    a("v_add_u32 v6, 2048, v6")
    a("v_lshlrev_b32 v7, 6, v3")
    a("v_lshl_add_u32 v7, v5, 4, v7")
    a("v_cmp_eq_u32 vcc, 1, v4")
    a("s_nop 1")
    a(f"v_cndmask_b32 v{cA2}, v6, v7, vcc")
    a("v_bfe_u32 v5, v1, 2, 2")
    a("v_lshl_add_u32 v5, v4, 2, v5")
    a("v_lshlrev_b32 v5, 6, v5")
    a("v_and_b32 v6, 1, v1")
    a("v_lshl_add_u32 v5, v6, 3, v5")
    a("v_bfe_u32 v6, v1, 4, 1")
    a("v_lshlrev_b32 v6, 1, v6")
    a("v_bfe_u32 v7, v1, 1, 1")
    a("v_or_b32 v6, v6, v7")
    a("v_xor_b32 v6, v6, v4")
    a(f"v_lshl_add_u32 v{cB0}, v6, 4, v5")
    a("v_xor_b32 v6, 2, v6")
    a("v_lshl_add_u32 v7, v6, 4, v5")
    a(f"v_add_u32 v{cB1}, 512, v7")
    a("v_and_b32 v5, 3, v1")
    a("v_bfe_u32 v6, v1, 4, 2")
    a("v_xor_b32 v5, v5, v6")
    a("v_lshlrev_b32 v5, 4, v5")
    a(f"s_lshl_b32 s42, s{S_WAVE}, 6")
    a("s_sub_u32 s42, s42, 512")
    a(f"v_add_u32 v{vLC}, s42, v5")
    a("v_and_b32 v5, 7, v1")
    a(f"v_mul_u32_u24 v5, {S_ROW}, v5")
    a("v_lshl_add_u32 v5, v4, 5, v5")
    a(f"s_lshl_b32 s42, s{S_WAVE}, 6")
    a(f"s_add_u32 s42, s42, {L_S}")
    a(f"v_add_u32 v{vS}, s42, v5")
    a("v_lshlrev_b32 v5, 2, v3")
    a(f"v_add_u32 v{vT}, {L_T}, v5")
    a("s_waitcnt vmcnt(7)")
    a(f"v_sub_u32 v{vSL}, v{vSL}, v{vOS}")
    a(f"s_mov_b32 s{S_IB}, 0")
    a(f"s_mov_b32 s{S_WIN}, 0")
    a(f"s_mov_b32 s{S_TG0}, 0")
    a(f"s_mov_b32 s{S_FIRST}, 1")
    rec_consts(a)
    rec_loads(a, "L2_ld0")
    a(f"s_cmp_ge_u32 s{S_WAVE}, 5")
    a("s_cbranch_scc1 L2_noscan")
    a("v_sub_u32 v62, v61, v60")
    a("v_mov_b32 v63, v62")
    for sh in (1, 2, 4, 8):
        a("s_nop 1")
        a(f"v_add_u32_dpp v63, v63, v63 row_shr:{sh} row_mask:0xf bank_mask:0xf")
    a("s_nop 1")
    a("v_add_u32_dpp v63, v63, v63 row_bcast:15 row_mask:0xa bank_mask:0xf")
    a("s_nop 1")
    a("v_add_u32_dpp v63, v63, v63 row_bcast:31 row_mask:0xc bank_mask:0xf")
    a("v_sub_u32 v62, v63, v62")
    a("v_sub_u32 v62, v62, v60")
    a(f"s_lshl_b32 s42, s{S_WAVE}, 8")
    a(f"s_add_u32 s42, s42, {L_REL}")
    a("v_lshlrev_b32 v45, 2, v1")
    a("v_add_u32 v45, s42, v45")
    a("ds_write_b32 v45, v62")
    a(f"s_lshl_b32 s42, s{S_WAVE}, 2")
    a(f"s_add_u32 s42, s42, {L_NG}")
    a("v_mov_b32 v45, s42")
    a("s_mov_b32 exec_lo, 0")
    a("s_mov_b32 exec_hi, 0x80000000")
    a("ds_write_b32 v45, v63")
    a("s_mov_b64 exec, -1")
    a.label("L2_noscan")
    a.label("L2_round_bar")
    a("s_waitcnt lgkmcnt(0)")
    a("s_barrier")
    a(f"s_cmp_eq_u32 s{S_FIRST}, 0")
    a("s_cbranch_scc1 L2_have_tb")
    a("v_lshlrev_b32 v45, 2, v1")
    a(f"v_add_u32 v45, {L_NG}, v45")
    a("s_mov_b32 exec_lo, 0xff")
    a("s_mov_b32 exec_hi, 0")
    a("ds_read_b32 v46, v45")
    a("s_waitcnt lgkmcnt(0)")
    a("v_add_u32 v46, 31, v46")
    a("v_lshrrev_b32 v46, 5, v46")
    a("v_max_u32 v46, 1, v46")
    a("s_nop 0")
    for g in range(5): a(f"v_readlane_b32 s{40+g}, v46, {g}")
    a(f"s_mov_b32 s{ZB}, s40")
    a(f"s_add_u32 s{ZB+1}, s{ZB}, s41")
    a(f"s_add_u32 s{ZB+2}, s{ZB+1}, s42")
    a(f"s_add_u32 s{ZB+3}, s{ZB+2}, s43")
    a(f"s_add_u32 s{S_NT}, s{ZB+3}, s44")
    a(f"s_mov_b32 s{ZB+4}, 0x7ffffff0")
    a("v_mov_b32 v46, 0")
    for g in range(1, 5):
        a(f"s_lshl_b32 s40, s{ZB+g-1}, 5")
        a(f"v_writelane_b32 v46, s40, {g}")
    for k in range(5): a(f"s_add_u32 s{FB+k}, s{ZB+k}, 1")
    for k in range(5): a(f"s_sub_u32 s{ZB+k}, s{ZB+k}, 1")
    a(f"s_lshl_b32 s40, s{S_WAVE}, 5")
    a(f"s_add_u32 s40, s40, {L_TB}")
    a("v_lshlrev_b32 v45, 2, v1")
    a("v_add_u32 v45, s40, v45")
    a("ds_write_b32 v45, v46")
    a("s_mov_b64 exec, -1")
    a.label("L2_have_tb")
    a(f"s_lshl_b32 s40, s{S_WAVE}, 5")
    a(f"s_add_u32 s40, s40, {L_TB}")
    a("v_mov_b32 v59, s40")
    a("s_waitcnt lgkmcnt(0)")
    a.stamp(3)
    build_recs(a, "L2_b0")
    a.label("L2_more")
    a(f"s_add_u32 s{S_IB}, s{S_IB}, 32")
    a(f"v_cmp_lt_u32 vcc, s{S_IB}, v{vSL}")
    a("s_cbranch_vccz L2_built")
    rec_loads(a, "L2_ld1")
    build_recs(a, "L2_b1")
    a("s_branch L2_more")
    a.label("L2_built")
    a("s_waitcnt lgkmcnt(0)")
    a("s_barrier")
    a.stamp(4)
    a(f"s_sub_u32 s{S_N}, s{S_NT}, s{S_TG0}")
    a(f"s_min_u32 s{S_N}, s{S_N}, {CAP}")
    a(f"s_mov_b32 s{S_T}, 0")
    a(f"s_mov_b32 s{S_TG}, s{S_TG0}")
    a(f"v_mov_b32 v{vA2}, v{cA2}")
    a(f"v_mov_b32 v{vB0}, v{cB0}")
    a(f"v_mov_b32 v{vB1}, v{cB1}")
    a("v_lshrrev_b32 v5, 2, v1")
    a("v_lshlrev_b32 v5, 2, v5")
    a(f"v_add_u32 v{vSR}, {L_SRC}, v5")
    for k in range(4):
        a(f"ds_read2_b32 v[{E+2*k}:{E+2*k+1}], v{vSR} offset0:{k*32} offset1:{k*32+16}")
    a(f"ds_read2_b32 v[{SR}:{SR+1}], v{vSR} offset0:128 offset1:144")
    a("s_waitcnt lgkmcnt(1)")
    for k in range(8):
        a(f"v_add_u32 v{E+k}, v{E+k}, v{vLC}")
        a(f"s_add_u32 m0, s{S_STG}, {k*1024}")
        a("s_nop 0")
        a(f"buffer_load_dwordx4 v{E+k}, s[{SQ}:{SQ+3}], 0 offen lds")
    for k in range(8): a(f"v_mov_b32 v{M+k}, 0")
    for k in range(8): a(f"v_mov_b32 v{BP+k}, 0")
    a(f"s_cmp_eq_u32 s{S_FIRST}, 0")
    a(f"s_cselect_b32 s{S_WPH}, 2, 0")
    a(f"s_mov_b32 s{S_FIRST}, 0")
    a("s_waitcnt vmcnt(6)")
    for x in a_reads(0): a(x)
    a("s_waitcnt lgkmcnt(0)")
    dma(a, 0)
    for m in z_mfmas(Z[0]): a(m)
    a(f"ds_read2_b32 v[{SR}:{SR+1}], v{vSR} offset0:160 offset1:176")
    a(f"v_add_u32 v{vSR}, 768, v{vSR}")
    a("s_waitcnt vmcnt(6)")
    for x in a_reads(1): a(x)
    a("s_nop 7")
    a.stamp(5)
    a.cstamp(1)
    a.label("L2_loop")
    OOL.clear()
    for u in range(4): iteration(a, u)
    a(f"v_add_u32 v{vA2}, {4*TILE}, v{vA2}")
    a(f"v_add_u32 v{vB0}, {4*TILE}, v{vB0}")
    a(f"v_add_u32 v{vB1}, {4*TILE}, v{vB1}")
    a(f"v_add_u32 v{vSR}, 512, v{vSR}")
    a(f"s_add_u32 s{S_WPH}, s{S_WPH}, 1")
    a(f"s_min_u32 s{S_WPH}, s{S_WPH}, 2")
    a("s_branch L2_loop")
    for lbl, fn in OOL:
        a.label(lbl); fn(a)
    a.label("L2_win_end")
    a("s_setprio 0")
    a("s_waitcnt lgkmcnt(0)")
    a(f"s_cmp_eq_u32 s{S_TG}, s{FB}")
    a("s_cbranch_scc0 L2_we_nf")
    flush(a, Z[0])
    a.label("L2_we_nf")
    for m in seg_mfmas(): a(m)
    a(f"s_add_u32 s{S_TG0}, s{S_TG0}, s{S_N}")
    a(f"s_cmp_ge_u32 s{S_TG0}, s{S_NT}")
    a("s_cbranch_scc1 L2_final")
    a("s_waitcnt vmcnt(0) lgkmcnt(0)")
    a("s_barrier")
    a(f"s_lshl_b32 s{S_WIN}, s{S_TG0}, 5")
    a(f"s_mov_b32 s{S_IB}, 0")
    zero_fill(a)
    rec_consts(a)
    rec_loads(a, "L2_ld2")
    a("s_branch L2_round_bar")

    a.label("L2_final")
    a.stamp(6)
    a.cstamp(2)
    RQ, HQ, O, BR = 88, 100, 16, 48
    a("v_and_b32 v3, 15, v1")
    a("v_lshrrev_b32 v4, 4, v1")
    a("v_lshrrev_b32 v5, 3, v3")
    a("v_lshlrev_b32 v5, 12, v5")
    a("v_and_b32 v6, 7, v3")
    a("v_lshl_add_u32 v5, v6, 4, v5")
    a("v_lshl_add_u32 v5, v4, 7, v5")
    a(f"s_lshl_b32 s40, s{S_WAVE}, 9")
    a("v_add_u32 v5, s40, v5")
    a(f"s_lshl_b32 s41, s{S_G5}, 12")
    a(f"s_add_u32 s41, s41, {WS_R}")
    a("v_lshlrev_b32 v6, 9, v3")
    a("v_lshl_add_u32 v6, v4, 4, v6")
    a(f"s_lshl_b32 s40, s{S_WAVE}, 6")
    a("v_add_u32 v6, s40, v6")
    a("s_mul_i32 s42, s2, 20480")
    for nb in range(3):
        a(f"buffer_load_dwordx4 v[{RQ+4*nb}:{RQ+4*nb+3}], v5, s[{SWS}:{SWS+3}], s41 offen")
        a("s_add_u32 s41, s41, 8192")
    for nb in range(3):
        a(f"s_add_u32 s43, s42, {nb*8192}")
        a(f"buffer_load_dwordx4 v[{HQ+4*nb}:{HQ+4*nb+3}], v6, s[{SH}:{SH+3}], s43 offen")
    a("v_lshlrev_b32 v7, 2, v1")
    a("s_mul_i32 s46, s2, 240")
    a(f"buffer_load_dword v8, v7, s[{SP}:{SP+3}], s46 offen")
    flush(a, Z[1])
    a(f"v_mul_u32_u24 v9, {S_ROW}, v3")
    a("v_lshl_add_u32 v9, v4, 4, v9")
    a(f"v_add_u32 v9, {L_S}, v9")
    a("s_waitcnt lgkmcnt(0)")
    a("s_barrier")
    a.lds = []
    seq = [(nb, ks) for nb in range(3) for ks in range(8)]
    def bread(i):
        nb, ks = seq[i]; q = BR + 4 * (i % 8)
        a.ds(f"ds_read_b128 v[{q}:{q+3}], v9 offset:{nb*16*S_ROW + ks*64}", ("B", i))
    for i in range(6): bread(i)
    for i, (nb, ks) in enumerate(seq):
        q = BR + 4 * (i % 8)
        a.wait_lds(("B", i))
        for cb in range(2):
            o = O + 8 * nb + 4 * cb; w = WH + 4 * (cb * 8 + ks)
            c = "0" if ks == 0 else f"v[{o}:{o+3}]"
            a(f"v_mfma_f32_16x16x32_bf16 v[{o}:{o+3}], v[{w}:{w+3}], v[{q}:{q+3}], {c}")
        if i + 6 < len(seq): bread(i + 6)
    a.stamp(7)
    a(f"s_mov_b32 s44, 0xffff0000")
    a(f"s_mov_b32 s45, {NLN2:#x}")
    a("s_waitcnt vmcnt(0)")
    X, EE = 48, 56
    for nb in range(3):
        o = O + 8 * nb
        if nb == 2:
            a("s_nop 1")
            a("s_mov_b32 exec_lo, 0x00ff00ff")
            a("s_mov_b32 exec_hi, 0x00ff00ff")
        for i in range(4):
            a(f"v_lshlrev_b32 v{X+2*i}, 16, v{RQ+4*nb+i}")
            a(f"v_and_b32 v{X+2*i+1}, s44, v{RQ+4*nb+i}")
        for k in range(8): a(f"v_add_f32 v{X+k}, v{X+k}, v{o+k}")
        for k in range(8): a(f"v_exp_f32 v{EE+k}, v{X+k}")
        for k in range(8): a(f"v_add_f32 v{EE+k}, 1.0, v{EE+k}")
        for k in range(8): a(f"v_rcp_f32 v{EE+k}, v{EE+k}")
        for k in range(8): a(f"v_mul_f32 v{X+k}, v{X+k}, v{EE+k}" if k else f"s_nop 0\nv_mul_f32 v{X+k}, v{X+k}, v{EE+k}")
        for i in range(4):
            a(f"v_lshlrev_b32 v{EE+2*i}, 16, v{HQ+4*nb+i}")
            a(f"v_and_b32 v{EE+2*i+1}, s44, v{HQ+4*nb+i}")
        for k in range(8): a(f"v_fma_f32 v{X+k}, v{X+k}, s45, v{EE+k}")
        d = 64 + 4 * nb
        for i in range(4): a(f"v_cvt_pk_bf16_f32 v{d+i}, v{X+2*i}, v{X+2*i+1}")
        a(f"s_add_u32 s43, s42, {nb*8192}")
        a(f"buffer_store_dwordx4 v[{d}:{d+3}], v6, s[{SO}:{SO+3}], s43 offen")
    a("s_mov_b64 exec, -1")
    a(f"s_cmp_lg_u32 s{S_WAVE}, 0")
    a("s_cbranch_scc1 L2_done")
    a("s_mov_b32 exec_hi, 0x0fffffff")
    for k in range(2):
        a(f"v_lshlrev_b32 v10, 1, v1")
        if k: a("v_add_u32 v10, 1, v10")
        a("v_mul_u32_u24 v11, 171, v10")
        a("v_lshrrev_b32 v11, 9, v11")
        a("v_mul_u32_u24 v12, 3, v11")
        a("v_sub_u32 v12, v10, v12")
        a("v_lshrrev_b32 v13, 3, v11")
        a("v_lshlrev_b32 v13, 5, v13")
        a("v_lshl_add_u32 v13, v12, 3, v13")
        a("v_and_b32 v11, 7, v11")
        a("v_add3_u32 v13, v13, v11, 8")
        a("v_lshlrev_b32 v13, 2, v13")
        a(f"v_add_u32 v13, {L_T}, v13")
        a(f"ds_read_b32 v{14+k}, v13")
    a("v_lshlrev_b32 v10, 16, v8")
    a("v_and_b32 v11, s44, v8")
    a("s_waitcnt lgkmcnt(0)")
    a("v_fma_f32 v10, v14, s45, v10")
    a("v_fma_f32 v11, v15, s45, v11")
    a("v_cvt_pk_bf16_f32 v10, v10, v11")
    a(f"buffer_store_dword v10, v7, s[{SPO}:{SPO+3}], s46 offen")
    a.label("L2_done")
    if a.diag:
        a("s_waitcnt vmcnt(0)")
        a.stamp(8)
        a.dump_stamps(S_WS, WS_DIAG2, S_WAVE, "e")
    a.label("L2_exit")
    a("s_endpgm")
    return a.text() + kernel_desc(NAME, NV, 82, diag)

if __name__ == "__main__":
    t = build()
    for p in check_hazards(t): print(p)
```

```python
import sys
from asmlib import check_hazards
import k1
from common import *
def build(which="12", diag=False):
    head = """; EGNN layer in two launches:
;   launch 1: P/Q/R = h @ {w_e[0:256], w_e[256:512], w_h[0:256]} (scaled by -log2 e), edge binning by destination
"""
    parts = []
    if "1" in which:
        head += f"; @launch kernel={k1.NAME} grid=({k1.GRID1},1,1) block=(512,1,1) lds={k1.LDS1}\n"
        parts.append(k1.build(diag))
    if "2" in which:
        import k2
        head += f"; @launch kernel={k2.NAME} grid=({k2.GRID2},1,1) block=(512,1,1) lds={k2.LDS2}\n"
        parts.append(k2.build(diag))
    txt = head + '.amdgcn_target "amdgcn-amd-amdhsa--gfx950"\n' + "".join(parts)
    probs = check_hazards(txt)
    for p in probs: print("HAZARD", p)
    return txt
if __name__ == "__main__":
    which = sys.argv[1] if len(sys.argv) > 1 else "12"
    if len(sys.argv) > 4:
        import k2
        k2.EXP.update(sys.argv[4].split(","))
    out = sys.argv[2] if len(sys.argv) > 2 else "../cdna_kernels/standalone__cheap_equivariant_egnn__graph.s"
    open(out, "w").write(build(which, len(sys.argv) > 3 and sys.argv[3] == "diag"))
    print("wrote", out)
```

```python
import re

def v(i, n=1):
    return f"v{i}" if n == 1 else f"v[{i}:{i+n-1}]"
def s(i, n=1):
    return f"s{i}" if n == 1 else f"s[{i}:{i+n-1}]"

class Asm:
    def __init__(self):
        self.L = []
        self.lds = []
        self.vm = []
    def __call__(self, text):
        for line in text.split("\n"):
            line = line.strip()
            if line:
                self.L.append(line)
    def label(self, name):
        self.L.append(name + ":")
    def comment(self, text):
        self.L.append("; " + text)
    diag = False
    def stamp(self, i):
        if self.diag:
            self("s_memrealtime s[100:101]")
            self("s_waitcnt lgkmcnt(0)")
            self(f"s_mov_b32 s{88+i}, s100")
            self.lds = []
    def cstamp(self, i):
        if self.diag:
            self("s_memtime s[100:101]")
            self("s_waitcnt lgkmcnt(0)")
            self(f"s_mov_b32 s{88+i}, s100")
            self.lds = []
    def dump_stamps(self, ws_sgpr, off, wave_sgpr):
        if not self.diag: return
        self("s_mov_b64 exec, -1")
        self(f"s_add_u32 s52, s{ws_sgpr}, {off}")
        self(f"s_addc_u32 s53, s{ws_sgpr+1}, 0")
        self("s_mov_b32 s54, 0x100000")
        self("s_mov_b32 s55, 0x00020000")
        self("v_mov_b32 v250, 0")
        for i in range(12):
            self(f"v_writelane_b32 v250, s{88+i}, {i}")
        self("v_and_b32 v251, 63, v0")
        self("v_lshlrev_b32 v251, 2, v251")
        self("s_lshl_b32 s56, s2, 3")
        self(f"s_add_u32 s56, s56, s{wave_sgpr}")
        self("s_lshl_b32 s56, s56, 6")
        self("v_add_u32 v251, s56, v251")
        self("s_mov_b32 exec_lo, 0xffff")
        self("s_mov_b32 exec_hi, 0")
        self("buffer_store_dword v250, v251, s[52:55], 0 offen")
        self("s_waitcnt vmcnt(0)")
    def ds(self, text, tag=None):
        self(text); self.lds.append(tag)
    def mem(self, text, tag=None):
        self(text); self.vm.append(tag)
    def wait_lds(self, tag):
        idx = max(i for i, t in enumerate(self.lds) if t == tag)
        n = len(self.lds) - 1 - idx
        assert n <= 14, n
        self(f"s_waitcnt lgkmcnt({n})")
        self.lds = self.lds[idx + 1:]
    def wait_lds_if(self, tag):
        if tag in self.lds:
            self.wait_lds(tag)
    def wait_vm(self, tag):
        idx = max(i for i, t in enumerate(self.vm) if t == tag)
        n = len(self.vm) - 1 - idx
        assert n <= 62, n
        self(f"s_waitcnt vmcnt({n})")
        self.vm = self.vm[idx + 1:]
    def wait_all(self, vm=True, lds=True):
        parts = []
        if vm: parts.append("vmcnt(0)"); self.vm = []
        if lds: parts.append("lgkmcnt(0)"); self.lds = []
        self("s_waitcnt " + " ".join(parts))
    def text(self):
        out = []
        for l in self.L:
            if l.endswith(":") or l.startswith(".") or l.startswith(";"):
                out.append(l)
            else:
                out.append("    " + l)
        return "\n".join(out) + "\n"

TRANS = ("v_exp_", "v_log_", "v_rcp_", "v_rsq_", "v_sqrt_", "v_sin_", "v_cos_")
def regs(op):
    op = op.strip()
    neg = op.lstrip("-|").rstrip("|")
    m = re.fullmatch(r"([vsa])(\d+)", neg)
    if m: return {(m.group(1), int(m.group(2)))}
    m = re.fullmatch(r"([vsa])\[(\d+):(\d+)\]", neg)
    if m: return {(m.group(1), i) for i in range(int(m.group(2)), int(m.group(3)) + 1)}
    if neg in ("vcc", "vcc_lo", "vcc_hi"): return {("s", "vcc")}
    if neg in ("exec", "exec_lo", "exec_hi"): return {("s", "exec")}
    if neg == "m0": return {("s", "m0")}
    return set()

class Ins:
    def __init__(self, text, idx):
        self.text = text; self.idx = idx
        t = text.split(";")[0].strip()
        parts = t.split(None, 1)
        self.mn = parts[0]
        rest = parts[1] if len(parts) > 1 else ""
        ops = [o.strip() for o in re.split(r",(?![^\[]*\])", rest)] if rest else []
        if ops:
            last = ops[-1].split()
            self.mods = " ".join(last[1:])
            ops[-1] = last[0] if last else ""
        else:
            self.mods = ""
        self.ops = ops
        mn = self.mn
        self.is_mfma = mn.startswith("v_mfma")
        self.is_valu = mn.startswith("v_") and not self.is_mfma
        self.is_trans = mn.startswith(TRANS)
        self.is_ds = mn.startswith("ds_")
        self.is_vmem = mn.startswith(("buffer_", "global_"))
        self.is_salu = mn.startswith("s_")
        self.is_dpp = bool(re.search(r"row_|quad_perm|wave_|bcast", self.mods)) or mn.endswith("_dpp")
        self.w = set(); self.r = set(); self.ra = set(); self.rb = set(); self.rc = set()
        self.store_data = set(); self.ldst = set()
        R = [regs(o) for o in ops]
        if self.is_mfma:
            self.w = R[0]; self.ra = R[1]; self.rb = R[2]; self.rc = R[3]
            self.r = self.ra | self.rb | self.rc
            self.passes = 8 if "32x32" in mn else 4
        elif self.is_valu:
            if mn.startswith("v_cmp"):
                self.w = R[0]; self.r = set().union(*R[1:])
            elif mn.startswith(("v_add_co", "v_sub_co", "v_addc_co", "v_subb_co")):
                self.w = R[0] | R[1]; self.r = set().union(*R[2:])
            elif mn.startswith("v_permlane"):
                self.w = R[0] | R[1]; self.r = R[0] | R[1]
            else:
                self.w = R[0]; self.r = set().union(*R[1:]) if len(R) > 1 else set()
                if mn.startswith(("v_fmac", "v_mac", "v_writelane", "v_pk_fmac")) or self.is_dpp:
                    self.r |= R[0]
                if mn.startswith("v_cndmask") and len(R) == 3:
                    self.r |= {("s", "vcc")}
        elif self.is_ds:
            if mn.startswith("ds_read") or "_rtn" in mn or mn.startswith(("ds_bpermute", "ds_permute", "ds_swizzle")):
                self.ldst = R[0]; self.r = set().union(*R[1:])
            else:
                self.r = set().union(*R)
                self.store_data = set().union(*R[1:])
        elif self.is_vmem:
            lds = " lds" in (" " + self.mods)
            if "load" in mn and not lds:
                self.ldst = R[0]; self.r = set().union(*R[1:])
            elif "load" in mn and lds:
                self.r = set().union(*R) | {("s", "m0")}
                self.dma = True
            else:
                self.r = set().union(*R)
                self.store_data = R[0] if mn.startswith("buffer_") else R[1]
        elif self.is_salu:
            if mn.startswith(("s_cmp", "s_waitcnt", "s_nop", "s_barrier", "s_branch", "s_cbranch", "s_endpgm", "s_setprio", "s_sleep")):
                self.r = set().union(*R) if R else set()
            else:
                self.w = R[0] if R else set(); self.r = set().union(*R[1:]) if len(R) > 1 else set()
                if "saveexec" in mn: self.w |= {("s", "exec")}
        self.states = 1
        if mn == "s_nop": self.states = int(ops[0], 0) + 1

def check_hazards(text):
    ins = []; labels = {}
    for line in text.split("\n"):
        t = line.split(";")[0].strip()
        if not t or t.startswith("."):
            continue
        if t.endswith(":"):
            labels[t[:-1]] = len(ins); continue
        ins.append(Ins(t, len(ins)))
    def succ(i):
        x = ins[i]
        if x.mn == "s_endpgm": return []
        if x.mn == "s_branch": return [labels[x.ops[0]]]
        out = [i + 1] if i + 1 < len(ins) else []
        if x.mn.startswith("s_cbranch"): out.append(labels[x.ops[0]])
        return out
    problems = []
    def need(p, c):
        n = 0
        vw = {r for r in p.w if r[0] in "va"}
        sw = {r for r in p.w if r[0] == "s"}
        if p.is_valu:
            if c.is_mfma and vw & c.r: n = max(n, 2)
            if p.is_trans and c.is_valu and not c.is_trans and vw & c.r: n = max(n, 1)
            if c.is_valu and c.is_dpp and vw & c.r: n = max(n, 2)
            if c.mn.startswith(("v_readlane", "v_readfirstlane")) and vw & c.r: n = max(n, 1)
            if c.mn.startswith("v_permlane") and vw & c.r: n = max(n, 2)
            if sw:
                if c.is_valu and sw & c.r: n = max(n, 4 if c.mn.startswith(("v_readlane", "v_writelane")) else 2)
                if c.is_vmem and sw & c.r: n = max(n, 5)
        if p.is_mfma:
            big = p.passes == 8
            if c.is_mfma:
                if p.w & (c.ra | c.rb): n = max(n, 12 if big else 8)
                if p.w & c.rc and not (p.w == c.rc and p.passes == c.passes): n = max(n, 10 if big else 6)
                if p.w & c.w and not (p.w & c.rc) : n = max(n, 0)
            else:
                if (c.is_valu and p.w & (c.r | c.w)) or ((c.is_ds or c.is_vmem) and p.w & (c.r | c.ldst)):
                    n = max(n, 12 if big else 8)
            if c.is_valu and p.rc & c.w and not (p.rc & p.w): n = max(n, 7 if big else 3)
        if (p.is_vmem or p.is_ds) and p.store_data and len(p.store_data) >= 3:
            if c.is_valu and p.store_data & c.w: n = max(n, 2)
            if (c.is_ds or c.is_vmem) and p.store_data & c.ldst: n = max(n, 1)
        if p.is_salu and ("s", "m0") in p.w and getattr(c, "dma", False): n = max(n, 1)
        return n
    MAXD = 12
    for p in ins:
        if not (p.w or p.store_data or p.is_mfma): continue
        stack = [(j, 0) for j in succ(p.idx)]
        seen = set()
        while stack:
            j, d = stack.pop()
            if (j, d) in seen or d >= MAXD or j >= len(ins): continue
            seen.add((j, d))
            c = ins[j]
            n = need(p, c)
            if n > d:
                problems.append(f"need {n} have {d}: [{p.idx}] {p.text}  ->  [{c.idx}] {c.text}")
            for k in succ(j): stack.append((k, d + c.states))
    return problems
```

```python
N_NODES = 10000
N_EDGES = 160000
WS_Q    = 0
WS_P    = 0x500000
WS_R    = 0xA00000
WS_RECA = 0xF00000
WS_RECB = 0x1200000
WS_TAB  = 0x1300000
WS_WHP  = 0x1400000
WS_WX   = 0x1420000
WS_WXP  = 0x1421000
WS_USED = 0x1430000
WS_DIAG = 0x1500000
MAT_BYTES = 5120000
NCH = 60
CH_E = 2667
CH_STRIDE = 2688
TAB_STRIDE = 4096
NLOG2E = 0xBFB8AA3B
NLN2 = 0xBF317218
SRD3 = 0x00020000

def srd(a, d, base, off, size):
    if off:
        a(f"s_add_u32 s{d}, s{base}, {off}")
        a(f"s_addc_u32 s{d+1}, s{base+1}, 0")
    else:
        a(f"s_mov_b32 s{d}, s{base}")
        a(f"s_mov_b32 s{d+1}, s{base+1}")
    a(f"s_mov_b32 s{d+2}, {size}")
    a(f"s_mov_b32 s{d+3}, {SRD3:#x}")

def kernel_desc(name, nvgpr, nsgpr):
    return f""".section .rodata,"a"
.p2align 6
.amdhsa_kernel {name}
  .amdhsa_next_free_vgpr {nvgpr}
  .amdhsa_next_free_sgpr {nsgpr}
  .amdhsa_accum_offset {(nvgpr + 3) // 4 * 4}
  .amdhsa_group_segment_fixed_size 0
  .amdhsa_kernarg_size 88
  .amdhsa_user_sgpr_count 2
  .amdhsa_user_sgpr_kernarg_segment_ptr 1
  .amdhsa_system_sgpr_workgroup_id_x 1
  .amdhsa_float_denorm_mode_32 3
.end_amdhsa_kernel
"""

S_WAVE = 3
P_H, P_POS, P_EA, P_SRC, P_DST, P_WE, P_WX, P_WH, P_WS, P_OUT, P_DBG = 4, 6, 8, 10, 12, 14, 16, 18, 20, 22, 24
R0, R1, R2, R3, R4, R5 = 28, 32, 36, 40, 44, 48
T = list(range(52, 64))
N_RANGE = 63
WG_SORT0 = 3 * N_RANGE
WG_PACK = WG_SORT0 + NCH
GRID = 250
CNT_SORT = ((0, 30), (16, 30))
CNT_GEMM = ((32, 48), (40, 48), (48, 47), (56, 47))
```

```python
from asmlib import *
from common import *

ST = " sc1"
W = S_WAVE

def signal(a, dword_expr_sgpr):
    a("s_waitcnt vmcnt(0) lgkmcnt(0)")
    a("s_barrier")
    a(f"s_cmp_lg_u32 s{W}, 0")
    a("s_cbranch_scc1 L_phase2")
    srd(a, R5, P_DBG, 0, 256)
    a(f"s_lshl_b32 s{T[0]}, s{dword_expr_sgpr}, 2")
    a(f"v_mov_b32 v2, s{T[0]}")
    a("v_mov_b32 v3, 1")
    a("s_mov_b32 exec_lo, 1")
    a("s_mov_b32 exec_hi, 0")
    a(f"buffer_atomic_add v3, v2, s[{R5}:{R5+3}], 0 offen sc1")
    a("s_mov_b64 exec, -1")
    a("s_branch L_phase2")

def gemm_counter(a):
    a(f"s_and_b32 s{T[1]}, s2, 3")
    a(f"s_lshl_b32 s{T[1]}, s{T[1]}, 3")
    a(f"s_add_u32 s{T[1]}, s{T[1]}, 32")
    return T[1]

def w_lane_offsets(a):
    a("v_lshrrev_b32 v2, 2, v1")
    a("v_lshlrev_b32 v2, 9, v2")
    a("v_and_b32 v3, 3, v1")
    a("v_lshl_add_u32 v2, v3, 4, v2")
    a(f"s_lshl_b32 s{T[0]}, s{W}, 6")
    a(f"v_add_u32 v2, s{T[0]}, v2")

def w_dma(a, srdw):
    a(f"s_lshl_b32 s{T[1]}, s{W}, 14")
    for i in range(16):
        a(f"s_add_u32 m0, s{T[1]}, {i*1024}")
        a(f"s_mov_b32 s{T[2]}, {i*8192}")
        a.mem(f"buffer_load_dwordx4 v2, s[{srdw}:{srdw+3}], s{T[2]} offen lds", ("W", i))

def gemm(a, mat):
    nm = "PQR"[mat]
    VW, VF, ACC, PK = 64, 128, (192, 208), 224
    VA = 8
    vH = (3, 4)
    sRange, sH0, sHL, sO, sScale, sTmp = T[6], T[7], T[8], T[9], T[4], T[2]
    SW_, SH_, SO_ = R0, R1, R2
    a.label(f"L1_gemm_{nm}")
    if mat == 0: srd(a, SW_, P_WE, 0, 131072)
    if mat == 1: srd(a, SW_, P_WE, 131072, 131072)
    if mat == 2: srd(a, SW_, P_WH, 0, 131072)
    srd(a, SH_, P_H, 0, MAT_BYTES)
    w_lane_offsets(a)
    a("v_lshrrev_b32 v5, 5, v1")
    a(f"s_lshl_b32 s{T[0]}, s{W}, 2")
    a("v_and_b32 v6, 31, v1")
    for i in range(2):
        a(f"v_add_u32 v7, s{T[0]}, v5")
        if i: a("v_add_u32 v7, 2, v7")
        a("v_and_b32 v16, 15, v7")
        a("v_xor_b32 v16, v16, v6")
        a("v_lshlrev_b32 v16, 4, v16")
        a(f"v_lshl_add_u32 v{vH[i]}, v7, 9, v16")
    a(f"s_mul_i32 s{sH0}, s{sRange}, 81920")
    a(f"s_lshl_b32 s{sHL}, s{W}, 11")
    def h_dma(Tt, ldsbase):
        for i in range(2):
            a(f"s_add_u32 m0, s{sHL}, {ldsbase + i*1024}")
            a(f"s_add_u32 s{sTmp}, s{sH0}, {Tt*16384}")
            a.mem(f"buffer_load_dwordx4 v{vH[i]}, s[{SH_}:{SH_+3}], s{sTmp} offen lds", ("H", Tt))
    h_dma(0, 131072)
    h_dma(1, 147456)
    w_dma(a, SW_)
    srd(a, SO_, P_WS, (WS_P, WS_Q, WS_R)[mat], MAT_BYTES)
    a("v_lshrrev_b32 v5, 5, v1")
    a("v_bfe_u32 v6, v1, 2, 2")
    a("v_lshl_add_u32 v6, v5, 3, v6")
    a("v_lshlrev_b32 v6, 6, v6")
    a("v_bfe_u32 v7, v1, 4, 1")
    a("v_and_b32 v16, 3, v1")
    a("v_lshl_add_u32 v7, v7, 2, v16")
    if mat == 0:
        a("v_lshlrev_b32 v7, 3, v7")
    else:
        a("v_and_b32 v16, 1, v7")
        a("v_lshlrev_b32 v16, 5, v16")
        a("v_lshrrev_b32 v7, 1, v7")
        a("v_lshl_add_u32 v7, v7, 3, v16")
    a("v_add_u32 v5, v6, v7")
    a(f"s_lshl_b32 s{T[1]}, s{W}, 14")
    a(f"v_add_u32 v5, s{T[1]}, v5")
    a("v_and_b32 v6, 31, v1")
    a("v_lshrrev_b32 v7, 5, v1")
    a("v_and_b32 v16, 15, v6")
    a("v_xor_b32 v7, v7, v16")
    a("v_lshlrev_b32 v6, 9, v6")
    a("v_add_u32 v6, 0x20000, v6")
    for k in range(8):
        a(f"v_xor_b32 v16, {2*k}, v7")
        a(f"v_lshl_add_u32 v{VA+k}, v16, 4, v6")
    a("v_and_b32 v6, 31, v1")
    a("v_lshrrev_b32 v7, 5, v1")
    a(f"s_mul_i32 s{sO}, s{sRange}, 81920")
    if mat == 0:
        a(f"s_lshl_b32 s{T[0]}, s{W}, 9")
        a("v_lshlrev_b32 v17, 4, v6")
        a("v_lshl_add_u32 v17, v7, 12, v17")
        a(f"v_add_u32 v17, s{T[0]}, v17")
    elif mat == 2:
        a(f"s_lshl_b32 s{T[0]}, s{W}, 9")
        a("v_lshrrev_b32 v17, 3, v6")
        a("v_lshlrev_b32 v17, 12, v17")
        a("v_lshl_add_u32 v17, v7, 8, v17")
        a("v_and_b32 v16, 7, v6")
        a("v_lshl_add_u32 v17, v16, 4, v17")
        a(f"v_add_u32 v17, s{T[0]}, v17")
    else:
        a(f"s_lshl_b32 s{T[0]}, s{W}, 11")
        a(f"s_add_u32 s{T[0]}, s{T[0]}, 65536")
        a("v_bfe_u32 v16, v6, 1, 2")
        a("v_lshlrev_b32 v19, 1, v7")
        a("v_xor_b32 v19, v19, v16")
        a("v_lshlrev_b32 v20, 6, v6")
        a(f"v_add_u32 v20, s{T[0]}, v20")
        a("v_lshl_add_u32 v17, v19, 4, v20")
        a("v_xor_b32 v19, 1, v19")
        a("v_lshl_add_u32 v18, v19, 4, v20")
        a("v_lshrrev_b32 v6, 2, v1")
        a("v_bfe_u32 v16, v1, 3, 2")
        a("v_and_b32 v7, 3, v1")
        a("v_xor_b32 v16, v16, v7")
        a("v_lshlrev_b32 v19, 6, v6")
        a("v_lshl_add_u32 v19, v16, 4, v19")
        a(f"v_add_u32 v19, s{T[0]}, v19")
        a(f"s_lshl_b32 s{T[0]}, s{W}, 6")
        a("v_lshlrev_b32 v20, 9, v6")
        a("v_lshl_add_u32 v20, v7, 4, v20")
        a(f"v_add_u32 v20, s{T[0]}, v20")
    a(f"s_mov_b32 s{sScale}, {NLOG2E:#x}")
    a.stamp(1)
    a.wait_vm(("H", 1))
    a("s_barrier")
    a.stamp(2)

    def trread(st):
        for i in range(2):
            a.ds(f"ds_read_b64_tr_b16 v[{VW+4*st+2*i}:{VW+4*st+2*i+1}], v5 offset:{st*1024+i*256}", ("TR", st))
    def fread(u):
        Tt, st = divmod(u, 16)
        base = Tt * 16384 if Tt < 2 else (Tt - 2) * 16384
        q = VF + 4 * (u % 16)
        a.ds(f"ds_read_b128 v[{q}:{q+3}], v{VA + (st & 7)} offset:{base + 256*(st >> 3)}", ("F", u))
    def mfma(u):
        Tt, st = divmod(u, 16)
        q = VF + 4 * (u % 16); w = VW + 4 * st; acc = ACC[Tt & 1]
        c = "0" if st == 0 else f"v[{acc}:{acc+15}]"
        A, B = (q, w) if mat == 0 else (w, q)
        a(f"v_mfma_f32_32x32x16_bf16 v[{acc}:{acc+15}], v[{A}:{A+3}], v[{B}:{B+3}], {c}")
    def epi(Tt):
        acc = ACC[Tt & 1]
        ops = []
        for j in range(8):
            ops.append(f"v_mul_f32 v{acc+2*j}, s{sScale}, v{acc+2*j}")
            ops.append(f"v_mul_f32 v{acc+2*j+1}, s{sScale}, v{acc+2*j+1}")
        for j in range(8):
            ops.append(f"v_cvt_pk_bf16_f32 v{PK+j}, v{acc+2*j}, v{acc+2*j+1}")
        if mat == 0:
            ops.append("s_nop 1")
            for q in (0, 2):
                ops.append(f"v_permlane32_swap_b32 v{PK+2*q}, v{PK+2*q+2}")
                ops.append(f"v_permlane32_swap_b32 v{PK+2*q+1}, v{PK+2*q+3}")
            for q in (0, 2):
                ops.append(f"s_add_u32 s{sTmp}, s{sO}, {Tt*16384 + q*4096}")
                ops.append(("vm", f"buffer_store_dwordx4 v[{PK+2*q}:{PK+2*q+3}], v17, s[{SO_}:{SO_+3}], s{sTmp} offen{ST}", ("S", Tt)))
        elif mat == 2:
            ops.append(f"s_add_u32 s{sTmp}, s{sO}, {Tt*16384}")
            for i in range(2):
                ops.append(("vm", f"buffer_store_dwordx4 v[{PK+4*i}:{PK+4*i+3}], v17, s[{SO_}:{SO_+3}], s{sTmp} offen offset:{i*128}{ST}", ("S", Tt)))
        else:
            ops.append(("ds", f"ds_write_b128 v17, v[{PK}:{PK+3}]", ("QW", Tt)))
            ops.append(("ds", f"ds_write_b128 v18, v[{PK+4}:{PK+7}]", ("QW", Tt)))
            ops.append(("waitlds", ("QW", Tt)))
            ops.append(("ds", f"ds_read_b128 v[232:235], v19", ("QR0", Tt)))
            ops.append(("ds", f"ds_read_b128 v[236:239], v19 offset:1024", ("QR1", Tt)))
            ops.append(f"s_add_u32 s{sTmp}, s{sO}, {Tt*16384}")
            ops.append(("waitlds", ("QR0", Tt)))
            ops.append(("vm", f"buffer_store_dwordx4 v[232:235], v20, s[{SO_}:{SO_+3}], s{sTmp} offen{ST}", ("S", Tt)))
            ops.append(f"s_add_u32 s{sTmp}, s{sO}, {Tt*16384 + 8192}")
            ops.append(("waitlds", ("QR1", Tt)))
            ops.append(("vm", f"buffer_store_dwordx4 v[236:239], v20, s[{SO_}:{SO_+3}], s{sTmp} offen{ST}", ("S", Tt)))
        return ops
    def emit(op):
        if isinstance(op, str): a(op)
        elif op[0] == "vm": a.mem(op[1], op[2])
        elif op[0] == "ds": a.ds(op[1], op[2])
        elif op[0] == "waitlds": a.wait_lds_if(op[1])
    PD = 8
    def stream(tiles, pend, first=False):
        u0, u1 = tiles[0] * 16, (tiles[-1] + 1) * 16
        for u in range(u0, u0 + (6 if first else PD)): fread(u)
        if first:
            for st in range(2):
                a.wait_vm(("W", st)); trread(st)
        nxt = u0 + (6 if first else PD)
        for u in range(u0, u1):
            Tt, st = divmod(u, 16)
            if st == 0 and u > u0:
                assert not pend
                pend = epi(Tt - 1)
            if first and Tt == 0:
                if st + 2 < 16:
                    a.wait_vm(("W", st + 2)); trread(st + 2)
                a.wait_lds_if(("TR", st))
            a.wait_lds_if(("F", u))
            mfma(u)
            if first and u == 15:
                a("s_barrier")
                for T2 in (2, 3, 4): h_dma(T2, (T2 - 2) * 16384)
            depth = 6 if (first and Tt == 0) else PD
            while nxt < u1 and nxt <= u + depth:
                fread(nxt); nxt += 1
            if st >= 5 and pend:
                k = -(-len(pend) // (16 - st))
                for op in pend[:k]: emit(op)
                pend = pend[k:]
        assert not pend
        return epi(tiles[-1])
    pend = stream([0, 1], [], first=True)
    a.stamp(3)
    for k in range(8): a(f"v_add_u32 v{VA+k}, 0xfffe0000, v{VA+k}")
    a.wait_vm(("H", 4))
    a("s_barrier")
    pend = stream([2, 3, 4], pend)
    a("s_nop 7"); a("s_nop 3")
    a.stamp(4)
    for op in pend: emit(op)
    signal(a, gemm_counter(a))

def sort(a):
    POS, HIST, WSUM, RECA = 0, 65536, 70656, 71680
    RECB = RECA + CH_STRIDE * 16
    NR = 6
    D, SX, EA = 8, 14, 20
    RA, RB, BA, RK = 32, 56, 62, 68
    t = 76
    sC, sE4, sE8, sTmp = T[6], T[7], T[8], T[2]
    MK = 62
    a.label("L1_sort")
    a(f"s_sub_u32 s{sC}, s2, {WG_SORT0}")
    srd(a, R0, P_DST, 0, N_EDGES * 4)
    srd(a, R1, P_SRC, 0, N_EDGES * 4)
    a(f"s_mul_i32 s{sE4}, s{sC}, {CH_E*4}")
    a(f"s_mul_i32 s{sE8}, s{sC}, {CH_E*8}")
    a("v_lshlrev_b32 v2, 2, v0")
    for i in range(NR):
        a(f"s_add_u32 s{sTmp}, s{sE4}, {i*2048}")
        a(f"buffer_load_dword v{D+i}, v2, s[{R0}:{R0+3}], s{sTmp} offen")
    srd(a, R3, P_POS, 0, 60000)
    a("v_lshlrev_b32 v4, 4, v1")
    for j in range(8):
        a(f"s_lshl_b32 s{T[0]}, s{W}, 10")
        a(f"s_add_u32 s{T[0]}, s{T[0]}, {j*8192}")
        a(f"s_mov_b32 m0, s{T[0]}")
        a("s_nop 0")
        a(f"buffer_load_dwordx4 v4, s[{R3}:{R3+3}], s{T[0]} offen lds")
    for i in range(NR):
        a(f"s_add_u32 s{sTmp}, s{sE4}, {i*2048}")
        a(f"buffer_load_dword v{SX+i}, v2, s[{R1}:{R1+3}], s{sTmp} offen")
    srd(a, R2, P_EA, 0, N_EDGES * 8)
    a("v_lshlrev_b32 v3, 3, v0")
    for i in range(NR):
        a(f"s_add_u32 s{sTmp}, s{sE8}, {i*4096}")
        a(f"buffer_load_dwordx2 v[{EA+2*i}:{EA+2*i+1}], v3, s[{R2}:{R2+3}], s{sTmp} offen")
    srd(a, R4, P_WS, 0, WS_USED)
    for k in range(4): a(f"v_mov_b32 v{t+k}, 0")
    a("v_lshlrev_b32 v5, 4, v0")
    a(f"v_add_u32 v5, {HIST}, v5")
    a(f"s_cmp_ge_u32 s{W}, 5")
    a("s_cbranch_scc1 L1_sort_z")
    a(f"ds_write_b128 v5, v[{t}:{t+3}]")
    a.label("L1_sort_z")
    a("v_mov_b32 v6, 1")
    a(f"s_mul_i32 s{T[0]}, s{sC}, {CH_E}")
    a(f"s_sub_u32 s{T[0]}, {N_EDGES}, s{T[0]}")
    a(f"s_min_u32 s{T[0]}, s{T[0]}, {CH_E}")
    a(f"s_sub_u32 s{T[0]}, s{T[0]}, {(NR-1)*512}")
    a(f"v_cmp_gt_u32 s[{MK}:{MK+1}], s{T[0]}, v0")
    a.stamp(1)
    a("s_waitcnt vmcnt(0) lgkmcnt(0)")
    a("s_barrier")
    a.stamp(2)
    def last_round(lbl):
        a(f"s_mov_b64 exec, s[{MK}:{MK+1}]")
        a(f"s_cbranch_execz {lbl}")
    for i in range(NR):
        if i == NR - 1: last_round("L1_sort_a")
        a(f"v_lshrrev_b32 v{t}, 3, v{D+i}")
        a(f"v_lshlrev_b32 v{BA+i}, 2, v{t}")
        a(f"v_add_u32 v{BA+i}, {HIST}, v{BA+i}")
        a(f"ds_add_rtn_u32 v{RK+i}, v{BA+i}, v6")
    a.label("L1_sort_a")
    a("s_mov_b64 exec, -1")
    a(f"s_mov_b32 s{T[3]}, 0xffff0000")
    M16 = T[3]
    for i in range(NR):
        PD_, PS_ = t, t + 2
        for (P, X) in ((PD_, D + i), (PS_, SX + i)):
            a(f"v_mul_u32_u24 v{t+4}, 6, v{X}")
            a(f"v_and_b32 v{t+4}, -4, v{t+4}")
            a(f"ds_read2_b32 v[{P}:{P+1}], v{t+4} offset0:0 offset1:1")
        a(f"v_and_b32 v{t+5}, 7, v{D+i}")
        a(f"v_lshl_or_b32 v{RB+i}, v{t+5}, 14, v{SX+i}")
        a(f"v_lshrrev_b32 v{t+5}, 3, v{D+i}")
        a(f"v_lshl_or_b32 v{RB+i}, v{t+5}, 17, v{RB+i}")
        a(f"v_and_b32 v{t+6}, 1, v{D+i}")
        a(f"v_lshlrev_b32 v{t+6}, 4, v{t+6}")
        a(f"v_and_b32 v{t+7}, 1, v{SX+i}")
        a(f"v_lshlrev_b32 v{t+7}, 4, v{t+7}")
        a("s_waitcnt lgkmcnt(0)")
        for (P, sh) in ((PD_, t + 6), (PS_, t + 7)):
            a(f"v_alignbit_b32 v{P}, v{P+1}, v{P}, v{sh}")
            a(f"v_lshrrev_b32 v{P+1}, v{sh}, v{P+1}")
        a(f"v_lshlrev_b32 v{t+8}, 16, v{PD_}")
        a(f"v_lshlrev_b32 v{t+9}, 16, v{PS_}")
        a(f"v_sub_f32 v{t+8}, v{t+8}, v{t+9}")
        a(f"v_and_b32 v{t+9}, s{M16}, v{PD_}")
        a(f"v_and_b32 v{t+10}, s{M16}, v{PS_}")
        a(f"v_sub_f32 v{t+9}, v{t+9}, v{t+10}")
        a(f"v_lshlrev_b32 v{t+10}, 16, v{PD_+1}")
        a(f"v_lshlrev_b32 v{t+11}, 16, v{PS_+1}")
        a(f"v_sub_f32 v{t+10}, v{t+10}, v{t+11}")
        a(f"v_mov_b32 v{t+11}, 0")
        a(f"v_cvt_pk_bf16_f32 v{t+12}, v{t+8}, v{t+9}")
        a(f"v_cvt_pk_bf16_f32 v{t+13}, v{t+10}, v{t+11}")
        a(f"v_lshlrev_b32 v{t+8}, 16, v{t+12}")
        a(f"v_and_b32 v{t+9}, s{M16}, v{t+12}")
        a(f"v_lshlrev_b32 v{t+10}, 16, v{t+13}")
        a(f"v_mul_f32 v{t+8}, v{t+8}, v{t+8}")
        a(f"v_mul_f32 v{t+9}, v{t+9}, v{t+9}")
        a(f"v_mul_f32 v{t+10}, v{t+10}, v{t+10}")
        a(f"v_cvt_pk_bf16_f32 v{t+14}, v{t+8}, v{t+9}")
        a(f"v_cvt_pk_bf16_f32 v{t+15}, v{t+10}, v{t+11}")
        a(f"v_lshlrev_b32 v{t+8}, 16, v{t+14}")
        a(f"v_and_b32 v{t+9}, s{M16}, v{t+14}")
        a(f"v_lshlrev_b32 v{t+10}, 16, v{t+15}")
        a(f"v_add_f32 v{t+8}, v{t+8}, v{t+9}")
        a(f"v_add_f32 v{t+8}, v{t+8}, v{t+10}")
        a(f"v_cvt_pk_bf16_f32 v{t+8}, v{t+8}, v{t+11}")
        r = RA + 4 * i
        a(f"v_lshl_or_b32 v{r}, v{EA+2*i}, 16, v{t+8}")
        a(f"v_alignbit_b32 v{r+1}, v{EA+2*i+1}, v{EA+2*i}, 16")
        a(f"v_alignbit_b32 v{r+2}, v{t+12}, v{EA+2*i+1}, 16")
        a(f"v_alignbit_b32 v{r+3}, v{t+13}, v{t+12}, 16")
    a("s_waitcnt lgkmcnt(0)")
    a("s_barrier")
    a.stamp(3)
    a(f"s_cmp_ge_u32 s{W}, 5")
    a("s_cbranch_scc1 L1_sort_s1")
    a(f"ds_read_b128 v[{t}:{t+3}], v5")
    a("s_waitcnt lgkmcnt(0)")
    a(f"v_add_u32 v{t+5}, v{t}, v{t+1}")
    a(f"v_add_u32 v{t+6}, v{t+5}, v{t+2}")
    a(f"v_add_u32 v{t+7}, v{t+6}, v{t+3}")
    a(f"v_mov_b32 v{t+8}, v{t+7}")
    for sh in (1, 2, 4, 8):
        a("s_nop 1")
        a(f"v_add_u32_dpp v{t+8}, v{t+8}, v{t+8} row_shr:{sh} row_mask:0xf bank_mask:0xf")
    a("s_nop 1")
    a(f"v_add_u32_dpp v{t+8}, v{t+8}, v{t+8} row_bcast:15 row_mask:0xa bank_mask:0xf")
    a("s_nop 1")
    a(f"v_add_u32_dpp v{t+8}, v{t+8}, v{t+8} row_bcast:31 row_mask:0xc bank_mask:0xf")
    a(f"s_lshl_b32 s{T[0]}, s{W}, 2")
    a(f"s_add_u32 s{T[0]}, s{T[0]}, {WSUM}")
    a(f"v_mov_b32 v{t+9}, s{T[0]}")
    a("s_mov_b32 exec_lo, 0")
    a("s_mov_b32 exec_hi, 0x80000000")
    a(f"ds_write_b32 v{t+9}, v{t+8}")
    a("s_mov_b64 exec, -1")
    a.label("L1_sort_s1")
    a("s_waitcnt lgkmcnt(0)")
    a("s_barrier")
    a(f"s_cmp_ge_u32 s{W}, 5")
    a("s_cbranch_scc1 L1_sort_s2")
    a(f"v_mov_b32 v{t+9}, {WSUM}")
    a(f"ds_read_b128 v[{t+10}:{t+13}], v{t+9}")
    a(f"v_sub_u32 v{t+8}, v{t+8}, v{t+7}")
    a("s_waitcnt lgkmcnt(0)")
    for k in range(4):
        a(f"v_readfirstlane_b32 s{64+k}, v{t+10+k}")
    a(f"s_mov_b32 s{T[0]}, 0")
    for k in range(4):
        a(f"s_cmp_gt_u32 s{W}, {k}")
        a(f"s_cselect_b32 s{T[1]}, s{64+k}, 0")
        a(f"s_add_u32 s{T[0]}, s{T[0]}, s{T[1]}")
    a(f"v_add_u32 v{t+8}, s{T[0]}, v{t+8}")
    a(f"v_add_u32 v{t+9}, v{t+8}, v{t}")
    a(f"v_add_u32 v{t+10}, v{t+8}, v{t+5}")
    a(f"v_add_u32 v{t+11}, v{t+8}, v{t+6}")
    a(f"ds_write_b128 v5, v[{t+8}:{t+11}]")
    a.label("L1_sort_s2")
    a("s_waitcnt lgkmcnt(0)")
    a("s_barrier")
    a.stamp(4)
    a(f"s_cmp_ge_u32 s{W}, 4")
    a("s_cbranch_scc1 L1_sort_t")
    a("v_mul_u32_u24 v7, 20, v0")
    a(f"v_add_u32 v7, {HIST}, v7")
    for k in range(6): a(f"ds_read_b32 v{t+8+k}, v7 offset:{4*k}")
    a.label("L1_sort_t")
    for i in range(NR):
        if i == NR - 1: last_round("L1_sort_b")
        a(f"ds_read_b32 v{t+i}, v{BA+i}")
    a.label("L1_sort_b")
    a("s_mov_b64 exec, -1")
    a("s_waitcnt lgkmcnt(0)")
    a(f"s_cmp_ge_u32 s{W}, 4")
    a("s_cbranch_scc1 L1_sort_t2")
    a(f"v_lshl_or_b32 v{t+16}, v{t+9}, 16, v{t+8}")
    a(f"v_lshl_or_b32 v{t+17}, v{t+11}, 16, v{t+10}")
    a(f"v_lshl_or_b32 v{t+18}, v{t+13}, 16, v{t+12}")
    a(f"v_mov_b32 v{t+19}, 0")
    a(f"s_mul_i32 s{T[0]}, s{sC}, {TAB_STRIDE}")
    a(f"s_add_u32 s{T[0]}, s{T[0]}, {WS_TAB}")
    a("v_lshlrev_b32 v7, 4, v0")
    a(f"buffer_store_dwordx4 v[{t+16}:{t+19}], v7, s[{R4}:{R4+3}], s{T[0]} offen{ST}")
    a.label("L1_sort_t2")
    for i in range(NR):
        if i == NR - 1: last_round("L1_sort_c")
        a(f"v_add_u32 v{t+i}, v{t+i}, v{RK+i}")
        a(f"v_lshlrev_b32 v{t+6}, 4, v{t+i}")
        a(f"v_add_u32 v{t+6}, {RECA}, v{t+6}")
        a(f"ds_write_b128 v{t+6}, v[{RA+4*i}:{RA+4*i+3}]")
        a(f"v_lshlrev_b32 v{t+7}, 2, v{t+i}")
        a(f"v_add_u32 v{t+7}, {RECB}, v{t+7}")
        a(f"ds_write_b32 v{t+7}, v{RB+i}")
    a.label("L1_sort_c")
    a("s_mov_b64 exec, -1")
    a("s_waitcnt lgkmcnt(0)")
    a("s_barrier")
    a.stamp(5)
    a("v_lshlrev_b32 v4, 4, v0")
    a(f"v_add_u32 v5, {RECA}, v4")
    for i in range(6):
        a(f"ds_read_b128 v[{RA+4*i}:{RA+4*i+3}], v5 offset:{i*8192}")
    a(f"v_add_u32 v7, {RECB}, v4")
    a(f"ds_read_b128 v[{t}:{t+3}], v7")
    a(f"ds_read_b128 v[{t+4}:{t+7}], v7 offset:8192")
    a(f"s_mul_i32 s{T[0]}, s{sC}, {CH_STRIDE*16}")
    a(f"s_add_u32 s{T[0]}, s{T[0]}, {WS_RECA}")
    a(f"s_mul_i32 s{T[1]}, s{sC}, {CH_STRIDE*4}")
    a(f"s_add_u32 s{T[1]}, s{T[1]}, {WS_RECB}")
    a("s_waitcnt lgkmcnt(0)")
    for i in range(5):
        a(f"buffer_store_dwordx4 v[{RA+4*i}:{RA+4*i+3}], v4, s[{R4}:{R4+3}], s{T[0]} offen{ST}")
        a(f"s_add_u32 s{T[0]}, s{T[0]}, 8192")
    a(f"buffer_store_dwordx4 v[{t}:{t+3}], v4, s[{R4}:{R4+3}], s{T[1]} offen{ST}")
    a(f"s_cmp_ge_u32 s{W}, 2")
    a("s_cbranch_scc1 L1_sort_r1")
    a(f"buffer_store_dwordx4 v[{RA+20}:{RA+23}], v4, s[{R4}:{R4+3}], s{T[0]} offen{ST}")
    a.label("L1_sort_r1")
    a(f"s_cmp_ge_u32 s{W}, 3")
    a("s_cbranch_scc1 L1_sort_r2")
    a(f"s_movk_i32 s{T[2]}, 160")
    a(f"v_cmp_gt_u32 vcc, s{T[2]}, v0")
    a("s_and_b64 exec, exec, vcc")
    a(f"s_add_u32 s{T[1]}, s{T[1]}, 8192")
    a(f"buffer_store_dwordx4 v[{t+4}:{t+7}], v4, s[{R4}:{R4+3}], s{T[1]} offen{ST}")
    a("s_mov_b64 exec, -1")
    a.label("L1_sort_r2")
    a.stamp(4)
    a(f"s_and_b32 s{T[1]}, s2, 1")
    a(f"s_xor_b32 s{T[1]}, s{T[1]}, 1")
    a(f"s_lshl_b32 s{T[1]}, s{T[1]}, 4")
    signal(a, T[1])

def pack(a):
    a.label("L1_pack")
    srd(a, R0, P_WH, 131072, 131072)
    srd(a, R2, P_WS, WS_WHP, 131072)
    w_lane_offsets(a)
    w_dma(a, R0)
    srd(a, R1, P_WE, 0, 517 * 512)
    srd(a, R3, P_WX, 0, 512)
    srd(a, R4, P_WS, 0, WS_USED)
    a("v_lshlrev_b32 v9, 1, v0")
    a(f"s_mov_b32 s{T[0]}, 0x40000")
    for k in range(5):
        a(f"buffer_load_ushort v{24+k}, v9, s[{R1}:{R1+3}], s{T[0]} offen offset:{k*512}")
    a("v_lshrrev_b32 v10, 2, v1")
    a("v_lshlrev_b32 v10, 5, v10")
    a("v_bfe_u32 v11, v1, 1, 1")
    a("v_lshl_add_u32 v10, v11, 4, v10")
    a("v_and_b32 v11, 1, v1")
    a("v_lshl_add_u32 v10, v11, 2, v10")
    a("v_lshlrev_b32 v10, 1, v10")
    a(f"buffer_load_dwordx2 v[32:33], v10, s[{R3}:{R3+3}], 0 offen")
    a(f"buffer_load_dwordx2 v[34:35], v10, s[{R3}:{R3+3}], 0 offen offset:16")
    a("v_lshrrev_b32 v5, 4, v1")
    a("v_and_b32 v6, 1, v5")
    a("v_lshlrev_b32 v6, 4, v6")
    a("v_lshrrev_b32 v7, 1, v5")
    a("v_lshl_add_u32 v6, v7, 2, v6")
    a("v_bfe_u32 v7, v1, 2, 2")
    a("v_add_u32 v6, v6, v7")
    a("v_lshlrev_b32 v6, 6, v6")
    a("v_and_b32 v7, 3, v1")
    a("v_lshl_add_u32 v6, v7, 4, v6")
    a(f"s_lshl_b32 s{T[1]}, s{W}, 14")
    a(f"v_add_u32 v5, s{T[1]}, v6")
    a("v_lshlrev_b32 v8, 4, v1")
    a.wait_all()
    for cb in range(2):
        for ks in range(8):
            q = 64 + 4 * (cb * 8 + ks)
            for i in range(2):
                a(f"ds_read_b64_tr_b16 v[{q+2*i}:{q+2*i+1}], v5 offset:{ks*2048 + i*512 + cb*8}")
            if ks % 4 == 3: a("s_waitcnt lgkmcnt(0)")
    for cb in range(2):
        for ks in range(8):
            q = 64 + 4 * (cb * 8 + ks)
            a(f"s_add_u32 s{T[2]}, s{T[1]}, {(cb*8+ks)*1024}")
            a(f"buffer_store_dwordx4 v[{q}:{q+3}], v8, s[{R2}:{R2+3}], s{T[2]} offen{ST}")
    a(f"s_cmp_ge_u32 s{W}, 4")
    a("s_cbranch_scc1 L1_pack_b")
    a(f"s_mov_b32 s{T[4]}, {NLOG2E:#x}")
    for k in range(5):
        a(f"v_lshlrev_b32 v{24+k}, 16, v{24+k}")
        a(f"v_mul_f32 v{24+k}, s{T[4]}, v{24+k}")
    a("v_mov_b32 v29, 0")
    a("v_cvt_pk_bf16_f32 v36, v24, v25")
    a("v_cvt_pk_bf16_f32 v37, v26, v27")
    a("v_cvt_pk_bf16_f32 v38, v28, v29")
    a("v_mov_b32 v39, 0")
    a("v_lshlrev_b32 v3, 4, v0")
    a(f"s_mov_b32 s{T[0]}, {WS_WX}")
    a(f"buffer_store_dwordx4 v[36:39], v3, s[{R4}:{R4+3}], s{T[0]} offen{ST}")
    a("s_branch L1_pack_e")
    a.label("L1_pack_b")
    a(f"s_cmp_gt_u32 s{W}, 4")
    a("s_cbranch_scc1 L1_pack_e")
    a("v_lshlrev_b32 v3, 4, v1")
    a(f"s_mov_b32 s{T[0]}, {WS_WXP}")
    a("s_mov_b32 exec_hi, 0")
    a(f"buffer_store_dwordx4 v[32:35], v3, s[{R4}:{R4+3}], s{T[0]} offen{ST}")
    a("s_mov_b64 exec, -1")
    a.label("L1_pack_e")
    signal(a, gemm_counter(a))
```

```python
from asmlib import *
from common import *

EXP = set()
CAP = 27
TILE = 2560
L_SRC = CAP * TILE
L_STAGE = L_SRC + 32 * 128
L_S = L_STAGE + 65536
S_ROW = 544
L_T = L_S + 40 * S_ROW
L_REL = L_T + 640
L_NG = L_REL + 1280
L_TB = L_NG + 32
W = S_WAVE
NRW = 7

SWS, SQ, SH, SO, STAB, SDBG = R0, R1, R2, R3, R4, R5
S_T, S_N, S_TG0, S_NT, S_WIN, S_TG = 64, 65, 66, 67, 68, 69
ZB, FB = 70, 75
S_STG, S_G5, S_IB, S_FIRST, S_WPH, S_M8 = 80, 81, 82, 83, 84, 86
S_RA, S_RB = 26, 27
S_MK = 56
t0, t1, t2, t3 = T[0], T[1], T[2], T[3]

Z = (16, 32); E = 48; ACC = 64; M = 80; A0 = 88; A1 = 92; A2 = 96; BP = 100
I0 = 108; I1 = 112; B2 = 116; B2Q = 120; WXA = 136; WH = 144
ONE2 = 208; SR = 210; DV = 212
vA0, vA1, vA2, vB0, vB1, vSR, vLC, vS, vT = 214, 215, 216, 217, 218, 219, 220, 221, 222
vOS, vSL = 223, 224
cA2, cB0, cB1 = 225, 226, 227
FL = 228
ZQ = 236
NV = 240

def zero_fill(a):
    for k in range(4): a(f"v_mov_b32 v{36+k}, 0")
    a("v_lshlrev_b32 v40, 4, v0")
    a("v_add_u32 v41, 0x10000, v40")
    for k in range(8): a(f"ds_write_b128 v40, v[36:39] offset:{k*8192}")
    a("ds_write_b128 v41, v[36:39]")

def mf32(d, x, y, c): return f"v_mfma_f32_32x32x16_bf16 v[{d}:{d+15}], v[{x}:{x+3}], v[{y}:{y+3}], {c}"
def z_mfmas(zn):
    return [mf32(zn, A0, I0, "0"), mf32(zn, A1, I1, f"v[{zn}:{zn+15}]"), mf32(zn, A2, B2, f"v[{zn}:{zn+15}]")]

def dma(a, slot):
    a(f"v_add_u32 v{DV}, v{SR}, v{vLC}")
    a(f"v_add_u32 v{DV+1}, v{SR+1}, v{vLC}")
    a(f"s_add_u32 m0, s{S_STG}, {slot*2048}")
    a("s_nop 0")
    a(f"buffer_load_dwordx4 v{DV}, s[{SQ}:{SQ+3}], 0 offen lds")
    a(f"s_add_u32 m0, s{S_STG}, {slot*2048+1024}")
    a("s_nop 0")
    a(f"buffer_load_dwordx4 v{DV+1}, s[{SQ}:{SQ+3}], 0 offen lds")

def shift_q(a, base):
    for k in range(4): a(f"s_mov_b32 s{base+k}, s{base+k+1}")

def flush(a, tmp):
    for q in range(8): a(f"v_cvt_pk_bf16_f32 v{FL+q}, v{ACC+2*q}, v{ACC+2*q+1}")
    a(f"s_mov_b64 exec, s[{S_M8}:{S_M8+1}]")
    a(f"ds_write_b128 v{vS}, v[{FL}:{FL+3}]")
    a(f"ds_write_b128 v{vS}, v[{FL+4}:{FL+7}] offset:16")
    a("s_mov_b64 exec, -1")
    a(mf32(tmp, WXA, FL, "0"))
    a(mf32(tmp, WXA + 4, FL + 4, f"v[{tmp}:{tmp+15}]"))
    a(mf32(ACC, ZQ, ZQ, "0"))
    a(f"v_add_u32 v{vS}, {8*S_ROW}, v{vS}")
    shift_q(a, FB)
    a("s_nop 6")
    a("s_mov_b32 exec_hi, 0")
    a(f"ds_add_f32 v{vT}, v{tmp}")
    a("s_mov_b64 exec, -1")
    a(f"v_add_u32 v{vT}, 128, v{vT}")

def rotate_b2(a):
    if "oldrot" in EXP:
        for q in range(4): a(f"v_mov_b32 v{B2+q}, v{B2Q+q}")
        for q in range(12): a(f"v_mov_b32 v{B2Q+q}, v{B2Q+4+q}")
        return
    for q in range(0, 4, 2): a(f"v_pk_mov_b32 v[{B2+q}:{B2+q+1}], v[{B2Q+q}:{B2Q+q+1}], v[{B2Q+q}:{B2Q+q+1}] op_sel:[0,1]")
    for q in range(0, 12, 2): a(f"v_pk_mov_b32 v[{B2Q+q}:{B2Q+q+1}], v[{B2Q+4+q}:{B2Q+4+q+1}], v[{B2Q+4+q}:{B2Q+4+q+1}] op_sel:[0,1]")

def rec_consts(a):
    a(f"s_mov_b32 s{t0}, {CH_STRIDE*16}")
    a(f"v_mul_lo_u32 v42, s{t0}, v1")
    a(f"s_movk_i32 s{t0}, {CH_STRIDE*4}")
    a(f"v_mul_lo_u32 v43, s{t0}, v1")
    a(f"s_mov_b32 s{S_RA}, {WS_RECA}")
    a(f"s_mov_b32 s{S_RB}, {WS_RECB}")

def rec_loads(a, lbl):
    for it in range(4):
        a(f"s_add_u32 s{t0}, s{S_IB}, s{W}")
        if it: a(f"s_add_u32 s{t0}, s{t0}, {NRW*it}")
        a(f"v_cmp_lt_u32 s[{S_MK+2*it}:{S_MK+2*it+1}], s{t0}, v{vSL}")
        a(f"v_add_u32 v36, s{t0}, v{vOS}")
        a(f"v_lshl_add_u32 v37, v36, 4, v42")
        a(f"v_lshl_add_u32 v38, v36, 2, v43")
        a(f"s_mov_b64 exec, s[{S_MK+2*it}:{S_MK+2*it+1}]")
        a(f"s_cbranch_execz {lbl}_{it}")
        a(f"buffer_load_dwordx4 v[{16+4*it}:{19+4*it}], v37, s[{SWS}:{SWS+3}], s{S_RA} offen sc1")
        a(f"buffer_load_dword v{32+it}, v38, s[{SWS}:{SWS+3}], s{S_RB} offen sc1")
        a.label(f"{lbl}_{it}")
        a("s_mov_b64 exec, -1")

def build_recs(a, lbl):
    a("s_waitcnt vmcnt(0)")
    a("v_mov_b32 v58, 0x3f80")
    for it in range(4):
        RA, RB = 16 + 4 * it, 32 + it
        a(f"s_mov_b64 exec, s[{S_MK+2*it}:{S_MK+2*it+1}]")
        a(f"s_cbranch_execz {lbl}_{it}")
        a(f"v_lshrrev_b32 v44, 17, v{RB}")
        a(f"v_subrev_u32 v44, s{S_G5}, v44")
        a(f"v_lshl_add_u32 v45, v44, 8, v60")
        a(f"ds_read_b32 v46, v45")
        a(f"v_lshl_add_u32 v47, v44, 2, v59")
        a(f"ds_read_b32 v48, v47")
        a(f"s_add_u32 s{t0}, s{S_IB}, s{W}")
        if it: a(f"s_add_u32 s{t0}, s{t0}, {NRW*it}")
        a(f"s_sub_u32 s{t0}, s{t0}, s{S_WIN}")
        a(f"v_add_u32 v49, s{t0}, v{vOS}")
        a(f"v_and_b32 v50, 0x3fff, v{RB}")
        a("v_lshlrev_b32 v50, 9, v50")
        a("v_add_u32 v50, 512, v50")
        a(f"v_bfe_u32 v54, v{RB}, 14, 3")
        a(f"s_movk_i32 s{t1}, {CAP*32}")
        a("s_waitcnt lgkmcnt(0)")
        a("v_add3_u32 v49, v49, v46, v48")
        a(f"v_cmp_gt_u32 vcc, s{t1}, v49")
        a("s_and_b64 exec, exec, vcc")
        a(f"s_cbranch_execz {lbl}_{it}")
        a("v_lshlrev_b32 v51, 2, v49")
        a(f"ds_write_b32 v51, v50 offset:0" if False else f"v_add_u32 v51, {L_SRC}, v51")
        a("ds_write_b32 v51, v50")
        a("v_lshrrev_b32 v52, 5, v49")
        a(f"v_mul_u32_u24 v52, {TILE}, v52")
        a("v_and_b32 v53, 31, v49")
        a("v_lshl_add_u32 v55, v53, 4, v52")
        a(f"ds_write_b128 v55, v[{RA}:{RA+3}] offset:2048")
        a("v_lshl_add_u32 v52, v53, 6, v52")
        a("v_lshl_add_u32 v52, v54, 1, v52")
        a("v_bfe_u32 v53, v53, 2, 2")
        a("v_lshl_add_u32 v54, v53, 4, v52")
        a("ds_write_b16 v54, v58")
        a("v_xor_b32 v55, 1, v53")
        a("v_lshl_add_u32 v55, v55, 4, v52")
        a(f"ds_write_b16_d16_hi v55, v{RA+2}")
        a("v_xor_b32 v56, 2, v53")
        a("v_lshl_add_u32 v56, v56, 4, v52")
        a(f"ds_write_b16 v56, v{RA+3}")
        a("v_xor_b32 v57, 3, v53")
        a("v_lshl_add_u32 v57, v57, 4, v52")
        a(f"ds_write_b16_d16_hi v57, v{RA+3}")
        a.label(f"{lbl}_{it}")
    a("s_mov_b64 exec, -1")

def poll(a, lbl, counters):
    lo = sum(1 << d for d, _ in counters if d < 32); hi = sum(1 << (d - 32) for d, _ in counters if d >= 32)
    a("v_mov_b32 v9, 0")
    for d, val in counters:
        a(f"s_movk_i32 s{t0}, {val}")
        a(f"v_writelane_b32 v9, s{t0}, {d}")
    a("v_lshlrev_b32 v8, 2, v1")
    a(f"s_mov_b32 s{t1}, 0x10000")
    a(f"s_mov_b32 exec_lo, {lo:#x}")
    a(f"s_mov_b32 exec_hi, {hi:#x}")
    a.label(lbl)
    a(f"buffer_load_dword v10, v8, s[{SDBG}:{SDBG+3}], 0 offen sc1")
    a("s_waitcnt vmcnt(0)")
    a("v_cmp_lt_u32 vcc, v10, v9")
    a(f"s_cbranch_vccz {lbl}_ok")
    a(f"s_sub_u32 s{t1}, s{t1}, 1")
    a(f"s_cmp_eq_u32 s{t1}, 0")
    a(f"s_cbranch_scc1 {lbl}_ok")
    a("s_sleep 4")
    a(f"s_branch {lbl}")
    a.label(f"{lbl}_ok")
    a("s_mov_b64 exec, -1")

def a_reads(u1):
    sl = u1 % 4
    return [f"ds_read_b128 v[{A0}:{A0+3}], v{vA0} offset:{sl*2048}",
            f"ds_read_b128 v[{A1}:{A1+3}], v{vA1} offset:{sl*2048}",
            f"ds_read_b128 v[{A2}:{A2+3}], v{vA2} offset:{u1*TILE}"]
def bp_reads(u):
    return [f"ds_read_b64_tr_b16 v[{BP}:{BP+1}], v{vB0} offset:{u*TILE}",
            f"ds_read_b64_tr_b16 v[{BP+2}:{BP+3}], v{vB1} offset:{u*TILE}",
            f"ds_read_b64_tr_b16 v[{BP+4}:{BP+5}], v{vB0} offset:{u*TILE+1024}",
            f"ds_read_b64_tr_b16 v[{BP+6}:{BP+7}], v{vB1} offset:{u*TILE+1024}"]
def seg_mfmas():
    return [mf32(ACC, M, BP, f"v[{ACC}:{ACC+15}]"), mf32(ACC, M + 4, BP + 4, f"v[{ACC}:{ACC+15}]")]

OOL = []

def iteration(a, u):
    zc, zn = Z[u & 1], Z[(u + 1) & 1]
    sl = (u + 1) % 4
    att = {k: [] for k in range(16)}
    a(f"s_setprio {3-u}")
    a("s_waitcnt lgkmcnt(0)")
    a(f"s_cmp_eq_u32 s{S_TG}, s{FB}")
    a(f"s_cbranch_scc1 L2_fl_{u}")
    a.label(f"L2_fl_{u}_r")
    OOL.append((f"L2_fl_{u}", lambda a, zn=zn, u=u: (flush(a, zn), a(f"s_branch L2_fl_{u}_r"))))
    a(f"s_cmp_eq_u32 s{S_TG}, s{ZB}")
    a(f"s_cbranch_scc1 L2_rt_{u}")
    a.label(f"L2_rt_{u}_r")
    OOL.append((f"L2_rt_{u}", lambda a, u=u: (rotate_b2(a), shift_q(a, ZB), a(f"s_branch L2_rt_{u}_r"))))
    zm = z_mfmas(zn)
    att[0].append(zm[0]); att[4].append(zm[1]); att[8].append(zm[2])
    att[1].append(f"v_add_u32 v{DV}, v{SR}, v{vLC}")
    att[1].append(f"s_add_u32 m0, s{S_STG}, {sl*2048}")
    att[2].append(f"v_add_u32 v{DV+1}, v{SR+1}, v{vLC}")
    att[2].append(f"buffer_load_dwordx4 v{DV}, s[{SQ}:{SQ+3}], 0 offen lds")
    att[5].append(f"s_add_u32 m0, s{S_STG}, {sl*2048+1024}")
    att[6].append(f"buffer_load_dwordx4 v{DV+1}, s[{SQ}:{SQ+3}], 0 offen lds")
    att[9].append(f"s_cmp_eq_u32 s{S_WPH}, 0")
    att[9].append(f"s_cbranch_scc1 L2_wl_{u}")
    att[9].append(f"L2_wl_{u}_r:")
    def wl(a, u=u):
        a("v_lshlrev_b32 v5, 4, v1")
        a(f"s_lshl_b32 s{t0}, s{W}, 14")
        a(f"s_add_u32 s{t0}, s{t0}, {WS_WHP + u*4096}")
        for q in range(4 * u, 4 * u + 4):
            a(f"buffer_load_dwordx4 v[{WH+4*q}:{WH+4*q+3}], v5, s[{SWS}:{SWS+3}], s{t0} offen offset:{(q%4)*1024}")
        a(f"s_branch L2_wl_{u}_r")
    OOL.append((f"L2_wl_{u}", wl))
    for k in range(16):
        a(f"v_exp_f32 v{E+k}, v{zc+k}")
        for x in att[k]: a(x)
    for k in range(8): a(f"v_pk_add_f32 v[{E+2*k}:{E+2*k+1}], v[{E+2*k}:{E+2*k+1}], v[{ONE2}:{ONE2+1}]")
    att = {k: [] for k in range(16)}
    sm = seg_mfmas()
    att[0].append(sm[0]); att[4].append(sm[1])
    for i, x in enumerate(bp_reads(u)): att[5 + i].append(x)
    att[9].append(f"s_cmp_lt_u32 s{S_WPH}, 2")
    att[9].append(f"s_cbranch_scc1 L2_wv_{u}")
    att[9].append("s_waitcnt vmcnt(6)")
    att[9].append(f"L2_wv_{u}_r:")
    def wv(a, u=u):
        a(f"s_cmp_eq_u32 s{S_WPH}, 0")
        a(f"s_cbranch_scc1 L2_wv_{u}_0")
        a(f"s_waitcnt vmcnt({(18, 14, 10, 6)[u]})")
        a(f"s_branch L2_wv_{u}_r")
        a.label(f"L2_wv_{u}_0")
        a(f"s_waitcnt vmcnt({(10, 14, 18, 22)[u]})")
        a(f"s_branch L2_wv_{u}_r")
    OOL.append((f"L2_wv_{u}", wv))
    for i, x in enumerate(a_reads(u + 2)): att[10 + i].append(x)
    att[13].append(f"ds_read2_b32 v[{SR}:{SR+1}], v{vSR} offset0:{u*32} offset1:{u*32+16}")
    att[14].append(f"s_add_u32 s{S_T}, s{S_T}, 1")
    att[14].append(f"s_add_u32 s{S_TG}, s{S_TG}, 1")
    for k in range(16):
        a(f"v_rcp_f32 v{E+k}, v{E+k}")
        for x in att[k]: a(x)
    a(f"s_cmp_eq_u32 s{S_T}, s{S_N}")
    for k in range(8): a(f"v_pk_mul_f32 v[{E+2*k}:{E+2*k+1}], v[{E+2*k}:{E+2*k+1}], v[{zc+2*k}:{zc+2*k+1}]")
    for k in range(8): a(f"v_cvt_pk_bf16_f32 v{M+k}, v{E+2*k}, v{E+2*k+1}")
    a("s_cbranch_scc1 L2_win_end")

def constants(a):
    a("v_and_b32 v3, 31, v1")
    a("v_lshrrev_b32 v4, 5, v1")
    a(f"v_mov_b32 v{ONE2}, 1.0")
    a(f"v_mov_b32 v{ONE2+1}, 1.0")
    for q in range(4): a(f"v_mov_b32 v{ZQ+q}, 0")
    a(f"s_mov_b32 s{S_M8}, 0xff")
    a(f"s_mov_b32 s{S_M8+1}, 0xff")
    a(f"s_lshl_b32 s{S_STG}, s{W}, 13")
    a(f"s_add_u32 s{S_STG}, s{S_STG}, {L_STAGE}")
    a("s_nop 0")
    a(mf32(ACC, ZQ, ZQ, "0"))
    a("v_lshlrev_b32 v5, 3, v4")
    a("v_sub_u32 v5, v3, v5")
    a("v_mov_b32 v8, 0x3f80")
    a("v_mov_b32 v9, 0x3f800000")
    for st, I in enumerate((I0, I1)):
        if st: a("v_add_u32 v5, -16, v5")
        a("v_and_b32 v6, 1, v5")
        a("v_cmp_eq_u32 vcc, 1, v6")
        a("v_lshrrev_b32 v7, 1, v5")
        a("s_nop 0")
        a("v_cndmask_b32 v6, v8, v9, vcc")
        for q in range(4):
            mk = S_MK + 2 * q
            a(f"v_cmp_eq_u32 s[{mk}:{mk+1}], {q}, v7")
        for q in range(4):
            mk = S_MK + 2 * q
            a(f"v_cndmask_b32 v{I+q}, 0, v6, s[{mk}:{mk+1}]")
    a("v_bfe_u32 v5, v3, 2, 2")
    a("v_xor_b32 v6, v4, v5")
    a("v_lshlrev_b32 v7, 6, v3")
    a(f"v_add_u32 v8, s{S_STG}, v7")
    a(f"v_lshl_add_u32 v{vA0}, v6, 4, v8")
    a("v_xor_b32 v6, 2, v6")
    a(f"v_lshl_add_u32 v{vA1}, v6, 4, v8")
    a("v_lshlrev_b32 v6, 4, v3")
    a("v_add_u32 v6, 2048, v6")
    a("v_lshl_add_u32 v7, v5, 4, v7")
    a("v_cmp_eq_u32 vcc, 1, v4")
    a("v_bfe_u32 v5, v1, 2, 2")
    a("v_lshl_add_u32 v5, v4, 2, v5")
    a(f"v_cndmask_b32 v{cA2}, v6, v7, vcc")
    a("v_lshlrev_b32 v5, 6, v5")
    a("v_and_b32 v6, 1, v1")
    a("v_lshl_add_u32 v5, v6, 3, v5")
    a("v_bfe_u32 v6, v1, 4, 1")
    a("v_lshlrev_b32 v6, 1, v6")
    a("v_bfe_u32 v7, v1, 1, 1")
    a("v_or_b32 v6, v6, v7")
    a("v_xor_b32 v6, v6, v4")
    a(f"v_lshl_add_u32 v{cB0}, v6, 4, v5")
    a("v_xor_b32 v6, 2, v6")
    a("v_lshl_add_u32 v7, v6, 4, v5")
    a(f"v_add_u32 v{cB1}, 512, v7")
    a("v_and_b32 v5, 3, v1")
    a("v_bfe_u32 v6, v1, 4, 2")
    a("v_xor_b32 v5, v5, v6")
    a("v_lshlrev_b32 v5, 4, v5")
    a(f"s_lshl_b32 s{t0}, s{W}, 6")
    a(f"s_sub_u32 s{t1}, s{t0}, 512")
    a(f"v_add_u32 v{vLC}, s{t1}, v5")
    a("v_and_b32 v5, 7, v1")
    a(f"v_mul_u32_u24 v5, {S_ROW}, v5")
    a("v_lshl_add_u32 v5, v4, 5, v5")
    a(f"s_add_u32 s{t0}, s{t0}, {L_S}")
    a(f"v_add_u32 v{vS}, s{t0}, v5")
    a("v_lshlrev_b32 v5, 2, v3")
    a(f"v_add_u32 v{vT}, {L_T}, v5")

def phase2(a):
    a.label("L_phase2")
    a.stamp(5)
    a("v_and_b32 v1, 63, v0")
    srd(a, SDBG, P_DBG, 0, 256)
    srd(a, STAB, P_WS, WS_TAB, NCH * TAB_STRIDE)
    srd(a, SWS, P_WS, 0, WS_USED)
    a(f"s_mul_i32 s{S_G5}, s2, 5")
    a(f"s_cmp_eq_u32 s{W}, 7")
    a("s_cbranch_scc0 L2_noinv")
    a("buffer_inv sc1")
    a.label("L2_noinv")
    a(f"s_cmp_eq_u32 s{W}, 0")
    a("s_cbranch_scc0 L2_w1")
    poll(a, "L2_poll1", CNT_SORT)
    a.label("L2_w1")
    a("s_barrier")
    a.stamp(6)
    a("v_lshlrev_b32 v2, 12, v1")
    a(f"s_lshl_b32 s{t0}, s2, 4")
    a(f"buffer_load_dwordx3 v[60:62], v2, s[{STAB}:{STAB+3}], s{t0} offen sc1")
    zero_fill(a)
    a(f"v_add_u32 v41, {L_T}, v40")
    a(f"s_cmp_lg_u32 s{W}, 0")
    a("s_cbranch_scc1 L2_tz")
    a("s_mov_b32 exec_lo, -1")
    a("s_mov_b32 exec_hi, 0xff")
    a("ds_write_b128 v41, v[36:39]")
    a("s_mov_b64 exec, -1")
    a.label("L2_tz")
    rec_consts(a)
    a(f"s_mov_b32 s{S_IB}, 0")
    a(f"s_mov_b32 s{S_WIN}, 0")
    a(f"s_mov_b32 s{S_TG0}, 0")
    a(f"s_mov_b32 s{S_FIRST}, 1")
    a(f"s_cmp_eq_u32 s{W}, 7")
    a("s_cbranch_scc1 L2_w7a")
    a("s_waitcnt vmcnt(0)")
    a(f"v_and_b32 v{vOS}, 0xffff, v60")
    a(f"v_lshrrev_b32 v{vSL}, 16, v62")
    a(f"v_sub_u32 v{vSL}, v{vSL}, v{vOS}")
    rec_loads(a, "L2_ld0")
    a(f"s_cmp_ge_u32 s{W}, 5")
    a("s_cbranch_scc1 L2_noscan")
    a(f"s_cmp_lt_u32 s{W}, 2")
    a("s_cbranch_scc1 L2_sel")
    a("v_mov_b32 v60, v61")
    a("v_mov_b32 v61, v62")
    a(f"s_cmp_lt_u32 s{W}, 4")
    a("s_cbranch_scc1 L2_sel")
    a("v_mov_b32 v60, v61")
    a.label("L2_sel")
    a(f"s_and_b32 s{t0}, s{W}, 1")
    a(f"s_lshl_b32 s{t0}, s{t0}, 4")
    a(f"v_alignbit_b32 v61, v61, v60, s{t0}")
    a("v_and_b32 v60, 0xffff, v61")
    a("v_lshrrev_b32 v61, 16, v61")
    a("v_sub_u32 v62, v61, v60")
    a("v_mov_b32 v63, v62")
    for sh in (1, 2, 4, 8):
        a("s_nop 1")
        a(f"v_add_u32_dpp v63, v63, v63 row_shr:{sh} row_mask:0xf bank_mask:0xf")
    a("s_nop 1")
    a("v_add_u32_dpp v63, v63, v63 row_bcast:15 row_mask:0xa bank_mask:0xf")
    a("s_nop 1")
    a("v_add_u32_dpp v63, v63, v63 row_bcast:31 row_mask:0xc bank_mask:0xf")
    a("v_sub_u32 v62, v63, v62")
    a("v_sub_u32 v62, v62, v60")
    a(f"s_lshl_b32 s{t0}, s{W}, 8")
    a(f"s_add_u32 s{t0}, s{t0}, {L_REL}")
    a("v_lshlrev_b32 v45, 2, v1")
    a(f"v_add_u32 v45, s{t0}, v45")
    a("ds_write_b32 v45, v62")
    a(f"s_lshl_b32 s{t0}, s{W}, 2")
    a(f"s_add_u32 s{t0}, s{t0}, {L_NG}")
    a(f"v_mov_b32 v45, s{t0}")
    a("s_mov_b32 exec_lo, 0")
    a("s_mov_b32 exec_hi, 0x80000000")
    a("ds_write_b32 v45, v63")
    a("s_mov_b64 exec, -1")
    a.label("L2_noscan")
    a.label("L2_w7a")
    a.label("L2_round_bar")
    a("s_waitcnt lgkmcnt(0)")
    a("s_barrier")
    a.stamp(7)
    a(f"s_cmp_eq_u32 s{S_FIRST}, 0")
    a("s_cbranch_scc1 L2_have_tb")
    a("v_lshlrev_b32 v45, 2, v1")
    a(f"v_add_u32 v45, {L_NG}, v45")
    a("s_mov_b32 exec_lo, 0xff")
    a("s_mov_b32 exec_hi, 0")
    a("ds_read_b32 v46, v45")
    a("s_waitcnt lgkmcnt(0)")
    a("v_add_u32 v46, 31, v46")
    a("v_lshrrev_b32 v46, 5, v46")
    a("v_max_u32 v46, 1, v46")
    a("s_nop 0")
    NTG = (T[0], T[1], T[2], T[3], 85)
    for g in range(5): a(f"v_readlane_b32 s{NTG[g]}, v46, {g}")
    a(f"s_mov_b32 s{ZB}, s{NTG[0]}")
    for g in range(1, 4): a(f"s_add_u32 s{ZB+g}, s{ZB+g-1}, s{NTG[g]}")
    a(f"s_add_u32 s{S_NT}, s{ZB+3}, s85")
    a(f"s_mov_b32 s{ZB+4}, 0x7ffffff0")
    a("v_mov_b32 v46, 0")
    for g in range(1, 5):
        a(f"s_lshl_b32 s{t0}, s{ZB+g-1}, 5")
        a(f"v_writelane_b32 v46, s{t0}, {g}")
    for k in range(5): a(f"s_add_u32 s{FB+k}, s{ZB+k}, 1")
    for k in range(5): a(f"s_sub_u32 s{ZB+k}, s{ZB+k}, 1")
    a(f"s_lshl_b32 s{t0}, s{W}, 5")
    a(f"s_add_u32 s{t0}, s{t0}, {L_TB}")
    a("v_lshlrev_b32 v45, 2, v1")
    a(f"v_add_u32 v45, s{t0}, v45")
    a("ds_write_b32 v45, v46")
    a("s_mov_b64 exec, -1")
    a.label("L2_have_tb")
    a(f"s_cmp_eq_u32 s{W}, 7")
    a("s_cbranch_scc1 L2_w7b")
    a(f"s_lshl_b32 s{t0}, s{W}, 5")
    a(f"s_add_u32 s{t0}, s{t0}, {L_TB}")
    a(f"v_mov_b32 v59, s{t0}")
    a("v_lshlrev_b32 v60, 2, v1")
    a(f"v_add_u32 v60, {L_REL}, v60")
    a("s_waitcnt lgkmcnt(0)")
    build_recs(a, "L2_b0")
    a.label("L2_more")
    a(f"s_add_u32 s{S_IB}, s{S_IB}, {4*NRW}")
    a(f"v_cmp_lt_u32 vcc, s{S_IB}, v{vSL}")
    a("s_cbranch_vccz L2_built0")
    rec_loads(a, "L2_ld1")
    build_recs(a, "L2_b1")
    a("s_branch L2_more")
    a.label("L2_built0")
    a(f"s_cmp_eq_u32 s{S_FIRST}, 0")
    a("s_cbranch_scc1 L2_built")
    constants(a)
    a("s_branch L2_built")
    a.label("L2_w7b")
    a(f"s_cmp_eq_u32 s{S_FIRST}, 0")
    a("s_cbranch_scc1 L2_built")
    constants(a)
    poll(a, "L2_poll2", CNT_GEMM)
    a.label("L2_built")
    a("s_waitcnt vmcnt(0) lgkmcnt(0)")
    a("s_barrier")
    a.stamp(8)
    a(f"s_cmp_eq_u32 s{S_FIRST}, 0")
    a("s_cbranch_scc1 L2_nob2")
    srd(a, SQ, P_WS, WS_Q, MAT_BYTES)
    a("v_and_b32 v3, 31, v1")
    a("v_lshrrev_b32 v4, 5, v1")
    a(f"s_lshl_b32 s{t0}, s{W}, 9")
    a("v_lshlrev_b32 v5, 4, v3")
    a(f"v_add_u32 v5, s{t0}, v5")
    a(f"s_lshl_b32 s{t1}, s{S_G5}, 12")
    a(f"s_add_u32 s{t1}, s{t1}, {WS_P - WS_WX}")
    a(f"v_mul_lo_u32 v6, s{t1}, v4")
    a("v_add_u32 v5, v5, v6")
    a(f"v_add_u32 v5, {WS_WX}, v5")
    a("v_lshlrev_b32 v6, 12, v4")
    for g in range(5):
        d = B2 if g == 0 else B2Q + 4 * (g - 1)
        a(f"buffer_load_dwordx4 v[{d}:{d+3}], v5, s[{SWS}:{SWS+3}], 0 offen")
        if g < 4: a("v_add_u32 v5, v5, v6")
    a(f"s_lshl_b32 s{t0}, s{W}, 6")
    a(f"s_add_u32 s{t0}, s{t0}, {WS_WXP}")
    a("v_lshlrev_b32 v7, 4, v4")
    a(f"buffer_load_dwordx4 v[{WXA}:{WXA+3}], v7, s[{SWS}:{SWS+3}], s{t0} offen")
    a(f"buffer_load_dwordx4 v[{WXA+4}:{WXA+7}], v7, s[{SWS}:{SWS+3}], s{t0} offen offset:32")
    a.label("L2_nob2")
    a(f"s_sub_u32 s{S_N}, s{S_NT}, s{S_TG0}")
    a(f"s_min_u32 s{S_N}, s{S_N}, {CAP}")
    a(f"s_mov_b32 s{S_T}, 0")
    a(f"s_mov_b32 s{S_TG}, s{S_TG0}")
    a("v_lshrrev_b32 v5, 2, v1")
    a("v_lshlrev_b32 v5, 2, v5")
    a(f"v_add_u32 v{vSR}, {L_SRC}, v5")
    for k in range(4):
        a(f"ds_read2_b32 v[{E+2*k}:{E+2*k+1}], v{vSR} offset0:{k*32} offset1:{k*32+16}")
    a(f"ds_read2_b32 v[{SR}:{SR+1}], v{vSR} offset0:128 offset1:144")
    a(f"v_mov_b32 v{vA2}, v{cA2}")
    a(f"v_mov_b32 v{vB0}, v{cB0}")
    a(f"v_mov_b32 v{vB1}, v{cB1}")
    a("s_waitcnt lgkmcnt(1)")
    for k in range(8):
        a(f"v_add_u32 v{E+k}, v{E+k}, v{vLC}")
        a(f"s_add_u32 m0, s{S_STG}, {k*1024}")
        a("s_nop 0")
        a(f"buffer_load_dwordx4 v{E+k}, s[{SQ}:{SQ+3}], 0 offen lds")
    for k in range(8): a(f"v_mov_b32 v{M+k}, 0")
    for k in range(8): a(f"v_mov_b32 v{BP+k}, 0")
    a(f"s_cmp_eq_u32 s{S_FIRST}, 0")
    a(f"s_cselect_b32 s{S_WPH}, 2, 0")
    a(f"s_mov_b32 s{S_FIRST}, 0")
    a("s_waitcnt vmcnt(6)")
    for x in a_reads(0): a(x)
    a("s_waitcnt lgkmcnt(0)")
    dma(a, 0)
    for m in z_mfmas(Z[0]): a(m)
    a(f"ds_read2_b32 v[{SR}:{SR+1}], v{vSR} offset0:160 offset1:176")
    a(f"v_add_u32 v{vSR}, 768, v{vSR}")
    a("s_waitcnt vmcnt(6)")
    for x in a_reads(1): a(x)
    a("s_nop 7")
    a.stamp(9)
    a.label("L2_loop")
    OOL.clear()
    for u in range(4): iteration(a, u)
    a(f"v_add_u32 v{vA2}, {4*TILE}, v{vA2}")
    a(f"v_add_u32 v{vB0}, {4*TILE}, v{vB0}")
    a(f"v_add_u32 v{vB1}, {4*TILE}, v{vB1}")
    a(f"v_add_u32 v{vSR}, 512, v{vSR}")
    a(f"s_add_u32 s{S_WPH}, s{S_WPH}, 1")
    a(f"s_min_u32 s{S_WPH}, s{S_WPH}, 2")
    a("s_branch L2_loop")
    for lbl, fn in OOL:
        a.label(lbl); fn(a)
    a.label("L2_win_end")
    a("s_setprio 0")
    a("s_waitcnt lgkmcnt(0)")
    a(f"s_cmp_eq_u32 s{S_TG}, s{FB}")
    a("s_cbranch_scc0 L2_we_nf")
    flush(a, Z[0])
    a.label("L2_we_nf")
    for m in seg_mfmas(): a(m)
    a(f"s_add_u32 s{S_TG0}, s{S_TG0}, s{S_N}")
    a(f"s_cmp_ge_u32 s{S_TG0}, s{S_NT}")
    a("s_cbranch_scc1 L2_final")
    a("s_waitcnt vmcnt(0) lgkmcnt(0)")
    a("s_barrier")
    a(f"s_lshl_b32 s{S_WIN}, s{S_TG0}, 5")
    a(f"s_mov_b32 s{S_IB}, 0")
    zero_fill(a)
    a(f"s_cmp_eq_u32 s{W}, 7")
    a("s_cbranch_scc1 L2_round_bar")
    rec_consts(a)
    rec_loads(a, "L2_ld2")
    a("s_branch L2_round_bar")

    a.label("L2_final")
    a.stamp(10)
    RQ, HQ, O, BR = 88, 100, 16, 48
    SP, SPO = R4, R5
    srd(a, SH, P_H, 0, MAT_BYTES)
    srd(a, SO, P_OUT, 0, MAT_BYTES)
    srd(a, SP, P_POS, 0, 60000)
    srd(a, SPO, P_OUT, MAT_BYTES, 60000)
    sR, sN, sTmp, sP = T[4], T[5], T[6], T[7]
    a("v_and_b32 v3, 15, v1")
    a("v_lshrrev_b32 v4, 4, v1")
    a("v_lshrrev_b32 v5, 3, v3")
    a("v_lshlrev_b32 v5, 12, v5")
    a("v_and_b32 v6, 7, v3")
    a("v_lshl_add_u32 v5, v6, 4, v5")
    a("v_lshl_add_u32 v5, v4, 7, v5")
    a(f"s_lshl_b32 s{t0}, s{W}, 9")
    a(f"v_add_u32 v5, s{t0}, v5")
    a(f"s_lshl_b32 s{sR}, s{S_G5}, 12")
    a(f"s_add_u32 s{sR}, s{sR}, {WS_R}")
    a("v_lshlrev_b32 v6, 9, v3")
    a("v_lshl_add_u32 v6, v4, 4, v6")
    a(f"s_lshl_b32 s{t0}, s{W}, 6")
    a(f"v_add_u32 v6, s{t0}, v6")
    a(f"s_mul_i32 s{sN}, s2, 20480")
    for nb in range(3):
        a(f"buffer_load_dwordx4 v[{RQ+4*nb}:{RQ+4*nb+3}], v5, s[{SWS}:{SWS+3}], s{sR} offen")
        a(f"s_add_u32 s{sR}, s{sR}, 8192")
    for nb in range(3):
        a(f"s_add_u32 s{sTmp}, s{sN}, {nb*8192}")
        a(f"buffer_load_dwordx4 v[{HQ+4*nb}:{HQ+4*nb+3}], v6, s[{SH}:{SH+3}], s{sTmp} offen")
    a("v_lshlrev_b32 v7, 2, v1")
    a(f"s_mul_i32 s{sP}, s2, 240")
    a(f"buffer_load_dword v8, v7, s[{SP}:{SP+3}], s{sP} offen")
    flush(a, Z[1])
    a(f"v_mul_u32_u24 v9, {S_ROW}, v3")
    a("v_lshl_add_u32 v9, v4, 4, v9")
    a(f"v_add_u32 v9, {L_S}, v9")
    a("s_waitcnt lgkmcnt(0)")
    a("s_barrier")
    a.lds = []
    seq = [(nb, ks) for nb in range(3) for ks in range(8)]
    def bread(i):
        nb, ks = seq[i]; q = BR + 4 * (i % 8)
        a.ds(f"ds_read_b128 v[{q}:{q+3}], v9 offset:{nb*16*S_ROW + ks*64}", ("B", i))
    X, EE = 112, 120
    sM16, sLN2 = T[8], T[9]
    a(f"s_mov_b32 s{sM16}, 0xffff0000")
    a(f"s_mov_b32 s{sLN2}, {NLN2:#x}")
    def epilogue(nb):
        o = O + 8 * nb
        ops = []
        if nb == 2:
            ops += ["s_mov_b32 exec_lo, 0x00ff00ff", "s_mov_b32 exec_hi, 0x00ff00ff"]
        for i in range(4):
            ops.append(f"v_lshlrev_b32 v{X+2*i}, 16, v{RQ+4*nb+i}")
            ops.append(f"v_and_b32 v{X+2*i+1}, s{sM16}, v{RQ+4*nb+i}")
        for k in range(8): ops.append(f"v_add_f32 v{X+k}, v{X+k}, v{o+k}")
        for k in range(8): ops.append(f"v_exp_f32 v{EE+k}, v{X+k}")
        for k in range(8): ops.append(f"v_add_f32 v{EE+k}, 1.0, v{EE+k}")
        for k in range(8): ops.append(f"v_rcp_f32 v{EE+k}, v{EE+k}")
        for i in range(4):
            ops.append(f"v_lshlrev_b32 v{o+2*i}, 16, v{HQ+4*nb+i}")
            ops.append(f"v_and_b32 v{o+2*i+1}, s{sM16}, v{HQ+4*nb+i}")
        for k in range(8): ops.append(f"v_mul_f32 v{X+k}, v{X+k}, v{EE+k}")
        for k in range(8): ops.append(f"v_fma_f32 v{X+k}, v{X+k}, s{sLN2}, v{o+k}")
        d = 128 + 4 * nb
        for i in range(4): ops.append(f"v_cvt_pk_bf16_f32 v{d+i}, v{X+2*i}, v{X+2*i+1}")
        ops.append(f"s_add_u32 s{sTmp}, s{sN}, {nb*8192}")
        ops.append(f"buffer_store_dwordx4 v[{d}:{d+3}], v6, s[{SO}:{SO+3}], s{sTmp} offen")
        return ops
    for i in range(6): bread(i)
    pend = []
    for i, (nb, ks) in enumerate(seq):
        q = BR + 4 * (i % 8)
        if ks == 3 and nb > 0:
            if nb == 1: a("s_waitcnt vmcnt(0)")
            pend = epilogue(nb - 1)
        a.wait_lds(("B", i))
        for cb in range(2):
            o = O + 8 * nb + 4 * cb; w = WH + 4 * (cb * 8 + ks)
            c = "0" if ks == 0 else f"v[{o}:{o+3}]"
            a(f"v_mfma_f32_16x16x32_bf16 v[{o}:{o+3}], v[{w}:{w+3}], v[{q}:{q+3}], {c}")
        if i + 6 < len(seq): bread(i + 6)
        left = 7 - ks if ks >= 3 else None
        if pend:
            k = -(-len(pend) // (8 - ks + 2))
            for op in pend[:k]: a(op)
            pend = pend[k:]
        if ks == 2:
            for op in pend: a(op)
            pend = []
    for op in pend: a(op)
    a.stamp(11)
    a("s_nop 7")
    for op in epilogue(2): a(op)
    a("s_mov_b64 exec, -1")
    a(f"s_cmp_lg_u32 s{W}, 0")
    a("s_cbranch_scc1 L2_done")
    a("s_mov_b32 exec_hi, 0x0fffffff")
    for k in range(2):
        a(f"v_lshlrev_b32 v10, 1, v1")
        if k: a("v_add_u32 v10, 1, v10")
        a("v_mul_u32_u24 v11, 171, v10")
        a("v_lshrrev_b32 v11, 9, v11")
        a("v_mul_u32_u24 v12, 3, v11")
        a("v_sub_u32 v12, v10, v12")
        a("v_lshrrev_b32 v13, 3, v11")
        a("v_lshlrev_b32 v13, 5, v13")
        a("v_lshl_add_u32 v13, v12, 3, v13")
        a("v_and_b32 v11, 7, v11")
        a("v_add3_u32 v13, v13, v11, 8")
        a("v_lshlrev_b32 v13, 2, v13")
        a(f"v_add_u32 v13, {L_T}, v13")
        a(f"ds_read_b32 v{14+k}, v13")
    a("v_lshlrev_b32 v10, 16, v8")
    a(f"v_and_b32 v11, s{sM16}, v8")
    a("s_waitcnt lgkmcnt(0)")
    a(f"v_fma_f32 v10, v14, s{sLN2}, v10")
    a(f"v_fma_f32 v11, v15, s{sLN2}, v11")
    a("v_cvt_pk_bf16_f32 v10, v10, v11")
    a(f"buffer_store_dword v10, v7, s[{SPO}:{SPO+3}], s{sP} offen")
    a.label("L2_done")
    if a.diag:
        a("s_waitcnt vmcnt(0)")
        a("s_memrealtime s[100:101]")
        a("s_waitcnt lgkmcnt(0)")
        a("s_mov_b32 s89, s100")
        a.dump_stamps(P_WS, WS_DIAG, W)
```

```python
import sys
from asmlib import *
from common import *
import p1, p2
NAME = "standalone__cheap_equivariant_egnn__graph_kernel"
LDS = 163840
def build(diag=False):
    head = f"""; EGNN layer in one launch of 250 co-resident workgroups (one per CU, 160 KiB LDS each).
; @launch grid=({GRID},1,1) block=(512,1,1) lds={LDS}
"""
    a = Asm(); a.diag = diag
    a(".text"); a(f".globl {NAME}"); a(".p2align 8"); a(f".type {NAME},@function")
    a.label(NAME)
    a(f"s_cmp_ge_u32 s2, {GRID}")
    a("s_cbranch_scc1 L_exit")
    a("s_load_dwordx4 s[4:7], s[0:1], 0")
    a("s_load_dwordx4 s[8:11], s[0:1], 16")
    a("s_load_dwordx4 s[12:15], s[0:1], 32")
    a("s_load_dwordx4 s[16:19], s[0:1], 48")
    a("s_load_dwordx2 s[22:23], s[0:1], 64")
    a("s_load_dwordx2 s[24:25], s[0:1], 72")
    a("s_load_dwordx2 s[20:21], s[0:1], 80")
    a("v_and_b32 v1, 63, v0")
    a("v_lshrrev_b32 v2, 6, v0")
    a(f"s_mul_hi_u32 s{T[6]}, s2, 0x55555556")
    a(f"v_readfirstlane_b32 s{S_WAVE}, v2")
    a(f"s_mul_i32 s{T[0]}, s{T[6]}, 3")
    a(f"s_sub_u32 s{T[5]}, s2, s{T[0]}")
    a("s_waitcnt lgkmcnt(0)")
    a.stamp(0)
    a(f"s_cmp_ge_u32 s2, {WG_PACK}")
    a("s_cbranch_scc1 L1_pack")
    a(f"s_cmp_ge_u32 s2, {WG_SORT0}")
    a("s_cbranch_scc1 L1_sort")
    a(f"s_cmp_eq_u32 s{T[5]}, 1")
    a("s_cbranch_scc1 L1_gemm_Q")
    a(f"s_cmp_eq_u32 s{T[5]}, 2")
    a("s_cbranch_scc1 L1_gemm_R")
    p1.CONSTS = lambda a, b: (p2.constants_b(a, b), p2.constants_a(a, b))
    for mat in range(3):
        a.lds = []; a.vm = []
        p1.gemm(a, mat)
    a.lds = []; a.vm = []
    p1.sort(a)
    a.lds = []; a.vm = []
    p1.pack(a)
    a.lds = []; a.vm = []
    p2.phase2(a)
    a.label("L_exit")
    a("s_endpgm")
    txt = head + '.amdgcn_target "amdgcn-amd-amdhsa--gfx950"\n' + a.text() + kernel_desc(NAME, 256 if diag else 241, 102 if diag else 88)
    for p in check_hazards(txt): print("HAZARD", p)
    return txt
if __name__ == "__main__":
    out = sys.argv[1] if len(sys.argv) > 1 else "../cdna_kernels/standalone__cheap_equivariant_egnn__graph.s"
    diag = len(sys.argv) > 2 and sys.argv[2] == "diag"
    if len(sys.argv) > 3:
        for x in sys.argv[3].split(","):
            p2.EXP.add(x)
            if x.startswith("st_"): p1.ST = " " + x[3:].replace("+", " ")
    open(out, "w").write(build(diag))
    print("wrote", out)
```

```python
N_NODES = 10000
N_EDGES = 160000
WS_Q    = 0
WS_P    = 0x500000
WS_R    = 0xA00000
WS_RECA = 0xF00000
WS_RECB = 0x1200000
WS_TAB  = 0x1300000
WS_WHP  = 0x1400000
WS_WX   = 0x1420000
WS_WXP  = 0x1421000
WS_USED = 0x1430000
WS_DIAG = 0x1500000
MAT_BYTES = 5120000
NCH = 60
CH_E = 2667
CH_STRIDE = 2688
TAB_STRIDE = 4096
NLOG2E = 0xBFB8AA3B
NLN2 = 0xBF317218
SRD3 = 0x00020000

def srd(a, d, base, off, size):
    if off:
        a(f"s_add_u32 s{d}, s{base}, {off}")
        a(f"s_addc_u32 s{d+1}, s{base+1}, 0")
    else:
        a(f"s_mov_b32 s{d}, s{base}")
        a(f"s_mov_b32 s{d+1}, s{base+1}")
    a(f"s_mov_b32 s{d+2}, {size}")
    a(f"s_mov_b32 s{d+3}, {SRD3:#x}")

def kernel_desc(name, nvgpr, nsgpr):
    return f""".section .rodata,"a"
.p2align 6
.amdhsa_kernel {name}
  .amdhsa_next_free_vgpr {nvgpr}
  .amdhsa_next_free_sgpr {nsgpr}
  .amdhsa_accum_offset {(nvgpr + 3) // 4 * 4}
  .amdhsa_group_segment_fixed_size 0
  .amdhsa_kernarg_size 88
  .amdhsa_user_sgpr_count 2
  .amdhsa_user_sgpr_kernarg_segment_ptr 1
  .amdhsa_system_sgpr_workgroup_id_x 1
  .amdhsa_float_denorm_mode_32 3
.end_amdhsa_kernel
"""

S_WAVE = 3
P_H, P_POS, P_EA, P_SRC, P_DST, P_WE, P_WX, P_WH, P_WS, P_OUT, P_DBG = 4, 6, 8, 10, 12, 14, 16, 18, 20, 22, 24
R0, R1, R2, R3, R4, R5 = 28, 32, 36, 40, 44, 48
T = list(range(52, 64))
N_RANGE = 63
WG_SORT0 = 3 * N_RANGE
WG_PACK = WG_SORT0 + NCH
GRID = 250
INC_INIT, INC_SORT, INC_GEMM = 1, 1 << 8, 1 << 16
K1 = 1 | (NCH << 8)
K2 = WG_SORT0 + 1
WS_MBX = 0x1428000
```

```python
from asmlib import *
from common import *
CONSTS = None

ST = " sc1"
W = S_WAVE

S_CNT = 85

def broadcast(a, lbl, word):
    srd(a, R4, P_WS, WS_MBX, 2048)
    a("v_lshlrev_b32 v2, 7, v1")
    a("v_mov_b32 v3, 1")
    a("s_mov_b32 exec_lo, 0xffff")
    a("s_mov_b32 exec_hi, 0")
    a(f"buffer_store_dword v3, v2, s[{R4}:{R4+3}], 0 offen offset:{4*word} sc1")
    a("s_mov_b64 exec, -1")

def arrive_issue(a, inc):
    srd(a, R5, P_DBG, 0, 256)
    a("v_mov_b32 v2, 0")
    a(f"v_mov_b32 v3, {inc}")
    a("s_mov_b32 exec_lo, 1")
    a("s_mov_b32 exec_hi, 0")
    a(f"buffer_atomic_add v3, v2, s[{R5}:{R5+3}], 0 offen sc0 sc1")
    a("s_mov_b64 exec, -1")

def arrive_finish(a, inc, tag):
    a("s_waitcnt vmcnt(0)")
    a(f"v_readfirstlane_b32 s{T[0]}, v3")
    a(f"s_add_u32 s{S_CNT}, s{T[0]}, {inc}")
    a(f"s_and_b32 s{T[1]}, s{S_CNT}, 0xffff")
    a(f"s_cmp_eq_u32 s{T[1]}, {K1:#x}")
    a(f"s_cbranch_scc0 L_arr1_{tag}")
    a(f"s_and_b32 s{T[1]}, s{T[0]}, 0xffff")
    a(f"s_cmp_eq_u32 s{T[1]}, {K1:#x}")
    a(f"s_cbranch_scc1 L_arr1_{tag}")
    broadcast(a, tag, 0)
    a.label(f"L_arr1_{tag}")
    a(f"s_and_b32 s{T[1]}, s{S_CNT}, 0xffff00ff")
    a(f"s_cmp_eq_u32 s{T[1]}, {(K2 << 16) | 1:#x}")
    a(f"s_cbranch_scc0 L_arr2_{tag}")
    a(f"s_and_b32 s{T[1]}, s{T[0]}, 0xffff00ff")
    a(f"s_cmp_eq_u32 s{T[1]}, {(K2 << 16) | 1:#x}")
    a(f"s_cbranch_scc1 L_arr2_{tag}")
    broadcast(a, tag, 1)
    a.label(f"L_arr2_{tag}")

S_INC = 84

def signal(a, inc, tag):
    a(f"s_mov_b32 s{S_INC}, {inc:#x}")
    a("s_waitcnt vmcnt(0) lgkmcnt(0)")
    a("s_barrier")
    a("s_branch L_phase2")

def w_lane_offsets(a):
    a("v_lshrrev_b32 v2, 2, v1")
    a("v_lshlrev_b32 v2, 9, v2")
    a("v_and_b32 v3, 3, v1")
    a("v_lshl_add_u32 v2, v3, 4, v2")
    a(f"s_lshl_b32 s{T[0]}, s{W}, 6")
    a(f"v_add_u32 v2, s{T[0]}, v2")

def w_dma(a, srdw):
    a(f"s_lshl_b32 s{T[1]}, s{W}, 14")
    for i in range(16):
        a(f"s_add_u32 m0, s{T[1]}, {i*1024}")
        a(f"s_mov_b32 s{T[2]}, {i*8192}")
        a.mem(f"buffer_load_dwordx4 v2, s[{srdw}:{srdw+3}], s{T[2]} offen lds", ("W", i))

def gemm(a, mat):
    nm = "PQR"[mat]
    VW, VF, ACC, PK = 48, 112, (152, 168), 184
    QS, RING = 192, 10
    VA = 8
    vH = (3, 4)
    sRange, sH0, sHL, sO, sScale, sTmp = T[6], T[7], T[8], T[9], T[4], T[2]
    SW_, SH_, SO_ = R0, R1, R2
    a.label(f"L1_gemm_{nm}")
    if mat == 0: srd(a, SW_, P_WE, 0, 131072)
    if mat == 1: srd(a, SW_, P_WE, 131072, 131072)
    if mat == 2: srd(a, SW_, P_WH, 0, 131072)
    srd(a, SH_, P_H, 0, MAT_BYTES)
    w_lane_offsets(a)
    a("v_lshrrev_b32 v5, 5, v1")
    a(f"s_lshl_b32 s{T[0]}, s{W}, 2")
    a("v_and_b32 v6, 31, v1")
    for i in range(2):
        a(f"v_add_u32 v7, s{T[0]}, v5")
        if i: a("v_add_u32 v7, 2, v7")
        a("v_and_b32 v16, 15, v7")
        a("v_xor_b32 v16, v16, v6")
        a("v_lshlrev_b32 v16, 4, v16")
        a(f"v_lshl_add_u32 v{vH[i]}, v7, 9, v16")
    a(f"s_mul_i32 s{sH0}, s{sRange}, 81920")
    a(f"s_lshl_b32 s{sHL}, s{W}, 11")
    def h_dma(Tt, ldsbase):
        for i in range(2):
            a(f"s_add_u32 m0, s{sHL}, {ldsbase + i*1024}")
            a(f"s_add_u32 s{sTmp}, s{sH0}, {Tt*16384}")
            a.mem(f"buffer_load_dwordx4 v{vH[i]}, s[{SH_}:{SH_+3}], s{sTmp} offen lds", ("H", Tt))
    a("s_setprio 3")
    h_dma(0, 131072)
    a("s_setprio 0")
    w_dma(a, SW_)
    h_dma(1, 147456)
    HP = 24
    for Tt in (2, 3, 4):
        a(f"s_add_u32 s{sTmp}, s{sH0}, {Tt*16384}")
        for i in range(2):
            q = HP + 8 * (Tt - 2) + 4 * i
            a.mem(f"buffer_load_dwordx4 v[{q}:{q+3}], v{vH[i]}, s[{SH_}:{SH_+3}], s{sTmp} offen", ("H", Tt))
    srd(a, SO_, P_WS, (WS_P, WS_Q, WS_R)[mat], MAT_BYTES)
    a("v_lshrrev_b32 v5, 5, v1")
    a("v_bfe_u32 v6, v1, 2, 2")
    a("v_lshl_add_u32 v6, v5, 3, v6")
    a("v_lshlrev_b32 v6, 6, v6")
    a("v_bfe_u32 v7, v1, 4, 1")
    a("v_and_b32 v16, 3, v1")
    a("v_lshl_add_u32 v7, v7, 2, v16")
    if mat == 0:
        a("v_lshlrev_b32 v7, 3, v7")
    else:
        a("v_and_b32 v16, 1, v7")
        a("v_lshlrev_b32 v16, 5, v16")
        a("v_lshrrev_b32 v7, 1, v7")
        a("v_lshl_add_u32 v7, v7, 3, v16")
    a("v_add_u32 v5, v6, v7")
    a(f"s_lshl_b32 s{T[1]}, s{W}, 14")
    a(f"v_add_u32 v5, s{T[1]}, v5")
    a("v_and_b32 v6, 31, v1")
    a("v_lshrrev_b32 v7, 5, v1")
    a("v_and_b32 v16, 15, v6")
    a("v_xor_b32 v7, v7, v16")
    a("v_lshlrev_b32 v6, 9, v6")
    a("v_add_u32 v6, 0x20000, v6")
    for k in range(8):
        a(f"v_xor_b32 v16, {2*k}, v7")
        a(f"v_lshl_add_u32 v{VA+k}, v16, 4, v6")
    a("v_and_b32 v6, 31, v1")
    a("v_lshrrev_b32 v7, 5, v1")
    a(f"s_mul_i32 s{sO}, s{sRange}, 81920")
    if mat == 0:
        a(f"s_lshl_b32 s{T[0]}, s{W}, 9")
        a("v_lshlrev_b32 v17, 4, v6")
        a("v_lshl_add_u32 v17, v7, 12, v17")
        a(f"v_add_u32 v17, s{T[0]}, v17")
    elif mat == 2:
        a(f"s_lshl_b32 s{T[0]}, s{W}, 9")
        a("v_lshrrev_b32 v17, 3, v6")
        a("v_lshlrev_b32 v17, 12, v17")
        a("v_lshl_add_u32 v17, v7, 8, v17")
        a("v_and_b32 v16, 7, v6")
        a("v_lshl_add_u32 v17, v16, 4, v17")
        a(f"v_add_u32 v17, s{T[0]}, v17")
    else:
        a(f"s_lshl_b32 s{T[0]}, s{W}, 11")
        a(f"s_add_u32 s{T[0]}, s{T[0]}, 65536")
        a("v_bfe_u32 v16, v6, 1, 2")
        a("v_lshlrev_b32 v19, 1, v7")
        a("v_xor_b32 v19, v19, v16")
        a("v_lshlrev_b32 v20, 6, v6")
        a(f"v_add_u32 v20, s{T[0]}, v20")
        a("v_lshl_add_u32 v17, v19, 4, v20")
        a("v_xor_b32 v19, 1, v19")
        a("v_lshl_add_u32 v18, v19, 4, v20")
        a("v_lshrrev_b32 v6, 2, v1")
        a("v_bfe_u32 v16, v1, 3, 2")
        a("v_and_b32 v7, 3, v1")
        a("v_xor_b32 v16, v16, v7")
        a("v_lshlrev_b32 v19, 6, v6")
        a("v_lshl_add_u32 v19, v16, 4, v19")
        a(f"v_add_u32 v19, s{T[0]}, v19")
        a(f"s_lshl_b32 s{T[0]}, s{W}, 6")
        a("v_lshlrev_b32 v20, 9, v6")
        a("v_lshl_add_u32 v20, v7, 4, v20")
        a(f"v_add_u32 v20, s{T[0]}, v20")
    CONSTS(a, 112)
    a(f"s_mov_b32 s{sScale}, {NLOG2E:#x}")
    a.stamp(1)
    a.wait_vm(("H", 0))
    a("s_barrier")
    a.stamp(2)

    def trread(st):
        for i in range(2):
            a.ds(f"ds_read_b64_tr_b16 v[{VW+4*st+2*i}:{VW+4*st+2*i+1}], v5 offset:{st*1024+i*256}", ("TR", st))
    def fread(u):
        Tt, st = divmod(u, 16)
        base = Tt * 16384 if Tt < 2 else (Tt - 2) * 16384
        q = VF + 4 * (u % RING)
        a.ds(f"ds_read_b128 v[{q}:{q+3}], v{VA + (st & 7)} offset:{base + 256*(st >> 3)}", ("F", u))
    def mfma(u):
        Tt, st = divmod(u, 16)
        q = VF + 4 * (u % RING); w = VW + 4 * st; acc = ACC[Tt & 1]
        c = "0" if st == 0 else f"v[{acc}:{acc+15}]"
        A, B = (q, w) if mat == 0 else (w, q)
        a(f"v_mfma_f32_32x32x16_bf16 v[{acc}:{acc+15}], v[{A}:{A+3}], v[{B}:{B+3}], {c}")
    def epi(Tt):
        acc = ACC[Tt & 1]
        ops = []
        for j in range(8):
            ops.append(f"v_mul_f32 v{acc+2*j}, s{sScale}, v{acc+2*j}")
            ops.append(f"v_mul_f32 v{acc+2*j+1}, s{sScale}, v{acc+2*j+1}")
        for j in range(8):
            ops.append(f"v_cvt_pk_bf16_f32 v{PK+j}, v{acc+2*j}, v{acc+2*j+1}")
        if mat == 0:
            ops.append("s_nop 1")
            for q in (0, 2):
                ops.append(f"v_permlane32_swap_b32 v{PK+2*q}, v{PK+2*q+2}")
                ops.append(f"v_permlane32_swap_b32 v{PK+2*q+1}, v{PK+2*q+3}")
            for q in (0, 2):
                ops.append(f"s_add_u32 s{sTmp}, s{sO}, {Tt*16384 + q*4096}")
                ops.append(("vm", f"buffer_store_dwordx4 v[{PK+2*q}:{PK+2*q+3}], v17, s[{SO_}:{SO_+3}], s{sTmp} offen{ST}", ("S", Tt)))
        elif mat == 2:
            ops.append(f"s_add_u32 s{sTmp}, s{sO}, {Tt*16384}")
            for i in range(2):
                ops.append(("vm", f"buffer_store_dwordx4 v[{PK+4*i}:{PK+4*i+3}], v17, s[{SO_}:{SO_+3}], s{sTmp} offen offset:{i*128}{ST}", ("S", Tt)))
        else:
            ops.append(("ds", f"ds_write_b128 v17, v[{PK}:{PK+3}]", ("QW", Tt)))
            ops.append(("ds", f"ds_write_b128 v18, v[{PK+4}:{PK+7}]", ("QW", Tt)))
            ops.append(("waitlds", ("QW", Tt)))
            ops.append(("ds", f"ds_read_b128 v[{QS}:{QS+3}], v19", ("QR0", Tt)))
            ops.append(("ds", f"ds_read_b128 v[{QS+4}:{QS+7}], v19 offset:1024", ("QR1", Tt)))
            ops.append(f"s_add_u32 s{sTmp}, s{sO}, {Tt*16384}")
            ops.append(("waitlds", ("QR0", Tt)))
            ops.append(("vm", f"buffer_store_dwordx4 v[{QS}:{QS+3}], v20, s[{SO_}:{SO_+3}], s{sTmp} offen{ST}", ("S", Tt)))
            ops.append(f"s_add_u32 s{sTmp}, s{sO}, {Tt*16384 + 8192}")
            ops.append(("waitlds", ("QR1", Tt)))
            ops.append(("vm", f"buffer_store_dwordx4 v[{QS+4}:{QS+7}], v20, s[{SO_}:{SO_+3}], s{sTmp} offen{ST}", ("S", Tt)))
        return ops
    def emit(op):
        if isinstance(op, str): a(op)
        elif op[0] == "vm": a.mem(op[1], op[2])
        elif op[0] == "ds": a.ds(op[1], op[2])
        elif op[0] == "waitlds": a.wait_lds_if(op[1])
    PD = 8
    def stream(tiles, pend, first=False):
        u0, u1 = tiles[0] * 16, (tiles[-1] + 1) * 16
        for u in range(u0, u0 + (6 if first else PD)): fread(u)
        if first:
            for st in range(2):
                a.wait_vm(("W", st)); trread(st)
        nxt = u0 + (6 if first else PD)
        for u in range(u0, u1):
            Tt, st = divmod(u, 16)
            if st == 0 and u > u0:
                assert not pend
                pend = epi(Tt - 1)
            if first and Tt == 0:
                if st + 2 < 16:
                    a.wait_vm(("W", st + 2)); trread(st + 2)
                a.wait_lds_if(("TR", st))
            a.wait_lds_if(("F", u))
            mfma(u)
            if first and u == 15:
                a.wait_vm(("H", 1))
                a("s_barrier")
                a.wait_vm(("H", 4))
                a("v_lshlrev_b32 v21, 4, v1")
                a(f"v_add_u32 v21, s{sHL}, v21")
                for T2 in (2, 3, 4):
                    for i in range(2):
                        q = HP + 8 * (T2 - 2) + 4 * i
                        a.ds(f"ds_write_b128 v21, v[{q}:{q+3}] offset:{(T2-2)*16384 + i*1024}", ("HW", T2))
            depth = 6 if (first and Tt == 0) else PD
            while nxt < u1 and nxt <= u + depth and not (first and u < 15 and nxt >= 16):
                fread(nxt); nxt += 1
            if st >= 5 and pend:
                k = -(-len(pend) // (16 - st))
                for op in pend[:k]: emit(op)
                pend = pend[k:]
        assert not pend
        return epi(tiles[-1])
    pend = stream([0, 1], [], first=True)
    a.stamp(3)
    for k in range(8): a(f"v_add_u32 v{VA+k}, 0xfffe0000, v{VA+k}")
    a.wait_lds_if(("HW", 4))
    a("s_barrier")
    pend = stream([2, 3, 4], pend)
    a("s_nop 7"); a("s_nop 3")
    a.stamp(4)
    for op in pend: emit(op)
    signal(a, INC_GEMM, f"g{nm}")

def sort(a):
    POS, HIST, WSUM, RECA = 0, 65536, 70656, 71680
    RECB = RECA + CH_STRIDE * 16
    NR = 6
    D, SX, EA = 8, 14, 20
    RA, RB, BA, RK = 32, 56, 62, 68
    t = 76
    sC, sE4, sE8, sTmp = T[6], T[7], T[8], T[2]
    MK = 62
    a.label("L1_sort")
    a(f"s_sub_u32 s{sC}, s2, {WG_SORT0}")
    srd(a, R0, P_DST, 0, N_EDGES * 4)
    srd(a, R1, P_SRC, 0, N_EDGES * 4)
    a(f"s_mul_i32 s{sE4}, s{sC}, {CH_E*4}")
    a(f"s_mul_i32 s{sE8}, s{sC}, {CH_E*8}")
    a("v_lshlrev_b32 v2, 2, v0")
    for i in range(NR):
        a(f"s_add_u32 s{sTmp}, s{sE4}, {i*2048}")
        a(f"buffer_load_dword v{D+i}, v2, s[{R0}:{R0+3}], s{sTmp} offen")
    srd(a, R3, P_POS, 0, 60000)
    a("v_lshlrev_b32 v4, 4, v1")
    for j in range(8):
        a(f"s_lshl_b32 s{T[0]}, s{W}, 10")
        a(f"s_add_u32 s{T[0]}, s{T[0]}, {j*8192}")
        a(f"s_mov_b32 m0, s{T[0]}")
        a("s_nop 0")
        a(f"buffer_load_dwordx4 v4, s[{R3}:{R3+3}], s{T[0]} offen lds")
    for i in range(NR):
        a(f"s_add_u32 s{sTmp}, s{sE4}, {i*2048}")
        a(f"buffer_load_dword v{SX+i}, v2, s[{R1}:{R1+3}], s{sTmp} offen")
    srd(a, R2, P_EA, 0, N_EDGES * 8)
    a("v_lshlrev_b32 v3, 3, v0")
    for i in range(NR):
        a(f"s_add_u32 s{sTmp}, s{sE8}, {i*4096}")
        a(f"buffer_load_dwordx2 v[{EA+2*i}:{EA+2*i+1}], v3, s[{R2}:{R2+3}], s{sTmp} offen")
    srd(a, R4, P_WS, 0, WS_USED)
    for k in range(4): a(f"v_mov_b32 v{t+k}, 0")
    a("v_lshlrev_b32 v5, 4, v0")
    a(f"v_add_u32 v5, {HIST}, v5")
    a(f"s_cmp_ge_u32 s{W}, 5")
    a("s_cbranch_scc1 L1_sort_z")
    a(f"ds_write_b128 v5, v[{t}:{t+3}]")
    a.label("L1_sort_z")
    CONSTS(a, 100)
    a("v_mov_b32 v6, 1")
    a(f"s_mul_i32 s{T[0]}, s{sC}, {CH_E}")
    a(f"s_sub_u32 s{T[0]}, {N_EDGES}, s{T[0]}")
    a(f"s_min_u32 s{T[0]}, s{T[0]}, {CH_E}")
    a(f"s_sub_u32 s{T[0]}, s{T[0]}, {(NR-1)*512}")
    a(f"v_cmp_gt_u32 s[{MK}:{MK+1}], s{T[0]}, v0")
    a.stamp(1)
    a("s_waitcnt vmcnt(0) lgkmcnt(0)")
    a("s_barrier")
    a.stamp(2)
    def last_round(lbl):
        a(f"s_mov_b64 exec, s[{MK}:{MK+1}]")
        a(f"s_cbranch_execz {lbl}")
    for i in range(NR):
        if i == NR - 1: last_round("L1_sort_a")
        a(f"v_lshrrev_b32 v{t}, 3, v{D+i}")
        a(f"v_lshlrev_b32 v{BA+i}, 2, v{t}")
        a(f"v_add_u32 v{BA+i}, {HIST}, v{BA+i}")
        a(f"ds_add_rtn_u32 v{RK+i}, v{BA+i}, v6")
    a.label("L1_sort_a")
    a("s_mov_b64 exec, -1")
    a(f"s_mov_b32 s{T[3]}, 0xffff0000")
    M16 = T[3]
    for i in range(NR):
        PD_, PS_ = t, t + 2
        for (P, X) in ((PD_, D + i), (PS_, SX + i)):
            a(f"v_mul_u32_u24 v{t+4}, 6, v{X}")
            a(f"v_and_b32 v{t+4}, -4, v{t+4}")
            a(f"ds_read2_b32 v[{P}:{P+1}], v{t+4} offset0:0 offset1:1")
        a(f"v_and_b32 v{t+5}, 7, v{D+i}")
        a(f"v_lshl_or_b32 v{RB+i}, v{t+5}, 14, v{SX+i}")
        a(f"v_lshrrev_b32 v{t+5}, 3, v{D+i}")
        a(f"v_lshl_or_b32 v{RB+i}, v{t+5}, 17, v{RB+i}")
        a(f"v_and_b32 v{t+6}, 1, v{D+i}")
        a(f"v_lshlrev_b32 v{t+6}, 4, v{t+6}")
        a(f"v_and_b32 v{t+7}, 1, v{SX+i}")
        a(f"v_lshlrev_b32 v{t+7}, 4, v{t+7}")
        a("s_waitcnt lgkmcnt(0)")
        for (P, sh) in ((PD_, t + 6), (PS_, t + 7)):
            a(f"v_alignbit_b32 v{P}, v{P+1}, v{P}, v{sh}")
            a(f"v_lshrrev_b32 v{P+1}, v{sh}, v{P+1}")
        a(f"v_lshlrev_b32 v{t+8}, 16, v{PD_}")
        a(f"v_lshlrev_b32 v{t+9}, 16, v{PS_}")
        a(f"v_sub_f32 v{t+8}, v{t+8}, v{t+9}")
        a(f"v_and_b32 v{t+9}, s{M16}, v{PD_}")
        a(f"v_and_b32 v{t+10}, s{M16}, v{PS_}")
        a(f"v_sub_f32 v{t+9}, v{t+9}, v{t+10}")
        a(f"v_lshlrev_b32 v{t+10}, 16, v{PD_+1}")
        a(f"v_lshlrev_b32 v{t+11}, 16, v{PS_+1}")
        a(f"v_sub_f32 v{t+10}, v{t+10}, v{t+11}")
        a(f"v_mov_b32 v{t+11}, 0")
        a(f"v_cvt_pk_bf16_f32 v{t+12}, v{t+8}, v{t+9}")
        a(f"v_cvt_pk_bf16_f32 v{t+13}, v{t+10}, v{t+11}")
        a(f"v_lshlrev_b32 v{t+8}, 16, v{t+12}")
        a(f"v_and_b32 v{t+9}, s{M16}, v{t+12}")
        a(f"v_lshlrev_b32 v{t+10}, 16, v{t+13}")
        a(f"v_mul_f32 v{t+8}, v{t+8}, v{t+8}")
        a(f"v_mul_f32 v{t+9}, v{t+9}, v{t+9}")
        a(f"v_mul_f32 v{t+10}, v{t+10}, v{t+10}")
        a(f"v_cvt_pk_bf16_f32 v{t+14}, v{t+8}, v{t+9}")
        a(f"v_cvt_pk_bf16_f32 v{t+15}, v{t+10}, v{t+11}")
        a(f"v_lshlrev_b32 v{t+8}, 16, v{t+14}")
        a(f"v_and_b32 v{t+9}, s{M16}, v{t+14}")
        a(f"v_lshlrev_b32 v{t+10}, 16, v{t+15}")
        a(f"v_add_f32 v{t+8}, v{t+8}, v{t+9}")
        a(f"v_add_f32 v{t+8}, v{t+8}, v{t+10}")
        a(f"v_cvt_pk_bf16_f32 v{t+8}, v{t+8}, v{t+11}")
        r = RA + 4 * i
        a(f"v_lshl_or_b32 v{r}, v{EA+2*i}, 16, v{t+8}")
        a(f"v_alignbit_b32 v{r+1}, v{EA+2*i+1}, v{EA+2*i}, 16")
        a(f"v_alignbit_b32 v{r+2}, v{t+12}, v{EA+2*i+1}, 16")
        a(f"v_alignbit_b32 v{r+3}, v{t+13}, v{t+12}, 16")
    a("s_waitcnt lgkmcnt(0)")
    a("s_barrier")
    a.stamp(3)
    a(f"s_cmp_ge_u32 s{W}, 5")
    a("s_cbranch_scc1 L1_sort_s1")
    a(f"ds_read_b128 v[{t}:{t+3}], v5")
    a("s_waitcnt lgkmcnt(0)")
    a(f"v_add_u32 v{t+5}, v{t}, v{t+1}")
    a(f"v_add_u32 v{t+6}, v{t+5}, v{t+2}")
    a(f"v_add_u32 v{t+7}, v{t+6}, v{t+3}")
    a(f"v_mov_b32 v{t+8}, v{t+7}")
    for sh in (1, 2, 4, 8):
        a("s_nop 1")
        a(f"v_add_u32_dpp v{t+8}, v{t+8}, v{t+8} row_shr:{sh} row_mask:0xf bank_mask:0xf")
    a("s_nop 1")
    a(f"v_add_u32_dpp v{t+8}, v{t+8}, v{t+8} row_bcast:15 row_mask:0xa bank_mask:0xf")
    a("s_nop 1")
    a(f"v_add_u32_dpp v{t+8}, v{t+8}, v{t+8} row_bcast:31 row_mask:0xc bank_mask:0xf")
    a(f"s_lshl_b32 s{T[0]}, s{W}, 2")
    a(f"s_add_u32 s{T[0]}, s{T[0]}, {WSUM}")
    a(f"v_mov_b32 v{t+9}, s{T[0]}")
    a("s_mov_b32 exec_lo, 0")
    a("s_mov_b32 exec_hi, 0x80000000")
    a(f"ds_write_b32 v{t+9}, v{t+8}")
    a("s_mov_b64 exec, -1")
    a.label("L1_sort_s1")
    a("s_waitcnt lgkmcnt(0)")
    a("s_barrier")
    a(f"s_cmp_ge_u32 s{W}, 5")
    a("s_cbranch_scc1 L1_sort_s2")
    a(f"v_mov_b32 v{t+9}, {WSUM}")
    a(f"ds_read_b128 v[{t+10}:{t+13}], v{t+9}")
    a(f"v_sub_u32 v{t+8}, v{t+8}, v{t+7}")
    a("s_waitcnt lgkmcnt(0)")
    for k in range(4):
        a(f"v_readfirstlane_b32 s{64+k}, v{t+10+k}")
    a(f"s_mov_b32 s{T[0]}, 0")
    for k in range(4):
        a(f"s_cmp_gt_u32 s{W}, {k}")
        a(f"s_cselect_b32 s{T[1]}, s{64+k}, 0")
        a(f"s_add_u32 s{T[0]}, s{T[0]}, s{T[1]}")
    a(f"v_add_u32 v{t+8}, s{T[0]}, v{t+8}")
    a(f"v_add_u32 v{t+9}, v{t+8}, v{t}")
    a(f"v_add_u32 v{t+10}, v{t+8}, v{t+5}")
    a(f"v_add_u32 v{t+11}, v{t+8}, v{t+6}")
    a(f"ds_write_b128 v5, v[{t+8}:{t+11}]")
    a.label("L1_sort_s2")
    a("s_waitcnt lgkmcnt(0)")
    a("s_barrier")
    a.stamp(4)
    a(f"s_cmp_ge_u32 s{W}, 4")
    a("s_cbranch_scc1 L1_sort_t")
    a("v_mul_u32_u24 v7, 20, v0")
    a(f"v_add_u32 v7, {HIST}, v7")
    for k in range(6): a(f"ds_read_b32 v{t+8+k}, v7 offset:{4*k}")
    a.label("L1_sort_t")
    for i in range(NR):
        if i == NR - 1: last_round("L1_sort_b")
        a(f"ds_read_b32 v{t+i}, v{BA+i}")
    a.label("L1_sort_b")
    a("s_mov_b64 exec, -1")
    a("s_waitcnt lgkmcnt(0)")
    a(f"s_cmp_ge_u32 s{W}, 4")
    a("s_cbranch_scc1 L1_sort_t2")
    a(f"v_lshl_or_b32 v{t+16}, v{t+9}, 16, v{t+8}")
    a(f"v_lshl_or_b32 v{t+17}, v{t+11}, 16, v{t+10}")
    a(f"v_lshl_or_b32 v{t+18}, v{t+13}, 16, v{t+12}")
    a(f"v_mov_b32 v{t+19}, 0")
    a(f"s_mul_i32 s{T[0]}, s{sC}, {TAB_STRIDE}")
    a(f"s_add_u32 s{T[0]}, s{T[0]}, {WS_TAB}")
    a("v_lshlrev_b32 v7, 4, v0")
    a(f"buffer_store_dwordx4 v[{t+16}:{t+19}], v7, s[{R4}:{R4+3}], s{T[0]} offen{ST}")
    a.label("L1_sort_t2")
    for i in range(NR):
        if i == NR - 1: last_round("L1_sort_c")
        a(f"v_add_u32 v{t+i}, v{t+i}, v{RK+i}")
        a(f"v_lshlrev_b32 v{t+6}, 4, v{t+i}")
        a(f"v_add_u32 v{t+6}, {RECA}, v{t+6}")
        a(f"ds_write_b128 v{t+6}, v[{RA+4*i}:{RA+4*i+3}]")
        a(f"v_lshlrev_b32 v{t+7}, 2, v{t+i}")
        a(f"v_add_u32 v{t+7}, {RECB}, v{t+7}")
        a(f"ds_write_b32 v{t+7}, v{RB+i}")
    a.label("L1_sort_c")
    a("s_mov_b64 exec, -1")
    a("s_waitcnt lgkmcnt(0)")
    a("s_barrier")
    a.stamp(5)
    a("v_lshlrev_b32 v4, 4, v0")
    a(f"v_add_u32 v5, {RECA}, v4")
    for i in range(6):
        a(f"ds_read_b128 v[{RA+4*i}:{RA+4*i+3}], v5 offset:{i*8192}")
    a(f"v_add_u32 v7, {RECB}, v4")
    a(f"ds_read_b128 v[{t}:{t+3}], v7")
    a(f"ds_read_b128 v[{t+4}:{t+7}], v7 offset:8192")
    a(f"s_mul_i32 s{T[0]}, s{sC}, {CH_STRIDE*16}")
    a(f"s_add_u32 s{T[0]}, s{T[0]}, {WS_RECA}")
    a(f"s_mul_i32 s{T[1]}, s{sC}, {CH_STRIDE*4}")
    a(f"s_add_u32 s{T[1]}, s{T[1]}, {WS_RECB}")
    a("s_waitcnt lgkmcnt(0)")
    for i in range(5):
        a(f"buffer_store_dwordx4 v[{RA+4*i}:{RA+4*i+3}], v4, s[{R4}:{R4+3}], s{T[0]} offen{ST}")
        a(f"s_add_u32 s{T[0]}, s{T[0]}, 8192")
    a(f"buffer_store_dwordx4 v[{t}:{t+3}], v4, s[{R4}:{R4+3}], s{T[1]} offen{ST}")
    a(f"s_cmp_ge_u32 s{W}, 2")
    a("s_cbranch_scc1 L1_sort_r1")
    a(f"buffer_store_dwordx4 v[{RA+20}:{RA+23}], v4, s[{R4}:{R4+3}], s{T[0]} offen{ST}")
    a.label("L1_sort_r1")
    a(f"s_cmp_ge_u32 s{W}, 3")
    a("s_cbranch_scc1 L1_sort_r2")
    a(f"s_movk_i32 s{T[2]}, 160")
    a(f"v_cmp_gt_u32 vcc, s{T[2]}, v0")
    a("s_and_b64 exec, exec, vcc")
    a(f"s_add_u32 s{T[1]}, s{T[1]}, 8192")
    a(f"buffer_store_dwordx4 v[{t+4}:{t+7}], v4, s[{R4}:{R4+3}], s{T[1]} offen{ST}")
    a("s_mov_b64 exec, -1")
    a.label("L1_sort_r2")
    a.stamp(4)
    signal(a, INC_SORT, "s")

def pack(a):
    a.label("L1_pack")
    a(f"s_cmp_lg_u32 s{W}, 7")
    a("s_cbranch_scc1 L1_pack_go")
    srd(a, R4, P_WS, WS_MBX, 2048)
    a("v_lshlrev_b32 v2, 7, v1")
    a("v_mov_b32 v4, 0")
    a("v_mov_b32 v5, 0")
    a("s_mov_b32 exec_lo, 0xffff")
    a("s_mov_b32 exec_hi, 0")
    a(f"buffer_store_dwordx2 v[4:5], v2, s[{R4}:{R4+3}], 0 offen sc1")
    a("s_waitcnt vmcnt(0)")
    a("s_mov_b64 exec, -1")
    arrive_issue(a, f"{INC_INIT:#x}")
    arrive_finish(a, f"{INC_INIT:#x}", "i")
    a.label("L1_pack_go")
    srd(a, R0, P_WH, 131072, 131072)
    srd(a, R2, P_WS, WS_WHP, 131072)
    w_lane_offsets(a)
    w_dma(a, R0)
    srd(a, R1, P_WE, 0, 517 * 512)
    srd(a, R3, P_WX, 0, 512)
    srd(a, R4, P_WS, 0, WS_USED)
    a("v_lshlrev_b32 v9, 1, v0")
    a(f"s_mov_b32 s{T[0]}, 0x40000")
    for k in range(5):
        a(f"buffer_load_ushort v{24+k}, v9, s[{R1}:{R1+3}], s{T[0]} offen offset:{k*512}")
    a("v_lshrrev_b32 v10, 2, v1")
    a("v_lshlrev_b32 v10, 5, v10")
    a("v_bfe_u32 v11, v1, 1, 1")
    a("v_lshl_add_u32 v10, v11, 4, v10")
    a("v_and_b32 v11, 1, v1")
    a("v_lshl_add_u32 v10, v11, 2, v10")
    a("v_lshlrev_b32 v10, 1, v10")
    a(f"buffer_load_dwordx2 v[32:33], v10, s[{R3}:{R3+3}], 0 offen")
    a(f"buffer_load_dwordx2 v[34:35], v10, s[{R3}:{R3+3}], 0 offen offset:16")
    a("v_lshrrev_b32 v5, 4, v1")
    a("v_and_b32 v6, 1, v5")
    a("v_lshlrev_b32 v6, 4, v6")
    a("v_lshrrev_b32 v7, 1, v5")
    a("v_lshl_add_u32 v6, v7, 2, v6")
    a("v_bfe_u32 v7, v1, 2, 2")
    a("v_add_u32 v6, v6, v7")
    a("v_lshlrev_b32 v6, 6, v6")
    a("v_and_b32 v7, 3, v1")
    a("v_lshl_add_u32 v6, v7, 4, v6")
    a(f"s_lshl_b32 s{T[1]}, s{W}, 14")
    a(f"v_add_u32 v5, s{T[1]}, v6")
    a("v_lshlrev_b32 v8, 4, v1")
    CONSTS(a, 100)
    a(f"s_lshl_b32 s{T[1]}, s{W}, 14")
    a.wait_all()
    for cb in range(2):
        for ks in range(8):
            q = 64 + 4 * (cb * 8 + ks)
            for i in range(2):
                a(f"ds_read_b64_tr_b16 v[{q+2*i}:{q+2*i+1}], v5 offset:{ks*2048 + i*512 + cb*8}")
            if ks % 4 == 3: a("s_waitcnt lgkmcnt(0)")
    for cb in range(2):
        for ks in range(8):
            q = 64 + 4 * (cb * 8 + ks)
            a(f"s_add_u32 s{T[2]}, s{T[1]}, {(cb*8+ks)*1024}")
            a(f"buffer_store_dwordx4 v[{q}:{q+3}], v8, s[{R2}:{R2+3}], s{T[2]} offen{ST}")
    a(f"s_cmp_ge_u32 s{W}, 4")
    a("s_cbranch_scc1 L1_pack_b")
    a(f"s_mov_b32 s{T[4]}, {NLOG2E:#x}")
    for k in range(5):
        a(f"v_lshlrev_b32 v{24+k}, 16, v{24+k}")
        a(f"v_mul_f32 v{24+k}, s{T[4]}, v{24+k}")
    a("v_mov_b32 v29, 0")
    a("v_cvt_pk_bf16_f32 v36, v24, v25")
    a("v_cvt_pk_bf16_f32 v37, v26, v27")
    a("v_cvt_pk_bf16_f32 v38, v28, v29")
    a("v_mov_b32 v39, 0")
    a("v_lshlrev_b32 v3, 4, v0")
    a(f"s_mov_b32 s{T[0]}, {WS_WX}")
    a(f"buffer_store_dwordx4 v[36:39], v3, s[{R4}:{R4+3}], s{T[0]} offen{ST}")
    a("s_branch L1_pack_e")
    a.label("L1_pack_b")
    a(f"s_cmp_gt_u32 s{W}, 4")
    a("s_cbranch_scc1 L1_pack_e")
    a("v_lshlrev_b32 v3, 4, v1")
    a(f"s_mov_b32 s{T[0]}, {WS_WXP}")
    a("s_mov_b32 exec_hi, 0")
    a(f"buffer_store_dwordx4 v[32:35], v3, s[{R4}:{R4+3}], s{T[0]} offen{ST}")
    a("s_mov_b64 exec, -1")
    a.label("L1_pack_e")
    signal(a, INC_GEMM, "p")
```

```python
from asmlib import *
from common import *
import p1

EXP = set()
CAP = 27
TILE = 2560
L_SRC = CAP * TILE
L_STAGE = L_SRC + 32 * 128
L_S = L_STAGE + 65536
S_ROW = 544
L_T = L_S + 40 * S_ROW
L_REL = L_T + 640
L_NG = L_REL + 1280
L_TB = L_NG + 32
W = S_WAVE
NRW = 7

SWS, SQ, SH, SO, STAB, SDBG = R0, R1, R2, R3, R4, R5
S_T, S_N, S_TG0, S_NT, S_WIN, S_TG = 64, 65, 66, 67, 68, 69
ZB, FB = 70, 75
S_STG, S_G5, S_IB, S_FIRST, S_WPH, S_M8 = 80, 81, 82, 83, 84, 86
S_RA, S_RB = 26, 27
S_HALF, S_HF = 85, 68
S_MK = 56
t0, t1, t2, t3 = T[0], T[1], T[2], T[3]

Z = (16, 32); E = 48; ACC = 64; M = 80; A0 = 88; A1 = 92; A2 = 96; BP = 100
I0 = 200; I1 = 204; B2 = 116; B2Q = 120; WXA = 108; WH = 136
ONE2 = 208; SR = 210; DV = 212
vA0, vA1, vA2, vB0, vB1, vSR, vLC, vS, vT = 214, 215, 216, 217, 218, 219, 220, 221, 222
vOS, vSL = 223, 224
cA2, cB0, cB1 = 225, 226, 227
FL = 228
ZQ = 236
cSR = 240
NV = 241

def zero_fill(a):
    for k in range(4): a(f"v_mov_b32 v{36+k}, 0")
    a("v_lshlrev_b32 v40, 4, v0")
    a("v_add_u32 v41, 0x10000, v40")
    for k in range(8): a(f"ds_write_b128 v40, v[36:39] offset:{k*8192}")
    a("ds_write_b128 v41, v[36:39]")

def mf32(d, x, y, c): return f"v_mfma_f32_32x32x16_bf16 v[{d}:{d+15}], v[{x}:{x+3}], v[{y}:{y+3}], {c}"
def z_mfmas(zn):
    return [mf32(zn, A0, I0, "0"), mf32(zn, A1, I1, f"v[{zn}:{zn+15}]"), mf32(zn, A2, B2, f"v[{zn}:{zn+15}]")]

def dma(a, slot):
    a(f"v_add_u32 v{DV}, v{SR}, v{vLC}")
    a(f"v_add_u32 v{DV+1}, v{SR+1}, v{vLC}")
    a(f"s_add_u32 m0, s{S_STG}, {slot*2048}")
    a("s_nop 0")
    a(f"buffer_load_dwordx4 v{DV}, s[{SQ}:{SQ+3}], 0 offen lds")
    a(f"s_add_u32 m0, s{S_STG}, {slot*2048+1024}")
    a("s_nop 0")
    a(f"buffer_load_dwordx4 v{DV+1}, s[{SQ}:{SQ+3}], 0 offen lds")

def shift_q(a, base):
    for k in range(4): a(f"s_mov_b32 s{base+k}, s{base+k+1}")

def flush(a, tmp):
    for q in range(8): a(f"v_cvt_pk_bf16_f32 v{FL+q}, v{ACC+2*q}, v{ACC+2*q+1}")
    a(f"s_mov_b64 exec, s[{S_M8}:{S_M8+1}]")
    a(f"ds_write_b128 v{vS}, v[{FL}:{FL+3}]")
    a(f"ds_write_b128 v{vS}, v[{FL+4}:{FL+7}] offset:16")
    a("s_mov_b64 exec, -1")
    a(mf32(tmp, WXA, FL, "0"))
    a(mf32(tmp, WXA + 4, FL + 4, f"v[{tmp}:{tmp+15}]"))
    a(mf32(ACC, ZQ, ZQ, "0"))
    a(f"v_add_u32 v{vS}, {8*S_ROW}, v{vS}")
    shift_q(a, FB)
    a("s_nop 6")
    a("s_mov_b32 exec_hi, 0")
    a(f"ds_add_f32 v{vT}, v{tmp}")
    a("s_mov_b64 exec, -1")
    a(f"v_add_u32 v{vT}, 128, v{vT}")

def rotate_b2(a):
    if "oldrot" in EXP:
        for q in range(4): a(f"v_mov_b32 v{B2+q}, v{B2Q+q}")
        for q in range(12): a(f"v_mov_b32 v{B2Q+q}, v{B2Q+4+q}")
        return
    for q in range(0, 4, 2): a(f"v_pk_mov_b32 v[{B2+q}:{B2+q+1}], v[{B2Q+q}:{B2Q+q+1}], v[{B2Q+q}:{B2Q+q+1}] op_sel:[0,1]")
    for q in range(0, 12, 2): a(f"v_pk_mov_b32 v[{B2Q+q}:{B2Q+q+1}], v[{B2Q+4+q}:{B2Q+4+q+1}], v[{B2Q+4+q}:{B2Q+4+q+1}] op_sel:[0,1]")

def rec_consts(a):
    a(f"s_mov_b32 s{t0}, {CH_STRIDE*16}")
    a(f"v_mul_lo_u32 v42, s{t0}, v1")
    a(f"s_movk_i32 s{t0}, {CH_STRIDE*4}")
    a(f"v_mul_lo_u32 v43, s{t0}, v1")
    a(f"s_mov_b32 s{S_RA}, {WS_RECA}")
    a(f"s_mov_b32 s{S_RB}, {WS_RECB}")

def rec_loads(a, lbl):
    for it in range(4):
        a(f"s_add_u32 s{t0}, s{S_IB}, s{W}")
        if it: a(f"s_add_u32 s{t0}, s{t0}, {NRW*it}")
        a(f"v_cmp_lt_u32 s[{S_MK+2*it}:{S_MK+2*it+1}], s{t0}, v{vSL}")
        a(f"v_add_u32 v36, s{t0}, v{vOS}")
        a(f"v_lshl_add_u32 v37, v36, 4, v42")
        a(f"v_lshl_add_u32 v38, v36, 2, v43")
        a(f"s_mov_b64 exec, s[{S_MK+2*it}:{S_MK+2*it+1}]")
        a(f"s_cbranch_execz {lbl}_{it}")
        a(f"buffer_load_dwordx4 v[{16+4*it}:{19+4*it}], v37, s[{SWS}:{SWS+3}], s{S_RA} offen sc1")
        a(f"buffer_load_dword v{32+it}, v38, s[{SWS}:{SWS+3}], s{S_RB} offen sc1")
        a.label(f"{lbl}_{it}")
        a("s_mov_b64 exec, -1")

def build_recs(a, lbl):
    a("s_waitcnt vmcnt(0)")
    a("v_mov_b32 v58, 0x3f80")
    for it in range(4):
        RB = 32 + it
        a(f"s_mov_b64 exec, s[{S_MK+2*it}:{S_MK+2*it+1}]")
        a(f"s_cbranch_execz {lbl}_a{it}")
        a(f"v_lshrrev_b32 v44, 17, v{RB}")
        a(f"v_subrev_u32 v44, s{S_G5}, v44")
        a(f"v_lshl_add_u32 v45, v44, 8, v60")
        a(f"ds_read_b32 v{2+2*it}, v45")
        a(f"v_lshl_add_u32 v47, v44, 2, v59")
        a(f"ds_read_b32 v{3+2*it}, v47")
        a.label(f"{lbl}_a{it}")
    a("s_mov_b64 exec, -1")
    a(f"s_add_u32 s{t0}, s{S_IB}, s{W}")
    a(f"s_lshl_b32 s{t1}, s{S_TG0}, 5")
    a(f"s_sub_u32 s{t0}, s{t0}, s{t1}")
    a(f"v_add_u32 v49, s{t0}, v{vOS}")
    a(f"s_movk_i32 s{t1}, {CAP*32}")
    a("s_waitcnt lgkmcnt(0)")
    for it in range(4):
        RA, RB = 16 + 4 * it, 32 + it
        a(f"s_mov_b64 exec, s[{S_MK+2*it}:{S_MK+2*it+1}]")
        a(f"s_cbranch_execz {lbl}_{it}")
        a(f"v_add3_u32 v44, v49, v{2+2*it}, v{3+2*it}")
        if it: a(f"v_add_u32 v44, {NRW*it}, v44")
        a(f"v_and_b32 v50, 0x3fff, v{RB}")
        a(f"v_cmp_gt_u32 vcc, s{t1}, v44")
        a("v_lshlrev_b32 v50, 9, v50")
        a("v_add_u32 v50, 512, v50")
        a("s_and_b64 exec, exec, vcc")
        a(f"s_cbranch_execz {lbl}_{it}")
        a("v_lshlrev_b32 v51, 2, v44")
        a(f"v_add_u32 v51, {L_SRC}, v51")
        a("ds_write_b32 v51, v50")
        a("v_lshrrev_b32 v52, 5, v44")
        a(f"v_mul_u32_u24 v52, {TILE}, v52")
        a("v_and_b32 v53, 31, v44")
        a("v_lshl_add_u32 v55, v53, 4, v52")
        a(f"ds_write_b128 v55, v[{RA}:{RA+3}] offset:2048")
        a(f"v_bfe_u32 v54, v{RB}, 14, 3")
        a("v_lshl_add_u32 v52, v53, 6, v52")
        a("v_lshl_add_u32 v52, v54, 1, v52")
        a("v_bfe_u32 v53, v53, 2, 2")
        a("v_lshl_add_u32 v54, v53, 4, v52")
        a("ds_write_b16 v54, v58")
        a("v_xor_b32 v55, 1, v53")
        a("v_lshl_add_u32 v55, v55, 4, v52")
        a(f"ds_write_b16_d16_hi v55, v{RA+2}")
        a("v_xor_b32 v56, 2, v53")
        a("v_lshl_add_u32 v56, v56, 4, v52")
        a(f"ds_write_b16 v56, v{RA+3}")
        a("v_xor_b32 v57, 3, v53")
        a("v_lshl_add_u32 v57, v57, 4, v52")
        a(f"ds_write_b16_d16_hi v57, v{RA+3}")
        a.label(f"{lbl}_{it}")
    a("s_mov_b64 exec, -1")

def poll(a, lbl, srdreg, voff, want, sleep):
    a(f"s_mov_b32 s{t1}, 0x8000")
    a("s_mov_b32 exec_lo, 1")
    a("s_mov_b32 exec_hi, 0")
    a.label(lbl)
    a(f"buffer_load_dword v10, v{voff}, s[{srdreg}:{srdreg+3}], 0 offen sc1")
    a("s_waitcnt vmcnt(0)")
    a(f"v_readfirstlane_b32 s{t0}, v10")
    a(f"s_and_b32 s{t0}, s{t0}, {want:#x}")
    a(f"s_cmp_eq_u32 s{t0}, {want:#x}")
    a(f"s_cbranch_scc1 {lbl}_ok")
    a(f"s_sub_u32 s{t1}, s{t1}, 1")
    a(f"s_cmp_eq_u32 s{t1}, 0")
    a(f"s_cbranch_scc1 {lbl}_ok")
    a(f"s_sleep {sleep}")
    a(f"s_branch {lbl}")
    a.label(f"{lbl}_ok")
    a("s_mov_b64 exec, -1")

def mailbox(a, word):
    srd(a, R4, P_WS, WS_MBX, 2048)
    a(f"s_and_b32 s{t2}, s2, 15")
    a(f"s_lshl_b32 s{t2}, s{t2}, 7")
    a(f"s_add_u32 s{t2}, s{t2}, {4*word}")
    a(f"v_mov_b32 v8, s{t2}")

def a_reads(u1):
    sl = u1 % 4
    return [f"ds_read_b128 v[{A0}:{A0+3}], v{vA0} offset:{sl*2048}",
            f"ds_read_b128 v[{A1}:{A1+3}], v{vA1} offset:{sl*2048}",
            f"ds_read_b128 v[{A2}:{A2+3}], v{vA2} offset:{u1*TILE}"]
def bp_reads(u):
    return [f"ds_read_b64_tr_b16 v[{BP}:{BP+1}], v{vB0} offset:{u*TILE}",
            f"ds_read_b64_tr_b16 v[{BP+2}:{BP+3}], v{vB1} offset:{u*TILE}",
            f"ds_read_b64_tr_b16 v[{BP+4}:{BP+5}], v{vB0} offset:{u*TILE+1024}",
            f"ds_read_b64_tr_b16 v[{BP+6}:{BP+7}], v{vB1} offset:{u*TILE+1024}"]
def seg_mfmas():
    return [mf32(ACC, M, BP, f"v[{ACC}:{ACC+15}]"), mf32(ACC, M + 4, BP + 4, f"v[{ACC}:{ACC+15}]")]

OOL = []

def first_pass_wait(a, lbl):
    a(f"s_cmp_eq_u32 s{S_WPH}, 0")
    a(f"s_cbranch_scc0 {lbl}")
    a("s_waitcnt vmcnt(0)")
    a.label(lbl)

def iteration(a, u):
    zc, zn = Z[u & 1], Z[(u + 1) & 1]
    sl = (u + 1) % 4
    a(f"s_setprio {3-u}")
    a("s_waitcnt lgkmcnt(0)")
    a(f"s_cmp_eq_u32 s{S_TG}, s{FB}")
    a(f"s_cbranch_scc1 L2_fl_{u}")
    a.label(f"L2_fl_{u}_r")
    OOL.append((f"L2_fl_{u}", lambda a, zn=zn, u=u: (first_pass_wait(a, f"L2_flw_{u}"), flush(a, zn), a(f"s_branch L2_fl_{u}_r"))))
    a(f"s_cmp_eq_u32 s{S_TG}, s{ZB}")
    a(f"s_cbranch_scc1 L2_rt_{u}")
    a.label(f"L2_rt_{u}_r")
    def rt(a, u=u):
        first_pass_wait(a, f"L2_rtw_{u}")
        rotate_b2(a); shift_q(a, ZB)
        a(f"s_and_b32 s{S_HALF}, s{S_HF}, 1")
        a(f"s_lshr_b32 s{S_HF}, s{S_HF}, 1")
        a(f"s_branch L2_rt_{u}_r")
    OOL.append((f"L2_rt_{u}", rt))
    zm = z_mfmas(zn); sm = seg_mfmas(); bp = bp_reads(u); ar = a_reads(u + 2)
    def run(op, regs, att):
        for i, k in enumerate(regs):
            a(f"{op} v{E+k}, v{(zc if op == 'v_exp_f32' else E)+k}")
            for x in att.get(i, []): a(x)
    def pk(op, lo):
        for k in range(lo, lo + 8, 2):
            other = f"v[{ONE2}:{ONE2+1}]" if op == "v_pk_add_f32" else f"v[{zc+k}:{zc+k+1}]"
            a(f"{op} v[{E+k}:{E+k+1}], v[{E+k}:{E+k+1}], {other}")
    def cvt(lo):
        for k in range(lo, lo + 8, 2): a(f"v_cvt_pk_bf16_f32 v{M+k//2}, v{E+k}, v{E+k+1}")
    att = {0: [sm[0]],
           1: [f"v_add_u32 v{DV}, v{SR}, v{vLC}", f"s_add_u32 m0, s{S_STG}, {sl*2048}"],
           2: [f"v_add_u32 v{DV+1}, v{SR+1}, v{vLC}", f"buffer_load_dwordx4 v{DV}, s[{SQ}:{SQ+3}], 0 offen lds"],
           3: [bp[0], bp[1]],
           4: [zm[0]],
           5: [f"s_add_u32 m0, s{S_STG}, {sl*2048+1024}"],
           6: [f"buffer_load_dwordx4 v{DV+1}, s[{SQ}:{SQ+3}], 0 offen lds"],
           7: [f"s_cmp_eq_u32 s{S_WPH}, 0", f"s_cbranch_scc1 L2_wl_{u}", f"L2_wl_{u}_r:"]}
    def wl(a, u=u):
        a("v_lshlrev_b32 v5, 4, v1")
        a(f"s_lshl_b32 s{t0}, s{W}, 14")
        a(f"s_add_u32 s{t0}, s{t0}, {WS_WHP + u*4096}")
        for q in range(4 * u, 4 * u + 4):
            a(f"buffer_load_dwordx4 v[{WH+4*q}:{WH+4*q+3}], v5, s[{SWS}:{SWS+3}], s{t0} offen offset:{(q%4)*1024}")
        a(f"s_branch L2_wl_{u}_r")
    OOL.append((f"L2_wl_{u}", wl))
    run("v_exp_f32", range(0, 8), att)
    pk("v_pk_add_f32", 0)
    att = {0: [zm[1]],
           1: [f"s_add_u32 s{S_T}, s{S_T}, 1", f"s_add_u32 s{S_TG}, s{S_TG}, 1"],
           4: [zm[2]],
           5: [f"s_cmp_lt_u32 s{S_WPH}, 2", f"s_cbranch_scc1 L2_wv_{u}", "s_waitcnt vmcnt(6)", f"L2_wv_{u}_r:", ar[0]],
           6: [ar[1], ar[2]],
           7: [f"ds_read2_b32 v[{SR}:{SR+1}], v{vSR} offset0:{u*32} offset1:{u*32+16}"]}
    def wv(a, u=u):
        a(f"s_cmp_eq_u32 s{S_WPH}, 0")
        a(f"s_cbranch_scc1 L2_wv_{u}_0")
        a(f"s_waitcnt vmcnt({(18, 14, 10, 6)[u]})")
        a(f"s_branch L2_wv_{u}_r")
        a.label(f"L2_wv_{u}_0")
        a(f"s_waitcnt vmcnt({(16, 20, 18, 22)[u]})")
        a(f"s_branch L2_wv_{u}_r")
    OOL.append((f"L2_wv_{u}", wv))
    run("v_rcp_f32", range(0, 8), att)
    a(f"s_cmp_eq_u32 s{S_HALF}, 1")
    pk("v_pk_mul_f32", 0)
    cvt(0)
    a(f"s_cbranch_scc1 L2_hf_{u}")
    def hf(a, u=u):
        a(sm[1]); a(f"s_mov_b32 s{S_HALF}, 0"); a(bp[2]); a(bp[3])
        a(f"s_branch L2_hf_{u}_r")
    OOL.append((f"L2_hf_{u}", hf))
    run("v_exp_f32", range(8, 16), {0: [sm[1]], 1: [bp[2]], 2: [bp[3]]})
    pk("v_pk_add_f32", 8)
    run("v_rcp_f32", range(8, 16), {})
    pk("v_pk_mul_f32", 8)
    cvt(8)
    a.label(f"L2_hf_{u}_r")
    a(f"s_cmp_eq_u32 s{S_T}, s{S_N}")
    a("s_cbranch_scc1 L2_win_end")

def constants_a(a, b=44):
    a(f"v_and_b32 v{b+0}, 31, v1")
    a(f"v_lshrrev_b32 v{b+1}, 5, v1")
    a(f"v_mov_b32 v{ONE2}, 1.0")
    a(f"v_mov_b32 v{ONE2+1}, 1.0")
    for q in range(4): a(f"v_mov_b32 v{ZQ+q}, 0")
    a(f"s_mov_b32 s{S_M8}, 0xff")
    a(f"s_mov_b32 s{S_M8+1}, 0xff")
    a(f"v_lshlrev_b32 v{b+2}, 3, v{b+1}")
    a(f"v_sub_u32 v{b+2}, v{b+0}, v{b+2}")
    a(f"v_mov_b32 v{b+4}, 0x3f80")
    a(f"v_mov_b32 v{b+5}, 0x3f800000")
    a(f"v_and_b32 v{b+3}, 1, v{b+2}")
    a(f"v_cmp_eq_u32 vcc, 1, v{b+3}")
    a(f"v_lshrrev_b32 v{b+6}, 1, v{b+2}")
    a(f"v_add_u32 v{b+7}, -8, v{b+6}")
    a(f"v_cndmask_b32 v{b+3}, v{b+4}, v{b+5}, vcc")
    for I, r in ((I0, b + 6), (I1, b + 7)):
        for q0 in (0, 2):
            a(f"v_cmp_eq_u32 s[52:53], {q0}, v{r}")
            a(f"v_cmp_eq_u32 s[54:55], {q0+1}, v{r}")
            a("s_nop 0")
            a(f"v_cndmask_b32 v{I+q0}, 0, v{b+3}, s[52:53]")
            a(f"v_cndmask_b32 v{I+q0+1}, 0, v{b+3}, s[54:55]")

def constants_b(a, b=44):
    a(f"v_and_b32 v{b+0}, 31, v1")
    a(f"v_lshrrev_b32 v{b+1}, 5, v1")
    a(f"s_lshl_b32 s{S_STG}, s{W}, 13")
    a(f"s_add_u32 s{S_STG}, s{S_STG}, {L_STAGE}")
    a(f"v_bfe_u32 v{b+2}, v{b+0}, 2, 2")
    a(f"v_xor_b32 v{b+3}, v{b+1}, v{b+2}")
    a(f"v_lshlrev_b32 v{b+4}, 6, v{b+0}")
    a(f"v_add_u32 v{b+5}, s{S_STG}, v{b+4}")
    a(f"v_lshl_add_u32 v{vA0}, v{b+3}, 4, v{b+5}")
    a(f"v_xor_b32 v{b+3}, 2, v{b+3}")
    a(f"v_lshl_add_u32 v{vA1}, v{b+3}, 4, v{b+5}")
    a(f"v_lshlrev_b32 v{b+3}, 4, v{b+0}")
    a(f"v_add_u32 v{b+3}, 2048, v{b+3}")
    a(f"v_lshl_add_u32 v{b+4}, v{b+2}, 4, v{b+4}")
    a(f"v_cmp_eq_u32 vcc, 1, v{b+1}")
    a(f"v_bfe_u32 v{b+2}, v1, 2, 2")
    a(f"v_lshl_add_u32 v{b+2}, v{b+1}, 2, v{b+2}")
    a(f"v_cndmask_b32 v{cA2}, v{b+3}, v{b+4}, vcc")
    a(f"v_lshlrev_b32 v{b+2}, 6, v{b+2}")
    a(f"v_and_b32 v{b+3}, 1, v1")
    a(f"v_lshl_add_u32 v{b+2}, v{b+3}, 3, v{b+2}")
    a(f"v_bfe_u32 v{b+3}, v1, 4, 1")
    a(f"v_lshlrev_b32 v{b+3}, 1, v{b+3}")
    a(f"v_bfe_u32 v{b+4}, v1, 1, 1")
    a(f"v_or_b32 v{b+3}, v{b+3}, v{b+4}")
    a(f"v_xor_b32 v{b+3}, v{b+3}, v{b+1}")
    a(f"v_lshl_add_u32 v{cB0}, v{b+3}, 4, v{b+2}")
    a(f"v_xor_b32 v{b+3}, 2, v{b+3}")
    a(f"v_lshl_add_u32 v{b+4}, v{b+3}, 4, v{b+2}")
    a(f"v_add_u32 v{cB1}, 512, v{b+4}")
    a(f"v_and_b32 v{b+2}, 3, v1")
    a(f"v_bfe_u32 v{b+3}, v1, 4, 2")
    a(f"v_xor_b32 v{b+2}, v{b+2}, v{b+3}")
    a(f"v_lshlrev_b32 v{b+2}, 4, v{b+2}")
    a(f"s_lshl_b32 s{t0}, s{W}, 6")
    a(f"s_sub_u32 s{t1}, s{t0}, 512")
    a(f"v_add_u32 v{vLC}, s{t1}, v{b+2}")
    a(f"v_and_b32 v{b+2}, 7, v1")
    a(f"v_mul_u32_u24 v{b+2}, {S_ROW}, v{b+2}")
    a(f"v_lshl_add_u32 v{b+2}, v{b+1}, 5, v{b+2}")
    a(f"s_add_u32 s{t0}, s{t0}, {L_S}")
    a(f"v_add_u32 v{vS}, s{t0}, v{b+2}")
    a(f"v_lshlrev_b32 v{b+2}, 2, v{b+0}")
    a(f"v_add_u32 v{vT}, {L_T}, v{b+2}")
    a(f"v_lshrrev_b32 v{b+2}, 2, v1")
    a(f"v_lshlrev_b32 v{b+2}, 2, v{b+2}")
    a(f"v_add_u32 v{cSR}, {L_SRC}, v{b+2}")

def phase2(a):
    a.label("L_phase2")
    a.stamp(5)
    a("v_and_b32 v1, 63, v0")
    a(f"s_cmp_eq_u32 s{W}, 7")
    a("s_cbranch_scc0 L2_noinv")
    a("buffer_inv sc1")
    a.label("L2_noinv")
    a(f"s_cmp_eq_u32 s{W}, 0")
    a("s_cbranch_scc0 L2_noarr")
    p1.arrive_issue(a, f"s{p1.S_INC}")
    a.label("L2_noarr")
    srd(a, SWS, P_WS, 0, WS_USED)
    a(f"s_mul_i32 s{S_G5}, s2, 5")
    zero_fill(a)
    a(f"s_cmp_eq_u32 s{W}, 0")
    a("s_cbranch_scc0 L2_w1")
    a(f"v_add_u32 v41, {L_T}, v40")
    a("s_mov_b32 exec_lo, -1")
    a("s_mov_b32 exec_hi, 0xff")
    a("ds_write_b128 v41, v[36:39]")
    a("s_mov_b64 exec, -1")
    p1.arrive_finish(a, f"s{p1.S_INC}", "a")
    a("s_and_b32 s52, s85, 1")
    a("s_cmp_eq_u32 s52, 1")
    a("s_cbranch_scc1 L2_inited")
    srd(a, SDBG, P_DBG, 0, 256)
    a("v_mov_b32 v8, 0")
    poll(a, "L2_poll0", SDBG, 8, 1, 16)
    a("s_mov_b32 s85, 0")
    a.label("L2_inited")
    a("s_and_b32 s52, s85, 0xffff")
    a(f"s_cmp_eq_u32 s52, {K1:#x}")
    a("s_cbranch_scc1 L2_w1")
    mailbox(a, 0)
    poll(a, "L2_poll1", R4, 8, 1, 2)
    a.label("L2_w1")
    a("s_barrier")
    a.stamp(6)
    srd(a, STAB, P_WS, WS_TAB, NCH * TAB_STRIDE)
    a("v_lshlrev_b32 v2, 12, v1")
    a(f"s_lshl_b32 s{t0}, s2, 4")
    a(f"buffer_load_dwordx3 v[60:62], v2, s[{STAB}:{STAB+3}], s{t0} offen sc1")
    rec_consts(a)
    a(f"s_mov_b32 s{S_IB}, 0")
    a(f"s_mov_b32 s{S_TG0}, 0")
    a(f"s_mov_b32 s{S_FIRST}, 1")
    a(mf32(ACC, ZQ, ZQ, "0"))
    a(f"s_cmp_eq_u32 s{W}, 7")
    a("s_cbranch_scc1 L2_w7a")
    a("s_waitcnt vmcnt(0)")
    a(f"v_and_b32 v{vOS}, 0xffff, v60")
    a(f"v_lshrrev_b32 v{vSL}, 16, v62")
    a(f"v_sub_u32 v{vSL}, v{vSL}, v{vOS}")
    rec_loads(a, "L2_ld0")
    a(f"s_cmp_ge_u32 s{W}, 5")
    a("s_cbranch_scc1 L2_noscan")
    a(f"s_cmp_lt_u32 s{W}, 2")
    a("s_cbranch_scc1 L2_sel")
    a("v_mov_b32 v60, v61")
    a("v_mov_b32 v61, v62")
    a(f"s_cmp_lt_u32 s{W}, 4")
    a("s_cbranch_scc1 L2_sel")
    a("v_mov_b32 v60, v61")
    a.label("L2_sel")
    a(f"s_and_b32 s{t0}, s{W}, 1")
    a(f"s_lshl_b32 s{t0}, s{t0}, 4")
    a(f"v_alignbit_b32 v61, v61, v60, s{t0}")
    a("v_and_b32 v60, 0xffff, v61")
    a("v_lshrrev_b32 v61, 16, v61")
    a("v_sub_u32 v62, v61, v60")
    a("v_mov_b32 v63, v62")
    for sh in (1, 2, 4, 8):
        a("s_nop 1")
        a(f"v_add_u32_dpp v63, v63, v63 row_shr:{sh} row_mask:0xf bank_mask:0xf")
    a("s_nop 1")
    a("v_add_u32_dpp v63, v63, v63 row_bcast:15 row_mask:0xa bank_mask:0xf")
    a("s_nop 1")
    a("v_add_u32_dpp v63, v63, v63 row_bcast:31 row_mask:0xc bank_mask:0xf")
    a("v_sub_u32 v62, v63, v62")
    a("v_sub_u32 v62, v62, v60")
    a(f"s_lshl_b32 s{t0}, s{W}, 8")
    a(f"s_add_u32 s{t0}, s{t0}, {L_REL}")
    a("v_lshlrev_b32 v45, 2, v1")
    a(f"v_add_u32 v45, s{t0}, v45")
    a("ds_write_b32 v45, v62")
    a(f"s_lshl_b32 s{t0}, s{W}, 2")
    a(f"s_add_u32 s{t0}, s{t0}, {L_NG}")
    a(f"v_mov_b32 v45, s{t0}")
    a("s_mov_b32 exec_lo, 0")
    a("s_mov_b32 exec_hi, 0x80000000")
    a("ds_write_b32 v45, v63")
    a("s_mov_b64 exec, -1")
    a.label("L2_noscan")
    a.label("L2_w7a")
    a.label("L2_round_bar")
    a("s_waitcnt lgkmcnt(0)")
    a("s_barrier")
    a.stamp(7)
    a(f"s_cmp_eq_u32 s{S_FIRST}, 0")
    a("s_cbranch_scc1 L2_have_tb")
    a("v_lshlrev_b32 v45, 2, v1")
    a(f"v_add_u32 v45, {L_NG}, v45")
    a("s_mov_b32 exec_lo, 0xff")
    a("s_mov_b32 exec_hi, 0")
    a("ds_read_b32 v46, v45")
    a("s_waitcnt lgkmcnt(0)")
    a("v_max_u32 v46, 1, v46")
    a("v_add_u32 v47, -1, v46")
    a("v_and_b32 v47, 31, v47")
    a("v_cmp_gt_u32 vcc, 16, v47")
    a("v_add_u32 v46, 31, v46")
    a("v_lshrrev_b32 v46, 5, v46")
    a(f"s_and_b32 s{S_HF}, vcc_lo, 0x1f")
    NTG = (T[0], T[1], T[2], T[3], 85)
    for g in range(5): a(f"v_readlane_b32 s{NTG[g]}, v46, {g}")
    a(f"s_mov_b32 s{ZB}, s{NTG[0]}")
    for g in range(1, 4): a(f"s_add_u32 s{ZB+g}, s{ZB+g-1}, s{NTG[g]}")
    a(f"s_add_u32 s{S_NT}, s{ZB+3}, s85")
    a(f"s_mov_b32 s{ZB+4}, s{S_NT}")
    a(f"s_mov_b32 s{S_HALF}, 0")
    a("v_mov_b32 v46, 0")
    for g in range(1, 5):
        a(f"s_lshl_b32 s{t0}, s{ZB+g-1}, 5")
        a(f"v_writelane_b32 v46, s{t0}, {g}")
    for k in range(4): a(f"s_add_u32 s{FB+k}, s{ZB+k}, 1")
    a(f"s_mov_b32 s{FB+4}, 0x7ffffff0")
    for k in range(5): a(f"s_sub_u32 s{ZB+k}, s{ZB+k}, 1")
    a(f"s_lshl_b32 s{t0}, s{W}, 5")
    a(f"s_add_u32 s{t0}, s{t0}, {L_TB}")
    a("v_lshlrev_b32 v45, 2, v1")
    a(f"v_add_u32 v45, s{t0}, v45")
    a("ds_write_b32 v45, v46")
    a("s_mov_b64 exec, -1")
    a.label("L2_have_tb")
    a(f"s_cmp_eq_u32 s{W}, 7")
    a("s_cbranch_scc1 L2_w7b")
    a(f"s_lshl_b32 s{t0}, s{W}, 5")
    a(f"s_add_u32 s{t0}, s{t0}, {L_TB}")
    a(f"v_mov_b32 v59, s{t0}")
    a("v_lshlrev_b32 v60, 2, v1")
    a(f"v_add_u32 v60, {L_REL}, v60")
    a("s_waitcnt lgkmcnt(0)")
    build_recs(a, "L2_b0")
    a.label("L2_more")
    a(f"s_add_u32 s{S_IB}, s{S_IB}, {4*NRW}")
    a(f"v_cmp_lt_u32 vcc, s{S_IB}, v{vSL}")
    a("s_cbranch_vccz L2_built0")
    rec_loads(a, "L2_ld1")
    build_recs(a, "L2_b1")
    a("s_branch L2_more")
    a.label("L2_built0")
    a("s_branch L2_built")
    a.label("L2_w7b")
    a(f"s_cmp_eq_u32 s{S_FIRST}, 0")
    a("s_cbranch_scc1 L2_built")
    mailbox(a, 1)
    poll(a, "L2_poll2", R4, 8, 1, 2)
    a.label("L2_built")
    a("s_waitcnt vmcnt(0) lgkmcnt(0)")
    a("s_barrier")
    a.stamp(8)
    a("s_setprio 3")
    a(f"v_mov_b32 v{vSR}, v{cSR}")
    for k in range(4):
        a(f"ds_read2_b32 v[{E+2*k}:{E+2*k+1}], v{vSR} offset0:{k*32} offset1:{k*32+16}")
    a(f"ds_read2_b32 v[{SR}:{SR+1}], v{vSR} offset0:128 offset1:144")
    a(f"s_cmp_eq_u32 s{S_FIRST}, 0")
    a("s_cbranch_scc1 L2_nob2")
    srd(a, SQ, P_WS, WS_Q, MAT_BYTES)
    a("v_and_b32 v3, 31, v1")
    a("v_lshrrev_b32 v4, 5, v1")
    a(f"s_lshl_b32 s{t0}, s{W}, 9")
    a("v_lshlrev_b32 v5, 4, v3")
    a(f"v_add_u32 v5, s{t0}, v5")
    a(f"s_lshl_b32 s{t1}, s{S_G5}, 12")
    a(f"s_add_u32 s{t1}, s{t1}, {WS_P - WS_WX}")
    a(f"v_mul_lo_u32 v6, s{t1}, v4")
    a("v_add_u32 v5, v5, v6")
    a(f"v_add_u32 v5, {WS_WX}, v5")
    a("v_lshlrev_b32 v6, 12, v4")
    a(f"buffer_load_dwordx4 v[{B2}:{B2+3}], v5, s[{SWS}:{SWS+3}], 0 offen")
    a.label("L2_nob2")
    a("s_waitcnt lgkmcnt(1)")
    for k in range(8):
        if k == 4: a("s_setprio 0")
        a(f"v_add_u32 v{E+k}, v{E+k}, v{vLC}")
        a(f"s_add_u32 m0, s{S_STG}, {k*1024}")
        a("s_nop 0")
        a(f"buffer_load_dwordx4 v{E+k}, s[{SQ}:{SQ+3}], 0 offen lds")
    a(f"s_cmp_eq_u32 s{S_FIRST}, 0")
    a("s_cbranch_scc1 L2_nob3")
    for g in range(1, 5):
        d = B2Q + 4 * (g - 1)
        a("v_add_u32 v5, v5, v6")
        a(f"buffer_load_dwordx4 v[{d}:{d+3}], v5, s[{SWS}:{SWS+3}], 0 offen")
    a(f"s_lshl_b32 s{t0}, s{W}, 6")
    a(f"s_add_u32 s{t0}, s{t0}, {WS_WXP}")
    a("v_lshlrev_b32 v7, 4, v4")
    a(f"buffer_load_dwordx4 v[{WXA}:{WXA+3}], v7, s[{SWS}:{SWS+3}], s{t0} offen")
    a(f"buffer_load_dwordx4 v[{WXA+4}:{WXA+7}], v7, s[{SWS}:{SWS+3}], s{t0} offen offset:32")
    a.label("L2_nob3")
    a(f"s_sub_u32 s{S_N}, s{S_NT}, s{S_TG0}")
    a(f"s_min_u32 s{S_N}, s{S_N}, {CAP}")
    a(f"s_mov_b32 s{S_T}, 0")
    a(f"s_mov_b32 s{S_TG}, s{S_TG0}")
    a(f"v_mov_b32 v{vA2}, v{cA2}")
    a(f"v_mov_b32 v{vB0}, v{cB0}")
    a(f"v_mov_b32 v{vB1}, v{cB1}")
    for k in range(8): a(f"v_mov_b32 v{M+k}, 0")
    for k in range(8): a(f"v_mov_b32 v{BP+k}, 0")
    a(f"s_cmp_eq_u32 s{S_FIRST}, 0")
    a(f"s_cselect_b32 s{S_WPH}, 2, 0")
    a("s_cbranch_scc0 L2_pw0")
    a("s_waitcnt vmcnt(6)")
    a("s_branch L2_pw1")
    a.label("L2_pw0")
    a("s_waitcnt vmcnt(12)")
    a.label("L2_pw1")
    a("s_setprio 3")
    for x in a_reads(0): a(x)
    a("s_waitcnt lgkmcnt(0)")
    dma(a, 0)
    for m in z_mfmas(Z[0]): a(m)
    a(f"ds_read2_b32 v[{SR}:{SR+1}], v{vSR} offset0:160 offset1:176")
    a(f"v_add_u32 v{vSR}, 768, v{vSR}")
    a(f"s_cmp_eq_u32 s{S_FIRST}, 0")
    a("s_cbranch_scc0 L2_pw2")
    a("s_waitcnt vmcnt(6)")
    a("s_branch L2_pw3")
    a.label("L2_pw2")
    a("s_waitcnt vmcnt(12)")
    a.label("L2_pw3")
    a(f"s_mov_b32 s{S_FIRST}, 0")
    for x in a_reads(1): a(x)
    a("s_nop 7")
    a.stamp(9)
    if "cyc" in EXP: a.cstamp(2)
    a.label("L2_loop")
    OOL.clear()
    for u in range(4): iteration(a, u)
    a(f"v_add_u32 v{vA2}, {4*TILE}, v{vA2}")
    a(f"v_add_u32 v{vB0}, {4*TILE}, v{vB0}")
    a(f"v_add_u32 v{vB1}, {4*TILE}, v{vB1}")
    a(f"v_add_u32 v{vSR}, 512, v{vSR}")
    a(f"s_add_u32 s{S_WPH}, s{S_WPH}, 1")
    a(f"s_min_u32 s{S_WPH}, s{S_WPH}, 2")
    a("s_branch L2_loop")
    for lbl, fn in OOL:
        a.label(lbl); fn(a)
    a.label("L2_win_end")
    a("s_setprio 0")
    a("s_waitcnt lgkmcnt(0)")
    a(f"s_cmp_eq_u32 s{S_TG}, s{FB}")
    a("s_cbranch_scc0 L2_we_nf")
    a("s_nop 3")
    flush(a, Z[0])
    a.label("L2_we_nf")
    for m in seg_mfmas(): a(m)
    a(f"s_add_u32 s{S_TG0}, s{S_TG0}, s{S_N}")
    a(f"s_cmp_ge_u32 s{S_TG0}, s{S_NT}")
    a("s_cbranch_scc1 L2_final")
    a("s_waitcnt vmcnt(0) lgkmcnt(0)")
    a("s_barrier")
    a(f"s_mov_b32 s{S_IB}, 0")
    zero_fill(a)
    a(f"s_cmp_eq_u32 s{W}, 7")
    a("s_cbranch_scc1 L2_round_bar")
    rec_consts(a)
    rec_loads(a, "L2_ld2")
    a("s_branch L2_round_bar")

    a.label("L2_final")
    a.stamp(10)
    if "cyc" in EXP:
        a.cstamp(3)
        a(f"s_mov_b32 s92, s{S_NT}")
    RQ, HQ, O, BR = 88, 120, 16, 40
    SP, SPO = R4, R5
    srd(a, SH, P_H, 0, MAT_BYTES)
    srd(a, SO, P_OUT, 0, MAT_BYTES)
    srd(a, SP, P_POS, 0, 60000)
    srd(a, SPO, P_OUT, MAT_BYTES, 60000)
    sR, sN, sTmp, sP = T[4], T[5], T[6], T[7]
    a("v_and_b32 v3, 15, v1")
    a("v_lshrrev_b32 v4, 4, v1")
    a("v_lshrrev_b32 v5, 3, v3")
    a("v_lshlrev_b32 v5, 12, v5")
    a("v_and_b32 v6, 7, v3")
    a("v_lshl_add_u32 v5, v6, 4, v5")
    a("v_lshl_add_u32 v5, v4, 7, v5")
    a(f"s_lshl_b32 s{t0}, s{W}, 9")
    a(f"v_add_u32 v5, s{t0}, v5")
    a(f"s_lshl_b32 s{sR}, s{S_G5}, 12")
    a(f"s_add_u32 s{sR}, s{sR}, {WS_R}")
    a("v_lshlrev_b32 v6, 9, v3")
    a("v_lshl_add_u32 v6, v4, 4, v6")
    a(f"s_lshl_b32 s{t0}, s{W}, 6")
    a(f"v_add_u32 v6, s{t0}, v6")
    a(f"s_mul_i32 s{sN}, s2, 20480")
    for nb in range(3):
        a(f"buffer_load_dwordx4 v[{RQ+4*nb}:{RQ+4*nb+3}], v5, s[{SWS}:{SWS+3}], s{sR} offen")
        a(f"s_add_u32 s{sR}, s{sR}, 8192")
    for nb in range(3):
        a(f"s_add_u32 s{sTmp}, s{sN}, {nb*8192}")
        a(f"buffer_load_dwordx4 v[{HQ+4*nb}:{HQ+4*nb+3}], v6, s[{SH}:{SH+3}], s{sTmp} offen")
    a("v_lshlrev_b32 v7, 2, v1")
    a(f"s_mul_i32 s{sP}, s2, 240")
    a(f"buffer_load_dword v8, v7, s[{SP}:{SP+3}], s{sP} offen")
    flush(a, Z[1])
    a(f"v_mul_u32_u24 v9, {S_ROW}, v3")
    a("v_lshl_add_u32 v9, v4, 4, v9")
    a(f"v_add_u32 v9, {L_S}, v9")
    a("s_waitcnt lgkmcnt(0)")
    a("s_barrier")
    a.lds = []
    seq = [(nb, ks) for nb in range(3) for ks in range(8)]
    def bread(i):
        nb, ks = seq[i]; q = BR + 4 * (i % 6)
        a.ds(f"ds_read_b128 v[{q}:{q+3}], v9 offset:{nb*16*S_ROW + ks*64}", ("B", i))
    X, EE = 64, 72
    sM16, sLN2 = T[8], T[9]
    a(f"s_mov_b32 s{sM16}, 0xffff0000")
    a(f"s_mov_b32 s{sLN2}, {NLN2:#x}")
    def epilogue(nb):
        o = O + 8 * nb
        ops = []
        if nb == 2:
            ops += ["s_mov_b32 exec_lo, 0x00ff00ff", "s_mov_b32 exec_hi, 0x00ff00ff"]
        for i in range(4):
            ops.append(f"v_lshlrev_b32 v{X+2*i}, 16, v{RQ+4*nb+i}")
            ops.append(f"v_and_b32 v{X+2*i+1}, s{sM16}, v{RQ+4*nb+i}")
        for k in range(8): ops.append(f"v_add_f32 v{X+k}, v{X+k}, v{o+k}")
        for k in range(8): ops.append(f"v_exp_f32 v{EE+k}, v{X+k}")
        for k in range(8): ops.append(f"v_add_f32 v{EE+k}, 1.0, v{EE+k}")
        for k in range(8): ops.append(f"v_rcp_f32 v{EE+k}, v{EE+k}")
        for i in range(4):
            ops.append(f"v_lshlrev_b32 v{o+2*i}, 16, v{HQ+4*nb+i}")
            ops.append(f"v_and_b32 v{o+2*i+1}, s{sM16}, v{HQ+4*nb+i}")
        for k in range(8): ops.append(f"v_mul_f32 v{X+k}, v{X+k}, v{EE+k}")
        for k in range(8): ops.append(f"v_fma_f32 v{X+k}, v{X+k}, s{sLN2}, v{o+k}")
        d = 100 + 4 * nb
        for i in range(4): ops.append(f"v_cvt_pk_bf16_f32 v{d+i}, v{X+2*i}, v{X+2*i+1}")
        ops.append(f"s_add_u32 s{sTmp}, s{sN}, {nb*8192}")
        ops.append(f"buffer_store_dwordx4 v[{d}:{d+3}], v6, s[{SO}:{SO+3}], s{sTmp} offen")
        return ops
    for i in range(5): bread(i)
    pend = []
    for i, (nb, ks) in enumerate(seq):
        q = BR + 4 * (i % 6)
        if ks == 3 and nb > 0:
            if nb == 1: a("s_waitcnt vmcnt(0)")
            pend = epilogue(nb - 1)
        a.wait_lds(("B", i))
        for cb in range(2):
            o = O + 8 * nb + 4 * cb; w = WH + 4 * (cb * 8 + ks)
            c = "0" if ks == 0 else f"v[{o}:{o+3}]"
            a(f"v_mfma_f32_16x16x32_bf16 v[{o}:{o+3}], v[{w}:{w+3}], v[{q}:{q+3}], {c}")
        if i + 5 < len(seq): bread(i + 5)
        left = 7 - ks if ks >= 3 else None
        if pend:
            k = -(-len(pend) // (8 - ks + 2))
            for op in pend[:k]: a(op)
            pend = pend[k:]
        if ks == 2:
            for op in pend: a(op)
            pend = []
    for op in pend: a(op)
    a.stamp(11)
    a("s_nop 7")
    for op in epilogue(2): a(op)
    a("s_mov_b64 exec, -1")
    a(f"s_cmp_lg_u32 s{W}, 0")
    a("s_cbranch_scc1 L2_done")
    a("s_mov_b32 exec_hi, 0x0fffffff")
    for k in range(2):
        a(f"v_lshlrev_b32 v10, 1, v1")
        if k: a("v_add_u32 v10, 1, v10")
        a("v_mul_u32_u24 v11, 171, v10")
        a("v_lshrrev_b32 v11, 9, v11")
        a("v_mul_u32_u24 v12, 3, v11")
        a("v_sub_u32 v12, v10, v12")
        a("v_lshrrev_b32 v13, 3, v11")
        a("v_lshlrev_b32 v13, 5, v13")
        a("v_lshl_add_u32 v13, v12, 3, v13")
        a("v_and_b32 v11, 7, v11")
        a("v_add3_u32 v13, v13, v11, 8")
        a("v_lshlrev_b32 v13, 2, v13")
        a(f"v_add_u32 v13, {L_T}, v13")
        a(f"ds_read_b32 v{14+k}, v13")
    a("v_lshlrev_b32 v10, 16, v8")
    a(f"v_and_b32 v11, s{sM16}, v8")
    a("s_waitcnt lgkmcnt(0)")
    a(f"v_fma_f32 v10, v14, s{sLN2}, v10")
    a(f"v_fma_f32 v11, v15, s{sLN2}, v11")
    a("v_cvt_pk_bf16_f32 v10, v10, v11")
    a(f"buffer_store_dword v10, v7, s[{SPO}:{SPO+3}], s{sP} offen")
    a.label("L2_done")
    if a.diag:
        a("s_waitcnt vmcnt(0)")
        a("s_memrealtime s[100:101]")
        a("s_waitcnt lgkmcnt(0)")
        a("s_mov_b32 s89, s100")
        a.dump_stamps(P_WS, WS_DIAG, W)
```

```python
import re

def v(i, n=1):
    return f"v{i}" if n == 1 else f"v[{i}:{i+n-1}]"
def s(i, n=1):
    return f"s{i}" if n == 1 else f"s[{i}:{i+n-1}]"

class Asm:
    def __init__(self):
        self.L = []
        self.lds = []
        self.vm = []
    def __call__(self, text):
        for line in text.split("\n"):
            line = line.strip()
            if line:
                self.L.append(line)
    def label(self, name):
        self.L.append(name + ":")
    def comment(self, text):
        self.L.append("; " + text)
    diag = False
    def stamp(self, i):
        if self.diag:
            self("s_memrealtime s[100:101]")
            self("s_waitcnt lgkmcnt(0)")
            self(f"s_mov_b32 s{88+i}, s100")
            self.lds = []
    def cstamp(self, i):
        if self.diag:
            self("s_memtime s[100:101]")
            self("s_waitcnt lgkmcnt(0)")
            self(f"s_mov_b32 s{88+i}, s100")
            self.lds = []
    def dump_stamps(self, ws_sgpr, off, wave_sgpr):
        if not self.diag: return
        self("s_mov_b64 exec, -1")
        self(f"s_add_u32 s52, s{ws_sgpr}, {off}")
        self(f"s_addc_u32 s53, s{ws_sgpr+1}, 0")
        self("s_mov_b32 s54, 0x100000")
        self("s_mov_b32 s55, 0x00020000")
        self("v_mov_b32 v250, 0")
        for i in range(12):
            self(f"v_writelane_b32 v250, s{88+i}, {i}")
        self("v_and_b32 v251, 63, v0")
        self("v_lshlrev_b32 v251, 2, v251")
        self("s_lshl_b32 s56, s2, 3")
        self(f"s_add_u32 s56, s56, s{wave_sgpr}")
        self("s_lshl_b32 s56, s56, 6")
        self("v_add_u32 v251, s56, v251")
        self("s_mov_b32 exec_lo, 0xffff")
        self("s_mov_b32 exec_hi, 0")
        self("buffer_store_dword v250, v251, s[52:55], 0 offen")
        self("s_waitcnt vmcnt(0)")
    def ds(self, text, tag=None):
        self(text); self.lds.append(tag)
    def mem(self, text, tag=None):
        self(text); self.vm.append(tag)
    def wait_lds(self, tag):
        idx = max(i for i, t in enumerate(self.lds) if t == tag)
        n = len(self.lds) - 1 - idx
        assert n <= 14, n
        self(f"s_waitcnt lgkmcnt({n})")
        self.lds = self.lds[idx + 1:]
    def wait_lds_if(self, tag):
        if tag in self.lds:
            self.wait_lds(tag)
    def wait_vm(self, tag):
        idx = max(i for i, t in enumerate(self.vm) if t == tag)
        n = len(self.vm) - 1 - idx
        assert n <= 62, n
        self(f"s_waitcnt vmcnt({n})")
        self.vm = self.vm[idx + 1:]
    def wait_all(self, vm=True, lds=True):
        parts = []
        if vm: parts.append("vmcnt(0)"); self.vm = []
        if lds: parts.append("lgkmcnt(0)"); self.lds = []
        self("s_waitcnt " + " ".join(parts))
    def text(self):
        out = []
        for l in self.L:
            if l.endswith(":") or l.startswith(".") or l.startswith(";"):
                out.append(l)
            else:
                out.append("    " + l)
        return "\n".join(out) + "\n"

TRANS = ("v_exp_", "v_log_", "v_rcp_", "v_rsq_", "v_sqrt_", "v_sin_", "v_cos_")
def regs(op):
    op = op.strip()
    neg = op.lstrip("-|").rstrip("|")
    m = re.fullmatch(r"([vsa])(\d+)", neg)
    if m: return {(m.group(1), int(m.group(2)))}
    m = re.fullmatch(r"([vsa])\[(\d+):(\d+)\]", neg)
    if m: return {(m.group(1), i) for i in range(int(m.group(2)), int(m.group(3)) + 1)}
    if neg in ("vcc", "vcc_lo", "vcc_hi"): return {("s", "vcc")}
    if neg in ("exec", "exec_lo", "exec_hi"): return {("s", "exec")}
    if neg == "m0": return {("s", "m0")}
    return set()

class Ins:
    def __init__(self, text, idx):
        self.text = text; self.idx = idx
        t = text.split(";")[0].strip()
        parts = t.split(None, 1)
        self.mn = parts[0]
        rest = parts[1] if len(parts) > 1 else ""
        ops = [o.strip() for o in re.split(r",(?![^\[]*\])", rest)] if rest else []
        if ops:
            last = ops[-1].split()
            self.mods = " ".join(last[1:])
            ops[-1] = last[0] if last else ""
        else:
            self.mods = ""
        self.ops = ops
        mn = self.mn
        self.is_mfma = mn.startswith("v_mfma")
        self.is_valu = mn.startswith("v_") and not self.is_mfma
        self.is_trans = mn.startswith(TRANS)
        self.is_ds = mn.startswith("ds_")
        self.is_vmem = mn.startswith(("buffer_", "global_"))
        self.is_salu = mn.startswith("s_")
        self.is_dpp = bool(re.search(r"row_|quad_perm|wave_|bcast", self.mods)) or mn.endswith("_dpp")
        self.w = set(); self.r = set(); self.ra = set(); self.rb = set(); self.rc = set()
        self.store_data = set(); self.ldst = set()
        R = [regs(o) for o in ops]
        if self.is_mfma:
            self.w = R[0]; self.ra = R[1]; self.rb = R[2]; self.rc = R[3]
            self.r = self.ra | self.rb | self.rc
            self.passes = 8 if "32x32" in mn else 4
        elif self.is_valu:
            if mn.startswith("v_cmp"):
                self.w = R[0]; self.r = set().union(*R[1:])
            elif mn.startswith(("v_add_co", "v_sub_co", "v_addc_co", "v_subb_co")):
                self.w = R[0] | R[1]; self.r = set().union(*R[2:])
            elif mn.startswith("v_permlane"):
                self.w = R[0] | R[1]; self.r = R[0] | R[1]
            else:
                self.w = R[0]; self.r = set().union(*R[1:]) if len(R) > 1 else set()
                if mn.startswith(("v_fmac", "v_mac", "v_writelane", "v_pk_fmac")) or self.is_dpp:
                    self.r |= R[0]
                if mn.startswith("v_cndmask") and len(R) == 3:
                    self.r |= {("s", "vcc")}
        elif self.is_ds:
            if mn.startswith("ds_read") or "_rtn" in mn or mn.startswith(("ds_bpermute", "ds_permute", "ds_swizzle")):
                self.ldst = R[0]; self.r = set().union(*R[1:])
            else:
                self.r = set().union(*R)
                self.store_data = set().union(*R[1:])
        elif self.is_vmem:
            lds = " lds" in (" " + self.mods)
            if "load" in mn and not lds:
                self.ldst = R[0]; self.r = set().union(*R[1:])
            elif "load" in mn and lds:
                self.r = set().union(*R) | {("s", "m0")}
                self.dma = True
            else:
                self.r = set().union(*R)
                self.store_data = R[0] if mn.startswith("buffer_") else R[1]
        elif self.is_salu:
            if mn.startswith(("s_cmp", "s_waitcnt", "s_nop", "s_barrier", "s_branch", "s_cbranch", "s_endpgm", "s_setprio", "s_sleep")):
                self.r = set().union(*R) if R else set()
            else:
                self.w = R[0] if R else set(); self.r = set().union(*R[1:]) if len(R) > 1 else set()
                if "saveexec" in mn: self.w |= {("s", "exec")}
        self.states = 1
        if mn == "s_nop": self.states = int(ops[0], 0) + 1

def check_hazards(text):
    ins = []; labels = {}; local = {}
    for line in text.split("\n"):
        t = line.split(";")[0].strip()
        if not t or t.startswith("."):
            continue
        if t.endswith(":"):
            nm = t[:-1]
            if nm.isdigit(): local.setdefault(nm, []).append(len(ins))
            else: labels[nm] = len(ins)
            continue
        ins.append(Ins(t, len(ins)))
    def succ(i):
        x = ins[i]
        if x.mn == "s_endpgm": return []
        def tgt(o):
            if o[:-1].isdigit() and o[-1] == "f": return min(p for p in local[o[:-1]] if p > i)
            return labels[o]
        if x.mn == "s_branch": return [tgt(x.ops[0])]
        out = [i + 1] if i + 1 < len(ins) else []
        if x.mn.startswith("s_cbranch"): out.append(tgt(x.ops[0]))
        return out
    problems = []
    def need(p, c):
        n = 0
        vw = {r for r in p.w if r[0] in "va"}
        sw = {r for r in p.w if r[0] == "s"}
        if p.is_valu:
            if c.is_mfma and vw & c.r: n = max(n, 2)
            if p.is_trans and c.is_valu and not c.is_trans and vw & c.r: n = max(n, 1)
            if c.is_valu and c.is_dpp and vw & c.r: n = max(n, 2)
            if c.mn.startswith(("v_readlane", "v_readfirstlane")) and vw & c.r: n = max(n, 1)
            if c.mn.startswith("v_permlane") and vw & c.r: n = max(n, 2)
            if sw:
                if c.is_valu and sw & c.r: n = max(n, 4 if c.mn.startswith(("v_readlane", "v_writelane")) else 2)
                if c.is_vmem and sw & c.r: n = max(n, 5)
        if p.is_mfma:
            big = p.passes == 8
            if c.is_mfma:
                if p.w & (c.ra | c.rb): n = max(n, 12 if big else 8)
                if p.w & c.rc and not (p.w == c.rc and p.passes == c.passes): n = max(n, 10 if big else 6)
                if p.w & c.w and not (p.w & c.rc) : n = max(n, 0)
            else:
                if (c.is_valu and p.w & (c.r | c.w)) or ((c.is_ds or c.is_vmem) and p.w & (c.r | c.ldst)):
                    n = max(n, 12 if big else 8)
            if c.is_valu and p.rc & c.w and not (p.rc & p.w): n = max(n, 7 if big else 3)
        if (p.is_vmem or p.is_ds) and p.store_data and len(p.store_data) >= 3:
            if c.is_valu and p.store_data & c.w: n = max(n, 2)
            if (c.is_ds or c.is_vmem) and p.store_data & c.ldst: n = max(n, 1)
        if p.is_salu and ("s", "m0") in p.w and getattr(c, "dma", False): n = max(n, 1)
        return n
    MAXD = 12
    for p in ins:
        if not (p.w or p.store_data or p.is_mfma): continue
        stack = [(j, 0) for j in succ(p.idx)]
        seen = set()
        while stack:
            j, d = stack.pop()
            if (j, d) in seen or d >= MAXD or j >= len(ins): continue
            seen.add((j, d))
            c = ins[j]
            n = need(p, c)
            if n > d:
                problems.append(f"need {n} have {d}: [{p.idx}] {p.text}  ->  [{c.idx}] {c.text}")
            for k in succ(j): stack.append((k, d + c.states))
    return problems
```

```python
N_NODES = 10000
N_EDGES = 160000
WS_Q    = 0
WS_P    = 0x500000
WS_R    = 0xA00000
WS_RECA = 0xF00000
WS_RECB = 0x1200000
WS_TAB  = 0x1300000
WS_WHP  = 0x1400000
WS_WX   = 0x1420000
WS_WXP  = 0x1421000
WS_USED = 0x1430000
WS_DIAG = 0x1500000
MAT_BYTES = 5120000
NCH = 60
CH_E = 2667
CH_STRIDE = 2688
TAB_STRIDE = 4096
NLOG2E = 0xBFB8AA3B
NLN2 = 0xBF317218
SRD3 = 0x00020000

def srd(a, d, base, off, size):
    if off:
        a(f"s_add_u32 s{d}, s{base}, {off}")
        a(f"s_addc_u32 s{d+1}, s{base+1}, 0")
    else:
        a(f"s_mov_b32 s{d}, s{base}")
        a(f"s_mov_b32 s{d+1}, s{base+1}")
    a(f"s_mov_b32 s{d+2}, {size}")
    a(f"s_mov_b32 s{d+3}, {SRD3:#x}")

def kernel_desc(name, nvgpr, nsgpr):
    return f""".section .rodata,"a"
.p2align 6
.amdhsa_kernel {name}
  .amdhsa_next_free_vgpr {nvgpr}
  .amdhsa_next_free_sgpr {nsgpr}
  .amdhsa_accum_offset {(nvgpr + 3) // 4 * 4}
  .amdhsa_group_segment_fixed_size 0
  .amdhsa_kernarg_size 88
  .amdhsa_user_sgpr_count 2
  .amdhsa_user_sgpr_kernarg_segment_ptr 1
  .amdhsa_system_sgpr_workgroup_id_x 1
  .amdhsa_float_denorm_mode_32 3
.end_amdhsa_kernel
"""

S_WAVE = 3
P_H, P_POS, P_EA, P_SRC, P_DST, P_WE, P_WX, P_WH, P_WS, P_OUT, P_DBG = 4, 6, 8, 10, 12, 14, 16, 18, 20, 22, 24
R0, R1, R2, R3, R4, R5 = 28, 32, 36, 40, 44, 48
T = list(range(52, 64))
N_RANGE = 63
WG_SORT0 = 0
WG_PACK = NCH
WG_GEMM0 = NCH + 1
N_GEMM = 3 * N_RANGE
GRID = 250
INC_INIT, INC_SORT, INC_GEMM = 1, 1 << 8, 1 << 16
K1 = 1 | (NCH << 8)
K2 = N_GEMM + 1
WS_MBX = 0x1428000
```

```python
from asmlib import *
from common import *
CONSTS = None

ST = " sc1"
W = S_WAVE

S_CNT = 85

def broadcast(a, lbl, word):
    srd(a, R4, P_WS, WS_MBX, 2048)
    a("v_lshlrev_b32 v2, 7, v1")
    a("v_mov_b32 v3, 1")
    a("s_mov_b32 exec_lo, 0xffff")
    a("s_mov_b32 exec_hi, 0")
    a(f"buffer_store_dword v3, v2, s[{R4}:{R4+3}], 0 offen offset:{4*word} sc1")
    a("s_mov_b64 exec, -1")

def arrive_issue(a, inc):
    srd(a, R5, P_DBG, 0, 256)
    a("v_mov_b32 v2, 0")
    a(f"v_mov_b32 v3, {inc}")
    a("s_mov_b32 exec_lo, 1")
    a("s_mov_b32 exec_hi, 0")
    a(f"buffer_atomic_add v3, v2, s[{R5}:{R5+3}], 0 offen sc0 sc1")
    a("s_mov_b64 exec, -1")

def arrive_finish(a, inc, tag):
    a("s_waitcnt vmcnt(0)")
    a(f"v_readfirstlane_b32 s{T[0]}, v3")
    a(f"s_add_u32 s{S_CNT}, s{T[0]}, {inc}")
    a(f"s_and_b32 s{T[1]}, s{S_CNT}, 0xffff")
    a(f"s_cmp_eq_u32 s{T[1]}, {K1:#x}")
    a(f"s_cbranch_scc0 L_arr1_{tag}")
    a(f"s_and_b32 s{T[1]}, s{T[0]}, 0xffff")
    a(f"s_cmp_eq_u32 s{T[1]}, {K1:#x}")
    a(f"s_cbranch_scc1 L_arr1_{tag}")
    broadcast(a, tag, 0)
    a.label(f"L_arr1_{tag}")
    a(f"s_and_b32 s{T[1]}, s{S_CNT}, 0xffff00ff")
    a(f"s_cmp_eq_u32 s{T[1]}, {(K2 << 16) | 1:#x}")
    a(f"s_cbranch_scc0 L_arr2_{tag}")
    a(f"s_and_b32 s{T[1]}, s{T[0]}, 0xffff00ff")
    a(f"s_cmp_eq_u32 s{T[1]}, {(K2 << 16) | 1:#x}")
    a(f"s_cbranch_scc1 L_arr2_{tag}")
    broadcast(a, tag, 1)
    a.label(f"L_arr2_{tag}")

LDS_FLAG = 163824
S_INC = 84

def signal(a, inc, tag):
    a(f"s_mov_b32 s{S_INC}, {inc:#x}")
    a("s_waitcnt vmcnt(0) lgkmcnt(0)")
    a("s_barrier")
    a("s_branch L_phase2")

def w_lane_offsets(a):
    a("v_lshrrev_b32 v2, 2, v1")
    a("v_lshlrev_b32 v2, 9, v2")
    a("v_and_b32 v3, 3, v1")
    a("v_lshl_add_u32 v2, v3, 4, v2")
    a(f"s_lshl_b32 s{T[0]}, s{W}, 6")
    a(f"v_add_u32 v2, s{T[0]}, v2")

def w_dma(a, srdw):
    a(f"s_lshl_b32 s{T[1]}, s{W}, 14")
    for i in range(16):
        a(f"s_add_u32 m0, s{T[1]}, {i*1024}")
        a(f"s_mov_b32 s{T[2]}, {i*8192}")
        a.mem(f"buffer_load_dwordx4 v2, s[{srdw}:{srdw+3}], s{T[2]} offen lds", ("W", i))

def gemm(a, mat):
    nm = "PQR"[mat]
    VW, VF, ACC, PK = 48, 112, (152, 168), 184
    QS, RING = 192, 10
    VA = 8
    vH = (3, 4)
    sRange, sH0, sHL, sO, sScale, sTmp = T[6], T[7], T[8], T[9], T[4], T[2]
    SW_, SH_, SO_ = R0, R1, R2
    a.label(f"L1_gemm_{nm}")
    if mat == 0: srd(a, SW_, P_WE, 0, 131072)
    if mat == 1: srd(a, SW_, P_WE, 131072, 131072)
    if mat == 2: srd(a, SW_, P_WH, 0, 131072)
    srd(a, SH_, P_H, 0, MAT_BYTES)
    w_lane_offsets(a)
    a("v_lshrrev_b32 v5, 5, v1")
    a(f"s_lshl_b32 s{T[0]}, s{W}, 2")
    a("v_and_b32 v6, 31, v1")
    for i in range(2):
        a(f"v_add_u32 v7, s{T[0]}, v5")
        if i: a("v_add_u32 v7, 2, v7")
        a("v_and_b32 v16, 15, v7")
        a("v_xor_b32 v16, v16, v6")
        a("v_lshlrev_b32 v16, 4, v16")
        a(f"v_lshl_add_u32 v{vH[i]}, v7, 9, v16")
    a(f"s_mul_i32 s{sH0}, s{sRange}, 81920")
    a(f"s_lshl_b32 s{sHL}, s{W}, 11")
    def h_dma(Tt, ldsbase):
        for i in range(2):
            a(f"s_add_u32 m0, s{sHL}, {ldsbase + i*1024}")
            a(f"s_add_u32 s{sTmp}, s{sH0}, {Tt*16384}")
            a.mem(f"buffer_load_dwordx4 v{vH[i]}, s[{SH_}:{SH_+3}], s{sTmp} offen lds", ("H", Tt))
    sWL = T[10]
    a(f"s_lshl_b32 s{sWL}, s{W}, 14")
    def w_one(i):
        a(f"s_add_u32 m0, s{sWL}, {i*1024}")
        a(f"s_mov_b32 s{sTmp}, {i*8192}")
        a.mem(f"buffer_load_dwordx4 v2, s[{SW_}:{SW_+3}], s{sTmp} offen lds", ("W", i))
    HP = 24
    def hp_load(Tt):
        a(f"s_add_u32 s{sTmp}, s{sH0}, {Tt*16384}")
        for i in range(2):
            q = HP + 8 * (Tt - 2) + 4 * i
            a.mem(f"buffer_load_dwordx4 v[{q}:{q+3}], v{vH[i]}, s[{SH_}:{SH_+3}], s{sTmp} offen", ("H", Tt))
    a("s_setprio 3")
    h_dma(0, 131072)
    for i in range(8): w_one(i)
    a("s_setprio 0")
    srd(a, SO_, P_WS, (WS_P, WS_Q, WS_R)[mat], MAT_BYTES)
    a("v_lshrrev_b32 v5, 5, v1")
    a("v_bfe_u32 v6, v1, 2, 2")
    a("v_lshl_add_u32 v6, v5, 3, v6")
    a("v_lshlrev_b32 v6, 6, v6")
    a("v_bfe_u32 v7, v1, 4, 1")
    a("v_and_b32 v16, 3, v1")
    a("v_lshl_add_u32 v7, v7, 2, v16")
    if mat == 0:
        a("v_lshlrev_b32 v7, 3, v7")
    else:
        a("v_and_b32 v16, 1, v7")
        a("v_lshlrev_b32 v16, 5, v16")
        a("v_lshrrev_b32 v7, 1, v7")
        a("v_lshl_add_u32 v7, v7, 3, v16")
    a("v_add_u32 v5, v6, v7")
    a(f"s_lshl_b32 s{T[1]}, s{W}, 14")
    a(f"v_add_u32 v5, s{T[1]}, v5")
    a("v_and_b32 v6, 31, v1")
    a("v_lshrrev_b32 v7, 5, v1")
    a("v_and_b32 v16, 15, v6")
    a("v_xor_b32 v7, v7, v16")
    a("v_lshlrev_b32 v6, 9, v6")
    a("v_add_u32 v6, 0x20000, v6")
    for k in range(8):
        a(f"v_xor_b32 v16, {2*k}, v7")
        a(f"v_lshl_add_u32 v{VA+k}, v16, 4, v6")
    a("v_and_b32 v6, 31, v1")
    a("v_lshrrev_b32 v7, 5, v1")
    a(f"s_mul_i32 s{sO}, s{sRange}, 81920")
    if mat == 0:
        a(f"s_lshl_b32 s{T[0]}, s{W}, 9")
        a("v_lshlrev_b32 v17, 4, v6")
        a("v_lshl_add_u32 v17, v7, 12, v17")
        a(f"v_add_u32 v17, s{T[0]}, v17")
    elif mat == 2:
        a(f"s_lshl_b32 s{T[0]}, s{W}, 9")
        a("v_lshrrev_b32 v17, 3, v6")
        a("v_lshlrev_b32 v17, 12, v17")
        a("v_lshl_add_u32 v17, v7, 8, v17")
        a("v_and_b32 v16, 7, v6")
        a("v_lshl_add_u32 v17, v16, 4, v17")
        a(f"v_add_u32 v17, s{T[0]}, v17")
    else:
        a(f"s_lshl_b32 s{T[0]}, s{W}, 11")
        a(f"s_add_u32 s{T[0]}, s{T[0]}, 65536")
        a("v_bfe_u32 v16, v6, 1, 2")
        a("v_lshlrev_b32 v19, 1, v7")
        a("v_xor_b32 v19, v19, v16")
        a("v_lshlrev_b32 v20, 6, v6")
        a(f"v_add_u32 v20, s{T[0]}, v20")
        a("v_lshl_add_u32 v17, v19, 4, v20")
        a("v_xor_b32 v19, 1, v19")
        a("v_lshl_add_u32 v18, v19, 4, v20")
        a("v_lshrrev_b32 v6, 2, v1")
        a("v_bfe_u32 v16, v1, 3, 2")
        a("v_and_b32 v7, 3, v1")
        a("v_xor_b32 v16, v16, v7")
        a("v_lshlrev_b32 v19, 6, v6")
        a("v_lshl_add_u32 v19, v16, 4, v19")
        a(f"v_add_u32 v19, s{T[0]}, v19")
        a(f"s_lshl_b32 s{T[0]}, s{W}, 6")
        a("v_lshlrev_b32 v20, 9, v6")
        a("v_lshl_add_u32 v20, v7, 4, v20")
        a(f"v_add_u32 v20, s{T[0]}, v20")
    a(f"s_mov_b32 s{sScale}, {NLOG2E:#x}")
    a.stamp(1)
    a.wait_vm(("H", 0))
    a("s_barrier")
    a.stamp(2)

    def trread(st):
        for i in range(2):
            a.ds(f"ds_read_b64_tr_b16 v[{VW+4*st+2*i}:{VW+4*st+2*i+1}], v5 offset:{st*1024+i*256}", ("TR", st))
    def fread(u):
        Tt, st = divmod(u, 16)
        base = Tt * 16384 if Tt < 2 else (Tt - 2) * 16384
        q = VF + 4 * (u % RING)
        a.ds(f"ds_read_b128 v[{q}:{q+3}], v{VA + (st & 7)} offset:{base + 256*(st >> 3)}", ("F", u))
    def mfma(u):
        Tt, st = divmod(u, 16)
        q = VF + 4 * (u % RING); w = VW + 4 * st; acc = ACC[Tt & 1]
        c = "0" if st == 0 else f"v[{acc}:{acc+15}]"
        A, B = (q, w) if mat == 0 else (w, q)
        a(f"v_mfma_f32_32x32x16_bf16 v[{acc}:{acc+15}], v[{A}:{A+3}], v[{B}:{B+3}], {c}")
    def epi(Tt):
        acc = ACC[Tt & 1]
        ops = []
        for j in range(8):
            ops.append(f"v_mul_f32 v{acc+2*j}, s{sScale}, v{acc+2*j}")
            ops.append(f"v_mul_f32 v{acc+2*j+1}, s{sScale}, v{acc+2*j+1}")
        for j in range(8):
            ops.append(f"v_cvt_pk_bf16_f32 v{PK+j}, v{acc+2*j}, v{acc+2*j+1}")
        if mat == 0:
            ops.append("s_nop 1")
            for q in (0, 2):
                ops.append(f"v_permlane32_swap_b32 v{PK+2*q}, v{PK+2*q+2}")
                ops.append(f"v_permlane32_swap_b32 v{PK+2*q+1}, v{PK+2*q+3}")
            for q in (0, 2):
                ops.append(f"s_add_u32 s{sTmp}, s{sO}, {Tt*16384 + q*4096}")
                ops.append(("vm", f"buffer_store_dwordx4 v[{PK+2*q}:{PK+2*q+3}], v17, s[{SO_}:{SO_+3}], s{sTmp} offen{ST}", ("S", Tt)))
        elif mat == 2:
            ops.append(f"s_add_u32 s{sTmp}, s{sO}, {Tt*16384}")
            for i in range(2):
                ops.append(("vm", f"buffer_store_dwordx4 v[{PK+4*i}:{PK+4*i+3}], v17, s[{SO_}:{SO_+3}], s{sTmp} offen offset:{i*128}{ST}", ("S", Tt)))
        else:
            ops.append(("ds", f"ds_write_b128 v17, v[{PK}:{PK+3}]", ("QW", Tt)))
            ops.append(("ds", f"ds_write_b128 v18, v[{PK+4}:{PK+7}]", ("QW", Tt)))
            ops.append(("waitlds", ("QW", Tt)))
            ops.append(("ds", f"ds_read_b128 v[{QS}:{QS+3}], v19", ("QR0", Tt)))
            ops.append(("ds", f"ds_read_b128 v[{QS+4}:{QS+7}], v19 offset:1024", ("QR1", Tt)))
            ops.append(f"s_add_u32 s{sTmp}, s{sO}, {Tt*16384}")
            ops.append(("waitlds", ("QR0", Tt)))
            ops.append(("vm", f"buffer_store_dwordx4 v[{QS}:{QS+3}], v20, s[{SO_}:{SO_+3}], s{sTmp} offen{ST}", ("S", Tt)))
            ops.append(f"s_add_u32 s{sTmp}, s{sO}, {Tt*16384 + 8192}")
            ops.append(("waitlds", ("QR1", Tt)))
            ops.append(("vm", f"buffer_store_dwordx4 v[{QS+4}:{QS+7}], v20, s[{SO_}:{SO_+3}], s{sTmp} offen{ST}", ("S", Tt)))
        return ops
    def emit(op):
        if isinstance(op, str): a(op)
        elif op[0] == "vm": a.mem(op[1], op[2])
        elif op[0] == "ds": a.ds(op[1], op[2])
        elif op[0] == "waitlds": a.wait_lds_if(op[1])
    PD = 8
    tmp = Asm(); CONSTS(tmp, 241, 64); filler = list(tmp.L)
    def stream(tiles, pend, first=False):
        u0, u1 = tiles[0] * 16, (tiles[-1] + 1) * 16
        for u in range(u0, u0 + (6 if first else PD)): fread(u)
        if first:
            for st in range(2):
                a.wait_vm(("W", st)); trread(st)
        nxt = u0 + (6 if first else PD)
        for u in range(u0, u1):
            Tt, st = divmod(u, 16)
            if st == 0 and u > u0:
                assert not pend
                pend = epi(Tt - 1)
            if first and Tt == 0:
                if st + 8 < 16: w_one(st + 8)
                elif st == 8: h_dma(1, 147456)
                elif st in (9, 10, 11): hp_load(st - 7)
                if st + 2 < 16:
                    a.wait_vm(("W", st + 2)); trread(st + 2)
                a.wait_lds_if(("TR", st))
            a.wait_lds_if(("F", u))
            mfma(u)
            if first and u == 15:
                a.wait_vm(("H", 1))
                a("s_barrier")
            depth = 6 if (first and Tt == 0) else PD
            while nxt < u1 and nxt <= u + depth and not (first and u < 15 and nxt >= 16):
                fread(nxt); nxt += 1
            if filler and st >= 2 and Tt == 3:
                k = -(-len(filler) // (16 - st))
                for op in filler[:k]: a(op)
                del filler[:k]
            if st >= 5 and pend:
                k = -(-len(pend) // (16 - st))
                for op in pend[:k]: emit(op)
                pend = pend[k:]
        assert not pend
        return epi(tiles[-1])
    pend = stream([0, 1], [], first=True)
    a.stamp(3)
    for k in range(8): a(f"v_add_u32 v{VA+k}, 0xfffe0000, v{VA+k}")
    a.wait_vm(("H", 4))
    a("v_lshlrev_b32 v21, 4, v1")
    a(f"v_add_u32 v21, s{sHL}, v21")
    for T2 in (2, 3, 4):
        for i in range(2):
            q = HP + 8 * (T2 - 2) + 4 * i
            a.ds(f"ds_write_b128 v21, v[{q}:{q+3}] offset:{(T2-2)*16384 + i*1024}", ("HW", T2))
    a.wait_lds_if(("HW", 4))
    a("s_barrier")
    a(f"s_cmp_lg_u32 s{W}, 0")
    a(f"s_cbranch_scc1 L1_peek_{nm}")
    srd(a, R5, P_DBG, 0, 256)
    a("v_mov_b32 v22, 0")
    a("s_mov_b32 exec_lo, 1")
    a("s_mov_b32 exec_hi, 0")
    a(f"buffer_load_dword v23, v22, s[{R5}:{R5+3}], 0 offen sc1")
    a("s_mov_b64 exec, -1")
    a.label(f"L1_peek_{nm}")
    pend = stream([2, 3, 4], pend)
    a("s_nop 7"); a("s_nop 3")
    a.stamp(4)
    for op in pend: emit(op)
    a(f"s_mov_b32 s{S_INC}, {INC_GEMM:#x}")
    a(f"s_cmp_lg_u32 s{W}, 0")
    a(f"s_cbranch_scc1 L1_peek2_{nm}")
    a("s_waitcnt vmcnt(0)")
    a("v_and_b32 v23, 0xffff, v23")
    a(f"v_mov_b32 v22, {LDS_FLAG}")
    a("s_mov_b32 exec_lo, 1")
    a("s_mov_b32 exec_hi, 0")
    a("ds_write_b32 v22, v23")
    a("s_mov_b64 exec, -1")
    a.label(f"L1_peek2_{nm}")
    a("s_waitcnt vmcnt(0) lgkmcnt(0)")
    a("s_barrier")
    a(f"v_mov_b32 v22, {LDS_FLAG}")
    a("ds_read_b32 v23, v22")
    a("s_waitcnt lgkmcnt(0)")
    a(f"v_readfirstlane_b32 s{T[0]}, v23")
    a(f"s_cmp_eq_u32 s{T[0]}, {K1:#x}")
    a("s_cbranch_scc1 L_phase2_fast")
    a("s_branch L_phase2")

def sort(a):
    POS, HIST, WSUM, RECA = 0, 65536, 70656, 71680
    RECB = RECA + CH_STRIDE * 16
    NR = 6
    D, SX, EA = 8, 14, 20
    RA, RB, BA, RK = 32, 56, 62, 68
    t = 76
    sC, sE4, sE8, sTmp = T[6], T[7], T[8], T[2]
    MK = 62
    a.label("L1_sort")
    a(f"s_mov_b32 s{sC}, s2")
    srd(a, R0, P_DST, 0, N_EDGES * 4)
    a(f"s_mul_i32 s{sE4}, s{sC}, {CH_E*4}")
    a(f"s_mul_i32 s{sE8}, s{sC}, {CH_E*8}")
    a("v_lshlrev_b32 v2, 2, v0")
    a("s_setprio 3")
    for i in range(NR):
        a(f"s_add_u32 s{sTmp}, s{sE4}, {i*2048}")
        a.mem(f"buffer_load_dword v{D+i}, v2, s[{R0}:{R0+3}], s{sTmp} offen", "D")
    a("s_setprio 0")
    srd(a, R1, P_SRC, 0, N_EDGES * 4)
    for i in range(NR):
        a(f"s_add_u32 s{sTmp}, s{sE4}, {i*2048}")
        a.mem(f"buffer_load_dword v{SX+i}, v2, s[{R1}:{R1+3}], s{sTmp} offen", "S")
    srd(a, R3, P_POS, 0, 60000)
    a("v_lshlrev_b32 v4, 4, v1")
    for j in range(8):
        a(f"s_lshl_b32 s{T[0]}, s{W}, 10")
        a(f"s_add_u32 s{T[0]}, s{T[0]}, {j*8192}")
        a(f"s_mov_b32 m0, s{T[0]}")
        a("s_nop 0")
        a.mem(f"buffer_load_dwordx4 v4, s[{R3}:{R3+3}], s{T[0]} offen lds", "P")
    srd(a, R2, P_EA, 0, N_EDGES * 8)
    a("v_lshlrev_b32 v3, 3, v0")
    for i in range(NR):
        a(f"s_add_u32 s{sTmp}, s{sE8}, {i*4096}")
        a.mem(f"buffer_load_dwordx2 v[{EA+2*i}:{EA+2*i+1}], v3, s[{R2}:{R2+3}], s{sTmp} offen", "E")
    srd(a, R4, P_WS, 0, WS_USED)
    for k in range(4): a(f"v_mov_b32 v{t+k}, 0")
    a("v_lshlrev_b32 v5, 4, v0")
    a(f"v_add_u32 v5, {HIST}, v5")
    a(f"s_cmp_ge_u32 s{W}, 5")
    a("s_cbranch_scc1 L1_sort_z")
    a(f"ds_write_b128 v5, v[{t}:{t+3}]")
    a.label("L1_sort_z")
    a("v_mov_b32 v6, 1")
    a(f"s_mul_i32 s{T[0]}, s{sC}, {CH_E}")
    a(f"s_sub_u32 s{T[0]}, {N_EDGES}, s{T[0]}")
    a(f"s_min_u32 s{T[0]}, s{T[0]}, {CH_E}")
    a(f"s_sub_u32 s{T[0]}, s{T[0]}, {(NR-1)*512}")
    a(f"v_cmp_gt_u32 s[{MK}:{MK+1}], s{T[0]}, v0")
    a("s_waitcnt lgkmcnt(0)")
    a("s_barrier")
    a.wait_vm("D")
    def last_round(lbl):
        a(f"s_mov_b64 exec, s[{MK}:{MK+1}]")
        a(f"s_cbranch_execz {lbl}")
    for i in range(NR):
        if i == NR - 1: last_round("L1_sort_a")
        a(f"v_lshrrev_b32 v{t}, 3, v{D+i}")
        a(f"v_lshlrev_b32 v{BA+i}, 2, v{t}")
        a(f"v_add_u32 v{BA+i}, {HIST}, v{BA+i}")
        a(f"ds_add_rtn_u32 v{RK+i}, v{BA+i}, v6")
    a.label("L1_sort_a")
    a("s_mov_b64 exec, -1")
    CONSTS(a, 120, 64)
    a.wait_vm("P")
    a("s_waitcnt lgkmcnt(0)")
    a("s_barrier")
    a.stamp(2)
    a(f"s_cmp_lg_u32 s{W}, 0")
    a("s_cbranch_scc1 L1_sort_s1")
    C = 96
    a("v_mul_u32_u24 v7, 80, v1")
    a(f"v_add_u32 v7, {HIST}, v7")
    for q in range(5): a(f"ds_read_b128 v[{C+4*q}:{C+4*q+3}], v7 offset:{16*q}")
    a("s_waitcnt lgkmcnt(0)")
    a(f"v_mov_b32 v{t}, v{C}")
    a(f"v_mov_b32 v{C}, 0")
    for k in range(1, 20):
        a(f"v_add_u32 v{t+1}, v{t}, v{C+k}")
        a(f"v_mov_b32 v{C+k}, v{t}")
        a(f"v_mov_b32 v{t}, v{t+1}")
    a(f"v_mov_b32 v{t+2}, v{t}")
    for sh in (1, 2, 4, 8):
        a("s_nop 1")
        a(f"v_add_u32_dpp v{t+2}, v{t+2}, v{t+2} row_shr:{sh} row_mask:0xf bank_mask:0xf")
    a("s_nop 1")
    a(f"v_add_u32_dpp v{t+2}, v{t+2}, v{t+2} row_bcast:15 row_mask:0xa bank_mask:0xf")
    a("s_nop 1")
    a(f"v_add_u32_dpp v{t+2}, v{t+2}, v{t+2} row_bcast:31 row_mask:0xc bank_mask:0xf")
    a(f"v_sub_u32 v{t+2}, v{t+2}, v{t}")
    for k in range(20): a(f"v_add_u32 v{C+k}, v{C+k}, v{t+2}")
    for q in range(5): a(f"ds_write_b128 v7, v[{C+4*q}:{C+4*q+3}] offset:{16*q}")
    a.label("L1_sort_s1")
    PP = 96
    a(f"s_mov_b32 s{T[3]}, 0xffff0000")
    M16 = T[3]
    a("s_waitcnt lgkmcnt(0)")
    a("v_mov_b32 v7, 0")
    for i in range(NR):
        for j, X in enumerate((D + i, SX + i)):
            a(f"v_mul_u32_u24 v{t+4}, 6, v{X}")
            a(f"v_and_b32 v{t+4}, -4, v{t+4}")
            a(f"ds_read2_b32 v[{PP+4*i+2*j}:{PP+4*i+2*j+1}], v{t+4} offset0:0 offset1:1")
    a.wait_vm("E")
    for i in range(NR):
        PD_, PS_ = PP + 4 * i, PP + 4 * i + 2
        a(f"v_and_b32 v{t+5}, 7, v{D+i}")
        a(f"v_lshl_or_b32 v{RB+i}, v{t+5}, 14, v{SX+i}")
        a(f"v_lshrrev_b32 v{t+5}, 3, v{D+i}")
        a(f"v_lshl_or_b32 v{RB+i}, v{t+5}, 17, v{RB+i}")
        a(f"v_and_b32 v{t+6}, 1, v{D+i}")
        a(f"v_lshlrev_b32 v{t+6}, 4, v{t+6}")
        a(f"v_and_b32 v{t+7}, 1, v{SX+i}")
        a(f"v_lshlrev_b32 v{t+7}, 4, v{t+7}")
        if i == 0: a("s_waitcnt lgkmcnt(0)")
        for (P, sh) in ((PD_, t + 6), (PS_, t + 7)):
            a(f"v_alignbit_b32 v{P}, v{P+1}, v{P}, v{sh}")
            a(f"v_lshrrev_b32 v{P+1}, v{sh}, v{P+1}")
        a(f"v_lshlrev_b32 v{t+8}, 16, v{PD_}")
        a(f"v_lshlrev_b32 v{t+9}, 16, v{PS_}")
        a(f"v_sub_f32 v{t+8}, v{t+8}, v{t+9}")
        a(f"v_and_b32 v{t+9}, s{M16}, v{PD_}")
        a(f"v_and_b32 v{t+10}, s{M16}, v{PS_}")
        a(f"v_sub_f32 v{t+9}, v{t+9}, v{t+10}")
        a(f"v_lshlrev_b32 v{t+10}, 16, v{PD_+1}")
        a(f"v_lshlrev_b32 v{t+11}, 16, v{PS_+1}")
        a(f"v_sub_f32 v{t+10}, v{t+10}, v{t+11}")
        a(f"v_cvt_pk_bf16_f32 v{t+12}, v{t+8}, v{t+9}")
        a(f"v_cvt_pk_bf16_f32 v{t+13}, v{t+10}, v7")
        a(f"v_lshlrev_b32 v{t+8}, 16, v{t+12}")
        a(f"v_and_b32 v{t+9}, s{M16}, v{t+12}")
        a(f"v_lshlrev_b32 v{t+10}, 16, v{t+13}")
        a(f"v_mul_f32 v{t+8}, v{t+8}, v{t+8}")
        a(f"v_fmac_f32 v{t+8}, v{t+9}, v{t+9}")
        a(f"v_fmac_f32 v{t+8}, v{t+10}, v{t+10}")
        a(f"v_cvt_pk_bf16_f32 v{t+8}, v{t+8}, v7")
        r = RA + 4 * i
        a(f"v_lshl_or_b32 v{r}, v{EA+2*i}, 16, v{t+8}")
        a(f"v_alignbit_b32 v{r+1}, v{EA+2*i+1}, v{EA+2*i}, 16")
        a(f"v_alignbit_b32 v{r+2}, v{t+12}, v{EA+2*i+1}, 16")
        a(f"v_alignbit_b32 v{r+3}, v{t+13}, v{t+12}, 16")
    a("s_waitcnt lgkmcnt(0)")
    a("s_barrier")
    a.stamp(3)
    a(f"s_cmp_ge_u32 s{W}, 4")
    a("s_cbranch_scc1 L1_sort_t")
    a("v_mul_u32_u24 v7, 20, v0")
    a(f"v_add_u32 v7, {HIST}, v7")
    for k in range(6): a(f"ds_read_b32 v{t+8+k}, v7 offset:{4*k}")
    a.label("L1_sort_t")
    for i in range(NR):
        if i == NR - 1: last_round("L1_sort_b")
        a(f"ds_read_b32 v{t+i}, v{BA+i}")
    a.label("L1_sort_b")
    a("s_mov_b64 exec, -1")
    a("s_waitcnt lgkmcnt(0)")
    a(f"s_cmp_ge_u32 s{W}, 4")
    a("s_cbranch_scc1 L1_sort_t2")
    a(f"v_lshl_or_b32 v{t+16}, v{t+9}, 16, v{t+8}")
    a(f"v_lshl_or_b32 v{t+17}, v{t+11}, 16, v{t+10}")
    a(f"v_lshl_or_b32 v{t+18}, v{t+13}, 16, v{t+12}")
    a(f"v_mov_b32 v{t+19}, 0")
    a(f"s_mul_i32 s{T[0]}, s{sC}, {TAB_STRIDE}")
    a(f"s_add_u32 s{T[0]}, s{T[0]}, {WS_TAB}")
    a("v_lshlrev_b32 v7, 4, v0")
    a(f"buffer_store_dwordx4 v[{t+16}:{t+19}], v7, s[{R4}:{R4+3}], s{T[0]} offen{ST}")
    a.label("L1_sort_t2")
    for i in range(NR):
        if i == NR - 1: last_round("L1_sort_c")
        a(f"v_add_u32 v{t+i}, v{t+i}, v{RK+i}")
        a(f"v_lshlrev_b32 v{t+6}, 4, v{t+i}")
        a(f"v_add_u32 v{t+6}, {RECA}, v{t+6}")
        a(f"ds_write_b128 v{t+6}, v[{RA+4*i}:{RA+4*i+3}]")
        a(f"v_lshlrev_b32 v{t+7}, 2, v{t+i}")
        a(f"v_add_u32 v{t+7}, {RECB}, v{t+7}")
        a(f"ds_write_b32 v{t+7}, v{RB+i}")
    a.label("L1_sort_c")
    a("s_mov_b64 exec, -1")
    a("s_waitcnt lgkmcnt(0)")
    a("s_barrier")
    a.stamp(5)
    a("v_lshlrev_b32 v4, 4, v0")
    a(f"v_add_u32 v5, {RECA}, v4")
    for i in range(6):
        a(f"ds_read_b128 v[{RA+4*i}:{RA+4*i+3}], v5 offset:{i*8192}")
    a(f"v_add_u32 v7, {RECB}, v4")
    a(f"ds_read_b128 v[{t}:{t+3}], v7")
    a(f"ds_read_b128 v[{t+4}:{t+7}], v7 offset:8192")
    a(f"s_mul_i32 s{T[0]}, s{sC}, {CH_STRIDE*16}")
    a(f"s_add_u32 s{T[0]}, s{T[0]}, {WS_RECA}")
    a(f"s_mul_i32 s{T[1]}, s{sC}, {CH_STRIDE*4}")
    a(f"s_add_u32 s{T[1]}, s{T[1]}, {WS_RECB}")
    a("s_waitcnt lgkmcnt(0)")
    for i in range(5):
        a(f"buffer_store_dwordx4 v[{RA+4*i}:{RA+4*i+3}], v4, s[{R4}:{R4+3}], s{T[0]} offen{ST}")
        a(f"s_add_u32 s{T[0]}, s{T[0]}, 8192")
    a(f"buffer_store_dwordx4 v[{t}:{t+3}], v4, s[{R4}:{R4+3}], s{T[1]} offen{ST}")
    a(f"s_cmp_ge_u32 s{W}, 2")
    a("s_cbranch_scc1 L1_sort_r1")
    a(f"buffer_store_dwordx4 v[{RA+20}:{RA+23}], v4, s[{R4}:{R4+3}], s{T[0]} offen{ST}")
    a.label("L1_sort_r1")
    a(f"s_cmp_ge_u32 s{W}, 3")
    a("s_cbranch_scc1 L1_sort_r2")
    a(f"s_movk_i32 s{T[2]}, 160")
    a(f"v_cmp_gt_u32 vcc, s{T[2]}, v0")
    a("s_and_b64 exec, exec, vcc")
    a(f"s_add_u32 s{T[1]}, s{T[1]}, 8192")
    a(f"buffer_store_dwordx4 v[{t+4}:{t+7}], v4, s[{R4}:{R4+3}], s{T[1]} offen{ST}")
    a("s_mov_b64 exec, -1")
    a.label("L1_sort_r2")
    a.stamp(4)
    signal(a, INC_SORT, "s")

def pack(a):
    a.label("L1_pack")
    a(f"s_cmp_lg_u32 s{W}, 7")
    a("s_cbranch_scc1 L1_pack_go")
    srd(a, R4, P_WS, WS_MBX, 2048)
    a("v_lshlrev_b32 v2, 7, v1")
    a("v_mov_b32 v4, 0")
    a("v_mov_b32 v5, 0")
    a("s_mov_b32 exec_lo, 0xffff")
    a("s_mov_b32 exec_hi, 0")
    a(f"buffer_store_dwordx2 v[4:5], v2, s[{R4}:{R4+3}], 0 offen sc1")
    a("s_waitcnt vmcnt(0)")
    a("s_mov_b64 exec, -1")
    arrive_issue(a, f"{INC_INIT:#x}")
    arrive_finish(a, f"{INC_INIT:#x}", "i")
    a.label("L1_pack_go")
    srd(a, R0, P_WH, 131072, 131072)
    srd(a, R2, P_WS, WS_WHP, 131072)
    w_lane_offsets(a)
    w_dma(a, R0)
    srd(a, R1, P_WE, 0, 517 * 512)
    srd(a, R3, P_WX, 0, 512)
    srd(a, R4, P_WS, 0, WS_USED)
    a("v_lshlrev_b32 v9, 1, v0")
    a(f"s_mov_b32 s{T[0]}, 0x40000")
    for k in range(5):
        a(f"buffer_load_ushort v{24+k}, v9, s[{R1}:{R1+3}], s{T[0]} offen offset:{k*512}")
    a("v_lshrrev_b32 v10, 2, v1")
    a("v_lshlrev_b32 v10, 5, v10")
    a("v_bfe_u32 v11, v1, 1, 1")
    a("v_lshl_add_u32 v10, v11, 4, v10")
    a("v_and_b32 v11, 1, v1")
    a("v_lshl_add_u32 v10, v11, 2, v10")
    a("v_lshlrev_b32 v10, 1, v10")
    a(f"buffer_load_dwordx2 v[32:33], v10, s[{R3}:{R3+3}], 0 offen")
    a(f"buffer_load_dwordx2 v[34:35], v10, s[{R3}:{R3+3}], 0 offen offset:16")
    a("v_lshrrev_b32 v5, 4, v1")
    a("v_and_b32 v6, 1, v5")
    a("v_lshlrev_b32 v6, 4, v6")
    a("v_lshrrev_b32 v7, 1, v5")
    a("v_lshl_add_u32 v6, v7, 2, v6")
    a("v_bfe_u32 v7, v1, 2, 2")
    a("v_add_u32 v6, v6, v7")
    a("v_lshlrev_b32 v6, 6, v6")
    a("v_and_b32 v7, 3, v1")
    a("v_lshl_add_u32 v6, v7, 4, v6")
    a(f"s_lshl_b32 s{T[1]}, s{W}, 14")
    a(f"v_add_u32 v5, s{T[1]}, v6")
    a("v_lshlrev_b32 v8, 4, v1")
    CONSTS(a, 100, 64)
    a(f"s_lshl_b32 s{T[1]}, s{W}, 14")
    a.wait_all()
    for cb in range(2):
        for ks in range(8):
            q = 64 + 4 * (cb * 8 + ks)
            for i in range(2):
                a(f"ds_read_b64_tr_b16 v[{q+2*i}:{q+2*i+1}], v5 offset:{ks*2048 + i*512 + cb*8}")
            if ks % 4 == 3: a("s_waitcnt lgkmcnt(0)")
    for cb in range(2):
        for ks in range(8):
            q = 64 + 4 * (cb * 8 + ks)
            a(f"s_add_u32 s{T[2]}, s{T[1]}, {(cb*8+ks)*1024}")
            a(f"buffer_store_dwordx4 v[{q}:{q+3}], v8, s[{R2}:{R2+3}], s{T[2]} offen{ST}")
    a(f"s_cmp_ge_u32 s{W}, 4")
    a("s_cbranch_scc1 L1_pack_b")
    a(f"s_mov_b32 s{T[4]}, {NLOG2E:#x}")
    for k in range(5):
        a(f"v_lshlrev_b32 v{24+k}, 16, v{24+k}")
        a(f"v_mul_f32 v{24+k}, s{T[4]}, v{24+k}")
    a("v_mov_b32 v29, 0")
    a("v_cvt_pk_bf16_f32 v36, v24, v25")
    a("v_cvt_pk_bf16_f32 v37, v26, v27")
    a("v_cvt_pk_bf16_f32 v38, v28, v29")
    a("v_mov_b32 v39, 0")
    a("v_lshlrev_b32 v3, 4, v0")
    a(f"s_mov_b32 s{T[0]}, {WS_WX}")
    a(f"buffer_store_dwordx4 v[36:39], v3, s[{R4}:{R4+3}], s{T[0]} offen{ST}")
    a("s_branch L1_pack_e")
    a.label("L1_pack_b")
    a(f"s_cmp_gt_u32 s{W}, 4")
    a("s_cbranch_scc1 L1_pack_e")
    a("v_lshlrev_b32 v3, 4, v1")
    a(f"s_mov_b32 s{T[0]}, {WS_WXP}")
    a("s_mov_b32 exec_hi, 0")
    a(f"buffer_store_dwordx4 v[32:35], v3, s[{R4}:{R4+3}], s{T[0]} offen{ST}")
    a("s_mov_b64 exec, -1")
    a.label("L1_pack_e")
    signal(a, INC_GEMM, "p")
```

```python
from asmlib import *
from common import *
import p1

EXP = set()
CAP = 27
TILE = 2560
L_SRC = CAP * TILE
L_STAGE = L_SRC + 32 * 128
L_S = L_STAGE + 65536
S_ROW = 544
L_T = L_S + 40 * S_ROW
L_REL = L_T + 640
L_NG = L_REL + 1280
L_TB = L_NG + 32
W = S_WAVE
NRW = 7

SWS, SQ, SH, SO, STAB, SDBG = R0, R1, R2, R3, R4, R5
S_T, S_N, S_TG0, S_NT, S_WIN, S_TG = 64, 65, 66, 67, 68, 69
ZB, FB = 70, 75
S_STG, S_G5, S_IB, S_FIRST, S_WPH, S_M8 = 80, 81, 82, 83, 84, 86
S_RA, S_RB = 26, 27
S_HALF, S_HF = 85, 68
S_MK = 56
t0, t1, t2, t3 = T[0], T[1], T[2], T[3]

Z = (16, 32); E = 48; ACC = 64; M = 80; A0 = 88; A1 = 92; A2 = 96; BP = 100
I0 = 200; I1 = 204; B2 = 116; B2Q = 120; WXA = 108; WH = 136
ONE2 = 208; SR = 210; DV = 212
vA0, vA1, vA2, vB0, vB1, vSR, vLC, vS, vT = 214, 215, 216, 217, 218, 219, 220, 221, 222
vOS, vSL = 223, 224
cA2, cB0, cB1 = 225, 226, 227
FL = 228
ZQ = 236
cSR = 240
NV = 241

def zero_fill(a):
    for k in range(4): a(f"v_mov_b32 v{36+k}, 0")
    a("v_lshlrev_b32 v40, 4, v0")
    a("v_add_u32 v41, 0x10000, v40")
    for k in range(8): a(f"ds_write_b128 v40, v[36:39] offset:{k*8192}")
    a("ds_write_b128 v41, v[36:39]")

def mf32(d, x, y, c): return f"v_mfma_f32_32x32x16_bf16 v[{d}:{d+15}], v[{x}:{x+3}], v[{y}:{y+3}], {c}"
def z_mfmas(zn):
    return [mf32(zn, A0, I0, "0"), mf32(zn, A1, I1, f"v[{zn}:{zn+15}]"), mf32(zn, A2, B2, f"v[{zn}:{zn+15}]")]

def dma(a, slot):
    a(f"v_add_u32 v{DV}, v{SR}, v{vLC}")
    a(f"v_add_u32 v{DV+1}, v{SR+1}, v{vLC}")
    a(f"s_add_u32 m0, s{S_STG}, {slot*2048}")
    a("s_nop 0")
    a(f"buffer_load_dwordx4 v{DV}, s[{SQ}:{SQ+3}], 0 offen lds")
    a(f"s_add_u32 m0, s{S_STG}, {slot*2048+1024}")
    a("s_nop 0")
    a(f"buffer_load_dwordx4 v{DV+1}, s[{SQ}:{SQ+3}], 0 offen lds")

def shift_q(a, base):
    for k in range(4): a(f"s_mov_b32 s{base+k}, s{base+k+1}")

def flush(a, tmp):
    for q in range(8): a(f"v_cvt_pk_bf16_f32 v{FL+q}, v{ACC+2*q}, v{ACC+2*q+1}")
    a(f"s_mov_b64 exec, s[{S_M8}:{S_M8+1}]")
    a(f"ds_write_b128 v{vS}, v[{FL}:{FL+3}]")
    a(f"ds_write_b128 v{vS}, v[{FL+4}:{FL+7}] offset:16")
    a("s_mov_b64 exec, -1")
    a(mf32(tmp, WXA, FL, "0"))
    a(mf32(tmp, WXA + 4, FL + 4, f"v[{tmp}:{tmp+15}]"))
    a(mf32(ACC, ZQ, ZQ, "0"))
    a(f"v_add_u32 v{vS}, {8*S_ROW}, v{vS}")
    shift_q(a, FB)
    a("s_nop 6")
    a("s_mov_b32 exec_hi, 0")
    a(f"ds_add_f32 v{vT}, v{tmp}")
    a("s_mov_b64 exec, -1")
    a(f"v_add_u32 v{vT}, 128, v{vT}")

def rotate_b2(a):
    if "oldrot" in EXP:
        for q in range(4): a(f"v_mov_b32 v{B2+q}, v{B2Q+q}")
        for q in range(12): a(f"v_mov_b32 v{B2Q+q}, v{B2Q+4+q}")
        return
    for q in range(0, 4, 2): a(f"v_pk_mov_b32 v[{B2+q}:{B2+q+1}], v[{B2Q+q}:{B2Q+q+1}], v[{B2Q+q}:{B2Q+q+1}] op_sel:[0,1]")
    for q in range(0, 12, 2): a(f"v_pk_mov_b32 v[{B2Q+q}:{B2Q+q+1}], v[{B2Q+4+q}:{B2Q+4+q+1}], v[{B2Q+4+q}:{B2Q+4+q+1}] op_sel:[0,1]")

def rec_consts(a):
    a(f"s_mov_b32 s{t0}, {CH_STRIDE*16}")
    a(f"v_mul_lo_u32 v42, s{t0}, v1")
    a(f"s_movk_i32 s{t0}, {CH_STRIDE*4}")
    a(f"v_mul_lo_u32 v43, s{t0}, v1")
    a(f"s_mov_b32 s{S_RA}, {WS_RECA}")
    a(f"s_mov_b32 s{S_RB}, {WS_RECB}")

def rec_loads(a, lbl):
    for it in range(4):
        a(f"s_add_u32 s{t0}, s{S_IB}, s{W}")
        if it: a(f"s_add_u32 s{t0}, s{t0}, {NRW*it}")
        a(f"v_cmp_lt_u32 s[{S_MK+2*it}:{S_MK+2*it+1}], s{t0}, v{vSL}")
        a(f"v_add_u32 v36, s{t0}, v{vOS}")
        a(f"v_lshl_add_u32 v37, v36, 4, v42")
        a(f"v_lshl_add_u32 v38, v36, 2, v43")
        a(f"s_mov_b64 exec, s[{S_MK+2*it}:{S_MK+2*it+1}]")
        a(f"s_cbranch_execz {lbl}_{it}")
        a(f"buffer_load_dwordx4 v[{16+4*it}:{19+4*it}], v37, s[{SWS}:{SWS+3}], s{S_RA} offen sc1")
        a(f"buffer_load_dword v{32+it}, v38, s[{SWS}:{SWS+3}], s{S_RB} offen sc1")
        a.label(f"{lbl}_{it}")
        a("s_mov_b64 exec, -1")

def build_recs(a, lbl):
    a("s_waitcnt vmcnt(0)")
    a("v_mov_b32 v58, 0x3f80")
    for it in range(4):
        RB = 32 + it
        a(f"s_mov_b64 exec, s[{S_MK+2*it}:{S_MK+2*it+1}]")
        a(f"s_cbranch_execz {lbl}_a{it}")
        a(f"v_lshrrev_b32 v44, 17, v{RB}")
        a(f"v_subrev_u32 v44, s{S_G5}, v44")
        a(f"v_lshl_add_u32 v45, v44, 8, v60")
        a(f"ds_read_b32 v{2+2*it}, v45")
        a(f"v_lshl_add_u32 v47, v44, 2, v59")
        a(f"ds_read_b32 v{3+2*it}, v47")
        a.label(f"{lbl}_a{it}")
    a("s_mov_b64 exec, -1")
    a(f"s_add_u32 s{t0}, s{S_IB}, s{W}")
    a(f"s_lshl_b32 s{t1}, s{S_TG0}, 5")
    a(f"s_sub_u32 s{t0}, s{t0}, s{t1}")
    a(f"v_add_u32 v49, s{t0}, v{vOS}")
    a(f"s_movk_i32 s{t1}, {CAP*32}")
    a("s_waitcnt lgkmcnt(0)")
    for it in range(4):
        RA, RB = 16 + 4 * it, 32 + it
        a(f"s_mov_b64 exec, s[{S_MK+2*it}:{S_MK+2*it+1}]")
        a(f"s_cbranch_execz {lbl}_{it}")
        a(f"v_add3_u32 v44, v49, v{2+2*it}, v{3+2*it}")
        if it: a(f"v_add_u32 v44, {NRW*it}, v44")
        a(f"v_and_b32 v50, 0x3fff, v{RB}")
        a(f"v_cmp_gt_u32 vcc, s{t1}, v44")
        a("v_lshlrev_b32 v50, 9, v50")
        a("v_add_u32 v50, 512, v50")
        a("s_and_b64 exec, exec, vcc")
        a(f"s_cbranch_execz {lbl}_{it}")
        a("v_lshlrev_b32 v51, 2, v44")
        a(f"v_add_u32 v51, {L_SRC}, v51")
        a("ds_write_b32 v51, v50")
        a("v_lshrrev_b32 v52, 5, v44")
        a(f"v_mul_u32_u24 v52, {TILE}, v52")
        a("v_and_b32 v53, 31, v44")
        a("v_lshl_add_u32 v55, v53, 4, v52")
        a(f"ds_write_b128 v55, v[{RA}:{RA+3}] offset:2048")
        a(f"v_bfe_u32 v54, v{RB}, 14, 3")
        a("v_lshl_add_u32 v52, v53, 6, v52")
        a("v_lshl_add_u32 v52, v54, 1, v52")
        a("v_bfe_u32 v53, v53, 2, 2")
        a("v_lshl_add_u32 v54, v53, 4, v52")
        a("ds_write_b16 v54, v58")
        a("v_xor_b32 v55, 1, v53")
        a("v_lshl_add_u32 v55, v55, 4, v52")
        a(f"ds_write_b16_d16_hi v55, v{RA+2}")
        a("v_xor_b32 v56, 2, v53")
        a("v_lshl_add_u32 v56, v56, 4, v52")
        a(f"ds_write_b16 v56, v{RA+3}")
        a("v_xor_b32 v57, 3, v53")
        a("v_lshl_add_u32 v57, v57, 4, v52")
        a(f"ds_write_b16_d16_hi v57, v{RA+3}")
        a.label(f"{lbl}_{it}")
    a("s_mov_b64 exec, -1")

def poll(a, lbl, srdreg, voff, want, sleep):
    a(f"s_mov_b32 s{t1}, 0x8000")
    a("s_mov_b32 exec_lo, 1")
    a("s_mov_b32 exec_hi, 0")
    a.label(lbl)
    a(f"buffer_load_dword v10, v{voff}, s[{srdreg}:{srdreg+3}], 0 offen sc1")
    a("s_waitcnt vmcnt(0)")
    a(f"v_readfirstlane_b32 s{t0}, v10")
    a(f"s_and_b32 s{t0}, s{t0}, {want:#x}")
    a(f"s_cmp_eq_u32 s{t0}, {want:#x}")
    a(f"s_cbranch_scc1 {lbl}_ok")
    a(f"s_sub_u32 s{t1}, s{t1}, 1")
    a(f"s_cmp_eq_u32 s{t1}, 0")
    a(f"s_cbranch_scc1 {lbl}_ok")
    a(f"s_sleep {sleep}")
    a(f"s_branch {lbl}")
    a.label(f"{lbl}_ok")
    a("s_mov_b64 exec, -1")

def mailbox(a, word):
    srd(a, R4, P_WS, WS_MBX, 2048)
    a(f"s_and_b32 s{t2}, s2, 15")
    a(f"s_lshl_b32 s{t2}, s{t2}, 7")
    a(f"s_add_u32 s{t2}, s{t2}, {4*word}")
    a(f"v_mov_b32 v8, s{t2}")

def a_reads(u1):
    sl = u1 % 4
    return [f"ds_read_b128 v[{A0}:{A0+3}], v{vA0} offset:{sl*2048}",
            f"ds_read_b128 v[{A1}:{A1+3}], v{vA1} offset:{sl*2048}",
            f"ds_read_b128 v[{A2}:{A2+3}], v{vA2} offset:{u1*TILE}"]
def bp_reads(u):
    return [f"ds_read_b64_tr_b16 v[{BP}:{BP+1}], v{vB0} offset:{u*TILE}",
            f"ds_read_b64_tr_b16 v[{BP+2}:{BP+3}], v{vB1} offset:{u*TILE}",
            f"ds_read_b64_tr_b16 v[{BP+4}:{BP+5}], v{vB0} offset:{u*TILE+1024}",
            f"ds_read_b64_tr_b16 v[{BP+6}:{BP+7}], v{vB1} offset:{u*TILE+1024}"]
def seg_mfmas():
    return [mf32(ACC, M, BP, f"v[{ACC}:{ACC+15}]"), mf32(ACC, M + 4, BP + 4, f"v[{ACC}:{ACC+15}]")]

OOL = []

def first_pass_wait(a, lbl):
    a(f"s_cmp_eq_u32 s{S_WPH}, 0")
    a(f"s_cbranch_scc0 {lbl}")
    a("s_waitcnt vmcnt(0)")
    a.label(lbl)

def iteration(a, u):
    zc, zn = Z[u & 1], Z[(u + 1) & 1]
    sl = (u + 1) % 4
    a(f"s_setprio {3-u}")
    a("s_waitcnt lgkmcnt(0)")
    a(f"s_cmp_eq_u32 s{S_TG}, s{FB}")
    a(f"s_cbranch_scc1 L2_fl_{u}")
    a.label(f"L2_fl_{u}_r")
    OOL.append((f"L2_fl_{u}", lambda a, zn=zn, u=u: (first_pass_wait(a, f"L2_flw_{u}"), flush(a, zn), a(f"s_branch L2_fl_{u}_r"))))
    a(f"s_cmp_eq_u32 s{S_TG}, s{ZB}")
    a(f"s_cbranch_scc1 L2_rt_{u}")
    a.label(f"L2_rt_{u}_r")
    def rt(a, u=u):
        first_pass_wait(a, f"L2_rtw_{u}")
        rotate_b2(a); shift_q(a, ZB)
        a(f"s_and_b32 s{S_HALF}, s{S_HF}, 1")
        a(f"s_lshr_b32 s{S_HF}, s{S_HF}, 1")
        a(f"s_branch L2_rt_{u}_r")
    OOL.append((f"L2_rt_{u}", rt))
    zm = z_mfmas(zn); sm = seg_mfmas(); bp = bp_reads(u); ar = a_reads(u + 2)
    def run(op, regs, att):
        for i, k in enumerate(regs):
            a(f"{op} v{E+k}, v{(zc if op == 'v_exp_f32' else E)+k}")
            for x in att.get(i, []): a(x)
    def pk(op, lo):
        for k in range(lo, lo + 8, 2):
            other = f"v[{ONE2}:{ONE2+1}]" if op == "v_pk_add_f32" else f"v[{zc+k}:{zc+k+1}]"
            a(f"{op} v[{E+k}:{E+k+1}], v[{E+k}:{E+k+1}], {other}")
    def cvt(lo):
        for k in range(lo, lo + 8, 2): a(f"v_cvt_pk_bf16_f32 v{M+k//2}, v{E+k}, v{E+k+1}")
    att = {0: [sm[0]],
           1: [f"v_add_u32 v{DV}, v{SR}, v{vLC}", f"s_add_u32 m0, s{S_STG}, {sl*2048}"],
           2: [f"v_add_u32 v{DV+1}, v{SR+1}, v{vLC}", f"buffer_load_dwordx4 v{DV}, s[{SQ}:{SQ+3}], 0 offen lds"],
           3: [bp[0], bp[1]],
           4: [zm[0]],
           5: [f"s_add_u32 m0, s{S_STG}, {sl*2048+1024}"],
           6: [f"buffer_load_dwordx4 v{DV+1}, s[{SQ}:{SQ+3}], 0 offen lds"],
           7: [f"s_cmp_eq_u32 s{S_WPH}, 0", f"s_cbranch_scc1 L2_wl_{u}", f"L2_wl_{u}_r:"]}
    def wl(a, u=u):
        a("v_lshlrev_b32 v5, 4, v1")
        a(f"s_lshl_b32 s{t0}, s{W}, 14")
        a(f"s_add_u32 s{t0}, s{t0}, {WS_WHP + u*4096}")
        for q in range(4 * u, 4 * u + 4):
            a(f"buffer_load_dwordx4 v[{WH+4*q}:{WH+4*q+3}], v5, s[{SWS}:{SWS+3}], s{t0} offen offset:{(q%4)*1024}")
        a(f"s_branch L2_wl_{u}_r")
    OOL.append((f"L2_wl_{u}", wl))
    run("v_exp_f32", range(0, 8), att)
    pk("v_pk_add_f32", 0)
    att = {0: [zm[1]],
           1: [f"s_add_u32 s{S_T}, s{S_T}, 1", f"s_add_u32 s{S_TG}, s{S_TG}, 1"],
           4: [zm[2]],
           5: [f"s_cmp_lt_u32 s{S_WPH}, 2", f"s_cbranch_scc1 L2_wv_{u}", "s_waitcnt vmcnt(6)", f"L2_wv_{u}_r:", ar[0]],
           6: [ar[1], ar[2]],
           7: [f"ds_read2_b32 v[{SR}:{SR+1}], v{vSR} offset0:{u*32} offset1:{u*32+16}"]}
    def wv(a, u=u):
        a(f"s_cmp_eq_u32 s{S_WPH}, 0")
        a(f"s_cbranch_scc1 L2_wv_{u}_0")
        a(f"s_waitcnt vmcnt({(18, 14, 10, 6)[u]})")
        a(f"s_branch L2_wv_{u}_r")
        a.label(f"L2_wv_{u}_0")
        a(f"s_waitcnt vmcnt({(16, 20, 18, 22)[u]})")
        a(f"s_branch L2_wv_{u}_r")
    OOL.append((f"L2_wv_{u}", wv))
    run("v_rcp_f32", range(0, 8), att)
    a(f"s_cmp_eq_u32 s{S_HALF}, 1")
    pk("v_pk_mul_f32", 0)
    cvt(0)
    a(f"s_cbranch_scc1 L2_hf_{u}")
    def hf(a, u=u):
        a(sm[1]); a(f"s_mov_b32 s{S_HALF}, 0"); a(bp[2]); a(bp[3])
        a(f"s_branch L2_hf_{u}_r")
    OOL.append((f"L2_hf_{u}", hf))
    run("v_exp_f32", range(8, 16), {0: [sm[1]], 1: [bp[2]], 2: [bp[3]]})
    pk("v_pk_add_f32", 8)
    run("v_rcp_f32", range(8, 16), {})
    pk("v_pk_mul_f32", 8)
    cvt(8)
    a.label(f"L2_hf_{u}_r")
    a(f"s_cmp_eq_u32 s{S_T}, s{S_N}")
    a("s_cbranch_scc1 L2_win_end")

def constants_a(a, b=44, mk=52):
    a(f"v_and_b32 v{b+0}, 31, v1")
    a(f"v_lshrrev_b32 v{b+1}, 5, v1")
    a(f"v_mov_b32 v{ONE2}, 1.0")
    a(f"v_mov_b32 v{ONE2+1}, 1.0")
    for q in range(4): a(f"v_mov_b32 v{ZQ+q}, 0")
    a(f"s_mov_b32 s{S_M8}, 0xff")
    a(f"s_mov_b32 s{S_M8+1}, 0xff")
    a(f"v_lshlrev_b32 v{b+2}, 3, v{b+1}")
    a(f"v_sub_u32 v{b+2}, v{b+0}, v{b+2}")
    a(f"v_mov_b32 v{b+4}, 0x3f80")
    a(f"v_mov_b32 v{b+5}, 0x3f800000")
    a(f"v_and_b32 v{b+3}, 1, v{b+2}")
    a(f"v_cmp_eq_u32 vcc, 1, v{b+3}")
    a(f"v_lshrrev_b32 v{b+6}, 1, v{b+2}")
    a(f"v_add_u32 v{b+7}, -8, v{b+6}")
    a(f"v_cndmask_b32 v{b+3}, v{b+4}, v{b+5}, vcc")
    for I, r in ((I0, b + 6), (I1, b + 7)):
        for q0 in (0, 2):
            a(f"v_cmp_eq_u32 s[{mk}:{mk+1}], {q0}, v{r}")
            a(f"v_cmp_eq_u32 s[{mk+2}:{mk+3}], {q0+1}, v{r}")
            a("s_nop 0")
            a(f"v_cndmask_b32 v{I+q0}, 0, v{b+3}, s[{mk}:{mk+1}]")
            a(f"v_cndmask_b32 v{I+q0+1}, 0, v{b+3}, s[{mk+2}:{mk+3}]")

def constants_b(a, b=44):
    a(f"v_and_b32 v{b+0}, 31, v1")
    a(f"v_lshrrev_b32 v{b+1}, 5, v1")
    a(f"s_lshl_b32 s{S_STG}, s{W}, 13")
    a(f"s_add_u32 s{S_STG}, s{S_STG}, {L_STAGE}")
    a(f"v_bfe_u32 v{b+2}, v{b+0}, 2, 2")
    a(f"v_xor_b32 v{b+3}, v{b+1}, v{b+2}")
    a(f"v_lshlrev_b32 v{b+4}, 6, v{b+0}")
    a(f"v_add_u32 v{b+5}, s{S_STG}, v{b+4}")
    a(f"v_lshl_add_u32 v{vA0}, v{b+3}, 4, v{b+5}")
    a(f"v_xor_b32 v{b+3}, 2, v{b+3}")
    a(f"v_lshl_add_u32 v{vA1}, v{b+3}, 4, v{b+5}")
    a(f"v_lshlrev_b32 v{b+3}, 4, v{b+0}")
    a(f"v_add_u32 v{b+3}, 2048, v{b+3}")
    a(f"v_lshl_add_u32 v{b+4}, v{b+2}, 4, v{b+4}")
    a(f"v_cmp_eq_u32 vcc, 1, v{b+1}")
    a(f"v_bfe_u32 v{b+2}, v1, 2, 2")
    a(f"v_lshl_add_u32 v{b+2}, v{b+1}, 2, v{b+2}")
    a(f"v_cndmask_b32 v{cA2}, v{b+3}, v{b+4}, vcc")
    a(f"v_lshlrev_b32 v{b+2}, 6, v{b+2}")
    a(f"v_and_b32 v{b+3}, 1, v1")
    a(f"v_lshl_add_u32 v{b+2}, v{b+3}, 3, v{b+2}")
    a(f"v_bfe_u32 v{b+3}, v1, 4, 1")
    a(f"v_lshlrev_b32 v{b+3}, 1, v{b+3}")
    a(f"v_bfe_u32 v{b+4}, v1, 1, 1")
    a(f"v_or_b32 v{b+3}, v{b+3}, v{b+4}")
    a(f"v_xor_b32 v{b+3}, v{b+3}, v{b+1}")
    a(f"v_lshl_add_u32 v{cB0}, v{b+3}, 4, v{b+2}")
    a(f"v_xor_b32 v{b+3}, 2, v{b+3}")
    a(f"v_lshl_add_u32 v{b+4}, v{b+3}, 4, v{b+2}")
    a(f"v_add_u32 v{cB1}, 512, v{b+4}")
    a(f"v_and_b32 v{b+2}, 3, v1")
    a(f"v_bfe_u32 v{b+3}, v1, 4, 2")
    a(f"v_xor_b32 v{b+2}, v{b+2}, v{b+3}")
    a(f"v_lshlrev_b32 v{b+2}, 4, v{b+2}")
    a(f"s_lshl_b32 s{t0}, s{W}, 6")
    a(f"s_sub_u32 s{t1}, s{t0}, 512")
    a(f"v_add_u32 v{vLC}, s{t1}, v{b+2}")
    a(f"v_and_b32 v{b+2}, 7, v1")
    a(f"v_mul_u32_u24 v{b+2}, {S_ROW}, v{b+2}")
    a(f"v_lshl_add_u32 v{b+2}, v{b+1}, 5, v{b+2}")
    a(f"s_add_u32 s{t0}, s{t0}, {L_S}")
    a(f"v_add_u32 v{vS}, s{t0}, v{b+2}")
    a(f"v_lshlrev_b32 v{b+2}, 2, v{b+0}")
    a(f"v_add_u32 v{vT}, {L_T}, v{b+2}")
    a(f"v_lshrrev_b32 v{b+2}, 2, v1")
    a(f"v_lshlrev_b32 v{b+2}, 2, v{b+2}")
    a(f"v_add_u32 v{cSR}, {L_SRC}, v{b+2}")

def phase2(a):
    def entry(a):
        a("v_and_b32 v1, 63, v0")
        a(f"s_cmp_eq_u32 s{W}, 7")
        a("s_cbranch_scc0 1f")
        a("buffer_inv sc1")
        a.label("1")
        a(f"s_cmp_eq_u32 s{W}, 0")
        a("s_cbranch_scc0 2f")
        p1.arrive_issue(a, f"s{p1.S_INC}")
        a.label("2")
        srd(a, SWS, P_WS, 0, WS_USED)
        a(f"s_mul_i32 s{S_G5}, s2, 5")
    def table_load(a):
        srd(a, STAB, P_WS, WS_TAB, NCH * TAB_STRIDE)
        a("v_lshlrev_b32 v2, 12, v1")
        a(f"s_lshl_b32 s{t0}, s2, 4")
        a(f"buffer_load_dwordx3 v[60:62], v2, s[{STAB}:{STAB+3}], s{t0} offen sc1")
    def t_zero(a):
        a(f"v_add_u32 v41, {L_T}, v40")
        a("s_mov_b32 exec_lo, -1")
        a("s_mov_b32 exec_hi, 0xff")
        a("ds_write_b128 v41, v[36:39]")
        a("s_mov_b64 exec, -1")
    a.label("L_phase2_fast")
    a.stamp(5)
    entry(a)
    table_load(a)
    zero_fill(a)
    a(f"s_cmp_eq_u32 s{W}, 0")
    a("s_cbranch_scc0 L2_tab")
    t_zero(a)
    p1.arrive_finish(a, f"s{p1.S_INC}", "f")
    a("s_branch L2_tab")
    a.label("L_phase2")
    a.stamp(5)
    entry(a)
    zero_fill(a)
    a(f"s_cmp_eq_u32 s{W}, 0")
    a("s_cbranch_scc0 L2_w1")
    t_zero(a)
    p1.arrive_finish(a, f"s{p1.S_INC}", "a")
    a("s_and_b32 s52, s85, 1")
    a("s_cmp_eq_u32 s52, 1")
    a("s_cbranch_scc1 L2_inited")
    srd(a, SDBG, P_DBG, 0, 256)
    a("v_mov_b32 v8, 0")
    poll(a, "L2_poll0", SDBG, 8, 1, 16)
    a("s_mov_b32 s85, 0")
    a.label("L2_inited")
    a("s_and_b32 s52, s85, 0xffff")
    a(f"s_cmp_eq_u32 s52, {K1:#x}")
    a("s_cbranch_scc1 L2_w1")
    mailbox(a, 0)
    poll(a, "L2_poll1", R4, 8, 1, 2)
    a.label("L2_w1")
    a("s_barrier")
    table_load(a)
    a.label("L2_tab")
    a.stamp(6)
    rec_consts(a)
    a(f"s_mov_b32 s{S_IB}, 0")
    a(f"s_mov_b32 s{S_TG0}, 0")
    a(f"s_mov_b32 s{S_FIRST}, 1")
    a(mf32(ACC, ZQ, ZQ, "0"))
    a(f"s_cmp_eq_u32 s{W}, 7")
    a("s_cbranch_scc1 L2_w7a")
    a("s_waitcnt vmcnt(0)")
    a(f"v_and_b32 v{vOS}, 0xffff, v60")
    a(f"v_lshrrev_b32 v{vSL}, 16, v62")
    a(f"v_sub_u32 v{vSL}, v{vSL}, v{vOS}")
    rec_loads(a, "L2_ld0")
    a(f"s_cmp_ge_u32 s{W}, 5")
    a("s_cbranch_scc1 L2_noscan")
    a(f"s_cmp_lt_u32 s{W}, 2")
    a("s_cbranch_scc1 L2_sel")
    a("v_mov_b32 v60, v61")
    a("v_mov_b32 v61, v62")
    a(f"s_cmp_lt_u32 s{W}, 4")
    a("s_cbranch_scc1 L2_sel")
    a("v_mov_b32 v60, v61")
    a.label("L2_sel")
    a(f"s_and_b32 s{t0}, s{W}, 1")
    a(f"s_lshl_b32 s{t0}, s{t0}, 4")
    a(f"v_alignbit_b32 v61, v61, v60, s{t0}")
    a("v_and_b32 v60, 0xffff, v61")
    a("v_lshrrev_b32 v61, 16, v61")
    a("v_sub_u32 v62, v61, v60")
    a("v_mov_b32 v63, v62")
    for sh in (1, 2, 4, 8):
        a("s_nop 1")
        a(f"v_add_u32_dpp v63, v63, v63 row_shr:{sh} row_mask:0xf bank_mask:0xf")
    a("s_nop 1")
    a("v_add_u32_dpp v63, v63, v63 row_bcast:15 row_mask:0xa bank_mask:0xf")
    a("s_nop 1")
    a("v_add_u32_dpp v63, v63, v63 row_bcast:31 row_mask:0xc bank_mask:0xf")
    a("v_sub_u32 v62, v63, v62")
    a("v_sub_u32 v62, v62, v60")
    a(f"s_lshl_b32 s{t0}, s{W}, 8")
    a(f"s_add_u32 s{t0}, s{t0}, {L_REL}")
    a("v_lshlrev_b32 v45, 2, v1")
    a(f"v_add_u32 v45, s{t0}, v45")
    a("ds_write_b32 v45, v62")
    a(f"s_lshl_b32 s{t0}, s{W}, 2")
    a(f"s_add_u32 s{t0}, s{t0}, {L_NG}")
    a(f"v_mov_b32 v45, s{t0}")
    a("s_mov_b32 exec_lo, 0")
    a("s_mov_b32 exec_hi, 0x80000000")
    a("ds_write_b32 v45, v63")
    a("s_mov_b64 exec, -1")
    a.label("L2_noscan")
    a.label("L2_w7a")
    a.label("L2_round_bar")
    a("s_waitcnt lgkmcnt(0)")
    a("s_barrier")
    a.stamp(7)
    a(f"s_cmp_eq_u32 s{S_FIRST}, 0")
    a("s_cbranch_scc1 L2_have_tb")
    a("v_lshlrev_b32 v45, 2, v1")
    a(f"v_add_u32 v45, {L_NG}, v45")
    a("s_mov_b32 exec_lo, 0xff")
    a("s_mov_b32 exec_hi, 0")
    a("ds_read_b32 v46, v45")
    a("s_waitcnt lgkmcnt(0)")
    a("v_max_u32 v46, 1, v46")
    a("v_add_u32 v47, -1, v46")
    a("v_and_b32 v47, 31, v47")
    a("v_cmp_gt_u32 vcc, 16, v47")
    a("v_add_u32 v46, 31, v46")
    a("v_lshrrev_b32 v46, 5, v46")
    a(f"s_and_b32 s{S_HF}, vcc_lo, 0x1f")
    NTG = (T[0], T[1], T[2], T[3], 85)
    for g in range(5): a(f"v_readlane_b32 s{NTG[g]}, v46, {g}")
    a(f"s_mov_b32 s{ZB}, s{NTG[0]}")
    for g in range(1, 4): a(f"s_add_u32 s{ZB+g}, s{ZB+g-1}, s{NTG[g]}")
    a(f"s_add_u32 s{S_NT}, s{ZB+3}, s85")
    a(f"s_mov_b32 s{ZB+4}, s{S_NT}")
    a(f"s_mov_b32 s{S_HALF}, 0")
    a("v_mov_b32 v46, 0")
    for g in range(1, 5):
        a(f"s_lshl_b32 s{t0}, s{ZB+g-1}, 5")
        a(f"v_writelane_b32 v46, s{t0}, {g}")
    for k in range(4): a(f"s_add_u32 s{FB+k}, s{ZB+k}, 1")
    a(f"s_mov_b32 s{FB+4}, 0x7ffffff0")
    for k in range(5): a(f"s_sub_u32 s{ZB+k}, s{ZB+k}, 1")
    a(f"s_lshl_b32 s{t0}, s{W}, 5")
    a(f"s_add_u32 s{t0}, s{t0}, {L_TB}")
    a("v_lshlrev_b32 v45, 2, v1")
    a(f"v_add_u32 v45, s{t0}, v45")
    a("ds_write_b32 v45, v46")
    a("s_mov_b64 exec, -1")
    a.label("L2_have_tb")
    a(f"s_cmp_eq_u32 s{W}, 7")
    a("s_cbranch_scc1 L2_w7b")
    a(f"s_lshl_b32 s{t0}, s{W}, 5")
    a(f"s_add_u32 s{t0}, s{t0}, {L_TB}")
    a(f"v_mov_b32 v59, s{t0}")
    a("v_lshlrev_b32 v60, 2, v1")
    a(f"v_add_u32 v60, {L_REL}, v60")
    a("s_waitcnt lgkmcnt(0)")
    build_recs(a, "L2_b0")
    a.label("L2_more")
    a(f"s_add_u32 s{S_IB}, s{S_IB}, {4*NRW}")
    a(f"v_cmp_lt_u32 vcc, s{S_IB}, v{vSL}")
    a("s_cbranch_vccz L2_built0")
    rec_loads(a, "L2_ld1")
    build_recs(a, "L2_b1")
    a("s_branch L2_more")
    a.label("L2_built0")
    a("s_branch L2_built")
    a.label("L2_w7b")
    a(f"s_cmp_eq_u32 s{S_FIRST}, 0")
    a("s_cbranch_scc1 L2_built")
    mailbox(a, 1)
    poll(a, "L2_poll2", R4, 8, 1, 2)
    a.label("L2_built")
    a("s_waitcnt vmcnt(0) lgkmcnt(0)")
    a("s_barrier")
    a.stamp(8)
    a("s_setprio 3")
    a(f"v_mov_b32 v{vSR}, v{cSR}")
    for k in range(4):
        a(f"ds_read2_b32 v[{E+2*k}:{E+2*k+1}], v{vSR} offset0:{k*32} offset1:{k*32+16}")
    a(f"ds_read2_b32 v[{SR}:{SR+1}], v{vSR} offset0:128 offset1:144")
    a(f"s_cmp_eq_u32 s{S_FIRST}, 0")
    a("s_cbranch_scc1 L2_nob2")
    srd(a, SQ, P_WS, WS_Q, MAT_BYTES)
    a("v_and_b32 v3, 31, v1")
    a("v_lshrrev_b32 v4, 5, v1")
    a(f"s_lshl_b32 s{t0}, s{W}, 9")
    a("v_lshlrev_b32 v5, 4, v3")
    a(f"v_add_u32 v5, s{t0}, v5")
    a(f"s_lshl_b32 s{t1}, s{S_G5}, 12")
    a(f"s_add_u32 s{t1}, s{t1}, {WS_P - WS_WX}")
    a(f"v_mul_lo_u32 v6, s{t1}, v4")
    a("v_add_u32 v5, v5, v6")
    a(f"v_add_u32 v5, {WS_WX}, v5")
    a("v_lshlrev_b32 v6, 12, v4")
    a(f"buffer_load_dwordx4 v[{B2}:{B2+3}], v5, s[{SWS}:{SWS+3}], 0 offen")
    a.label("L2_nob2")
    a("s_waitcnt lgkmcnt(1)")
    for k in range(8):
        if k == 4: a("s_setprio 0")
        a(f"v_add_u32 v{E+k}, v{E+k}, v{vLC}")
        a(f"s_add_u32 m0, s{S_STG}, {k*1024}")
        a("s_nop 0")
        a(f"buffer_load_dwordx4 v{E+k}, s[{SQ}:{SQ+3}], 0 offen lds")
    a(f"s_cmp_eq_u32 s{S_FIRST}, 0")
    a("s_cbranch_scc1 L2_nob3")
    for g in range(1, 5):
        d = B2Q + 4 * (g - 1)
        a("v_add_u32 v5, v5, v6")
        a(f"buffer_load_dwordx4 v[{d}:{d+3}], v5, s[{SWS}:{SWS+3}], 0 offen")
    a(f"s_lshl_b32 s{t0}, s{W}, 6")
    a(f"s_add_u32 s{t0}, s{t0}, {WS_WXP}")
    a("v_lshlrev_b32 v7, 4, v4")
    a(f"buffer_load_dwordx4 v[{WXA}:{WXA+3}], v7, s[{SWS}:{SWS+3}], s{t0} offen")
    a(f"buffer_load_dwordx4 v[{WXA+4}:{WXA+7}], v7, s[{SWS}:{SWS+3}], s{t0} offen offset:32")
    a.label("L2_nob3")
    a(f"s_sub_u32 s{S_N}, s{S_NT}, s{S_TG0}")
    a(f"s_min_u32 s{S_N}, s{S_N}, {CAP}")
    a(f"s_mov_b32 s{S_T}, 0")
    a(f"s_mov_b32 s{S_TG}, s{S_TG0}")
    a(f"v_mov_b32 v{vA2}, v{cA2}")
    a(f"v_mov_b32 v{vB0}, v{cB0}")
    a(f"v_mov_b32 v{vB1}, v{cB1}")
    for k in range(8): a(f"v_mov_b32 v{M+k}, 0")
    for k in range(8): a(f"v_mov_b32 v{BP+k}, 0")
    a(f"s_cmp_eq_u32 s{S_FIRST}, 0")
    a(f"s_cselect_b32 s{S_WPH}, 2, 0")
    a("s_cbranch_scc0 L2_pw0")
    a("s_waitcnt vmcnt(6)")
    a("s_branch L2_pw1")
    a.label("L2_pw0")
    a("s_waitcnt vmcnt(12)")
    a.label("L2_pw1")
    a("s_setprio 3")
    for x in a_reads(0): a(x)
    a("s_waitcnt lgkmcnt(0)")
    dma(a, 0)
    for m in z_mfmas(Z[0]): a(m)
    a(f"ds_read2_b32 v[{SR}:{SR+1}], v{vSR} offset0:160 offset1:176")
    a(f"v_add_u32 v{vSR}, 768, v{vSR}")
    a(f"s_cmp_eq_u32 s{S_FIRST}, 0")
    a("s_cbranch_scc0 L2_pw2")
    a("s_waitcnt vmcnt(6)")
    a("s_branch L2_pw3")
    a.label("L2_pw2")
    a("s_waitcnt vmcnt(12)")
    a.label("L2_pw3")
    a(f"s_mov_b32 s{S_FIRST}, 0")
    for x in a_reads(1): a(x)
    a("s_nop 7")
    a.stamp(9)
    if "cyc" in EXP: a.cstamp(2)
    a.label("L2_loop")
    OOL.clear()
    for u in range(4): iteration(a, u)
    a(f"v_add_u32 v{vA2}, {4*TILE}, v{vA2}")
    a(f"v_add_u32 v{vB0}, {4*TILE}, v{vB0}")
    a(f"v_add_u32 v{vB1}, {4*TILE}, v{vB1}")
    a(f"v_add_u32 v{vSR}, 512, v{vSR}")
    a(f"s_add_u32 s{S_WPH}, s{S_WPH}, 1")
    a(f"s_min_u32 s{S_WPH}, s{S_WPH}, 2")
    a("s_branch L2_loop")
    for lbl, fn in OOL:
        a.label(lbl); fn(a)
    a.label("L2_win_end")
    a("s_setprio 0")
    a("s_waitcnt lgkmcnt(0)")
    a(f"s_cmp_eq_u32 s{S_TG}, s{FB}")
    a("s_cbranch_scc0 L2_we_nf")
    a("s_nop 3")
    flush(a, Z[0])
    a.label("L2_we_nf")
    for m in seg_mfmas(): a(m)
    a(f"s_add_u32 s{S_TG0}, s{S_TG0}, s{S_N}")
    a(f"s_cmp_ge_u32 s{S_TG0}, s{S_NT}")
    a("s_cbranch_scc1 L2_final")
    a("s_waitcnt vmcnt(0) lgkmcnt(0)")
    a("s_barrier")
    a(f"s_mov_b32 s{S_IB}, 0")
    zero_fill(a)
    a(f"s_cmp_eq_u32 s{W}, 7")
    a("s_cbranch_scc1 L2_round_bar")
    rec_consts(a)
    rec_loads(a, "L2_ld2")
    a("s_branch L2_round_bar")

    a.label("L2_final")
    a.stamp(10)
    if "cyc" in EXP:
        a.cstamp(3)
        a(f"s_mov_b32 s92, s{S_NT}")
    RQ, HQ, O, BR = 88, 120, 16, 40
    SP, SPO = R4, R5
    srd(a, SH, P_H, 0, MAT_BYTES)
    srd(a, SO, P_OUT, 0, MAT_BYTES)
    srd(a, SP, P_POS, 0, 60000)
    srd(a, SPO, P_OUT, MAT_BYTES, 60000)
    sR, sN, sTmp, sP = T[4], T[5], T[6], T[7]
    a("v_and_b32 v3, 15, v1")
    a("v_lshrrev_b32 v4, 4, v1")
    a("v_lshrrev_b32 v5, 3, v3")
    a("v_lshlrev_b32 v5, 12, v5")
    a("v_and_b32 v6, 7, v3")
    a("v_lshl_add_u32 v5, v6, 4, v5")
    a("v_lshl_add_u32 v5, v4, 7, v5")
    a(f"s_lshl_b32 s{t0}, s{W}, 9")
    a(f"v_add_u32 v5, s{t0}, v5")
    a(f"s_lshl_b32 s{sR}, s{S_G5}, 12")
    a(f"s_add_u32 s{sR}, s{sR}, {WS_R}")
    a("v_lshlrev_b32 v6, 9, v3")
    a("v_lshl_add_u32 v6, v4, 4, v6")
    a(f"s_lshl_b32 s{t0}, s{W}, 6")
    a(f"v_add_u32 v6, s{t0}, v6")
    a(f"s_mul_i32 s{sN}, s2, 20480")
    for nb in range(3):
        a(f"buffer_load_dwordx4 v[{RQ+4*nb}:{RQ+4*nb+3}], v5, s[{SWS}:{SWS+3}], s{sR} offen")
        a(f"s_add_u32 s{sR}, s{sR}, 8192")
    for nb in range(3):
        a(f"s_add_u32 s{sTmp}, s{sN}, {nb*8192}")
        a(f"buffer_load_dwordx4 v[{HQ+4*nb}:{HQ+4*nb+3}], v6, s[{SH}:{SH+3}], s{sTmp} offen")
    a("v_lshlrev_b32 v7, 2, v1")
    a(f"s_mul_i32 s{sP}, s2, 240")
    a(f"buffer_load_dword v8, v7, s[{SP}:{SP+3}], s{sP} offen")
    flush(a, Z[1])
    a(f"v_mul_u32_u24 v9, {S_ROW}, v3")
    a("v_lshl_add_u32 v9, v4, 4, v9")
    a(f"v_add_u32 v9, {L_S}, v9")
    a("s_waitcnt lgkmcnt(0)")
    a("s_barrier")
    a.lds = []
    seq = [(nb, ks) for nb in range(3) for ks in range(8)]
    def bread(i):
        nb, ks = seq[i]; q = BR + 4 * (i % 6)
        a.ds(f"ds_read_b128 v[{q}:{q+3}], v9 offset:{nb*16*S_ROW + ks*64}", ("B", i))
    X, EE = 64, 72
    sM16, sLN2 = T[8], T[9]
    a(f"s_mov_b32 s{sM16}, 0xffff0000")
    a(f"s_mov_b32 s{sLN2}, {NLN2:#x}")
    def epilogue(nb):
        o = O + 8 * nb
        ops = []
        if nb == 2:
            ops += ["s_mov_b32 exec_lo, 0x00ff00ff", "s_mov_b32 exec_hi, 0x00ff00ff"]
        for i in range(4):
            ops.append(f"v_lshlrev_b32 v{X+2*i}, 16, v{RQ+4*nb+i}")
            ops.append(f"v_and_b32 v{X+2*i+1}, s{sM16}, v{RQ+4*nb+i}")
        for k in range(8): ops.append(f"v_add_f32 v{X+k}, v{X+k}, v{o+k}")
        for k in range(8): ops.append(f"v_exp_f32 v{EE+k}, v{X+k}")
        for k in range(8): ops.append(f"v_add_f32 v{EE+k}, 1.0, v{EE+k}")
        for k in range(8): ops.append(f"v_rcp_f32 v{EE+k}, v{EE+k}")
        for i in range(4):
            ops.append(f"v_lshlrev_b32 v{o+2*i}, 16, v{HQ+4*nb+i}")
            ops.append(f"v_and_b32 v{o+2*i+1}, s{sM16}, v{HQ+4*nb+i}")
        for k in range(8): ops.append(f"v_mul_f32 v{X+k}, v{X+k}, v{EE+k}")
        for k in range(8): ops.append(f"v_fma_f32 v{X+k}, v{X+k}, s{sLN2}, v{o+k}")
        d = 100 + 4 * nb
        for i in range(4): ops.append(f"v_cvt_pk_bf16_f32 v{d+i}, v{X+2*i}, v{X+2*i+1}")
        ops.append(f"s_add_u32 s{sTmp}, s{sN}, {nb*8192}")
        ops.append(f"buffer_store_dwordx4 v[{d}:{d+3}], v6, s[{SO}:{SO+3}], s{sTmp} offen")
        return ops
    for i in range(5): bread(i)
    pend = []
    for i, (nb, ks) in enumerate(seq):
        q = BR + 4 * (i % 6)
        if ks == 3 and nb > 0:
            if nb == 1: a("s_waitcnt vmcnt(0)")
            pend = epilogue(nb - 1)
        a.wait_lds(("B", i))
        for cb in range(2):
            o = O + 8 * nb + 4 * cb; w = WH + 4 * (cb * 8 + ks)
            c = "0" if ks == 0 else f"v[{o}:{o+3}]"
            a(f"v_mfma_f32_16x16x32_bf16 v[{o}:{o+3}], v[{w}:{w+3}], v[{q}:{q+3}], {c}")
        if i + 5 < len(seq): bread(i + 5)
        left = 7 - ks if ks >= 3 else None
        if pend:
            k = -(-len(pend) // (8 - ks + 2))
            for op in pend[:k]: a(op)
            pend = pend[k:]
        if ks == 2:
            for op in pend: a(op)
            pend = []
    for op in pend: a(op)
    a.stamp(11)
    a("s_nop 7")
    for op in epilogue(2): a(op)
    a("s_mov_b64 exec, -1")
    a(f"s_cmp_lg_u32 s{W}, 0")
    a("s_cbranch_scc1 L2_done")
    a("s_mov_b32 exec_hi, 0x0fffffff")
    for k in range(2):
        a(f"v_lshlrev_b32 v10, 1, v1")
        if k: a("v_add_u32 v10, 1, v10")
        a("v_mul_u32_u24 v11, 171, v10")
        a("v_lshrrev_b32 v11, 9, v11")
        a("v_mul_u32_u24 v12, 3, v11")
        a("v_sub_u32 v12, v10, v12")
        a("v_lshrrev_b32 v13, 3, v11")
        a("v_lshlrev_b32 v13, 5, v13")
        a("v_lshl_add_u32 v13, v12, 3, v13")
        a("v_and_b32 v11, 7, v11")
        a("v_add3_u32 v13, v13, v11, 8")
        a("v_lshlrev_b32 v13, 2, v13")
        a(f"v_add_u32 v13, {L_T}, v13")
        a(f"ds_read_b32 v{14+k}, v13")
    a("v_lshlrev_b32 v10, 16, v8")
    a(f"v_and_b32 v11, s{sM16}, v8")
    a("s_waitcnt lgkmcnt(0)")
    a(f"v_fma_f32 v10, v14, s{sLN2}, v10")
    a(f"v_fma_f32 v11, v15, s{sLN2}, v11")
    a("v_cvt_pk_bf16_f32 v10, v10, v11")
    a(f"buffer_store_dword v10, v7, s[{SPO}:{SPO+3}], s{sP} offen")
    a.label("L2_done")
    if a.diag:
        a("s_waitcnt vmcnt(0)")
        a("s_memrealtime s[100:101]")
        a("s_waitcnt lgkmcnt(0)")
        a("s_mov_b32 s89, s100")
        a.dump_stamps(P_WS, WS_DIAG, W)
```

```python
import sys
from asmlib import *
from common import *
import p1, p2
NAME = "standalone__cheap_equivariant_egnn__graph_kernel"
LDS = 163840
def build(diag=False):
    head = f"""; EGNN layer in one launch of 250 co-resident workgroups (one per CU, 160 KiB LDS each).
; @launch grid=({GRID},1,1) block=(512,1,1) lds={LDS}
"""
    a = Asm(); a.diag = diag; a.dbgmode = 'dbg' in p2.EXP
    a(".text"); a(f".globl {NAME}"); a(".p2align 8"); a(f".type {NAME},@function")
    a.label(NAME)
    a(f"s_cmp_ge_u32 s2, {GRID}")
    a("s_cbranch_scc1 L_exit")
    a("s_load_dwordx4 s[4:7], s[0:1], 0")
    a("s_load_dwordx4 s[8:11], s[0:1], 16")
    a("s_load_dwordx4 s[12:15], s[0:1], 32")
    a("s_load_dwordx4 s[16:19], s[0:1], 48")
    a("s_load_dwordx2 s[22:23], s[0:1], 64")
    a("s_load_dwordx2 s[24:25], s[0:1], 72")
    a("s_load_dwordx2 s[20:21], s[0:1], 80")
    a("v_and_b32 v1, 63, v0")
    a("v_lshrrev_b32 v2, 6, v0")
    a(f"s_sub_u32 s{T[4]}, s2, {WG_GEMM0}")
    a(f"v_readfirstlane_b32 s{S_WAVE}, v2")
    a(f"s_mul_hi_u32 s{T[6]}, s{T[4]}, 0x55555556")
    a(f"s_mul_i32 s{T[0]}, s{T[6]}, 3")
    a(f"s_sub_u32 s{T[5]}, s{T[4]}, s{T[0]}")
    a("s_waitcnt lgkmcnt(0)")
    a.stamp(0)
    a(f"s_cmp_lt_u32 s2, {WG_PACK}")
    a("s_cbranch_scc1 L1_sort")
    a(f"s_cmp_eq_u32 s2, {WG_PACK}")
    a("s_cbranch_scc1 L1_pack")
    a(f"s_cmp_eq_u32 s{T[5]}, 1")
    a("s_cbranch_scc1 L1_gemm_Q")
    a(f"s_cmp_eq_u32 s{T[5]}, 2")
    a("s_cbranch_scc1 L1_gemm_R")
    p1.CONSTS = lambda a, b, mk: (p2.constants_b(a, b), p2.constants_a(a, b, mk))
    for mat in range(3):
        a.lds = []; a.vm = []
        p1.gemm(a, mat)
    a.lds = []; a.vm = []
    p1.sort(a)
    a.lds = []; a.vm = []
    p1.pack(a)
    a.lds = []; a.vm = []
    p2.phase2(a)
    a.label("L_exit")
    a("s_endpgm")
    txt = head + '.amdgcn_target "amdgcn-amd-amdhsa--gfx950"\n' + a.text() + kernel_desc(NAME, 256 if diag else 249, 102 if diag else 88)
    for p in check_hazards(txt): print("HAZARD", p)
    return txt
if __name__ == "__main__":
    out = sys.argv[1] if len(sys.argv) > 1 else "../cdna_kernels/standalone__cheap_equivariant_egnn__graph.s"
    diag = len(sys.argv) > 2 and sys.argv[2] == "diag"
    if len(sys.argv) > 3:
        for x in sys.argv[3].split(","):
            p2.EXP.add(x); p1.EXP.add(x)
            if x.startswith("st_"): p1.ST = " " + x[3:].replace("+", " ")
    open(out, "w").write(build(diag))
    print("wrote", out)
```

```python
import re

def v(i, n=1):
    return f"v{i}" if n == 1 else f"v[{i}:{i+n-1}]"
def s(i, n=1):
    return f"s{i}" if n == 1 else f"s[{i}:{i+n-1}]"

class Asm:
    def __init__(self):
        self.L = []
        self.lds = []
        self.vm = []
    def __call__(self, text):
        for line in text.split("\n"):
            line = line.strip()
            if line:
                self.L.append(line)
    def label(self, name):
        self.L.append(name + ":")
    def comment(self, text):
        self.L.append("; " + text)
    diag = False
    def stamp(self, i):
        if self.diag and (not self.spanonly or i == 0):
            self("s_memrealtime s[100:101]")
            self("s_waitcnt lgkmcnt(0)")
            self(f"s_mov_b32 s{88+i}, s100")
            self.lds = []
    def cstamp(self, i):
        if self.diag:
            self("s_memtime s[100:101]")
            self("s_waitcnt lgkmcnt(0)")
            self(f"s_mov_b32 s{88+i}, s100")
            self.lds = []
    dbgmode = False
    spanonly = False
    def dump_dbg(self, dbg_sgpr, wave_sgpr):
        self(f"s_cmp_lg_u32 s{wave_sgpr}, 0")
        self("s_cbranch_scc1 L_nodbg")
        self("s_mov_b64 exec, -1")
        self(f"s_mov_b32 s52, s{dbg_sgpr}")
        self(f"s_mov_b32 s53, s{dbg_sgpr+1}")
        self("s_mov_b32 s54, 256")
        self("s_mov_b32 s55, 0x00020000")
        self("v_mov_b32 v250, 0")
        self("s_not_b32 s56, s88")
        self("v_writelane_b32 v250, s56, 1")
        for k, i in enumerate((0, 2, 3, 4, 5, 6, 7, 8, 9, 10, 11, 1)):
            self(f"v_writelane_b32 v250, s{88+i}, {2+k}")
        self("v_and_b32 v251, 63, v0")
        self("v_lshlrev_b32 v251, 2, v251")
        self("s_mov_b32 exec_lo, 0x3ffe")
        self("s_mov_b32 exec_hi, 0")
        self("buffer_atomic_umax v250, v251, s[52:55], 0 offen sc1")
        self("s_waitcnt vmcnt(0)")
        self.label("L_nodbg")
    def dump_stamps(self, ws_sgpr, off, wave_sgpr):
        if not self.diag: return
        if self.dbgmode: return self.dump_dbg(24, wave_sgpr)
        self("s_mov_b64 exec, -1")
        self(f"s_add_u32 s52, s{ws_sgpr}, {off}")
        self(f"s_addc_u32 s53, s{ws_sgpr+1}, 0")
        self("s_mov_b32 s54, 0x100000")
        self("s_mov_b32 s55, 0x00020000")
        self("v_mov_b32 v250, 0")
        for i in range(12):
            self(f"v_writelane_b32 v250, s{88+i}, {i}")
        self("v_and_b32 v251, 63, v0")
        self("v_lshlrev_b32 v251, 2, v251")
        self("s_lshl_b32 s56, s2, 3")
        self(f"s_add_u32 s56, s56, s{wave_sgpr}")
        self("s_lshl_b32 s56, s56, 6")
        self("v_add_u32 v251, s56, v251")
        self("s_mov_b32 exec_lo, 0xffff")
        self("s_mov_b32 exec_hi, 0")
        self("buffer_store_dword v250, v251, s[52:55], 0 offen")
        self("s_waitcnt vmcnt(0)")
    def ds(self, text, tag=None):
        self(text); self.lds.append(tag)
    def mem(self, text, tag=None):
        self(text); self.vm.append(tag)
    def wait_lds(self, tag):
        idx = max(i for i, t in enumerate(self.lds) if t == tag)
        n = len(self.lds) - 1 - idx
        assert n <= 14, n
        self(f"s_waitcnt lgkmcnt({n})")
        self.lds = self.lds[idx + 1:]
    def wait_lds_if(self, tag):
        if tag in self.lds:
            self.wait_lds(tag)
    def wait_vm(self, tag):
        idx = max(i for i, t in enumerate(self.vm) if t == tag)
        n = len(self.vm) - 1 - idx
        assert n <= 62, n
        self(f"s_waitcnt vmcnt({n})")
        self.vm = self.vm[idx + 1:]
    def wait_all(self, vm=True, lds=True):
        parts = []
        if vm: parts.append("vmcnt(0)"); self.vm = []
        if lds: parts.append("lgkmcnt(0)"); self.lds = []
        self("s_waitcnt " + " ".join(parts))
    def text(self):
        out = []
        for l in self.L:
            if l.endswith(":") or l.startswith(".") or l.startswith(";"):
                out.append(l)
            else:
                out.append("    " + l)
        return "\n".join(out) + "\n"

TRANS = ("v_exp_", "v_log_", "v_rcp_", "v_rsq_", "v_sqrt_", "v_sin_", "v_cos_")
def regs(op):
    op = op.strip()
    neg = op.lstrip("-|").rstrip("|")
    m = re.fullmatch(r"([vsa])(\d+)", neg)
    if m: return {(m.group(1), int(m.group(2)))}
    m = re.fullmatch(r"([vsa])\[(\d+):(\d+)\]", neg)
    if m: return {(m.group(1), i) for i in range(int(m.group(2)), int(m.group(3)) + 1)}
    if neg in ("vcc", "vcc_lo", "vcc_hi"): return {("s", "vcc")}
    if neg in ("exec", "exec_lo", "exec_hi"): return {("s", "exec")}
    if neg == "m0": return {("s", "m0")}
    return set()

class Ins:
    def __init__(self, text, idx):
        self.text = text; self.idx = idx
        t = text.split(";")[0].strip()
        parts = t.split(None, 1)
        self.mn = parts[0]
        rest = parts[1] if len(parts) > 1 else ""
        ops = [o.strip() for o in re.split(r",(?![^\[]*\])", rest)] if rest else []
        if ops:
            last = ops[-1].split()
            self.mods = " ".join(last[1:])
            ops[-1] = last[0] if last else ""
        else:
            self.mods = ""
        self.ops = ops
        mn = self.mn
        self.is_mfma = mn.startswith("v_mfma")
        self.is_valu = mn.startswith("v_") and not self.is_mfma
        self.is_trans = mn.startswith(TRANS)
        self.is_ds = mn.startswith("ds_")
        self.is_vmem = mn.startswith(("buffer_", "global_"))
        self.is_salu = mn.startswith("s_")
        self.is_dpp = bool(re.search(r"row_|quad_perm|wave_|bcast", self.mods)) or mn.endswith("_dpp")
        self.w = set(); self.r = set(); self.ra = set(); self.rb = set(); self.rc = set()
        self.store_data = set(); self.ldst = set()
        R = [regs(o) for o in ops]
        if self.is_mfma:
            self.w = R[0]; self.ra = R[1]; self.rb = R[2]; self.rc = R[3]
            self.r = self.ra | self.rb | self.rc
            self.passes = 8 if "32x32" in mn else 4
        elif self.is_valu:
            if mn.startswith("v_cmp"):
                self.w = R[0]; self.r = set().union(*R[1:])
            elif mn.startswith(("v_add_co", "v_sub_co", "v_addc_co", "v_subb_co")):
                self.w = R[0] | R[1]; self.r = set().union(*R[2:])
            elif mn.startswith("v_permlane"):
                self.w = R[0] | R[1]; self.r = R[0] | R[1]
            else:
                self.w = R[0]; self.r = set().union(*R[1:]) if len(R) > 1 else set()
                if mn.startswith(("v_fmac", "v_mac", "v_writelane", "v_pk_fmac")) or self.is_dpp:
                    self.r |= R[0]
                if mn.startswith("v_cndmask") and len(R) == 3:
                    self.r |= {("s", "vcc")}
        elif self.is_ds:
            if mn.startswith("ds_read") or "_rtn" in mn or mn.startswith(("ds_bpermute", "ds_permute", "ds_swizzle")):
                self.ldst = R[0]; self.r = set().union(*R[1:])
            else:
                self.r = set().union(*R)
                self.store_data = set().union(*R[1:])
        elif self.is_vmem:
            lds = " lds" in (" " + self.mods)
            if "load" in mn and not lds:
                self.ldst = R[0]; self.r = set().union(*R[1:])
            elif "load" in mn and lds:
                self.r = set().union(*R) | {("s", "m0")}
                self.dma = True
            else:
                self.r = set().union(*R)
                self.store_data = R[0] if mn.startswith("buffer_") else R[1]
        elif self.is_salu:
            if mn.startswith(("s_cmp", "s_waitcnt", "s_nop", "s_barrier", "s_branch", "s_cbranch", "s_endpgm", "s_setprio", "s_sleep")):
                self.r = set().union(*R) if R else set()
            else:
                self.w = R[0] if R else set(); self.r = set().union(*R[1:]) if len(R) > 1 else set()
                if "saveexec" in mn: self.w |= {("s", "exec")}
        self.states = 1
        if mn == "s_nop": self.states = int(ops[0], 0) + 1

def check_hazards(text):
    ins = []; labels = {}; local = {}
    for line in text.split("\n"):
        t = line.split(";")[0].strip()
        if not t or t.startswith("."):
            continue
        if t.endswith(":"):
            nm = t[:-1]
            if nm.isdigit(): local.setdefault(nm, []).append(len(ins))
            else: labels[nm] = len(ins)
            continue
        ins.append(Ins(t, len(ins)))
    def succ(i):
        x = ins[i]
        if x.mn == "s_endpgm": return []
        def tgt(o):
            if o[:-1].isdigit() and o[-1] == "f": return min(p for p in local[o[:-1]] if p > i)
            return labels[o]
        if x.mn == "s_branch": return [tgt(x.ops[0])]
        out = [i + 1] if i + 1 < len(ins) else []
        if x.mn.startswith("s_cbranch"): out.append(tgt(x.ops[0]))
        return out
    problems = []
    def need(p, c):
        n = 0
        vw = {r for r in p.w if r[0] in "va"}
        sw = {r for r in p.w if r[0] == "s"}
        if p.is_valu:
            if c.is_mfma and vw & c.r: n = max(n, 2)
            if p.is_trans and c.is_valu and not c.is_trans and vw & c.r: n = max(n, 1)
            if c.is_valu and c.is_dpp and vw & c.r: n = max(n, 2)
            if c.mn.startswith(("v_readlane", "v_readfirstlane")) and vw & c.r: n = max(n, 1)
            if c.mn.startswith("v_permlane") and vw & c.r: n = max(n, 2)
            if sw:
                if c.is_valu and sw & c.r: n = max(n, 4 if c.mn.startswith(("v_readlane", "v_writelane")) else 2)
                if c.is_vmem and sw & c.r: n = max(n, 5)
        if p.is_mfma:
            big = p.passes == 8
            if c.is_mfma:
                if p.w & (c.ra | c.rb): n = max(n, 12 if big else 8)
                if p.w & c.rc and not (p.w == c.rc and p.passes == c.passes): n = max(n, 10 if big else 6)
                if p.w & c.w and not (p.w & c.rc) : n = max(n, 0)
            else:
                if (c.is_valu and p.w & (c.r | c.w)) or ((c.is_ds or c.is_vmem) and p.w & (c.r | c.ldst)):
                    n = max(n, 12 if big else 8)
            if c.is_valu and p.rc & c.w and not (p.rc & p.w): n = max(n, 7 if big else 3)
        if (p.is_vmem or p.is_ds) and p.store_data and len(p.store_data) >= 3:
            if c.is_valu and p.store_data & c.w: n = max(n, 2)
            if (c.is_ds or c.is_vmem) and p.store_data & c.ldst: n = max(n, 1)
        if p.is_salu and ("s", "m0") in p.w and getattr(c, "dma", False): n = max(n, 1)
        return n
    MAXD = 12
    for p in ins:
        if not (p.w or p.store_data or p.is_mfma): continue
        stack = [(j, 0) for j in succ(p.idx)]
        seen = set()
        while stack:
            j, d = stack.pop()
            if (j, d) in seen or d >= MAXD or j >= len(ins): continue
            seen.add((j, d))
            c = ins[j]
            n = need(p, c)
            if n > d:
                problems.append(f"need {n} have {d}: [{p.idx}] {p.text}  ->  [{c.idx}] {c.text}")
            for k in succ(j): stack.append((k, d + c.states))
    return problems
```

```python
from asmlib import *
from common import *
CONSTS = None

ST = " sc1"
W = S_WAVE

S_CNT = 85

def broadcast(a, lbl, word):
    srd(a, R4, P_WS, WS_MBX, 2048)
    a("v_lshlrev_b32 v2, 7, v1")
    a("v_mov_b32 v3, 1")
    a("s_mov_b32 exec_lo, 0xffff")
    a("s_mov_b32 exec_hi, 0")
    a(f"buffer_store_dword v3, v2, s[{R4}:{R4+3}], 0 offen offset:{4*word} sc1")
    a("s_mov_b64 exec, -1")

def arrive_issue(a, inc):
    srd(a, R5, P_DBG, 0, 256)
    a("v_mov_b32 v2, 0")
    a(f"v_mov_b32 v3, {inc}")
    a("s_mov_b32 exec_lo, 1")
    a("s_mov_b32 exec_hi, 0")
    a(f"buffer_atomic_add v3, v2, s[{R5}:{R5+3}], 0 offen sc0 sc1")
    a("s_mov_b64 exec, -1")

def arrive_finish(a, inc, tag):
    a("s_waitcnt vmcnt(0)")
    a(f"v_readfirstlane_b32 s{T[0]}, v3")
    a(f"s_add_u32 s{S_CNT}, s{T[0]}, {inc}")
    a(f"s_and_b32 s{T[1]}, s{S_CNT}, 0xffff")
    a(f"s_cmp_eq_u32 s{T[1]}, {K1:#x}")
    a(f"s_cbranch_scc0 L_arr1_{tag}")
    a(f"s_and_b32 s{T[1]}, s{T[0]}, 0xffff")
    a(f"s_cmp_eq_u32 s{T[1]}, {K1:#x}")
    a(f"s_cbranch_scc1 L_arr1_{tag}")
    broadcast(a, tag, 0)
    a.label(f"L_arr1_{tag}")
    a(f"s_and_b32 s{T[1]}, s{S_CNT}, 0xffff00ff")
    a(f"s_cmp_eq_u32 s{T[1]}, {(K2 << 16) | 1:#x}")
    a(f"s_cbranch_scc0 L_arr2_{tag}")
    a(f"s_and_b32 s{T[1]}, s{T[0]}, 0xffff00ff")
    a(f"s_cmp_eq_u32 s{T[1]}, {(K2 << 16) | 1:#x}")
    a(f"s_cbranch_scc1 L_arr2_{tag}")
    broadcast(a, tag, 1)
    a.label(f"L_arr2_{tag}")

LDS_FLAG = 163824
S_INC = 84

def inv(a):
    a(f"s_cmp_eq_u32 s{W}, 7")
    a("s_cbranch_scc0 1f")
    a("buffer_inv sc1")
    a.label("1")

def signal(a, inc, tag):
    a(f"s_mov_b32 s{S_INC}, {inc:#x}")
    inv(a)
    a("s_waitcnt vmcnt(0) lgkmcnt(0)")
    a("s_barrier")
    a("s_branch L_phase2")

def w_lane_offsets(a):
    a("v_lshrrev_b32 v2, 2, v1")
    a("v_lshlrev_b32 v2, 9, v2")
    a("v_and_b32 v3, 3, v1")
    a("v_lshl_add_u32 v2, v3, 4, v2")
    a(f"s_lshl_b32 s{T[0]}, s{W}, 6")
    a(f"v_add_u32 v2, s{T[0]}, v2")

def w_dma(a, srdw):
    a(f"s_lshl_b32 s{T[1]}, s{W}, 14")
    for i in range(16):
        a(f"s_add_u32 m0, s{T[1]}, {i*1024}")
        a(f"s_mov_b32 s{T[2]}, {i*8192}")
        a.mem(f"buffer_load_dwordx4 v2, s[{srdw}:{srdw+3}], s{T[2]} offen lds", ("W", i))

def gemm(a, mat):
    nm = "PQR"[mat]
    VW, VF, ACC, PK = 48, 112, (152, 168), 184
    QS, RING = 192, 10
    VA = 8
    vH = (3, 4)
    sRange, sH0, sHL, sO, sScale, sTmp = T[6], T[7], T[8], T[9], T[4], T[2]
    SW_, SH_, SO_ = R0, R1, R2
    a.label(f"L1_gemm_{nm}")
    if mat == 0: srd(a, SW_, P_WE, 0, 131072)
    if mat == 1: srd(a, SW_, P_WE, 131072, 131072)
    if mat == 2: srd(a, SW_, P_WH, 0, 131072)
    srd(a, SH_, P_H, 0, MAT_BYTES)
    w_lane_offsets(a)
    a("v_lshrrev_b32 v5, 5, v1")
    a(f"s_lshl_b32 s{T[0]}, s{W}, 2")
    a("v_and_b32 v6, 31, v1")
    for i in range(2):
        a(f"v_add_u32 v7, s{T[0]}, v5")
        if i: a("v_add_u32 v7, 2, v7")
        a("v_and_b32 v16, 15, v7")
        a("v_xor_b32 v16, v16, v6")
        a("v_lshlrev_b32 v16, 4, v16")
        a(f"v_lshl_add_u32 v{vH[i]}, v7, 9, v16")
    a(f"s_mul_i32 s{sH0}, s{sRange}, 81920")
    a(f"s_lshl_b32 s{sHL}, s{W}, 11")
    def h_dma(Tt, ldsbase):
        for i in range(2):
            a(f"s_add_u32 m0, s{sHL}, {ldsbase + i*1024}")
            a(f"s_add_u32 s{sTmp}, s{sH0}, {Tt*16384}")
            a.mem(f"buffer_load_dwordx4 v{vH[i]}, s[{SH_}:{SH_+3}], s{sTmp} offen lds", ("H", Tt))
    sWL = T[10]
    a(f"s_lshl_b32 s{sWL}, s{W}, 14")
    def w_one(i):
        a(f"s_add_u32 m0, s{sWL}, {i*1024}")
        a(f"s_mov_b32 s{sTmp}, {i*8192}")
        a.mem(f"buffer_load_dwordx4 v2, s[{SW_}:{SW_+3}], s{sTmp} offen lds", ("W", i))
    HP = 24
    def hp_load(Tt):
        a(f"s_add_u32 s{sTmp}, s{sH0}, {Tt*16384}")
        for i in range(2):
            q = HP + 8 * (Tt - 2) + 4 * i
            a.mem(f"buffer_load_dwordx4 v[{q}:{q+3}], v{vH[i]}, s[{SH_}:{SH_+3}], s{sTmp} offen", ("H", Tt))
    a("s_setprio 3")
    h_dma(0, 131072)
    for i in range(8): w_one(i)
    a("s_setprio 0")
    srd(a, SO_, P_WS, (WS_P, WS_Q, WS_R)[mat], MAT_BYTES)
    a("v_lshrrev_b32 v5, 5, v1")
    a("v_bfe_u32 v6, v1, 2, 2")
    a("v_lshl_add_u32 v6, v5, 3, v6")
    a("v_lshlrev_b32 v6, 6, v6")
    a("v_bfe_u32 v7, v1, 4, 1")
    a("v_and_b32 v16, 3, v1")
    a("v_lshl_add_u32 v7, v7, 2, v16")
    if mat == 0:
        a("v_lshlrev_b32 v7, 3, v7")
    else:
        a("v_and_b32 v16, 1, v7")
        a("v_lshlrev_b32 v16, 5, v16")
        a("v_lshrrev_b32 v7, 1, v7")
        a("v_lshl_add_u32 v7, v7, 3, v16")
    a("v_add_u32 v5, v6, v7")
    a(f"s_lshl_b32 s{T[1]}, s{W}, 14")
    a(f"v_add_u32 v5, s{T[1]}, v5")
    a("v_and_b32 v6, 31, v1")
    a("v_lshrrev_b32 v7, 5, v1")
    a("v_and_b32 v16, 15, v6")
    a("v_xor_b32 v7, v7, v16")
    a("v_lshlrev_b32 v6, 9, v6")
    a("v_add_u32 v6, 0x20000, v6")
    for k in range(8):
        a(f"v_xor_b32 v16, {2*k}, v7")
        a(f"v_lshl_add_u32 v{VA+k}, v16, 4, v6")
    a("v_and_b32 v6, 31, v1")
    a("v_lshrrev_b32 v7, 5, v1")
    a(f"s_mul_i32 s{sO}, s{sRange}, 81920")
    if mat == 0:
        a(f"s_lshl_b32 s{T[0]}, s{W}, 9")
        a("v_lshlrev_b32 v17, 4, v6")
        a("v_lshl_add_u32 v17, v7, 12, v17")
        a(f"v_add_u32 v17, s{T[0]}, v17")
    elif mat == 2:
        a(f"s_lshl_b32 s{T[0]}, s{W}, 9")
        a("v_lshrrev_b32 v17, 3, v6")
        a("v_lshlrev_b32 v17, 12, v17")
        a("v_lshl_add_u32 v17, v7, 8, v17")
        a("v_and_b32 v16, 7, v6")
        a("v_lshl_add_u32 v17, v16, 4, v17")
        a(f"v_add_u32 v17, s{T[0]}, v17")
    else:
        a(f"s_lshl_b32 s{T[0]}, s{W}, 11")
        a(f"s_add_u32 s{T[0]}, s{T[0]}, 65536")
        a("v_bfe_u32 v16, v6, 1, 2")
        a("v_lshlrev_b32 v19, 1, v7")
        a("v_xor_b32 v19, v19, v16")
        a("v_lshlrev_b32 v20, 6, v6")
        a(f"v_add_u32 v20, s{T[0]}, v20")
        a("v_lshl_add_u32 v17, v19, 4, v20")
        a("v_xor_b32 v19, 1, v19")
        a("v_lshl_add_u32 v18, v19, 4, v20")
        a("v_lshrrev_b32 v6, 2, v1")
        a("v_bfe_u32 v16, v1, 3, 2")
        a("v_and_b32 v7, 3, v1")
        a("v_xor_b32 v16, v16, v7")
        a("v_lshlrev_b32 v19, 6, v6")
        a("v_lshl_add_u32 v19, v16, 4, v19")
        a(f"v_add_u32 v19, s{T[0]}, v19")
        a(f"s_lshl_b32 s{T[0]}, s{W}, 6")
        a("v_lshlrev_b32 v20, 9, v6")
        a("v_lshl_add_u32 v20, v7, 4, v20")
        a(f"v_add_u32 v20, s{T[0]}, v20")
    a(f"s_mov_b32 s{sScale}, {NLOG2E:#x}")
    a.stamp(1)
    a.wait_vm(("H", 0))
    a("s_barrier")
    a.stamp(2)

    def trread(st):
        for i in range(2):
            a.ds(f"ds_read_b64_tr_b16 v[{VW+4*st+2*i}:{VW+4*st+2*i+1}], v5 offset:{st*1024+i*256}", ("TR", st))
    def fread(u):
        Tt, st = divmod(u, 16)
        base = Tt * 16384 if Tt < 2 else (Tt - 2) * 16384
        q = VF + 4 * (u % RING)
        a.ds(f"ds_read_b128 v[{q}:{q+3}], v{VA + (st & 7)} offset:{base + 256*(st >> 3)}", ("F", u))
    def mfma(u):
        Tt, st = divmod(u, 16)
        q = VF + 4 * (u % RING); w = VW + 4 * st; acc = ACC[Tt & 1]
        c = "0" if st == 0 else f"v[{acc}:{acc+15}]"
        A, B = (q, w) if mat == 0 else (w, q)
        a(f"v_mfma_f32_32x32x16_bf16 v[{acc}:{acc+15}], v[{A}:{A+3}], v[{B}:{B+3}], {c}")
    def epi(Tt):
        acc = ACC[Tt & 1]
        ops = []
        for j in range(8):
            ops.append(f"v_mul_f32 v{acc+2*j}, s{sScale}, v{acc+2*j}")
            ops.append(f"v_mul_f32 v{acc+2*j+1}, s{sScale}, v{acc+2*j+1}")
        for j in range(8):
            ops.append(f"v_cvt_pk_bf16_f32 v{PK+j}, v{acc+2*j}, v{acc+2*j+1}")
        if mat == 0:
            ops.append("s_nop 1")
            for q in (0, 2):
                ops.append(f"v_permlane32_swap_b32 v{PK+2*q}, v{PK+2*q+2}")
                ops.append(f"v_permlane32_swap_b32 v{PK+2*q+1}, v{PK+2*q+3}")
            for q in (0, 2):
                ops.append(f"s_add_u32 s{sTmp}, s{sO}, {Tt*16384 + q*4096}")
                ops.append(("vm", f"buffer_store_dwordx4 v[{PK+2*q}:{PK+2*q+3}], v17, s[{SO_}:{SO_+3}], s{sTmp} offen{ST}", ("S", Tt)))
        elif mat == 2:
            ops.append(f"s_add_u32 s{sTmp}, s{sO}, {Tt*16384}")
            for i in range(2):
                ops.append(("vm", f"buffer_store_dwordx4 v[{PK+4*i}:{PK+4*i+3}], v17, s[{SO_}:{SO_+3}], s{sTmp} offen offset:{i*128}{ST}", ("S", Tt)))
        else:
            ops.append(("ds", f"ds_write_b128 v17, v[{PK}:{PK+3}]", ("QW", Tt)))
            ops.append(("ds", f"ds_write_b128 v18, v[{PK+4}:{PK+7}]", ("QW", Tt)))
            ops.append(("waitlds", ("QW", Tt)))
            ops.append(("ds", f"ds_read_b128 v[{QS}:{QS+3}], v19", ("QR0", Tt)))
            ops.append(("ds", f"ds_read_b128 v[{QS+4}:{QS+7}], v19 offset:1024", ("QR1", Tt)))
            ops.append(f"s_add_u32 s{sTmp}, s{sO}, {Tt*16384}")
            ops.append(("waitlds", ("QR0", Tt)))
            ops.append(("vm", f"buffer_store_dwordx4 v[{QS}:{QS+3}], v20, s[{SO_}:{SO_+3}], s{sTmp} offen{ST}", ("S", Tt)))
            ops.append(f"s_add_u32 s{sTmp}, s{sO}, {Tt*16384 + 8192}")
            ops.append(("waitlds", ("QR1", Tt)))
            ops.append(("vm", f"buffer_store_dwordx4 v[{QS+4}:{QS+7}], v20, s[{SO_}:{SO_+3}], s{sTmp} offen{ST}", ("S", Tt)))
        return ops
    def emit(op):
        if isinstance(op, str): a(op)
        elif op[0] == "vm": a.mem(op[1], op[2])
        elif op[0] == "ds": a.ds(op[1], op[2])
        elif op[0] == "waitlds": a.wait_lds_if(op[1])
    PD = 8
    tmp = Asm(); CONSTS(tmp, 241, 64); filler = list(tmp.L)
    def stream(tiles, pend, first=False):
        u0, u1 = tiles[0] * 16, (tiles[-1] + 1) * 16
        for u in range(u0, u0 + (6 if first else PD)): fread(u)
        if first:
            for st in range(2):
                a.wait_vm(("W", st)); trread(st)
        nxt = u0 + (6 if first else PD)
        for u in range(u0, u1):
            Tt, st = divmod(u, 16)
            if st == 0 and u > u0:
                assert not pend
                pend = epi(Tt - 1)
            if first and Tt == 0:
                if st + 8 < 16: w_one(st + 8)
                elif st == 8: h_dma(1, 147456)
                elif st in (9, 10, 11): hp_load(st - 7)
                if st + 2 < 16:
                    a.wait_vm(("W", st + 2)); trread(st + 2)
                a.wait_lds_if(("TR", st))
            a.wait_lds_if(("F", u))
            mfma(u)
            if first and u == 15:
                a.wait_vm(("H", 1))
                a("s_barrier")
            depth = 6 if (first and Tt == 0) else PD
            while nxt < u1 and nxt <= u + depth and not (first and u < 15 and nxt >= 16):
                fread(nxt); nxt += 1
            if filler and st >= 2 and Tt == 3:
                k = -(-len(filler) // (16 - st))
                for op in filler[:k]: a(op)
                del filler[:k]
            if st >= 5 and pend:
                k = -(-len(pend) // (16 - st))
                for op in pend[:k]: emit(op)
                pend = pend[k:]
        assert not pend
        return epi(tiles[-1])
    pend = stream([0, 1], [], first=True)
    a.stamp(3)
    for k in range(8): a(f"v_add_u32 v{VA+k}, 0xfffe0000, v{VA+k}")
    a.wait_vm(("H", 4))
    a("v_lshlrev_b32 v21, 4, v1")
    a(f"v_add_u32 v21, s{sHL}, v21")
    for T2 in (2, 3, 4):
        for i in range(2):
            q = HP + 8 * (T2 - 2) + 4 * i
            a.ds(f"ds_write_b128 v21, v[{q}:{q+3}] offset:{(T2-2)*16384 + i*1024}", ("HW", T2))
    a.wait_lds_if(("HW", 4))
    a("s_barrier")
    a(f"s_cmp_lg_u32 s{W}, 0")
    a(f"s_cbranch_scc1 L1_peek_{nm}")
    srd(a, R5, P_DBG, 0, 256)
    a("v_mov_b32 v22, 0")
    a("s_mov_b32 exec_lo, 1")
    a("s_mov_b32 exec_hi, 0")
    a(f"buffer_load_dword v23, v22, s[{R5}:{R5+3}], 0 offen sc1")
    a("s_mov_b64 exec, -1")
    a.label(f"L1_peek_{nm}")
    pend = stream([2, 3, 4], pend)
    a("s_nop 7"); a("s_nop 3")
    a.stamp(4)
    for op in pend: emit(op)
    a(f"s_mov_b32 s{S_INC}, {INC_GEMM:#x}")
    inv(a)
    a(f"s_cmp_lg_u32 s{W}, 0")
    a(f"s_cbranch_scc1 L1_peek2_{nm}")
    a("s_waitcnt vmcnt(0)")
    a("v_and_b32 v23, 0xffff, v23")
    a(f"v_mov_b32 v22, {LDS_FLAG}")
    a("s_mov_b32 exec_lo, 1")
    a("s_mov_b32 exec_hi, 0")
    a("ds_write_b32 v22, v23")
    a("s_mov_b64 exec, -1")
    a.label(f"L1_peek2_{nm}")
    a("s_waitcnt vmcnt(0) lgkmcnt(0)")
    a("s_barrier")
    a(f"v_mov_b32 v22, {LDS_FLAG}")
    a("ds_read_b32 v23, v22")
    a("s_waitcnt lgkmcnt(0)")
    a(f"v_readfirstlane_b32 s{T[0]}, v23")
    a(f"s_cmp_eq_u32 s{T[0]}, {K1:#x}")
    a("s_cbranch_scc1 L_phase2_fast")
    a("s_branch L_phase2")

def sort(a):
    POS, HIST, WSUM, RECA = 0, 65536, 70656, 71680
    RECB = RECA + CH_STRIDE * 16
    NR = 6
    D, SX, EA = 8, 14, 20
    RA, RB, BA, RK = 32, 56, 62, 68
    t = 76
    sC, sE4, sE8, sTmp = T[6], T[7], T[8], T[2]
    MK = 62
    a.label("L1_sort")
    a(f"s_mov_b32 s{sC}, s2")
    srd(a, R0, P_DST, 0, N_EDGES * 4)
    a(f"s_mul_i32 s{sE4}, s{sC}, {CH_E*4}")
    a(f"s_mul_i32 s{sE8}, s{sC}, {CH_E*8}")
    a("v_lshlrev_b32 v2, 2, v0")
    a("s_setprio 3")
    for i in range(NR):
        a(f"s_add_u32 s{sTmp}, s{sE4}, {i*2048}")
        a.mem(f"buffer_load_dword v{D+i}, v2, s[{R0}:{R0+3}], s{sTmp} offen", "D")
    a("s_setprio 0")
    srd(a, R1, P_SRC, 0, N_EDGES * 4)
    for i in range(NR):
        a(f"s_add_u32 s{sTmp}, s{sE4}, {i*2048}")
        a.mem(f"buffer_load_dword v{SX+i}, v2, s[{R1}:{R1+3}], s{sTmp} offen", "S")
    srd(a, R3, P_POS, 0, 60000)
    a("v_lshlrev_b32 v4, 4, v1")
    for j in range(8):
        a(f"s_lshl_b32 s{T[0]}, s{W}, 10")
        a(f"s_add_u32 s{T[0]}, s{T[0]}, {j*8192}")
        a(f"s_mov_b32 m0, s{T[0]}")
        a("s_nop 0")
        a.mem(f"buffer_load_dwordx4 v4, s[{R3}:{R3+3}], s{T[0]} offen lds", "P")
    srd(a, R2, P_EA, 0, N_EDGES * 8)
    a("v_lshlrev_b32 v3, 3, v0")
    for i in range(NR):
        a(f"s_add_u32 s{sTmp}, s{sE8}, {i*4096}")
        a.mem(f"buffer_load_dwordx2 v[{EA+2*i}:{EA+2*i+1}], v3, s[{R2}:{R2+3}], s{sTmp} offen", "E")
    srd(a, R4, P_WS, 0, WS_USED)
    for k in range(4): a(f"v_mov_b32 v{t+k}, 0")
    a("v_lshlrev_b32 v5, 4, v0")
    a(f"v_add_u32 v5, {HIST}, v5")
    a(f"s_cmp_ge_u32 s{W}, 5")
    a("s_cbranch_scc1 L1_sort_z")
    a(f"ds_write_b128 v5, v[{t}:{t+3}]")
    a.label("L1_sort_z")
    a("v_mov_b32 v6, 1")
    a(f"s_mul_i32 s{T[0]}, s{sC}, {CH_E}")
    a(f"s_sub_u32 s{T[0]}, {N_EDGES}, s{T[0]}")
    a(f"s_min_u32 s{T[0]}, s{T[0]}, {CH_E}")
    a(f"s_sub_u32 s{T[0]}, s{T[0]}, {(NR-1)*512}")
    a(f"v_cmp_gt_u32 s[{MK}:{MK+1}], s{T[0]}, v0")
    a("s_waitcnt lgkmcnt(0)")
    a("s_barrier")
    a.wait_vm("D")
    def last_round(lbl):
        a(f"s_mov_b64 exec, s[{MK}:{MK+1}]")
        a(f"s_cbranch_execz {lbl}")
    for i in range(NR):
        if i == NR - 1: last_round("L1_sort_a")
        a(f"v_lshrrev_b32 v{t}, 3, v{D+i}")
        a(f"v_lshlrev_b32 v{BA+i}, 2, v{t}")
        a(f"v_add_u32 v{BA+i}, {HIST}, v{BA+i}")
        a(f"ds_add_rtn_u32 v{RK+i}, v{BA+i}, v6")
    a.label("L1_sort_a")
    a("s_mov_b64 exec, -1")
    CONSTS(a, 120, 64)
    a.wait_vm("P")
    a("s_waitcnt lgkmcnt(0)")
    a("s_barrier")
    a.stamp(2)
    a(f"s_cmp_lg_u32 s{W}, 0")
    a("s_cbranch_scc1 L1_sort_s1")
    C = 96
    a("v_mul_u32_u24 v7, 80, v1")
    a(f"v_add_u32 v7, {HIST}, v7")
    for q in range(5): a(f"ds_read_b128 v[{C+4*q}:{C+4*q+3}], v7 offset:{16*q}")
    a("s_waitcnt lgkmcnt(0)")
    a(f"v_mov_b32 v{t}, v{C}")
    a(f"v_mov_b32 v{C}, 0")
    for k in range(1, 20):
        a(f"v_add_u32 v{t+1}, v{t}, v{C+k}")
        a(f"v_mov_b32 v{C+k}, v{t}")
        a(f"v_mov_b32 v{t}, v{t+1}")
    a(f"v_mov_b32 v{t+2}, v{t}")
    for sh in (1, 2, 4, 8):
        a("s_nop 1")
        a(f"v_add_u32_dpp v{t+2}, v{t+2}, v{t+2} row_shr:{sh} row_mask:0xf bank_mask:0xf")
    a("s_nop 1")
    a(f"v_add_u32_dpp v{t+2}, v{t+2}, v{t+2} row_bcast:15 row_mask:0xa bank_mask:0xf")
    a("s_nop 1")
    a(f"v_add_u32_dpp v{t+2}, v{t+2}, v{t+2} row_bcast:31 row_mask:0xc bank_mask:0xf")
    a(f"v_sub_u32 v{t+2}, v{t+2}, v{t}")
    for k in range(20): a(f"v_add_u32 v{C+k}, v{C+k}, v{t+2}")
    for q in range(5): a(f"ds_write_b128 v7, v[{C+4*q}:{C+4*q+3}] offset:{16*q}")
    a.label("L1_sort_s1")
    PP = 96
    a(f"s_mov_b32 s{T[3]}, 0xffff0000")
    M16 = T[3]
    a("s_waitcnt lgkmcnt(0)")
    a("v_mov_b32 v7, 0")
    for i in range(NR):
        for j, X in enumerate((D + i, SX + i)):
            a(f"v_mul_u32_u24 v{t+4}, 6, v{X}")
            a(f"v_and_b32 v{t+4}, -4, v{t+4}")
            a(f"ds_read2_b32 v[{PP+4*i+2*j}:{PP+4*i+2*j+1}], v{t+4} offset0:0 offset1:1")
    a.wait_vm("E")
    for i in range(NR):
        PD_, PS_ = PP + 4 * i, PP + 4 * i + 2
        a(f"v_and_b32 v{t+5}, 7, v{D+i}")
        a(f"v_lshl_or_b32 v{RB+i}, v{t+5}, 14, v{SX+i}")
        a(f"v_lshrrev_b32 v{t+5}, 3, v{D+i}")
        a(f"v_lshl_or_b32 v{RB+i}, v{t+5}, 17, v{RB+i}")
        a(f"v_and_b32 v{t+6}, 1, v{D+i}")
        a(f"v_lshlrev_b32 v{t+6}, 4, v{t+6}")
        a(f"v_and_b32 v{t+7}, 1, v{SX+i}")
        a(f"v_lshlrev_b32 v{t+7}, 4, v{t+7}")
        if i == 0: a("s_waitcnt lgkmcnt(0)")
        for (P, sh) in ((PD_, t + 6), (PS_, t + 7)):
            a(f"v_alignbit_b32 v{P}, v{P+1}, v{P}, v{sh}")
            a(f"v_lshrrev_b32 v{P+1}, v{sh}, v{P+1}")
        a(f"v_lshlrev_b32 v{t+8}, 16, v{PD_}")
        a(f"v_lshlrev_b32 v{t+9}, 16, v{PS_}")
        a(f"v_sub_f32 v{t+8}, v{t+8}, v{t+9}")
        a(f"v_and_b32 v{t+9}, s{M16}, v{PD_}")
        a(f"v_and_b32 v{t+10}, s{M16}, v{PS_}")
        a(f"v_sub_f32 v{t+9}, v{t+9}, v{t+10}")
        a(f"v_lshlrev_b32 v{t+10}, 16, v{PD_+1}")
        a(f"v_lshlrev_b32 v{t+11}, 16, v{PS_+1}")
        a(f"v_sub_f32 v{t+10}, v{t+10}, v{t+11}")
        a(f"v_cvt_pk_bf16_f32 v{t+12}, v{t+8}, v{t+9}")
        a(f"v_cvt_pk_bf16_f32 v{t+13}, v{t+10}, v7")
        a(f"v_lshlrev_b32 v{t+8}, 16, v{t+12}")
        a(f"v_and_b32 v{t+9}, s{M16}, v{t+12}")
        a(f"v_lshlrev_b32 v{t+10}, 16, v{t+13}")
        a(f"v_mul_f32 v{t+8}, v{t+8}, v{t+8}")
        a(f"v_fmac_f32 v{t+8}, v{t+9}, v{t+9}")
        a(f"v_fmac_f32 v{t+8}, v{t+10}, v{t+10}")
        a(f"v_cvt_pk_bf16_f32 v{t+8}, v{t+8}, v7")
        r = RA + 4 * i
        a(f"v_lshl_or_b32 v{r}, v{EA+2*i}, 16, v{t+8}")
        a(f"v_alignbit_b32 v{r+1}, v{EA+2*i+1}, v{EA+2*i}, 16")
        a(f"v_alignbit_b32 v{r+2}, v{t+12}, v{EA+2*i+1}, 16")
        a(f"v_alignbit_b32 v{r+3}, v{t+13}, v{t+12}, 16")
    a("s_waitcnt lgkmcnt(0)")
    a("s_barrier")
    a.stamp(3)
    a(f"s_cmp_ge_u32 s{W}, 4")
    a("s_cbranch_scc1 L1_sort_t")
    a("v_mul_u32_u24 v7, 20, v0")
    a(f"v_add_u32 v7, {HIST}, v7")
    for k in range(6): a(f"ds_read_b32 v{t+8+k}, v7 offset:{4*k}")
    a.label("L1_sort_t")
    for i in range(NR):
        if i == NR - 1: last_round("L1_sort_b")
        a(f"ds_read_b32 v{t+i}, v{BA+i}")
    a.label("L1_sort_b")
    a("s_mov_b64 exec, -1")
    a("s_waitcnt lgkmcnt(0)")
    a(f"s_cmp_ge_u32 s{W}, 4")
    a("s_cbranch_scc1 L1_sort_t2")
    a(f"v_lshl_or_b32 v{t+16}, v{t+9}, 16, v{t+8}")
    a(f"v_lshl_or_b32 v{t+17}, v{t+11}, 16, v{t+10}")
    a(f"v_lshl_or_b32 v{t+18}, v{t+13}, 16, v{t+12}")
    a(f"v_mov_b32 v{t+19}, 0")
    a(f"s_mul_i32 s{T[0]}, s{sC}, {TAB_STRIDE}")
    a(f"s_add_u32 s{T[0]}, s{T[0]}, {WS_TAB}")
    a("v_lshlrev_b32 v7, 4, v0")
    a(f"buffer_store_dwordx4 v[{t+16}:{t+19}], v7, s[{R4}:{R4+3}], s{T[0]} offen{ST}")
    a.label("L1_sort_t2")
    for i in range(NR):
        if i == NR - 1: last_round("L1_sort_c")
        a(f"v_add_u32 v{t+i}, v{t+i}, v{RK+i}")
        a(f"v_lshlrev_b32 v{t+6}, 4, v{t+i}")
        a(f"v_add_u32 v{t+6}, {RECA}, v{t+6}")
        a(f"ds_write_b128 v{t+6}, v[{RA+4*i}:{RA+4*i+3}]")
        a(f"v_lshlrev_b32 v{t+7}, 2, v{t+i}")
        a(f"v_add_u32 v{t+7}, {RECB}, v{t+7}")
        a(f"ds_write_b32 v{t+7}, v{RB+i}")
    a.label("L1_sort_c")
    a("s_mov_b64 exec, -1")
    a("s_waitcnt lgkmcnt(0)")
    a("s_barrier")
    a.stamp(5)
    a("v_lshlrev_b32 v4, 4, v0")
    a(f"v_add_u32 v5, {RECA}, v4")
    for i in range(6):
        a(f"ds_read_b128 v[{RA+4*i}:{RA+4*i+3}], v5 offset:{i*8192}")
    a(f"v_add_u32 v7, {RECB}, v4")
    a(f"ds_read_b128 v[{t}:{t+3}], v7")
    a(f"ds_read_b128 v[{t+4}:{t+7}], v7 offset:8192")
    a(f"s_mul_i32 s{T[0]}, s{sC}, {CH_STRIDE*16}")
    a(f"s_add_u32 s{T[0]}, s{T[0]}, {WS_RECA}")
    a(f"s_mul_i32 s{T[1]}, s{sC}, {CH_STRIDE*4}")
    a(f"s_add_u32 s{T[1]}, s{T[1]}, {WS_RECB}")
    a("s_waitcnt lgkmcnt(0)")
    for i in range(5):
        a(f"buffer_store_dwordx4 v[{RA+4*i}:{RA+4*i+3}], v4, s[{R4}:{R4+3}], s{T[0]} offen{ST}")
        a(f"s_add_u32 s{T[0]}, s{T[0]}, 8192")
    a(f"buffer_store_dwordx4 v[{t}:{t+3}], v4, s[{R4}:{R4+3}], s{T[1]} offen{ST}")
    a(f"s_cmp_ge_u32 s{W}, 2")
    a("s_cbranch_scc1 L1_sort_r1")
    a(f"buffer_store_dwordx4 v[{RA+20}:{RA+23}], v4, s[{R4}:{R4+3}], s{T[0]} offen{ST}")
    a.label("L1_sort_r1")
    a(f"s_cmp_ge_u32 s{W}, 3")
    a("s_cbranch_scc1 L1_sort_r2")
    a(f"s_movk_i32 s{T[2]}, 160")
    a(f"v_cmp_gt_u32 vcc, s{T[2]}, v0")
    a("s_and_b64 exec, exec, vcc")
    a(f"s_add_u32 s{T[1]}, s{T[1]}, 8192")
    a(f"buffer_store_dwordx4 v[{t+4}:{t+7}], v4, s[{R4}:{R4+3}], s{T[1]} offen{ST}")
    a("s_mov_b64 exec, -1")
    a.label("L1_sort_r2")
    a.stamp(4)
    signal(a, INC_SORT, "s")

def pack(a):
    a.label("L1_pack")
    a(f"s_cmp_lg_u32 s{W}, 7")
    a("s_cbranch_scc1 L1_pack_go")
    srd(a, R4, P_WS, WS_MBX, 2048)
    a("v_lshlrev_b32 v2, 7, v1")
    a("v_mov_b32 v4, 0")
    a("v_mov_b32 v5, 0")
    a("s_mov_b32 exec_lo, 0xffff")
    a("s_mov_b32 exec_hi, 0")
    a(f"buffer_store_dwordx2 v[4:5], v2, s[{R4}:{R4+3}], 0 offen sc1")
    a("s_waitcnt vmcnt(0)")
    a("s_mov_b64 exec, -1")
    arrive_issue(a, f"{INC_INIT:#x}")
    arrive_finish(a, f"{INC_INIT:#x}", "i")
    a.label("L1_pack_go")
    srd(a, R0, P_WH, 131072, 131072)
    srd(a, R2, P_WS, WS_WHP, 131072)
    w_lane_offsets(a)
    w_dma(a, R0)
    srd(a, R1, P_WE, 0, 517 * 512)
    srd(a, R3, P_WX, 0, 512)
    srd(a, R4, P_WS, 0, WS_USED)
    a("v_lshlrev_b32 v9, 1, v0")
    a(f"s_mov_b32 s{T[0]}, 0x40000")
    for k in range(5):
        a(f"buffer_load_ushort v{24+k}, v9, s[{R1}:{R1+3}], s{T[0]} offen offset:{k*512}")
    a("v_lshrrev_b32 v10, 2, v1")
    a("v_lshlrev_b32 v10, 5, v10")
    a("v_bfe_u32 v11, v1, 1, 1")
    a("v_lshl_add_u32 v10, v11, 4, v10")
    a("v_and_b32 v11, 1, v1")
    a("v_lshl_add_u32 v10, v11, 2, v10")
    a("v_lshlrev_b32 v10, 1, v10")
    a(f"buffer_load_dwordx2 v[32:33], v10, s[{R3}:{R3+3}], 0 offen")
    a(f"buffer_load_dwordx2 v[34:35], v10, s[{R3}:{R3+3}], 0 offen offset:16")
    a("v_lshrrev_b32 v5, 4, v1")
    a("v_and_b32 v6, 1, v5")
    a("v_lshlrev_b32 v6, 4, v6")
    a("v_lshrrev_b32 v7, 1, v5")
    a("v_lshl_add_u32 v6, v7, 2, v6")
    a("v_bfe_u32 v7, v1, 2, 2")
    a("v_add_u32 v6, v6, v7")
    a("v_lshlrev_b32 v6, 6, v6")
    a("v_and_b32 v7, 3, v1")
    a("v_lshl_add_u32 v6, v7, 4, v6")
    a(f"s_lshl_b32 s{T[1]}, s{W}, 14")
    a(f"v_add_u32 v5, s{T[1]}, v6")
    a("v_lshlrev_b32 v8, 4, v1")
    CONSTS(a, 100, 64)
    a(f"s_lshl_b32 s{T[1]}, s{W}, 14")
    a.wait_all()
    for cb in range(2):
        for ks in range(8):
            q = 64 + 4 * (cb * 8 + ks)
            for i in range(2):
                a(f"ds_read_b64_tr_b16 v[{q+2*i}:{q+2*i+1}], v5 offset:{ks*2048 + i*512 + cb*8}")
            if ks % 4 == 3: a("s_waitcnt lgkmcnt(0)")
    for cb in range(2):
        for ks in range(8):
            q = 64 + 4 * (cb * 8 + ks)
            a(f"s_add_u32 s{T[2]}, s{T[1]}, {(cb*8+ks)*1024}")
            a(f"buffer_store_dwordx4 v[{q}:{q+3}], v8, s[{R2}:{R2+3}], s{T[2]} offen{ST}")
    a(f"s_cmp_ge_u32 s{W}, 4")
    a("s_cbranch_scc1 L1_pack_b")
    a(f"s_mov_b32 s{T[4]}, {NLOG2E:#x}")
    for k in range(5):
        a(f"v_lshlrev_b32 v{24+k}, 16, v{24+k}")
        a(f"v_mul_f32 v{24+k}, s{T[4]}, v{24+k}")
    a("v_mov_b32 v29, 0")
    a("v_cvt_pk_bf16_f32 v36, v24, v25")
    a("v_cvt_pk_bf16_f32 v37, v26, v27")
    a("v_cvt_pk_bf16_f32 v38, v28, v29")
    a("v_mov_b32 v39, 0")
    a("v_lshlrev_b32 v3, 4, v0")
    a(f"s_mov_b32 s{T[0]}, {WS_WX}")
    a(f"buffer_store_dwordx4 v[36:39], v3, s[{R4}:{R4+3}], s{T[0]} offen{ST}")
    a("s_branch L1_pack_e")
    a.label("L1_pack_b")
    a(f"s_cmp_gt_u32 s{W}, 4")
    a("s_cbranch_scc1 L1_pack_e")
    a("v_lshlrev_b32 v3, 4, v1")
    a(f"s_mov_b32 s{T[0]}, {WS_WXP}")
    a("s_mov_b32 exec_hi, 0")
    a(f"buffer_store_dwordx4 v[32:35], v3, s[{R4}:{R4+3}], s{T[0]} offen{ST}")
    a("s_mov_b64 exec, -1")
    a.label("L1_pack_e")
    signal(a, INC_GEMM, "p")
```

```python
from asmlib import *
from common import *
import p1

EXP = set()
CAP = 27
TILE = 2560
L_SRC = CAP * TILE
L_STAGE = L_SRC + 32 * 128
L_S = L_STAGE + 65536
S_ROW = 544
L_T = L_S + 40 * S_ROW
L_REL = L_T + 640
L_NG = L_REL + 1280
L_TB = L_NG + 32
W = S_WAVE
NRW = 7

SWS, SQ, SH, SO, STAB, SDBG = R0, R1, R2, R3, R4, R5
S_T, S_N, S_TG0, S_NT, S_WIN, S_TG = 64, 65, 66, 67, 68, 69
ZB, FB = 70, 75
S_STG, S_G5, S_IB, S_FIRST, S_WPH, S_M8 = 80, 81, 82, 83, 84, 86
S_RA, S_RB = 26, 27
S_HALF, S_HF = 85, 68
S_MK = 56
t0, t1, t2, t3 = T[0], T[1], T[2], T[3]

Z = (16, 32); E = 48; ACC = 64; M = 80; A0 = 88; A1 = 92; A2 = 96; BP = 100
I0 = 200; I1 = 204; B2 = 116; B2Q = 120; WXA = 108; WH = 136
ONE2 = 208; SR = 210; DV = 212
vA0, vA1, vA2, vB0, vB1, vSR, vLC, vS, vT = 214, 215, 216, 217, 218, 219, 220, 221, 222
vOS, vSL = 223, 224
vOS1, vSL1 = 12, 13
cA2, cB0, cB1 = 225, 226, 227
FL = 228
ZQ = 236
cSR = 240
NV = 241

def zero_fill(a):
    for k in range(4): a(f"v_mov_b32 v{36+k}, 0")
    a("v_lshlrev_b32 v40, 4, v0")
    a("v_add_u32 v41, 0x10000, v40")
    for k in range(8): a(f"ds_write_b128 v40, v[36:39] offset:{k*8192}")
    a("ds_write_b128 v41, v[36:39]")

def mf32(d, x, y, c): return f"v_mfma_f32_32x32x16_bf16 v[{d}:{d+15}], v[{x}:{x+3}], v[{y}:{y+3}], {c}"
def z_mfmas(zn):
    return [mf32(zn, A0, I0, "0"), mf32(zn, A1, I1, f"v[{zn}:{zn+15}]"), mf32(zn, A2, B2, f"v[{zn}:{zn+15}]")]

def dma(a, slot):
    a(f"v_add_u32 v{DV}, v{SR}, v{vLC}")
    a(f"v_add_u32 v{DV+1}, v{SR+1}, v{vLC}")
    a(f"s_add_u32 m0, s{S_STG}, {slot*2048}")
    a("s_nop 0")
    a(f"buffer_load_dwordx4 v{DV}, s[{SQ}:{SQ+3}], 0 offen lds")
    a(f"s_add_u32 m0, s{S_STG}, {slot*2048+1024}")
    a("s_nop 0")
    a(f"buffer_load_dwordx4 v{DV+1}, s[{SQ}:{SQ+3}], 0 offen lds")

def shift_q(a, base):
    for k in range(4): a(f"s_mov_b32 s{base+k}, s{base+k+1}")

def flush(a, tmp):
    for q in range(8): a(f"v_cvt_pk_bf16_f32 v{FL+q}, v{ACC+2*q}, v{ACC+2*q+1}")
    a(f"s_mov_b64 exec, s[{S_M8}:{S_M8+1}]")
    a(f"ds_write_b128 v{vS}, v[{FL}:{FL+3}]")
    a(f"ds_write_b128 v{vS}, v[{FL+4}:{FL+7}] offset:16")
    a("s_mov_b64 exec, -1")
    a(mf32(tmp, WXA, FL, "0"))
    a(mf32(tmp, WXA + 4, FL + 4, f"v[{tmp}:{tmp+15}]"))
    a(mf32(ACC, ZQ, ZQ, "0"))
    a(f"v_add_u32 v{vS}, {8*S_ROW}, v{vS}")
    shift_q(a, FB)
    a("s_nop 6")
    a("s_mov_b32 exec_hi, 0")
    a(f"ds_add_f32 v{vT}, v{tmp}")
    a("s_mov_b64 exec, -1")
    a(f"v_add_u32 v{vT}, 128, v{vT}")

def rotate_b2(a):
    if "oldrot" in EXP:
        for q in range(4): a(f"v_mov_b32 v{B2+q}, v{B2Q+q}")
        for q in range(12): a(f"v_mov_b32 v{B2Q+q}, v{B2Q+4+q}")
        return
    for q in range(0, 4, 2): a(f"v_pk_mov_b32 v[{B2+q}:{B2+q+1}], v[{B2Q+q}:{B2Q+q+1}], v[{B2Q+q}:{B2Q+q+1}] op_sel:[0,1]")
    for q in range(0, 12, 2): a(f"v_pk_mov_b32 v[{B2Q+q}:{B2Q+q+1}], v[{B2Q+4+q}:{B2Q+4+q+1}], v[{B2Q+4+q}:{B2Q+4+q+1}] op_sel:[0,1]")

def rec_consts(a):
    a("v_lshrrev_b32 v44, 4, v1")
    a(f"s_lshl_b32 s{t0}, s{W}, 2")
    a(f"v_add_u32 v44, s{t0}, v44")
    a(f"s_mov_b32 s{t0}, {CH_STRIDE*16}")
    a(f"v_mul_lo_u32 v42, s{t0}, v44")
    a(f"s_movk_i32 s{t0}, {CH_STRIDE*4}")
    a(f"v_mul_lo_u32 v43, s{t0}, v44")
    a("v_lshlrev_b32 v40, 2, v44")
    a("v_and_b32 v41, 15, v1")

OSL = ((vOS, vSL), (vOS1, vSL1))

def rec_loads(a, lbl):
    for it in range(4):
        p, r = it >> 1, it & 1
        os_, sl_ = OSL[r]
        a(f"v_add_u32 v36, s{S_IB}, v41")
        if p: a("v_add_u32 v36, 16, v36")
        a(f"v_cmp_lt_u32 s[{S_MK+2*it}:{S_MK+2*it+1}], v36, v{sl_}")
        a(f"v_add_u32 v36, v36, v{os_}")
        a(f"v_lshl_add_u32 v37, v36, 4, v42")
        a(f"v_lshl_add_u32 v38, v36, 2, v43")
        a(f"s_mov_b32 s{S_RA}, {WS_RECA + r*32*CH_STRIDE*16}")
        a(f"s_mov_b32 s{S_RB}, {WS_RECB + r*32*CH_STRIDE*4}")
        a(f"s_mov_b64 exec, s[{S_MK+2*it}:{S_MK+2*it+1}]")
        a(f"s_cbranch_execz {lbl}_{it}")
        a(f"buffer_load_dwordx4 v[{16+4*it}:{19+4*it}], v37, s[{SWS}:{SWS+3}], s{S_RA} offen sc1")
        a(f"buffer_load_dword v{32+it}, v38, s[{SWS}:{SWS+3}], s{S_RB} offen sc1")
        a.label(f"{lbl}_{it}")
        a("s_mov_b64 exec, -1")

def build_recs(a, lbl):
    a("s_waitcnt vmcnt(0)")
    if "chain" in EXP and lbl == "L2_b0": a.stamp(0)
    a("v_mov_b32 v58, 0x3f80")
    for it in range(4):
        RB = 32 + it
        r = it & 1
        a(f"s_mov_b64 exec, s[{S_MK+2*it}:{S_MK+2*it+1}]")
        a(f"s_cbranch_execz {lbl}_a{it}")
        a(f"v_lshrrev_b32 v44, 17, v{RB}")
        a(f"v_subrev_u32 v44, s{S_G5}, v44")
        a(f"v_lshl_add_u32 v45, v44, 8, v40")
        a(f"v_add_u32 v45, {L_REL + 128*r}, v45")
        a(f"ds_read_b32 v{2+2*it}, v45")
        a(f"v_lshl_add_u32 v47, v44, 2, v59")
        a(f"ds_read_b32 v{3+2*it}, v47")
        a.label(f"{lbl}_a{it}")
    a("s_mov_b64 exec, -1")
    a(f"s_lshl_b32 s{t1}, s{S_TG0}, 5")
    a(f"s_sub_u32 s{t0}, s{S_IB}, s{t1}")
    a(f"v_add_u32 v49, s{t0}, v41")
    a(f"s_movk_i32 s{t1}, {CAP*32}")
    a("s_waitcnt lgkmcnt(0)")
    for it in range(4):
        RA, RB = 16 + 4 * it, 32 + it
        p, r = it >> 1, it & 1
        a(f"s_mov_b64 exec, s[{S_MK+2*it}:{S_MK+2*it+1}]")
        a(f"s_cbranch_execz {lbl}_{it}")
        a(f"v_add3_u32 v44, v49, v{2+2*it}, v{3+2*it}")
        a(f"v_add_u32 v44, v44, v{OSL[r][0]}")
        if p: a("v_add_u32 v44, 16, v44")
        a(f"v_and_b32 v50, 0x3fff, v{RB}")
        a(f"v_cmp_gt_u32 vcc, s{t1}, v44")
        a("v_lshlrev_b32 v50, 9, v50")
        a("v_add_u32 v50, 512, v50")
        a("s_and_b64 exec, exec, vcc")
        a(f"s_cbranch_execz {lbl}_{it}")
        a("v_lshlrev_b32 v51, 2, v44")
        a(f"v_add_u32 v51, {L_SRC}, v51")
        a("ds_write_b32 v51, v50")
        a("v_lshrrev_b32 v52, 5, v44")
        a(f"v_mul_u32_u24 v52, {TILE}, v52")
        a("v_and_b32 v53, 31, v44")
        a("v_lshl_add_u32 v55, v53, 4, v52")
        a(f"ds_write_b128 v55, v[{RA}:{RA+3}] offset:2048")
        a(f"v_bfe_u32 v54, v{RB}, 14, 3")
        a("v_lshl_add_u32 v52, v53, 6, v52")
        a("v_lshl_add_u32 v52, v54, 1, v52")
        a("v_bfe_u32 v53, v53, 2, 2")
        a("v_lshl_add_u32 v54, v53, 4, v52")
        a("ds_write_b16 v54, v58")
        a("v_xor_b32 v55, 1, v53")
        a("v_lshl_add_u32 v55, v55, 4, v52")
        a(f"ds_write_b16_d16_hi v55, v{RA+2}")
        a("v_xor_b32 v56, 2, v53")
        a("v_lshl_add_u32 v56, v56, 4, v52")
        a(f"ds_write_b16 v56, v{RA+3}")
        a("v_xor_b32 v57, 3, v53")
        a("v_lshl_add_u32 v57, v57, 4, v52")
        a(f"ds_write_b16_d16_hi v57, v{RA+3}")
        a.label(f"{lbl}_{it}")
    a("s_mov_b64 exec, -1")

def poll(a, lbl, srdreg, voff, want, sleep):
    a(f"s_mov_b32 s{t1}, 0x8000")
    a("s_mov_b32 exec_lo, 1")
    a("s_mov_b32 exec_hi, 0")
    a.label(lbl)
    a(f"buffer_load_dword v10, v{voff}, s[{srdreg}:{srdreg+3}], 0 offen sc1")
    a("s_waitcnt vmcnt(0)")
    a(f"v_readfirstlane_b32 s{t0}, v10")
    a(f"s_and_b32 s{t0}, s{t0}, {want:#x}")
    a(f"s_cmp_eq_u32 s{t0}, {want:#x}")
    a(f"s_cbranch_scc1 {lbl}_ok")
    a(f"s_sub_u32 s{t1}, s{t1}, 1")
    a(f"s_cmp_eq_u32 s{t1}, 0")
    a(f"s_cbranch_scc1 {lbl}_ok")
    a(f"s_sleep {sleep}")
    a(f"s_branch {lbl}")
    a.label(f"{lbl}_ok")
    a("s_mov_b64 exec, -1")

def mailbox(a, word):
    srd(a, R4, P_WS, WS_MBX, 2048)
    a(f"s_and_b32 s{t2}, s2, 15")
    a(f"s_lshl_b32 s{t2}, s{t2}, 7")
    a(f"s_add_u32 s{t2}, s{t2}, {4*word}")
    a(f"v_mov_b32 v8, s{t2}")

def a_reads(u1):
    sl = u1 % 4
    return [f"ds_read_b128 v[{A0}:{A0+3}], v{vA0} offset:{sl*2048}",
            f"ds_read_b128 v[{A1}:{A1+3}], v{vA1} offset:{sl*2048}",
            f"ds_read_b128 v[{A2}:{A2+3}], v{vA2} offset:{u1*TILE}"]
def bp_reads(u):
    return [f"ds_read_b64_tr_b16 v[{BP}:{BP+1}], v{vB0} offset:{u*TILE}",
            f"ds_read_b64_tr_b16 v[{BP+2}:{BP+3}], v{vB1} offset:{u*TILE}",
            f"ds_read_b64_tr_b16 v[{BP+4}:{BP+5}], v{vB0} offset:{u*TILE+1024}",
            f"ds_read_b64_tr_b16 v[{BP+6}:{BP+7}], v{vB1} offset:{u*TILE+1024}"]
def seg_mfmas():
    return [mf32(ACC, M, BP, f"v[{ACC}:{ACC+15}]"), mf32(ACC, M + 4, BP + 4, f"v[{ACC}:{ACC+15}]")]

OOL = []

def first_pass_wait(a, lbl):
    a(f"s_cmp_eq_u32 s{S_WPH}, 0")
    a(f"s_cbranch_scc0 {lbl}")
    a("s_waitcnt vmcnt(0)")
    a.label(lbl)

def iteration(a, u):
    zc, zn = Z[u & 1], Z[(u + 1) & 1]
    sl = (u + 1) % 4
    a(f"s_setprio {3-u}")
    a("s_waitcnt lgkmcnt(0)")
    a(f"s_cmp_eq_u32 s{S_TG}, s{FB}")
    a(f"s_cbranch_scc1 L2_fl_{u}")
    a.label(f"L2_fl_{u}_r")
    OOL.append((f"L2_fl_{u}", lambda a, zn=zn, u=u: (first_pass_wait(a, f"L2_flw_{u}"), flush(a, zn), a(f"s_branch L2_fl_{u}_r"))))
    a(f"s_cmp_eq_u32 s{S_TG}, s{ZB}")
    a(f"s_cbranch_scc1 L2_rt_{u}")
    a.label(f"L2_rt_{u}_r")
    def rt(a, u=u):
        first_pass_wait(a, f"L2_rtw_{u}")
        rotate_b2(a); shift_q(a, ZB)
        a(f"s_and_b32 s{S_HALF}, s{S_HF}, 1")
        a(f"s_lshr_b32 s{S_HF}, s{S_HF}, 1")
        a(f"s_branch L2_rt_{u}_r")
    OOL.append((f"L2_rt_{u}", rt))
    zm = z_mfmas(zn); sm = seg_mfmas(); bp = bp_reads(u); ar = a_reads(u + 2)
    def run(op, regs, att):
        for i, k in enumerate(regs):
            a(f"{op} v{E+k}, v{(zc if op == 'v_exp_f32' else E)+k}")
            for x in att.get(i, []): a(x)
    def pk(op, lo):
        for k in range(lo, lo + 8, 2):
            other = f"v[{ONE2}:{ONE2+1}]" if op == "v_pk_add_f32" else f"v[{zc+k}:{zc+k+1}]"
            a(f"{op} v[{E+k}:{E+k+1}], v[{E+k}:{E+k+1}], {other}")
    def cvt(lo):
        for k in range(lo, lo + 8, 2): a(f"v_cvt_pk_bf16_f32 v{M+k//2}, v{E+k}, v{E+k+1}")
    att = {0: [sm[0]],
           1: [f"v_add_u32 v{DV}, v{SR}, v{vLC}", f"s_add_u32 m0, s{S_STG}, {sl*2048}"],
           2: [f"v_add_u32 v{DV+1}, v{SR+1}, v{vLC}", f"buffer_load_dwordx4 v{DV}, s[{SQ}:{SQ+3}], 0 offen lds"],
           3: [bp[0], bp[1]],
           4: [zm[0]],
           5: [f"s_add_u32 m0, s{S_STG}, {sl*2048+1024}"],
           6: [f"buffer_load_dwordx4 v{DV+1}, s[{SQ}:{SQ+3}], 0 offen lds"],
           7: [f"s_cmp_eq_u32 s{S_WPH}, 0", f"s_cbranch_scc1 L2_wl_{u}", f"L2_wl_{u}_r:"]}
    def wl(a, u=u):
        a("v_lshlrev_b32 v5, 4, v1")
        a(f"s_lshl_b32 s{t0}, s{W}, 14")
        a(f"s_add_u32 s{t0}, s{t0}, {WS_WHP + u*4096}")
        for q in range(4 * u, 4 * u + 4):
            a(f"buffer_load_dwordx4 v[{WH+4*q}:{WH+4*q+3}], v5, s[{SWS}:{SWS+3}], s{t0} offen offset:{(q%4)*1024}")
        a(f"s_branch L2_wl_{u}_r")
    OOL.append((f"L2_wl_{u}", wl))
    run("v_exp_f32", range(0, 8), att)
    pk("v_pk_add_f32", 0)
    att = {0: [zm[1]],
           1: [f"s_add_u32 s{S_T}, s{S_T}, 1", f"s_add_u32 s{S_TG}, s{S_TG}, 1"],
           4: [zm[2]],
           5: [f"s_cmp_lt_u32 s{S_WPH}, 2", f"s_cbranch_scc1 L2_wv_{u}", "s_waitcnt vmcnt(6)", f"L2_wv_{u}_r:", ar[0]],
           6: [ar[1], ar[2]],
           7: [f"ds_read2_b32 v[{SR}:{SR+1}], v{vSR} offset0:{u*32} offset1:{u*32+16}"]}
    def wv(a, u=u):
        a(f"s_cmp_eq_u32 s{S_WPH}, 0")
        a(f"s_cbranch_scc1 L2_wv_{u}_0")
        a(f"s_waitcnt vmcnt({(18, 14, 10, 6)[u]})")
        a(f"s_branch L2_wv_{u}_r")
        a.label(f"L2_wv_{u}_0")
        a(f"s_waitcnt vmcnt({(16, 20, 24, 22)[u]})")
        a(f"s_branch L2_wv_{u}_r")
    OOL.append((f"L2_wv_{u}", wv))
    run("v_rcp_f32", range(0, 8), att)
    a(f"s_cmp_eq_u32 s{S_HALF}, 1")
    pk("v_pk_mul_f32", 0)
    cvt(0)
    a(f"s_cbranch_scc1 L2_hf_{u}")
    def hf(a, u=u):
        a(sm[1]); a(f"s_mov_b32 s{S_HALF}, 0"); a(bp[2]); a(bp[3])
        a(f"s_branch L2_hf_{u}_r")
    OOL.append((f"L2_hf_{u}", hf))
    run("v_exp_f32", range(8, 16), {0: [sm[1]], 1: [bp[2]], 2: [bp[3]]})
    pk("v_pk_add_f32", 8)
    run("v_rcp_f32", range(8, 16), {})
    pk("v_pk_mul_f32", 8)
    cvt(8)
    a.label(f"L2_hf_{u}_r")
    a(f"s_cmp_eq_u32 s{S_T}, s{S_N}")
    a("s_cbranch_scc1 L2_win_end")

def constants_a(a, b=44, mk=52):
    a(f"v_and_b32 v{b+0}, 31, v1")
    a(f"v_lshrrev_b32 v{b+1}, 5, v1")
    a(f"v_mov_b32 v{ONE2}, 1.0")
    a(f"v_mov_b32 v{ONE2+1}, 1.0")
    for q in range(4): a(f"v_mov_b32 v{ZQ+q}, 0")
    a(f"s_mov_b32 s{S_M8}, 0xff")
    a(f"s_mov_b32 s{S_M8+1}, 0xff")
    a(f"v_lshlrev_b32 v{b+2}, 3, v{b+1}")
    a(f"v_sub_u32 v{b+2}, v{b+0}, v{b+2}")
    a(f"v_mov_b32 v{b+4}, 0x3f80")
    a(f"v_mov_b32 v{b+5}, 0x3f800000")
    a(f"v_and_b32 v{b+3}, 1, v{b+2}")
    a(f"v_cmp_eq_u32 vcc, 1, v{b+3}")
    a(f"v_lshrrev_b32 v{b+6}, 1, v{b+2}")
    a(f"v_add_u32 v{b+7}, -8, v{b+6}")
    a(f"v_cndmask_b32 v{b+3}, v{b+4}, v{b+5}, vcc")
    for I, r in ((I0, b + 6), (I1, b + 7)):
        for q0 in (0, 2):
            a(f"v_cmp_eq_u32 s[{mk}:{mk+1}], {q0}, v{r}")
            a(f"v_cmp_eq_u32 s[{mk+2}:{mk+3}], {q0+1}, v{r}")
            a("s_nop 0")
            a(f"v_cndmask_b32 v{I+q0}, 0, v{b+3}, s[{mk}:{mk+1}]")
            a(f"v_cndmask_b32 v{I+q0+1}, 0, v{b+3}, s[{mk+2}:{mk+3}]")

def constants_b(a, b=44):
    a(f"v_and_b32 v{b+0}, 31, v1")
    a(f"v_lshrrev_b32 v{b+1}, 5, v1")
    a(f"s_lshl_b32 s{S_STG}, s{W}, 13")
    a(f"s_add_u32 s{S_STG}, s{S_STG}, {L_STAGE}")
    a(f"v_bfe_u32 v{b+2}, v{b+0}, 2, 2")
    a(f"v_xor_b32 v{b+3}, v{b+1}, v{b+2}")
    a(f"v_lshlrev_b32 v{b+4}, 6, v{b+0}")
    a(f"v_add_u32 v{b+5}, s{S_STG}, v{b+4}")
    a(f"v_lshl_add_u32 v{vA0}, v{b+3}, 4, v{b+5}")
    a(f"v_xor_b32 v{b+3}, 2, v{b+3}")
    a(f"v_lshl_add_u32 v{vA1}, v{b+3}, 4, v{b+5}")
    a(f"v_lshlrev_b32 v{b+3}, 4, v{b+0}")
    a(f"v_add_u32 v{b+3}, 2048, v{b+3}")
    a(f"v_lshl_add_u32 v{b+4}, v{b+2}, 4, v{b+4}")
    a(f"v_cmp_eq_u32 vcc, 1, v{b+1}")
    a(f"v_bfe_u32 v{b+2}, v1, 2, 2")
    a(f"v_lshl_add_u32 v{b+2}, v{b+1}, 2, v{b+2}")
    a(f"v_cndmask_b32 v{cA2}, v{b+3}, v{b+4}, vcc")
    a(f"v_lshlrev_b32 v{b+2}, 6, v{b+2}")
    a(f"v_and_b32 v{b+3}, 1, v1")
    a(f"v_lshl_add_u32 v{b+2}, v{b+3}, 3, v{b+2}")
    a(f"v_bfe_u32 v{b+3}, v1, 4, 1")
    a(f"v_lshlrev_b32 v{b+3}, 1, v{b+3}")
    a(f"v_bfe_u32 v{b+4}, v1, 1, 1")
    a(f"v_or_b32 v{b+3}, v{b+3}, v{b+4}")
    a(f"v_xor_b32 v{b+3}, v{b+3}, v{b+1}")
    a(f"v_lshl_add_u32 v{cB0}, v{b+3}, 4, v{b+2}")
    a(f"v_xor_b32 v{b+3}, 2, v{b+3}")
    a(f"v_lshl_add_u32 v{b+4}, v{b+3}, 4, v{b+2}")
    a(f"v_add_u32 v{cB1}, 512, v{b+4}")
    a(f"v_and_b32 v{b+2}, 3, v1")
    a(f"v_bfe_u32 v{b+3}, v1, 4, 2")
    a(f"v_xor_b32 v{b+2}, v{b+2}, v{b+3}")
    a(f"v_lshlrev_b32 v{b+2}, 4, v{b+2}")
    a(f"s_lshl_b32 s{t0}, s{W}, 6")
    a(f"s_sub_u32 s{t1}, s{t0}, 512")
    a(f"v_add_u32 v{vLC}, s{t1}, v{b+2}")
    a(f"v_and_b32 v{b+2}, 7, v1")
    a(f"v_mul_u32_u24 v{b+2}, {S_ROW}, v{b+2}")
    a(f"v_lshl_add_u32 v{b+2}, v{b+1}, 5, v{b+2}")
    a(f"s_add_u32 s{t0}, s{t0}, {L_S}")
    a(f"v_add_u32 v{vS}, s{t0}, v{b+2}")
    a(f"v_lshlrev_b32 v{b+2}, 2, v{b+0}")
    a(f"v_add_u32 v{vT}, {L_T}, v{b+2}")
    a(f"v_lshrrev_b32 v{b+2}, 2, v1")
    a(f"v_lshlrev_b32 v{b+2}, 2, v{b+2}")
    a(f"v_add_u32 v{cSR}, {L_SRC}, v{b+2}")

def phase2(a):
    def entry(a):
        a("v_and_b32 v1, 63, v0")
        a(f"s_cmp_eq_u32 s{W}, 0")
        a("s_cbranch_scc0 2f")
        p1.arrive_issue(a, f"s{p1.S_INC}")
        a.label("2")
        srd(a, SWS, P_WS, 0, WS_USED)
        a(f"s_mul_i32 s{S_G5}, s2, 5")
    def table_load(a):
        srd(a, STAB, P_WS, WS_TAB, NCH * TAB_STRIDE)
        a("v_lshlrev_b32 v2, 12, v1")
        a(f"s_lshl_b32 s{t0}, s2, 4")
        a(f"buffer_load_dwordx3 v[60:62], v2, s[{STAB}:{STAB+3}], s{t0} offen sc1")
    def t_zero(a):
        a(f"v_add_u32 v41, {L_T}, v40")
        a("s_mov_b32 exec_lo, -1")
        a("s_mov_b32 exec_hi, 0xff")
        a("ds_write_b128 v41, v[36:39]")
        a("s_mov_b64 exec, -1")
    a.label("L_phase2_fast")
    a.stamp(5)
    entry(a)
    table_load(a)
    zero_fill(a)
    a(f"s_cmp_eq_u32 s{W}, 0")
    a("s_cbranch_scc0 L2_tab")
    t_zero(a)
    p1.arrive_finish(a, f"s{p1.S_INC}", "f")
    a("s_branch L2_tab")
    a.label("L_phase2")
    a.stamp(5)
    entry(a)
    zero_fill(a)
    a(f"s_cmp_eq_u32 s{W}, 0")
    a("s_cbranch_scc0 L2_w1")
    t_zero(a)
    p1.arrive_finish(a, f"s{p1.S_INC}", "a")
    a("s_and_b32 s52, s85, 1")
    a("s_cmp_eq_u32 s52, 1")
    a("s_cbranch_scc1 L2_inited")
    srd(a, SDBG, P_DBG, 0, 256)
    a("v_mov_b32 v8, 0")
    poll(a, "L2_poll0", SDBG, 8, 1, 16)
    a("s_mov_b32 s85, 0")
    a.label("L2_inited")
    a("s_and_b32 s52, s85, 0xffff")
    a(f"s_cmp_eq_u32 s52, {K1:#x}")
    a("s_cbranch_scc1 L2_w1")
    mailbox(a, 0)
    poll(a, "L2_poll1", R4, 8, 1, 2)
    a.label("L2_w1")
    a("s_barrier")
    table_load(a)
    a.label("L2_tab")
    a.stamp(6)
    a(f"s_mov_b32 s{S_IB}, 0")
    a(f"s_mov_b32 s{S_TG0}, 0")
    a(f"s_mov_b32 s{S_FIRST}, 1")
    a(mf32(ACC, ZQ, ZQ, "0"))
    a("s_waitcnt vmcnt(0)")
    if "chain" in EXP: a.stamp(2)
    a(f"v_and_b32 v46, 0xffff, v60")
    a(f"v_lshrrev_b32 v47, 16, v62")
    a(f"v_sub_u32 v47, v47, v46")
    rec_consts(a)
    a("v_add_u32 v45, 128, v40")
    a(f"ds_bpermute_b32 v{vOS}, v40, v46")
    a(f"ds_bpermute_b32 v{vSL}, v40, v47")
    a(f"ds_bpermute_b32 v{vOS1}, v45, v46")
    a(f"ds_bpermute_b32 v{vSL1}, v45, v47")
    a("s_waitcnt lgkmcnt(0)")
    rec_loads(a, "L2_ld0")
    if "chain" in EXP: a.stamp(3)
    a(f"s_cmp_ge_u32 s{W}, 5")
    a("s_cbranch_scc1 L2_noscan")
    a(f"s_cmp_lt_u32 s{W}, 2")
    a("s_cbranch_scc1 L2_sel")
    a("v_mov_b32 v60, v61")
    a("v_mov_b32 v61, v62")
    a(f"s_cmp_lt_u32 s{W}, 4")
    a("s_cbranch_scc1 L2_sel")
    a("v_mov_b32 v60, v61")
    a.label("L2_sel")
    a(f"s_and_b32 s{t0}, s{W}, 1")
    a(f"s_lshl_b32 s{t0}, s{t0}, 4")
    a(f"v_alignbit_b32 v61, v61, v60, s{t0}")
    a("v_and_b32 v60, 0xffff, v61")
    a("v_lshrrev_b32 v61, 16, v61")
    a("v_sub_u32 v62, v61, v60")
    a("v_mov_b32 v63, v62")
    for sh in (1, 2, 4, 8):
        a("s_nop 1")
        a(f"v_add_u32_dpp v63, v63, v63 row_shr:{sh} row_mask:0xf bank_mask:0xf")
    a("s_nop 1")
    a("v_add_u32_dpp v63, v63, v63 row_bcast:15 row_mask:0xa bank_mask:0xf")
    a("s_nop 1")
    a("v_add_u32_dpp v63, v63, v63 row_bcast:31 row_mask:0xc bank_mask:0xf")
    a("v_sub_u32 v62, v63, v62")
    a("v_sub_u32 v62, v62, v60")
    a(f"s_lshl_b32 s{t0}, s{W}, 8")
    a(f"s_add_u32 s{t0}, s{t0}, {L_REL}")
    a("v_lshlrev_b32 v45, 2, v1")
    a(f"v_add_u32 v45, s{t0}, v45")
    a("ds_write_b32 v45, v62")
    a(f"s_lshl_b32 s{t0}, s{W}, 2")
    a(f"s_add_u32 s{t0}, s{t0}, {L_NG}")
    a(f"v_mov_b32 v45, s{t0}")
    a("s_mov_b32 exec_lo, 0")
    a("s_mov_b32 exec_hi, 0x80000000")
    a("ds_write_b32 v45, v63")
    a("s_mov_b64 exec, -1")
    a.label("L2_noscan")
    a.label("L2_round_bar")
    a("s_waitcnt lgkmcnt(0)")
    a("s_barrier")
    a.stamp(7)
    a(f"s_cmp_eq_u32 s{S_FIRST}, 0")
    a("s_cbranch_scc1 L2_have_tb")
    a("v_lshlrev_b32 v45, 2, v1")
    a(f"v_add_u32 v45, {L_NG}, v45")
    a("s_mov_b32 exec_lo, 0xff")
    a("s_mov_b32 exec_hi, 0")
    a("ds_read_b32 v46, v45")
    a("s_waitcnt lgkmcnt(0)")
    a("v_max_u32 v46, 1, v46")
    a("v_add_u32 v47, -1, v46")
    a("v_and_b32 v47, 31, v47")
    a("v_cmp_gt_u32 vcc, 16, v47")
    a("v_add_u32 v46, 31, v46")
    a("v_lshrrev_b32 v46, 5, v46")
    a(f"s_and_b32 s{S_HF}, vcc_lo, 0x1f")
    NTG = (T[0], T[1], T[2], T[3], 85)
    for g in range(5): a(f"v_readlane_b32 s{NTG[g]}, v46, {g}")
    a(f"s_mov_b32 s{ZB}, s{NTG[0]}")
    for g in range(1, 4): a(f"s_add_u32 s{ZB+g}, s{ZB+g-1}, s{NTG[g]}")
    a(f"s_add_u32 s{S_NT}, s{ZB+3}, s85")
    a(f"s_mov_b32 s{ZB+4}, s{S_NT}")
    a(f"s_mov_b32 s{S_HALF}, 0")
    a("v_mov_b32 v46, 0")
    for g in range(1, 5):
        a(f"s_lshl_b32 s{t0}, s{ZB+g-1}, 5")
        a(f"v_writelane_b32 v46, s{t0}, {g}")
    for k in range(4): a(f"s_add_u32 s{FB+k}, s{ZB+k}, 1")
    a(f"s_mov_b32 s{FB+4}, 0x7ffffff0")
    for k in range(5): a(f"s_sub_u32 s{ZB+k}, s{ZB+k}, 1")
    a(f"s_lshl_b32 s{t0}, s{W}, 5")
    a(f"s_add_u32 s{t0}, s{t0}, {L_TB}")
    a("v_lshlrev_b32 v45, 2, v1")
    a(f"v_add_u32 v45, s{t0}, v45")
    a("ds_write_b32 v45, v46")
    a("s_mov_b64 exec, -1")
    a.label("L2_have_tb")
    a(f"s_lshl_b32 s{t0}, s{W}, 5")
    a(f"s_add_u32 s{t0}, s{t0}, {L_TB}")
    a(f"v_mov_b32 v59, s{t0}")
    a("s_waitcnt lgkmcnt(0)")
    if "chain" in EXP: a.stamp(4)
    build_recs(a, "L2_b0")
    a.label("L2_more")
    a(f"s_add_u32 s{S_IB}, s{S_IB}, 32")
    a(f"v_cmp_lt_u32 vcc, s{S_IB}, v{vSL}")
    a(f"v_cmp_lt_u32 s[52:53], s{S_IB}, v{vSL1}")
    a("s_or_b64 vcc, vcc, s[52:53]")
    a("s_cbranch_vccz L2_built0")
    rec_loads(a, "L2_ld1")
    build_recs(a, "L2_b1")
    a("s_branch L2_more")
    a.label("L2_built0")
    if "chain" in EXP: a.stamp(11)
    a(f"s_cmp_eq_u32 s{W}, 7")
    a("s_cbranch_scc0 L2_built")
    a(f"s_cmp_eq_u32 s{S_FIRST}, 0")
    a("s_cbranch_scc1 L2_built")
    mailbox(a, 1)
    poll(a, "L2_poll2", R4, 8, 1, 2)
    a.label("L2_built")
    a("s_waitcnt vmcnt(0) lgkmcnt(0)")
    a("s_barrier")
    a.stamp(8)
    a("s_setprio 3")
    a(f"v_mov_b32 v{vSR}, v{cSR}")
    for k in range(4):
        a(f"ds_read2_b32 v[{E+2*k}:{E+2*k+1}], v{vSR} offset0:{k*32} offset1:{k*32+16}")
    a(f"ds_read2_b32 v[{SR}:{SR+1}], v{vSR} offset0:128 offset1:144")
    a(f"s_cmp_eq_u32 s{S_FIRST}, 0")
    a("s_cbranch_scc1 L2_nob2")
    srd(a, SQ, P_WS, WS_Q, MAT_BYTES)
    a("v_and_b32 v3, 31, v1")
    a("v_lshrrev_b32 v4, 5, v1")
    a(f"s_lshl_b32 s{t0}, s{W}, 9")
    a("v_lshlrev_b32 v5, 4, v3")
    a(f"v_add_u32 v5, s{t0}, v5")
    a(f"s_lshl_b32 s{t1}, s{S_G5}, 12")
    a(f"s_add_u32 s{t1}, s{t1}, {WS_P - WS_WX}")
    a(f"v_mul_lo_u32 v6, s{t1}, v4")
    a("v_add_u32 v5, v5, v6")
    a(f"v_add_u32 v5, {WS_WX}, v5")
    a("v_lshlrev_b32 v6, 12, v4")
    a(f"buffer_load_dwordx4 v[{B2}:{B2+3}], v5, s[{SWS}:{SWS+3}], 0 offen")
    a.label("L2_nob2")
    a("s_waitcnt lgkmcnt(1)")
    def dma_k(k):
        a(f"v_add_u32 v{E+k}, v{E+k}, v{vLC}")
        a(f"s_add_u32 m0, s{S_STG}, {k*1024}")
        a("s_nop 0")
        a(f"buffer_load_dwordx4 v{E+k}, s[{SQ}:{SQ+3}], 0 offen lds")
    for k in range(4): dma_k(k)
    a(f"s_sub_u32 s{S_N}, s{S_NT}, s{S_TG0}")
    a(f"s_min_u32 s{S_N}, s{S_N}, {CAP}")
    a(f"s_mov_b32 s{S_T}, 0")
    a(f"s_mov_b32 s{S_TG}, s{S_TG0}")
    a(f"v_mov_b32 v{vA2}, v{cA2}")
    a(f"v_mov_b32 v{vB0}, v{cB0}")
    a(f"v_mov_b32 v{vB1}, v{cB1}")
    for k in range(8): a(f"v_mov_b32 v{M+k}, 0")
    for k in range(8): a(f"v_mov_b32 v{BP+k}, 0")
    a(f"s_cmp_eq_u32 s{S_FIRST}, 0")
    a(f"s_cselect_b32 s{S_WPH}, 2, 0")
    a("s_waitcnt vmcnt(2)")
    for x in a_reads(0): a(x)
    for k in range(4, 8): dma_k(k)
    a("s_waitcnt lgkmcnt(0)")
    dma(a, 0)
    for m in z_mfmas(Z[0]): a(m)
    a(f"ds_read2_b32 v[{SR}:{SR+1}], v{vSR} offset0:160 offset1:176")
    a(f"v_add_u32 v{vSR}, 768, v{vSR}")
    a(f"s_cmp_eq_u32 s{S_FIRST}, 0")
    a("s_cbranch_scc1 L2_nob3")
    for g in range(1, 5):
        d = B2Q + 4 * (g - 1)
        a("v_add_u32 v5, v5, v6")
        a(f"buffer_load_dwordx4 v[{d}:{d+3}], v5, s[{SWS}:{SWS+3}], 0 offen")
    a(f"s_lshl_b32 s{t0}, s{W}, 6")
    a(f"s_add_u32 s{t0}, s{t0}, {WS_WXP}")
    a("v_lshlrev_b32 v7, 4, v4")
    a(f"buffer_load_dwordx4 v[{WXA}:{WXA+3}], v7, s[{SWS}:{SWS+3}], s{t0} offen")
    a(f"buffer_load_dwordx4 v[{WXA+4}:{WXA+7}], v7, s[{SWS}:{SWS+3}], s{t0} offen offset:32")
    a("s_waitcnt vmcnt(12)")
    a("s_branch L2_pw3")
    a.label("L2_nob3")
    a("s_waitcnt vmcnt(6)")
    a.label("L2_pw3")
    a(f"s_mov_b32 s{S_FIRST}, 0")
    for x in a_reads(1): a(x)
    a("s_nop 7")
    a.stamp(9)
    if "cyc" in EXP: a.cstamp(2)
    a.label("L2_loop")
    OOL.clear()
    for u in range(4): iteration(a, u)
    a(f"v_add_u32 v{vA2}, {4*TILE}, v{vA2}")
    a(f"v_add_u32 v{vB0}, {4*TILE}, v{vB0}")
    a(f"v_add_u32 v{vB1}, {4*TILE}, v{vB1}")
    a(f"v_add_u32 v{vSR}, 512, v{vSR}")
    a(f"s_add_u32 s{S_WPH}, s{S_WPH}, 1")
    a(f"s_min_u32 s{S_WPH}, s{S_WPH}, 2")
    a("s_branch L2_loop")
    for lbl, fn in OOL:
        a.label(lbl); fn(a)
    a.label("L2_win_end")
    a("s_setprio 0")
    a("s_waitcnt lgkmcnt(0)")
    a(f"s_cmp_eq_u32 s{S_TG}, s{FB}")
    a("s_cbranch_scc0 L2_we_nf")
    a("s_nop 3")
    flush(a, Z[0])
    a.label("L2_we_nf")
    for m in seg_mfmas(): a(m)
    a(f"s_add_u32 s{S_TG0}, s{S_TG0}, s{S_N}")
    a(f"s_cmp_ge_u32 s{S_TG0}, s{S_NT}")
    a("s_cbranch_scc1 L2_final")
    a("s_waitcnt vmcnt(0) lgkmcnt(0)")
    a("s_barrier")
    a(f"s_mov_b32 s{S_IB}, 0")
    zero_fill(a)
    rec_consts(a)
    rec_loads(a, "L2_ld2")
    a("s_branch L2_round_bar")

    a.label("L2_final")
    if "df" in EXP: a("s_sleep 64")
    a.stamp(10)
    if "cyc" in EXP:
        a.cstamp(3)
        a(f"s_mov_b32 s92, s{S_NT}")
    RQ, HQ, O, BR = 88, 120, 16, 40
    SP, SPO = R4, R5
    srd(a, SH, P_H, 0, MAT_BYTES)
    srd(a, SO, P_OUT, 0, MAT_BYTES)
    srd(a, SP, P_POS, 0, 60000)
    srd(a, SPO, P_OUT, MAT_BYTES, 60000)
    sR, sN, sTmp, sP = T[4], T[5], T[6], T[7]
    a("v_and_b32 v3, 15, v1")
    a("v_lshrrev_b32 v4, 4, v1")
    a("v_lshrrev_b32 v5, 3, v3")
    a("v_lshlrev_b32 v5, 12, v5")
    a("v_and_b32 v6, 7, v3")
    a("v_lshl_add_u32 v5, v6, 4, v5")
    a("v_lshl_add_u32 v5, v4, 7, v5")
    a(f"s_lshl_b32 s{t0}, s{W}, 9")
    a(f"v_add_u32 v5, s{t0}, v5")
    a(f"s_lshl_b32 s{sR}, s{S_G5}, 12")
    a(f"s_add_u32 s{sR}, s{sR}, {WS_R}")
    a("v_lshlrev_b32 v6, 9, v3")
    a("v_lshl_add_u32 v6, v4, 4, v6")
    a(f"s_lshl_b32 s{t0}, s{W}, 6")
    a(f"v_add_u32 v6, s{t0}, v6")
    a(f"s_mul_i32 s{sN}, s2, 20480")
    for nb in range(3):
        a(f"buffer_load_dwordx4 v[{RQ+4*nb}:{RQ+4*nb+3}], v5, s[{SWS}:{SWS+3}], s{sR} offen")
        a(f"s_add_u32 s{sR}, s{sR}, 8192")
    for nb in range(3):
        a(f"s_add_u32 s{sTmp}, s{sN}, {nb*8192}")
        a(f"buffer_load_dwordx4 v[{HQ+4*nb}:{HQ+4*nb+3}], v6, s[{SH}:{SH+3}], s{sTmp} offen")
    a("v_lshlrev_b32 v7, 2, v1")
    a(f"s_mul_i32 s{sP}, s2, 240")
    a(f"buffer_load_dword v8, v7, s[{SP}:{SP+3}], s{sP} offen")
    flush(a, Z[1])
    a(f"v_mul_u32_u24 v9, {S_ROW}, v3")
    a("v_lshl_add_u32 v9, v4, 4, v9")
    a(f"v_add_u32 v9, {L_S}, v9")
    a("s_waitcnt lgkmcnt(0)")
    a("s_barrier")
    a.lds = []
    seq = [(nb, ks) for nb in range(3) for ks in range(8)]
    def bread(i):
        nb, ks = seq[i]; q = BR + 4 * (i % 6)
        a.ds(f"ds_read_b128 v[{q}:{q+3}], v9 offset:{nb*16*S_ROW + ks*64}", ("B", i))
    X, EE = 64, 72
    sM16, sLN2 = T[8], T[9]
    a(f"s_mov_b32 s{sM16}, 0xffff0000")
    a(f"s_mov_b32 s{sLN2}, {NLN2:#x}")
    def epilogue(nb):
        o = O + 8 * nb
        ops = []
        if nb == 2:
            ops += ["s_mov_b32 exec_lo, 0x00ff00ff", "s_mov_b32 exec_hi, 0x00ff00ff"]
        for i in range(4):
            ops.append(f"v_lshlrev_b32 v{X+2*i}, 16, v{RQ+4*nb+i}")
            ops.append(f"v_and_b32 v{X+2*i+1}, s{sM16}, v{RQ+4*nb+i}")
        for k in range(8): ops.append(f"v_add_f32 v{X+k}, v{X+k}, v{o+k}")
        for k in range(8): ops.append(f"v_exp_f32 v{EE+k}, v{X+k}")
        for k in range(8): ops.append(f"v_add_f32 v{EE+k}, 1.0, v{EE+k}")
        for k in range(8): ops.append(f"v_rcp_f32 v{EE+k}, v{EE+k}")
        for i in range(4):
            ops.append(f"v_lshlrev_b32 v{o+2*i}, 16, v{HQ+4*nb+i}")
            ops.append(f"v_and_b32 v{o+2*i+1}, s{sM16}, v{HQ+4*nb+i}")
        for k in range(8): ops.append(f"v_mul_f32 v{X+k}, v{X+k}, v{EE+k}")
        for k in range(8): ops.append(f"v_fma_f32 v{X+k}, v{X+k}, s{sLN2}, v{o+k}")
        d = 100 + 4 * nb
        for i in range(4): ops.append(f"v_cvt_pk_bf16_f32 v{d+i}, v{X+2*i}, v{X+2*i+1}")
        ops.append(f"s_add_u32 s{sTmp}, s{sN}, {nb*8192}")
        ops.append(f"buffer_store_dwordx4 v[{d}:{d+3}], v6, s[{SO}:{SO+3}], s{sTmp} offen")
        return ops
    for i in range(5): bread(i)
    pend = []
    for i, (nb, ks) in enumerate(seq):
        q = BR + 4 * (i % 6)
        if ks == 3 and nb > 0:
            if nb == 1: a("s_waitcnt vmcnt(0)")
            pend = epilogue(nb - 1)
        a.wait_lds(("B", i))
        for cb in range(2):
            o = O + 8 * nb + 4 * cb; w = WH + 4 * (cb * 8 + ks)
            c = "0" if ks == 0 else f"v[{o}:{o+3}]"
            a(f"v_mfma_f32_16x16x32_bf16 v[{o}:{o+3}], v[{w}:{w+3}], v[{q}:{q+3}], {c}")
        if i + 5 < len(seq): bread(i + 5)
        left = 7 - ks if ks >= 3 else None
        if pend:
            k = -(-len(pend) // (8 - ks + 2))
            for op in pend[:k]: a(op)
            pend = pend[k:]
        if ks == 2:
            for op in pend: a(op)
            pend = []
    for op in pend: a(op)
    a.stamp(11)
    a("s_nop 7")
    for op in epilogue(2): a(op)
    a("s_mov_b64 exec, -1")
    a(f"s_cmp_lg_u32 s{W}, 0")
    a("s_cbranch_scc1 L2_done")
    a("s_mov_b32 exec_hi, 0x0fffffff")
    for k in range(2):
        a(f"v_lshlrev_b32 v10, 1, v1")
        if k: a("v_add_u32 v10, 1, v10")
        a("v_mul_u32_u24 v11, 171, v10")
        a("v_lshrrev_b32 v11, 9, v11")
        a("v_mul_u32_u24 v12, 3, v11")
        a("v_sub_u32 v12, v10, v12")
        a("v_lshrrev_b32 v13, 3, v11")
        a("v_lshlrev_b32 v13, 5, v13")
        a("v_lshl_add_u32 v13, v12, 3, v13")
        a("v_and_b32 v11, 7, v11")
        a("v_add3_u32 v13, v13, v11, 8")
        a("v_lshlrev_b32 v13, 2, v13")
        a(f"v_add_u32 v13, {L_T}, v13")
        a(f"ds_read_b32 v{14+k}, v13")
    a("v_lshlrev_b32 v10, 16, v8")
    a(f"v_and_b32 v11, s{sM16}, v8")
    a("s_waitcnt lgkmcnt(0)")
    a(f"v_fma_f32 v10, v14, s{sLN2}, v10")
    a(f"v_fma_f32 v11, v15, s{sLN2}, v11")
    a("v_cvt_pk_bf16_f32 v10, v10, v11")
    a(f"buffer_store_dword v10, v7, s[{SPO}:{SPO+3}], s{sP} offen")
    a.label("L2_done")
    if a.diag:
        a("s_waitcnt vmcnt(0)")
        a("s_memrealtime s[100:101]")
        a("s_waitcnt lgkmcnt(0)")
        a("s_mov_b32 s89, s100")
        a.dump_stamps(P_WS, WS_DIAG, W)
```

```python
from asmlib import *
from common import *
CONSTS = None

ST = " sc1"
W = S_WAVE

S_CNT = 85

def broadcast(a, lbl, word):
    srd(a, R4, P_WS, WS_MBX, 2048)
    a("v_lshlrev_b32 v2, 7, v1")
    a("v_mov_b32 v3, 1")
    a("s_mov_b32 exec_lo, 0xffff")
    a("s_mov_b32 exec_hi, 0")
    a(f"buffer_store_dword v3, v2, s[{R4}:{R4+3}], 0 offen offset:{4*word} sc1")
    a("s_mov_b64 exec, -1")

def arrive_issue(a, inc):
    srd(a, R5, P_DBG, 0, 256)
    a("v_mov_b32 v2, 0")
    a(f"v_mov_b32 v3, {inc}")
    a("s_mov_b32 exec_lo, 1")
    a("s_mov_b32 exec_hi, 0")
    a(f"buffer_atomic_add v3, v2, s[{R5}:{R5+3}], 0 offen sc0 sc1")
    a("s_mov_b64 exec, -1")

def arrive_finish(a, inc, tag):
    a("s_waitcnt vmcnt(0)")
    a(f"v_readfirstlane_b32 s{T[0]}, v3")
    a(f"s_add_u32 s{S_CNT}, s{T[0]}, {inc}")
    a(f"s_and_b32 s{T[1]}, s{S_CNT}, 0xffff")
    a(f"s_cmp_eq_u32 s{T[1]}, {K1:#x}")
    a(f"s_cbranch_scc0 L_arr1_{tag}")
    a(f"s_and_b32 s{T[1]}, s{T[0]}, 0xffff")
    a(f"s_cmp_eq_u32 s{T[1]}, {K1:#x}")
    a(f"s_cbranch_scc1 L_arr1_{tag}")
    broadcast(a, tag, 0)
    a.label(f"L_arr1_{tag}")
    a(f"s_and_b32 s{T[1]}, s{S_CNT}, 0xffff00ff")
    a(f"s_cmp_eq_u32 s{T[1]}, {(K2 << 16) | 1:#x}")
    a(f"s_cbranch_scc0 L_arr2_{tag}")
    a(f"s_and_b32 s{T[1]}, s{T[0]}, 0xffff00ff")
    a(f"s_cmp_eq_u32 s{T[1]}, {(K2 << 16) | 1:#x}")
    a(f"s_cbranch_scc1 L_arr2_{tag}")
    broadcast(a, tag, 1)
    a.label(f"L_arr2_{tag}")

LDS_FLAG = 163824
S_INC = 84

def inv(a):
    a(f"s_cmp_eq_u32 s{W}, 7")
    a("s_cbranch_scc0 1f")
    a("buffer_inv sc1")
    a.label("1")

EXP = set()
def signal(a, inc, tag):
    if ("d" + tag) in EXP: a("s_sleep 64")
    a(f"s_mov_b32 s{S_INC}, {inc:#x}")
    inv(a)
    a("s_waitcnt vmcnt(0) lgkmcnt(0)")
    a("s_barrier")
    a("s_branch L_phase2")

def w_lane_offsets(a):
    a("v_lshrrev_b32 v2, 2, v1")
    a("v_lshlrev_b32 v2, 9, v2")
    a("v_and_b32 v3, 3, v1")
    a("v_lshl_add_u32 v2, v3, 4, v2")
    a(f"s_lshl_b32 s{T[0]}, s{W}, 6")
    a(f"v_add_u32 v2, s{T[0]}, v2")

def w_dma(a, srdw):
    a(f"s_lshl_b32 s{T[1]}, s{W}, 14")
    for i in range(16):
        a(f"s_add_u32 m0, s{T[1]}, {i*1024}")
        a(f"s_mov_b32 s{T[2]}, {i*8192}")
        a.mem(f"buffer_load_dwordx4 v2, s[{srdw}:{srdw+3}], s{T[2]} offen lds", ("W", i))

def gemm(a, mat):
    nm = "PQR"[mat]
    VW, VF, ACC, PK = 48, 112, (152, 168), 184
    QS, RING = 192, 10
    VA = 8
    vH = (3, 4)
    sRange, sH0, sHL, sO, sScale, sTmp = T[6], T[7], T[8], T[9], T[4], T[2]
    SW_, SH_, SO_ = R0, R1, R2
    a.label(f"L1_gemm_{nm}")
    if mat == 0: srd(a, SW_, P_WE, 0, 131072)
    if mat == 1: srd(a, SW_, P_WE, 131072, 131072)
    if mat == 2: srd(a, SW_, P_WH, 0, 131072)
    srd(a, SH_, P_H, 0, MAT_BYTES)
    w_lane_offsets(a)
    a("v_lshrrev_b32 v5, 5, v1")
    a(f"s_lshl_b32 s{T[0]}, s{W}, 2")
    a("v_and_b32 v6, 31, v1")
    for i in range(2):
        a(f"v_add_u32 v7, s{T[0]}, v5")
        if i: a("v_add_u32 v7, 2, v7")
        a("v_and_b32 v16, 15, v7")
        a("v_xor_b32 v16, v16, v6")
        a("v_lshlrev_b32 v16, 4, v16")
        a(f"v_lshl_add_u32 v{vH[i]}, v7, 9, v16")
    a(f"s_mul_i32 s{sH0}, s{sRange}, 81920")
    a(f"s_lshl_b32 s{sHL}, s{W}, 11")
    def h_dma(Tt, ldsbase):
        for i in range(2):
            a(f"s_add_u32 m0, s{sHL}, {ldsbase + i*1024}")
            a(f"s_add_u32 s{sTmp}, s{sH0}, {Tt*16384}")
            a.mem(f"buffer_load_dwordx4 v{vH[i]}, s[{SH_}:{SH_+3}], s{sTmp} offen lds", ("H", Tt))
    sWL = T[10]
    a(f"s_lshl_b32 s{sWL}, s{W}, 14")
    def w_one(i):
        a(f"s_add_u32 m0, s{sWL}, {i*1024}")
        a(f"s_mov_b32 s{sTmp}, {i*8192}")
        a.mem(f"buffer_load_dwordx4 v2, s[{SW_}:{SW_+3}], s{sTmp} offen lds", ("W", i))
    HP = 24
    def hp_load(Tt):
        a(f"s_add_u32 s{sTmp}, s{sH0}, {Tt*16384}")
        for i in range(2):
            q = HP + 8 * (Tt - 2) + 4 * i
            a.mem(f"buffer_load_dwordx4 v[{q}:{q+3}], v{vH[i]}, s[{SH_}:{SH_+3}], s{sTmp} offen", ("H", Tt))
    a("s_setprio 3")
    h_dma(0, 131072)
    for i in range(8): w_one(i)
    a("s_setprio 0")
    srd(a, SO_, P_WS, (WS_P, WS_Q, WS_R)[mat], MAT_BYTES)
    a("v_lshrrev_b32 v5, 5, v1")
    a("v_bfe_u32 v6, v1, 2, 2")
    a("v_lshl_add_u32 v6, v5, 3, v6")
    a("v_lshlrev_b32 v6, 6, v6")
    a("v_bfe_u32 v7, v1, 4, 1")
    a("v_and_b32 v16, 3, v1")
    a("v_lshl_add_u32 v7, v7, 2, v16")
    if mat == 0:
        a("v_lshlrev_b32 v7, 3, v7")
    else:
        a("v_and_b32 v16, 1, v7")
        a("v_lshlrev_b32 v16, 5, v16")
        a("v_lshrrev_b32 v7, 1, v7")
        a("v_lshl_add_u32 v7, v7, 3, v16")
    a("v_add_u32 v5, v6, v7")
    a(f"s_lshl_b32 s{T[1]}, s{W}, 14")
    a(f"v_add_u32 v5, s{T[1]}, v5")
    a("v_and_b32 v6, 31, v1")
    a("v_lshrrev_b32 v7, 5, v1")
    a("v_and_b32 v16, 15, v6")
    a("v_xor_b32 v7, v7, v16")
    a("v_lshlrev_b32 v6, 9, v6")
    a("v_add_u32 v6, 0x20000, v6")
    for k in range(8):
        a(f"v_xor_b32 v16, {2*k}, v7")
        a(f"v_lshl_add_u32 v{VA+k}, v16, 4, v6")
    a("v_and_b32 v6, 31, v1")
    a("v_lshrrev_b32 v7, 5, v1")
    a(f"s_mul_i32 s{sO}, s{sRange}, 81920")
    if mat == 0:
        a(f"s_lshl_b32 s{T[0]}, s{W}, 9")
        a("v_lshlrev_b32 v17, 4, v6")
        a("v_lshl_add_u32 v17, v7, 12, v17")
        a(f"v_add_u32 v17, s{T[0]}, v17")
    elif mat == 2:
        a(f"s_lshl_b32 s{T[0]}, s{W}, 9")
        a("v_lshrrev_b32 v17, 3, v6")
        a("v_lshlrev_b32 v17, 12, v17")
        a("v_lshl_add_u32 v17, v7, 8, v17")
        a("v_and_b32 v16, 7, v6")
        a("v_lshl_add_u32 v17, v16, 4, v17")
        a(f"v_add_u32 v17, s{T[0]}, v17")
    else:
        a(f"s_lshl_b32 s{T[0]}, s{W}, 11")
        a(f"s_add_u32 s{T[0]}, s{T[0]}, 65536")
        a("v_bfe_u32 v16, v6, 1, 2")
        a("v_lshlrev_b32 v19, 1, v7")
        a("v_xor_b32 v19, v19, v16")
        a("v_lshlrev_b32 v20, 6, v6")
        a(f"v_add_u32 v20, s{T[0]}, v20")
        a("v_lshl_add_u32 v17, v19, 4, v20")
        a("v_xor_b32 v19, 1, v19")
        a("v_lshl_add_u32 v18, v19, 4, v20")
        a("v_lshrrev_b32 v6, 2, v1")
        a("v_bfe_u32 v16, v1, 3, 2")
        a("v_and_b32 v7, 3, v1")
        a("v_xor_b32 v16, v16, v7")
        a("v_lshlrev_b32 v19, 6, v6")
        a("v_lshl_add_u32 v19, v16, 4, v19")
        a(f"v_add_u32 v19, s{T[0]}, v19")
        a(f"s_lshl_b32 s{T[0]}, s{W}, 6")
        a("v_lshlrev_b32 v20, 9, v6")
        a("v_lshl_add_u32 v20, v7, 4, v20")
        a(f"v_add_u32 v20, s{T[0]}, v20")
    a(f"s_mov_b32 s{sScale}, {NLOG2E:#x}")
    a.stamp(1)
    a.wait_vm(("H", 0))
    a("s_barrier")
    a.stamp(2)

    def trread(st):
        for i in range(2):
            a.ds(f"ds_read_b64_tr_b16 v[{VW+4*st+2*i}:{VW+4*st+2*i+1}], v5 offset:{st*1024+i*256}", ("TR", st))
    def fread(u):
        Tt, st = divmod(u, 16)
        base = Tt * 16384 if Tt < 2 else (Tt - 2) * 16384
        q = VF + 4 * (u % RING)
        a.ds(f"ds_read_b128 v[{q}:{q+3}], v{VA + (st & 7)} offset:{base + 256*(st >> 3)}", ("F", u))
    def mfma(u):
        Tt, st = divmod(u, 16)
        q = VF + 4 * (u % RING); w = VW + 4 * st; acc = ACC[Tt & 1]
        c = "0" if st == 0 else f"v[{acc}:{acc+15}]"
        A, B = (q, w) if mat == 0 else (w, q)
        a(f"v_mfma_f32_32x32x16_bf16 v[{acc}:{acc+15}], v[{A}:{A+3}], v[{B}:{B+3}], {c}")
    def epi(Tt):
        acc = ACC[Tt & 1]
        ops = []
        for j in range(8):
            ops.append(f"v_mul_f32 v{acc+2*j}, s{sScale}, v{acc+2*j}")
            ops.append(f"v_mul_f32 v{acc+2*j+1}, s{sScale}, v{acc+2*j+1}")
        for j in range(8):
            ops.append(f"v_cvt_pk_bf16_f32 v{PK+j}, v{acc+2*j}, v{acc+2*j+1}")
        if mat == 0:
            ops.append("s_nop 1")
            for q in (0, 2):
                ops.append(f"v_permlane32_swap_b32 v{PK+2*q}, v{PK+2*q+2}")
                ops.append(f"v_permlane32_swap_b32 v{PK+2*q+1}, v{PK+2*q+3}")
            for q in (0, 2):
                ops.append(f"s_add_u32 s{sTmp}, s{sO}, {Tt*16384 + q*4096}")
                ops.append(("vm", f"buffer_store_dwordx4 v[{PK+2*q}:{PK+2*q+3}], v17, s[{SO_}:{SO_+3}], s{sTmp} offen{ST}", ("S", Tt)))
        elif mat == 2:
            ops.append(f"s_add_u32 s{sTmp}, s{sO}, {Tt*16384}")
            for i in range(2):
                ops.append(("vm", f"buffer_store_dwordx4 v[{PK+4*i}:{PK+4*i+3}], v17, s[{SO_}:{SO_+3}], s{sTmp} offen offset:{i*128}{ST}", ("S", Tt)))
        else:
            ops.append(("ds", f"ds_write_b128 v17, v[{PK}:{PK+3}]", ("QW", Tt)))
            ops.append(("ds", f"ds_write_b128 v18, v[{PK+4}:{PK+7}]", ("QW", Tt)))
            ops.append(("waitlds", ("QW", Tt)))
            ops.append(("ds", f"ds_read_b128 v[{QS}:{QS+3}], v19", ("QR0", Tt)))
            ops.append(("ds", f"ds_read_b128 v[{QS+4}:{QS+7}], v19 offset:1024", ("QR1", Tt)))
            ops.append(f"s_add_u32 s{sTmp}, s{sO}, {Tt*16384}")
            ops.append(("waitlds", ("QR0", Tt)))
            ops.append(("vm", f"buffer_store_dwordx4 v[{QS}:{QS+3}], v20, s[{SO_}:{SO_+3}], s{sTmp} offen{ST}", ("S", Tt)))
            ops.append(f"s_add_u32 s{sTmp}, s{sO}, {Tt*16384 + 8192}")
            ops.append(("waitlds", ("QR1", Tt)))
            ops.append(("vm", f"buffer_store_dwordx4 v[{QS+4}:{QS+7}], v20, s[{SO_}:{SO_+3}], s{sTmp} offen{ST}", ("S", Tt)))
        return ops
    def emit(op):
        if isinstance(op, str): a(op)
        elif op[0] == "vm": a.mem(op[1], op[2])
        elif op[0] == "ds": a.ds(op[1], op[2])
        elif op[0] == "waitlds": a.wait_lds_if(op[1])
    PD = 8
    tmp = Asm(); CONSTS(tmp, 241, 64); filler = list(tmp.L)
    def stream(tiles, pend, first=False):
        u0, u1 = tiles[0] * 16, (tiles[-1] + 1) * 16
        for u in range(u0, u0 + (6 if first else PD)): fread(u)
        if first:
            for st in range(2):
                a.wait_vm(("W", st)); trread(st)
        nxt = u0 + (6 if first else PD)
        for u in range(u0, u1):
            Tt, st = divmod(u, 16)
            if st == 0 and u > u0:
                assert not pend
                pend = epi(Tt - 1)
            if first and Tt == 0:
                if st + 8 < 16: w_one(st + 8)
                elif st == 8: h_dma(1, 147456)
                elif st in (9, 10, 11): hp_load(st - 7)
                if st + 2 < 16:
                    a.wait_vm(("W", st + 2)); trread(st + 2)
                a.wait_lds_if(("TR", st))
            a.wait_lds_if(("F", u))
            mfma(u)
            if first and u == 15:
                a.wait_vm(("H", 1))
                a("s_barrier")
            depth = 6 if (first and Tt == 0) else PD
            while nxt < u1 and nxt <= u + depth and not (first and u < 15 and nxt >= 16):
                fread(nxt); nxt += 1
            if filler and st >= 2 and Tt == 3:
                k = -(-len(filler) // (16 - st))
                for op in filler[:k]: a(op)
                del filler[:k]
            if st >= 5 and pend:
                k = -(-len(pend) // (16 - st))
                for op in pend[:k]: emit(op)
                pend = pend[k:]
        assert not pend
        return epi(tiles[-1])
    pend = stream([0, 1], [], first=True)
    a.stamp(3)
    for k in range(8): a(f"v_add_u32 v{VA+k}, 0xfffe0000, v{VA+k}")
    a.wait_vm(("H", 4))
    a("v_lshlrev_b32 v21, 4, v1")
    a(f"v_add_u32 v21, s{sHL}, v21")
    for T2 in (2, 3, 4):
        for i in range(2):
            q = HP + 8 * (T2 - 2) + 4 * i
            a.ds(f"ds_write_b128 v21, v[{q}:{q+3}] offset:{(T2-2)*16384 + i*1024}", ("HW", T2))
    a.wait_lds_if(("HW", 4))
    a("s_barrier")
    a(f"s_cmp_lg_u32 s{W}, 0")
    a(f"s_cbranch_scc1 L1_peek_{nm}")
    srd(a, R5, P_DBG, 0, 256)
    a("v_mov_b32 v22, 0")
    a("s_mov_b32 exec_lo, 1")
    a("s_mov_b32 exec_hi, 0")
    a(f"buffer_load_dword v23, v22, s[{R5}:{R5+3}], 0 offen sc1")
    a("s_mov_b64 exec, -1")
    a.label(f"L1_peek_{nm}")
    pend = stream([2, 3, 4], pend)
    a("s_nop 7"); a("s_nop 3")
    a.stamp(4)
    for op in pend: emit(op)
    if "dg" in EXP or ("dQ" in EXP and nm == "Q"): a("s_sleep 64")
    a(f"s_mov_b32 s{S_INC}, {INC_GEMM:#x}")
    inv(a)
    a(f"s_cmp_lg_u32 s{W}, 0")
    a(f"s_cbranch_scc1 L1_peek2_{nm}")
    a("s_waitcnt vmcnt(0)")
    a("v_and_b32 v23, 0xffff, v23")
    a(f"v_mov_b32 v22, {LDS_FLAG}")
    a("s_mov_b32 exec_lo, 1")
    a("s_mov_b32 exec_hi, 0")
    a("ds_write_b32 v22, v23")
    a("s_mov_b64 exec, -1")
    a.label(f"L1_peek2_{nm}")
    a("s_waitcnt vmcnt(0) lgkmcnt(0)")
    a("s_barrier")
    a(f"v_mov_b32 v22, {LDS_FLAG}")
    a("ds_read_b32 v23, v22")
    a("s_waitcnt lgkmcnt(0)")
    a(f"v_readfirstlane_b32 s{T[0]}, v23")
    a(f"s_cmp_eq_u32 s{T[0]}, {K1:#x}")
    a("s_cbranch_scc1 L_phase2_fast")
    a("s_branch L_phase2")

def sort(a):
    POS, HIST, WSUM, RECA = 0, 65536, 70656, 71680
    RECB = RECA + CH_STRIDE * 16
    NR = 6
    D, SX, EA = 8, 14, 20
    RA, RB, BA, RK = 32, 56, 62, 68
    t = 76
    sC, sE4, sE8, sTmp = T[6], T[7], T[8], T[2]
    MK = 62
    a.label("L1_sort")
    a(f"s_mov_b32 s{sC}, s2")
    srd(a, R0, P_DST, 0, N_EDGES * 4)
    a(f"s_mul_i32 s{sE4}, s{sC}, {CH_E*4}")
    a(f"s_mul_i32 s{sE8}, s{sC}, {CH_E*8}")
    a("v_lshlrev_b32 v2, 2, v0")
    a("s_setprio 3")
    for i in range(NR):
        a(f"s_add_u32 s{sTmp}, s{sE4}, {i*2048}")
        a.mem(f"buffer_load_dword v{D+i}, v2, s[{R0}:{R0+3}], s{sTmp} offen", "D")
    a("s_setprio 0")
    srd(a, R1, P_SRC, 0, N_EDGES * 4)
    for i in range(NR):
        a(f"s_add_u32 s{sTmp}, s{sE4}, {i*2048}")
        a.mem(f"buffer_load_dword v{SX+i}, v2, s[{R1}:{R1+3}], s{sTmp} offen", "S")
    srd(a, R3, P_POS, 0, 60000)
    a("v_lshlrev_b32 v4, 4, v1")
    for j in range(8):
        a(f"s_lshl_b32 s{T[0]}, s{W}, 10")
        a(f"s_add_u32 s{T[0]}, s{T[0]}, {j*8192}")
        a(f"s_mov_b32 m0, s{T[0]}")
        a("s_nop 0")
        a.mem(f"buffer_load_dwordx4 v4, s[{R3}:{R3+3}], s{T[0]} offen lds", "P")
    srd(a, R2, P_EA, 0, N_EDGES * 8)
    a("v_lshlrev_b32 v3, 3, v0")
    for i in range(NR):
        a(f"s_add_u32 s{sTmp}, s{sE8}, {i*4096}")
        a.mem(f"buffer_load_dwordx2 v[{EA+2*i}:{EA+2*i+1}], v3, s[{R2}:{R2+3}], s{sTmp} offen", "E")
    srd(a, R4, P_WS, 0, WS_USED)
    for k in range(4): a(f"v_mov_b32 v{t+k}, 0")
    a("v_lshlrev_b32 v5, 4, v0")
    a(f"v_add_u32 v5, {HIST}, v5")
    a(f"s_cmp_ge_u32 s{W}, 5")
    a("s_cbranch_scc1 L1_sort_z")
    a(f"ds_write_b128 v5, v[{t}:{t+3}]")
    a.label("L1_sort_z")
    a("v_mov_b32 v6, 1")
    a(f"s_mul_i32 s{T[0]}, s{sC}, {CH_E}")
    a(f"s_sub_u32 s{T[0]}, {N_EDGES}, s{T[0]}")
    a(f"s_min_u32 s{T[0]}, s{T[0]}, {CH_E}")
    a(f"s_sub_u32 s{T[0]}, s{T[0]}, {(NR-1)*512}")
    a(f"v_cmp_gt_u32 s[{MK}:{MK+1}], s{T[0]}, v0")
    a("s_waitcnt lgkmcnt(0)")
    a("s_barrier")
    a.wait_vm("D")
    def last_round(lbl):
        a(f"s_mov_b64 exec, s[{MK}:{MK+1}]")
        a(f"s_cbranch_execz {lbl}")
    for i in range(NR):
        if i == NR - 1: last_round("L1_sort_a")
        a(f"v_lshrrev_b32 v{t}, 3, v{D+i}")
        a(f"v_lshlrev_b32 v{BA+i}, 2, v{t}")
        a(f"v_add_u32 v{BA+i}, {HIST}, v{BA+i}")
        a(f"ds_add_rtn_u32 v{RK+i}, v{BA+i}, v6")
    a.label("L1_sort_a")
    a("s_mov_b64 exec, -1")
    CONSTS(a, 120, 64)
    a.wait_vm("P")
    a("s_waitcnt lgkmcnt(0)")
    a("s_barrier")
    a.stamp(2)
    a(f"s_cmp_lg_u32 s{W}, 0")
    a("s_cbranch_scc1 L1_sort_s1")
    C = 96
    a("v_mul_u32_u24 v7, 80, v1")
    a(f"v_add_u32 v7, {HIST}, v7")
    for q in range(5): a(f"ds_read_b128 v[{C+4*q}:{C+4*q+3}], v7 offset:{16*q}")
    a("s_waitcnt lgkmcnt(0)")
    a(f"v_mov_b32 v{t}, v{C}")
    a(f"v_mov_b32 v{C}, 0")
    for k in range(1, 20):
        a(f"v_add_u32 v{t+1}, v{t}, v{C+k}")
        a(f"v_mov_b32 v{C+k}, v{t}")
        a(f"v_mov_b32 v{t}, v{t+1}")
    a(f"v_mov_b32 v{t+2}, v{t}")
    for sh in (1, 2, 4, 8):
        a("s_nop 1")
        a(f"v_add_u32_dpp v{t+2}, v{t+2}, v{t+2} row_shr:{sh} row_mask:0xf bank_mask:0xf")
    a("s_nop 1")
    a(f"v_add_u32_dpp v{t+2}, v{t+2}, v{t+2} row_bcast:15 row_mask:0xa bank_mask:0xf")
    a("s_nop 1")
    a(f"v_add_u32_dpp v{t+2}, v{t+2}, v{t+2} row_bcast:31 row_mask:0xc bank_mask:0xf")
    a(f"v_sub_u32 v{t+2}, v{t+2}, v{t}")
    for k in range(20): a(f"v_add_u32 v{C+k}, v{C+k}, v{t+2}")
    for q in range(5): a(f"ds_write_b128 v7, v[{C+4*q}:{C+4*q+3}] offset:{16*q}")
    a.label("L1_sort_s1")
    PP = 96
    a(f"s_mov_b32 s{T[3]}, 0xffff0000")
    M16 = T[3]
    a("s_waitcnt lgkmcnt(0)")
    a("v_mov_b32 v7, 0")
    for i in range(NR):
        for j, X in enumerate((D + i, SX + i)):
            a(f"v_mul_u32_u24 v{t+4}, 6, v{X}")
            a(f"v_and_b32 v{t+4}, -4, v{t+4}")
            a(f"ds_read2_b32 v[{PP+4*i+2*j}:{PP+4*i+2*j+1}], v{t+4} offset0:0 offset1:1")
    a.wait_vm("E")
    for i in range(NR):
        PD_, PS_ = PP + 4 * i, PP + 4 * i + 2
        a(f"v_and_b32 v{t+5}, 7, v{D+i}")
        a(f"v_lshl_or_b32 v{RB+i}, v{t+5}, 14, v{SX+i}")
        a(f"v_lshrrev_b32 v{t+5}, 3, v{D+i}")
        a(f"v_lshl_or_b32 v{RB+i}, v{t+5}, 17, v{RB+i}")
        a(f"v_and_b32 v{t+6}, 1, v{D+i}")
        a(f"v_lshlrev_b32 v{t+6}, 4, v{t+6}")
        a(f"v_and_b32 v{t+7}, 1, v{SX+i}")
        a(f"v_lshlrev_b32 v{t+7}, 4, v{t+7}")
        if i == 0: a("s_waitcnt lgkmcnt(0)")
        for (P, sh) in ((PD_, t + 6), (PS_, t + 7)):
            a(f"v_alignbit_b32 v{P}, v{P+1}, v{P}, v{sh}")
            a(f"v_lshrrev_b32 v{P+1}, v{sh}, v{P+1}")
        a(f"v_lshlrev_b32 v{t+8}, 16, v{PD_}")
        a(f"v_lshlrev_b32 v{t+9}, 16, v{PS_}")
        a(f"v_sub_f32 v{t+8}, v{t+8}, v{t+9}")
        a(f"v_and_b32 v{t+9}, s{M16}, v{PD_}")
        a(f"v_and_b32 v{t+10}, s{M16}, v{PS_}")
        a(f"v_sub_f32 v{t+9}, v{t+9}, v{t+10}")
        a(f"v_lshlrev_b32 v{t+10}, 16, v{PD_+1}")
        a(f"v_lshlrev_b32 v{t+11}, 16, v{PS_+1}")
        a(f"v_sub_f32 v{t+10}, v{t+10}, v{t+11}")
        a(f"v_cvt_pk_bf16_f32 v{t+12}, v{t+8}, v{t+9}")
        a(f"v_cvt_pk_bf16_f32 v{t+13}, v{t+10}, v7")
        a(f"v_lshlrev_b32 v{t+8}, 16, v{t+12}")
        a(f"v_and_b32 v{t+9}, s{M16}, v{t+12}")
        a(f"v_lshlrev_b32 v{t+10}, 16, v{t+13}")
        a(f"v_mul_f32 v{t+8}, v{t+8}, v{t+8}")
        a(f"v_fmac_f32 v{t+8}, v{t+9}, v{t+9}")
        a(f"v_fmac_f32 v{t+8}, v{t+10}, v{t+10}")
        a(f"v_cvt_pk_bf16_f32 v{t+8}, v{t+8}, v7")
        r = RA + 4 * i
        a(f"v_lshl_or_b32 v{r}, v{EA+2*i}, 16, v{t+8}")
        a(f"v_alignbit_b32 v{r+1}, v{EA+2*i+1}, v{EA+2*i}, 16")
        a(f"v_alignbit_b32 v{r+2}, v{t+12}, v{EA+2*i+1}, 16")
        a(f"v_alignbit_b32 v{r+3}, v{t+13}, v{t+12}, 16")
    a("s_waitcnt lgkmcnt(0)")
    a("s_barrier")
    a.stamp(3)
    a(f"s_cmp_ge_u32 s{W}, 4")
    a("s_cbranch_scc1 L1_sort_t")
    a("v_mul_u32_u24 v7, 20, v0")
    a(f"v_add_u32 v7, {HIST}, v7")
    for k in range(6): a(f"ds_read_b32 v{t+8+k}, v7 offset:{4*k}")
    a.label("L1_sort_t")
    for i in range(NR):
        if i == NR - 1: last_round("L1_sort_b")
        a(f"ds_read_b32 v{t+i}, v{BA+i}")
    a.label("L1_sort_b")
    a("s_mov_b64 exec, -1")
    a("s_waitcnt lgkmcnt(0)")
    a(f"s_cmp_ge_u32 s{W}, 4")
    a("s_cbranch_scc1 L1_sort_t2")
    a(f"v_lshl_or_b32 v{t+16}, v{t+9}, 16, v{t+8}")
    a(f"v_lshl_or_b32 v{t+17}, v{t+11}, 16, v{t+10}")
    a(f"v_lshl_or_b32 v{t+18}, v{t+13}, 16, v{t+12}")
    a(f"v_mov_b32 v{t+19}, 0")
    a(f"s_mul_i32 s{T[0]}, s{sC}, {TAB_STRIDE}")
    a(f"s_add_u32 s{T[0]}, s{T[0]}, {WS_TAB}")
    a("v_lshlrev_b32 v7, 4, v0")
    a(f"buffer_store_dwordx4 v[{t+16}:{t+19}], v7, s[{R4}:{R4+3}], s{T[0]} offen{ST}")
    a.label("L1_sort_t2")
    for i in range(NR):
        if i == NR - 1: last_round("L1_sort_c")
        a(f"v_add_u32 v{t+i}, v{t+i}, v{RK+i}")
        a(f"v_lshlrev_b32 v{t+6}, 4, v{t+i}")
        a(f"v_add_u32 v{t+6}, {RECA}, v{t+6}")
        a(f"ds_write_b128 v{t+6}, v[{RA+4*i}:{RA+4*i+3}]")
        a(f"v_lshlrev_b32 v{t+7}, 2, v{t+i}")
        a(f"v_add_u32 v{t+7}, {RECB}, v{t+7}")
        a(f"ds_write_b32 v{t+7}, v{RB+i}")
    a.label("L1_sort_c")
    a("s_mov_b64 exec, -1")
    a("s_waitcnt lgkmcnt(0)")
    a("s_barrier")
    a.stamp(5)
    a("v_lshlrev_b32 v4, 4, v0")
    a(f"v_add_u32 v5, {RECA}, v4")
    for i in range(6):
        a(f"ds_read_b128 v[{RA+4*i}:{RA+4*i+3}], v5 offset:{i*8192}")
    a(f"v_add_u32 v7, {RECB}, v4")
    a(f"ds_read_b128 v[{t}:{t+3}], v7")
    a(f"ds_read_b128 v[{t+4}:{t+7}], v7 offset:8192")
    a(f"s_mul_i32 s{T[0]}, s{sC}, {CH_STRIDE*16}")
    a(f"s_add_u32 s{T[0]}, s{T[0]}, {WS_RECA}")
    a(f"s_mul_i32 s{T[1]}, s{sC}, {CH_STRIDE*4}")
    a(f"s_add_u32 s{T[1]}, s{T[1]}, {WS_RECB}")
    a("s_waitcnt lgkmcnt(0)")
    for i in range(5):
        a(f"buffer_store_dwordx4 v[{RA+4*i}:{RA+4*i+3}], v4, s[{R4}:{R4+3}], s{T[0]} offen{ST}")
        a(f"s_add_u32 s{T[0]}, s{T[0]}, 8192")
    a(f"buffer_store_dwordx4 v[{t}:{t+3}], v4, s[{R4}:{R4+3}], s{T[1]} offen{ST}")
    a(f"s_cmp_ge_u32 s{W}, 2")
    a("s_cbranch_scc1 L1_sort_r1")
    a(f"buffer_store_dwordx4 v[{RA+20}:{RA+23}], v4, s[{R4}:{R4+3}], s{T[0]} offen{ST}")
    a.label("L1_sort_r1")
    a(f"s_cmp_ge_u32 s{W}, 3")
    a("s_cbranch_scc1 L1_sort_r2")
    a(f"s_movk_i32 s{T[2]}, 160")
    a(f"v_cmp_gt_u32 vcc, s{T[2]}, v0")
    a("s_and_b64 exec, exec, vcc")
    a(f"s_add_u32 s{T[1]}, s{T[1]}, 8192")
    a(f"buffer_store_dwordx4 v[{t+4}:{t+7}], v4, s[{R4}:{R4+3}], s{T[1]} offen{ST}")
    a("s_mov_b64 exec, -1")
    a.label("L1_sort_r2")
    a.stamp(4)
    signal(a, INC_SORT, "s")

def pack(a):
    a.label("L1_pack")
    a(f"s_cmp_lg_u32 s{W}, 7")
    a("s_cbranch_scc1 L1_pack_go")
    srd(a, R4, P_WS, WS_MBX, 2048)
    a("v_lshlrev_b32 v2, 7, v1")
    a("v_mov_b32 v4, 0")
    a("v_mov_b32 v5, 0")
    a("s_mov_b32 exec_lo, 0xffff")
    a("s_mov_b32 exec_hi, 0")
    a(f"buffer_store_dwordx2 v[4:5], v2, s[{R4}:{R4+3}], 0 offen sc1")
    a("s_waitcnt vmcnt(0)")
    a("s_mov_b64 exec, -1")
    arrive_issue(a, f"{INC_INIT:#x}")
    arrive_finish(a, f"{INC_INIT:#x}", "i")
    a.label("L1_pack_go")
    srd(a, R0, P_WH, 131072, 131072)
    srd(a, R2, P_WS, WS_WHP, 131072)
    w_lane_offsets(a)
    w_dma(a, R0)
    srd(a, R1, P_WE, 0, 517 * 512)
    srd(a, R3, P_WX, 0, 512)
    srd(a, R4, P_WS, 0, WS_USED)
    a("v_lshlrev_b32 v9, 1, v0")
    a(f"s_mov_b32 s{T[0]}, 0x40000")
    for k in range(5):
        a(f"buffer_load_ushort v{24+k}, v9, s[{R1}:{R1+3}], s{T[0]} offen offset:{k*512}")
    a("v_lshrrev_b32 v10, 2, v1")
    a("v_lshlrev_b32 v10, 5, v10")
    a("v_bfe_u32 v11, v1, 1, 1")
    a("v_lshl_add_u32 v10, v11, 4, v10")
    a("v_and_b32 v11, 1, v1")
    a("v_lshl_add_u32 v10, v11, 2, v10")
    a("v_lshlrev_b32 v10, 1, v10")
    a(f"buffer_load_dwordx2 v[32:33], v10, s[{R3}:{R3+3}], 0 offen")
    a(f"buffer_load_dwordx2 v[34:35], v10, s[{R3}:{R3+3}], 0 offen offset:16")
    a("v_lshrrev_b32 v5, 4, v1")
    a("v_and_b32 v6, 1, v5")
    a("v_lshlrev_b32 v6, 4, v6")
    a("v_lshrrev_b32 v7, 1, v5")
    a("v_lshl_add_u32 v6, v7, 2, v6")
    a("v_bfe_u32 v7, v1, 2, 2")
    a("v_add_u32 v6, v6, v7")
    a("v_lshlrev_b32 v6, 6, v6")
    a("v_and_b32 v7, 3, v1")
    a("v_lshl_add_u32 v6, v7, 4, v6")
    a(f"s_lshl_b32 s{T[1]}, s{W}, 14")
    a(f"v_add_u32 v5, s{T[1]}, v6")
    a("v_lshlrev_b32 v8, 4, v1")
    CONSTS(a, 100, 64)
    a(f"s_lshl_b32 s{T[1]}, s{W}, 14")
    a.wait_all()
    for cb in range(2):
        for ks in range(8):
            q = 64 + 4 * (cb * 8 + ks)
            for i in range(2):
                a(f"ds_read_b64_tr_b16 v[{q+2*i}:{q+2*i+1}], v5 offset:{ks*2048 + i*512 + cb*8}")
            if ks % 4 == 3: a("s_waitcnt lgkmcnt(0)")
    for cb in range(2):
        for ks in range(8):
            q = 64 + 4 * (cb * 8 + ks)
            a(f"s_add_u32 s{T[2]}, s{T[1]}, {(cb*8+ks)*1024}")
            a(f"buffer_store_dwordx4 v[{q}:{q+3}], v8, s[{R2}:{R2+3}], s{T[2]} offen{ST}")
    a(f"s_cmp_ge_u32 s{W}, 4")
    a("s_cbranch_scc1 L1_pack_b")
    a(f"s_mov_b32 s{T[4]}, {NLOG2E:#x}")
    for k in range(5):
        a(f"v_lshlrev_b32 v{24+k}, 16, v{24+k}")
        a(f"v_mul_f32 v{24+k}, s{T[4]}, v{24+k}")
    a("v_mov_b32 v29, 0")
    a("v_cvt_pk_bf16_f32 v36, v24, v25")
    a("v_cvt_pk_bf16_f32 v37, v26, v27")
    a("v_cvt_pk_bf16_f32 v38, v28, v29")
    a("v_mov_b32 v39, 0")
    a("v_lshlrev_b32 v3, 4, v0")
    a(f"s_mov_b32 s{T[0]}, {WS_WX}")
    a(f"buffer_store_dwordx4 v[36:39], v3, s[{R4}:{R4+3}], s{T[0]} offen{ST}")
    a("s_branch L1_pack_e")
    a.label("L1_pack_b")
    a(f"s_cmp_gt_u32 s{W}, 4")
    a("s_cbranch_scc1 L1_pack_e")
    a("v_lshlrev_b32 v3, 4, v1")
    a(f"s_mov_b32 s{T[0]}, {WS_WXP}")
    a("s_mov_b32 exec_hi, 0")
    a(f"buffer_store_dwordx4 v[32:35], v3, s[{R4}:{R4+3}], s{T[0]} offen{ST}")
    a("s_mov_b64 exec, -1")
    a.label("L1_pack_e")
    signal(a, INC_GEMM, "p")
```

```python
from asmlib import *
from common import *
import p1

EXP = set()
CAP = 27
TILE = 2560
L_SRC = CAP * TILE
L_STAGE = L_SRC + 32 * 128
L_S = L_STAGE + 65536
S_ROW = 544
L_T = L_S + 40 * S_ROW
L_REL = L_T + 640
L_NG = L_REL + 1280
L_TB = L_NG + 32
W = S_WAVE
NRW = 7

SWS, SQ, SH, SO, STAB, SDBG = R0, R1, R2, R3, R4, R5
S_T, S_N, S_TG0, S_NT, S_WIN, S_TG = 64, 65, 66, 67, 68, 69
ZB, FB = 70, 75
S_STG, S_G5, S_IB, S_FIRST, S_WPH, S_M8 = 80, 81, 82, 83, 84, 86
S_RA, S_RB = 26, 27
S_HALF, S_HF = 85, 68
S_MK = 56
t0, t1, t2, t3 = T[0], T[1], T[2], T[3]

Z = (16, 32); E = 48; ACC = 64; M = 80; A0 = 88; A1 = 92; A2 = 96; BP = 100
I0 = 200; I1 = 204; B2 = 116; B2Q = 120; WXA = 108; WH = 136
ONE2 = 208; SR = 210; DV = 212
vA0, vA1, vA2, vB0, vB1, vSR, vLC, vS, vT = 214, 215, 216, 217, 218, 219, 220, 221, 222
vOS, vSL = 223, 224
vOS1, vSL1 = 12, 13
cA2, cB0, cB1 = 225, 226, 227
FL = 228
ZQ = 236
cSR = 240
NV = 241

def zero_fill(a):
    for k in range(4): a(f"v_mov_b32 v{36+k}, 0")
    a("v_lshlrev_b32 v40, 4, v0")
    a("v_add_u32 v41, 0x10000, v40")
    for k in range(8): a(f"ds_write_b128 v40, v[36:39] offset:{k*8192}")
    a("ds_write_b128 v41, v[36:39]")

def mf32(d, x, y, c): return f"v_mfma_f32_32x32x16_bf16 v[{d}:{d+15}], v[{x}:{x+3}], v[{y}:{y+3}], {c}"
def z_mfmas(zn):
    return [mf32(zn, A0, I0, "0"), mf32(zn, A1, I1, f"v[{zn}:{zn+15}]"), mf32(zn, A2, B2, f"v[{zn}:{zn+15}]")]

def dma(a, slot):
    a(f"v_add_u32 v{DV}, v{SR}, v{vLC}")
    a(f"v_add_u32 v{DV+1}, v{SR+1}, v{vLC}")
    a(f"s_add_u32 m0, s{S_STG}, {slot*2048}")
    a("s_nop 0")
    a(f"buffer_load_dwordx4 v{DV}, s[{SQ}:{SQ+3}], 0 offen lds")
    a(f"s_add_u32 m0, s{S_STG}, {slot*2048+1024}")
    a("s_nop 0")
    a(f"buffer_load_dwordx4 v{DV+1}, s[{SQ}:{SQ+3}], 0 offen lds")

def shift_q(a, base):
    for k in range(4): a(f"s_mov_b32 s{base+k}, s{base+k+1}")

def flush(a, tmp):
    for q in range(8): a(f"v_cvt_pk_bf16_f32 v{FL+q}, v{ACC+2*q}, v{ACC+2*q+1}")
    a(f"s_mov_b64 exec, s[{S_M8}:{S_M8+1}]")
    a(f"ds_write_b128 v{vS}, v[{FL}:{FL+3}]")
    a(f"ds_write_b128 v{vS}, v[{FL+4}:{FL+7}] offset:16")
    a("s_mov_b64 exec, -1")
    a(mf32(tmp, WXA, FL, "0"))
    a(mf32(tmp, WXA + 4, FL + 4, f"v[{tmp}:{tmp+15}]"))
    a(mf32(ACC, ZQ, ZQ, "0"))
    a(f"v_add_u32 v{vS}, {8*S_ROW}, v{vS}")
    shift_q(a, FB)
    a("s_nop 6")
    a("s_mov_b32 exec_hi, 0")
    a(f"ds_add_f32 v{vT}, v{tmp}")
    a("s_mov_b64 exec, -1")
    a(f"v_add_u32 v{vT}, 128, v{vT}")

def rotate_b2(a):
    if "oldrot" in EXP:
        for q in range(4): a(f"v_mov_b32 v{B2+q}, v{B2Q+q}")
        for q in range(12): a(f"v_mov_b32 v{B2Q+q}, v{B2Q+4+q}")
        return
    for q in range(0, 4, 2): a(f"v_pk_mov_b32 v[{B2+q}:{B2+q+1}], v[{B2Q+q}:{B2Q+q+1}], v[{B2Q+q}:{B2Q+q+1}] op_sel:[0,1]")
    for q in range(0, 12, 2): a(f"v_pk_mov_b32 v[{B2Q+q}:{B2Q+q+1}], v[{B2Q+4+q}:{B2Q+4+q+1}], v[{B2Q+4+q}:{B2Q+4+q+1}] op_sel:[0,1]")

def rec_consts(a):
    a("v_lshrrev_b32 v44, 4, v1")
    a(f"s_lshl_b32 s{t0}, s{W}, 2")
    a(f"v_add_u32 v44, s{t0}, v44")
    a(f"s_mov_b32 s{t0}, {CH_STRIDE*16}")
    a(f"v_mul_lo_u32 v42, s{t0}, v44")
    a(f"s_movk_i32 s{t0}, {CH_STRIDE*4}")
    a(f"v_mul_lo_u32 v43, s{t0}, v44")
    a("v_lshlrev_b32 v40, 2, v44")
    a("v_and_b32 v41, 15, v1")

OSL = ((vOS, vSL), (vOS1, vSL1))

def rec_loads(a, lbl):
    for it in range(4):
        p, r = it >> 1, it & 1
        os_, sl_ = OSL[r]
        a(f"v_add_u32 v36, s{S_IB}, v41")
        if p: a("v_add_u32 v36, 16, v36")
        a(f"v_cmp_lt_u32 s[{S_MK+2*it}:{S_MK+2*it+1}], v36, v{sl_}")
        a(f"v_add_u32 v36, v36, v{os_}")
        a(f"v_lshl_add_u32 v37, v36, 4, v42")
        a(f"v_lshl_add_u32 v38, v36, 2, v43")
        a(f"s_mov_b32 s{S_RA}, {WS_RECA + r*32*CH_STRIDE*16}")
        a(f"s_mov_b32 s{S_RB}, {WS_RECB + r*32*CH_STRIDE*4}")
        a(f"s_mov_b64 exec, s[{S_MK+2*it}:{S_MK+2*it+1}]")
        a(f"s_cbranch_execz {lbl}_{it}")
        a(f"buffer_load_dwordx4 v[{16+4*it}:{19+4*it}], v37, s[{SWS}:{SWS+3}], s{S_RA} offen sc1")
        a(f"buffer_load_dword v{32+it}, v38, s[{SWS}:{SWS+3}], s{S_RB} offen sc1")
        a.label(f"{lbl}_{it}")
        a("s_mov_b64 exec, -1")

def build_recs(a, lbl):
    a("s_waitcnt vmcnt(0)")
    if "chain" in EXP and lbl == "L2_b0": a.stamp(0)
    a("v_mov_b32 v58, 0x3f80")
    for it in range(4):
        RB = 32 + it
        r = it & 1
        a(f"s_mov_b64 exec, s[{S_MK+2*it}:{S_MK+2*it+1}]")
        a(f"s_cbranch_execz {lbl}_a{it}")
        a(f"v_lshrrev_b32 v44, 17, v{RB}")
        a(f"v_subrev_u32 v44, s{S_G5}, v44")
        a(f"v_lshl_add_u32 v45, v44, 8, v40")
        a(f"v_add_u32 v45, {L_REL + 128*r}, v45")
        a(f"ds_read_b32 v{2+2*it}, v45")
        a(f"v_lshl_add_u32 v47, v44, 2, v59")
        a(f"ds_read_b32 v{3+2*it}, v47")
        a.label(f"{lbl}_a{it}")
    a("s_mov_b64 exec, -1")
    a(f"s_lshl_b32 s{t1}, s{S_TG0}, 5")
    a(f"s_sub_u32 s{t0}, s{S_IB}, s{t1}")
    a(f"v_add_u32 v49, s{t0}, v41")
    a(f"s_movk_i32 s{t1}, {CAP*32}")
    a("s_waitcnt lgkmcnt(0)")
    for it in range(4):
        RA, RB = 16 + 4 * it, 32 + it
        p, r = it >> 1, it & 1
        a(f"s_mov_b64 exec, s[{S_MK+2*it}:{S_MK+2*it+1}]")
        a(f"s_cbranch_execz {lbl}_{it}")
        a(f"v_add3_u32 v44, v49, v{2+2*it}, v{3+2*it}")
        a(f"v_add_u32 v44, v44, v{OSL[r][0]}")
        if p: a("v_add_u32 v44, 16, v44")
        a(f"v_and_b32 v50, 0x3fff, v{RB}")
        a(f"v_cmp_gt_u32 vcc, s{t1}, v44")
        a("v_lshlrev_b32 v50, 9, v50")
        a("v_add_u32 v50, 512, v50")
        a("s_and_b64 exec, exec, vcc")
        a(f"s_cbranch_execz {lbl}_{it}")
        a("v_lshlrev_b32 v51, 2, v44")
        a(f"v_add_u32 v51, {L_SRC}, v51")
        a("ds_write_b32 v51, v50")
        a("v_lshrrev_b32 v52, 5, v44")
        a(f"v_mul_u32_u24 v52, {TILE}, v52")
        a("v_and_b32 v53, 31, v44")
        a("v_lshl_add_u32 v55, v53, 4, v52")
        a(f"ds_write_b128 v55, v[{RA}:{RA+3}] offset:2048")
        a(f"v_bfe_u32 v54, v{RB}, 14, 3")
        a("v_lshl_add_u32 v52, v53, 6, v52")
        a("v_lshl_add_u32 v52, v54, 1, v52")
        a("v_bfe_u32 v53, v53, 2, 2")
        a("v_lshl_add_u32 v54, v53, 4, v52")
        a("ds_write_b16 v54, v58")
        a("v_xor_b32 v55, 1, v53")
        a("v_lshl_add_u32 v55, v55, 4, v52")
        a(f"ds_write_b16_d16_hi v55, v{RA+2}")
        a("v_xor_b32 v56, 2, v53")
        a("v_lshl_add_u32 v56, v56, 4, v52")
        a(f"ds_write_b16 v56, v{RA+3}")
        a("v_xor_b32 v57, 3, v53")
        a("v_lshl_add_u32 v57, v57, 4, v52")
        a(f"ds_write_b16_d16_hi v57, v{RA+3}")
        a.label(f"{lbl}_{it}")
    a("s_mov_b64 exec, -1")

def poll(a, lbl, srdreg, voff, want, sleep):
    a(f"s_mov_b32 s{t1}, 0x8000")
    a("s_mov_b32 exec_lo, 1")
    a("s_mov_b32 exec_hi, 0")
    a.label(lbl)
    a(f"buffer_load_dword v10, v{voff}, s[{srdreg}:{srdreg+3}], 0 offen sc1")
    a("s_waitcnt vmcnt(0)")
    a(f"v_readfirstlane_b32 s{t0}, v10")
    a(f"s_and_b32 s{t0}, s{t0}, {want:#x}")
    a(f"s_cmp_eq_u32 s{t0}, {want:#x}")
    a(f"s_cbranch_scc1 {lbl}_ok")
    a(f"s_sub_u32 s{t1}, s{t1}, 1")
    a(f"s_cmp_eq_u32 s{t1}, 0")
    a(f"s_cbranch_scc1 {lbl}_ok")
    a(f"s_sleep {sleep}")
    a(f"s_branch {lbl}")
    a.label(f"{lbl}_ok")
    a("s_mov_b64 exec, -1")

def mailbox(a, word):
    srd(a, R4, P_WS, WS_MBX, 2048)
    a(f"s_and_b32 s{t2}, s2, 15")
    a(f"s_lshl_b32 s{t2}, s{t2}, 7")
    a(f"s_add_u32 s{t2}, s{t2}, {4*word}")
    a(f"v_mov_b32 v8, s{t2}")

def a_reads(u1):
    sl = u1 % 4
    return [f"ds_read_b128 v[{A0}:{A0+3}], v{vA0} offset:{sl*2048}",
            f"ds_read_b128 v[{A1}:{A1+3}], v{vA1} offset:{sl*2048}",
            f"ds_read_b128 v[{A2}:{A2+3}], v{vA2} offset:{u1*TILE}"]
def bp_reads(u):
    return [f"ds_read_b64_tr_b16 v[{BP}:{BP+1}], v{vB0} offset:{u*TILE}",
            f"ds_read_b64_tr_b16 v[{BP+2}:{BP+3}], v{vB1} offset:{u*TILE}",
            f"ds_read_b64_tr_b16 v[{BP+4}:{BP+5}], v{vB0} offset:{u*TILE+1024}",
            f"ds_read_b64_tr_b16 v[{BP+6}:{BP+7}], v{vB1} offset:{u*TILE+1024}"]
def seg_mfmas():
    return [mf32(ACC, M, BP, f"v[{ACC}:{ACC+15}]"), mf32(ACC, M + 4, BP + 4, f"v[{ACC}:{ACC+15}]")]

OOL = []
def OST():
    return " sc1" if "osc1" in EXP else " nt" if "ont" in EXP else " sc0 sc1" if "osc01" in EXP else ""

def first_pass_wait(a, lbl):
    a(f"s_cmp_eq_u32 s{S_WPH}, 0")
    a(f"s_cbranch_scc0 {lbl}")
    a("s_waitcnt vmcnt(0)")
    a.label(lbl)

def iteration(a, u):
    zc, zn = Z[u & 1], Z[(u + 1) & 1]
    sl = (u + 1) % 4
    a(f"s_setprio {3-u}")
    a("s_waitcnt lgkmcnt(0)")
    a(f"s_cmp_eq_u32 s{S_TG}, s{FB}")
    a(f"s_cbranch_scc1 L2_fl_{u}")
    a.label(f"L2_fl_{u}_r")
    OOL.append((f"L2_fl_{u}", lambda a, zn=zn, u=u: (first_pass_wait(a, f"L2_flw_{u}"), flush(a, zn), a(f"s_branch L2_fl_{u}_r"))))
    a(f"s_cmp_eq_u32 s{S_TG}, s{ZB}")
    a(f"s_cbranch_scc1 L2_rt_{u}")
    a.label(f"L2_rt_{u}_r")
    def rt(a, u=u):
        first_pass_wait(a, f"L2_rtw_{u}")
        rotate_b2(a); shift_q(a, ZB)
        a(f"s_and_b32 s{S_HALF}, s{S_HF}, 1")
        a(f"s_lshr_b32 s{S_HF}, s{S_HF}, 1")
        a(f"s_branch L2_rt_{u}_r")
    OOL.append((f"L2_rt_{u}", rt))
    zm = z_mfmas(zn); sm = seg_mfmas(); bp = bp_reads(u); ar = a_reads(u + 2)
    def run(op, regs, att):
        for i, k in enumerate(regs):
            a(f"{op} v{E+k}, v{(zc if op == 'v_exp_f32' else E)+k}")
            for x in att.get(i, []): a(x)
    def pk(op, lo):
        for k in range(lo, lo + 8, 2):
            other = f"v[{ONE2}:{ONE2+1}]" if op == "v_pk_add_f32" else f"v[{zc+k}:{zc+k+1}]"
            a(f"{op} v[{E+k}:{E+k+1}], v[{E+k}:{E+k+1}], {other}")
    def cvt(lo):
        for k in range(lo, lo + 8, 2): a(f"v_cvt_pk_bf16_f32 v{M+k//2}, v{E+k}, v{E+k+1}")
    att = {0: [sm[0]],
           1: [f"v_add_u32 v{DV}, v{SR}, v{vLC}", f"s_add_u32 m0, s{S_STG}, {sl*2048}"],
           2: [f"v_add_u32 v{DV+1}, v{SR+1}, v{vLC}", f"buffer_load_dwordx4 v{DV}, s[{SQ}:{SQ+3}], 0 offen lds"],
           3: [bp[0], bp[1]],
           4: [zm[0]],
           5: [f"s_add_u32 m0, s{S_STG}, {sl*2048+1024}"],
           6: [f"buffer_load_dwordx4 v{DV+1}, s[{SQ}:{SQ+3}], 0 offen lds"],
           7: [f"s_cmp_eq_u32 s{S_WPH}, 0", f"s_cbranch_scc1 L2_wl_{u}", f"L2_wl_{u}_r:"]}
    def wl(a, u=u):
        a("v_lshlrev_b32 v5, 4, v1")
        a(f"s_lshl_b32 s{t0}, s{W}, 14")
        a(f"s_add_u32 s{t0}, s{t0}, {WS_WHP + u*4096}")
        for q in range(4 * u, 4 * u + 4):
            a(f"buffer_load_dwordx4 v[{WH+4*q}:{WH+4*q+3}], v5, s[{SWS}:{SWS+3}], s{t0} offen offset:{(q%4)*1024}")
        a(f"s_branch L2_wl_{u}_r")
    OOL.append((f"L2_wl_{u}", wl))
    run("v_exp_f32", range(0, 8), att)
    pk("v_pk_add_f32", 0)
    att = {0: [zm[1]],
           1: [f"s_add_u32 s{S_T}, s{S_T}, 1", f"s_add_u32 s{S_TG}, s{S_TG}, 1"],
           4: [zm[2]],
           5: [f"s_cmp_lt_u32 s{S_WPH}, 2", f"s_cbranch_scc1 L2_wv_{u}", "s_waitcnt vmcnt(6)", f"L2_wv_{u}_r:", ar[0]],
           6: [ar[1], ar[2]],
           7: [f"ds_read2_b32 v[{SR}:{SR+1}], v{vSR} offset0:{u*32} offset1:{u*32+16}"]}
    def wv(a, u=u):
        a(f"s_cmp_eq_u32 s{S_WPH}, 0")
        a(f"s_cbranch_scc1 L2_wv_{u}_0")
        a(f"s_waitcnt vmcnt({(18, 14, 10, 6)[u]})")
        a(f"s_branch L2_wv_{u}_r")
        a.label(f"L2_wv_{u}_0")
        a(f"s_waitcnt vmcnt({(16, 20, 24, 22)[u]})")
        a(f"s_branch L2_wv_{u}_r")
    OOL.append((f"L2_wv_{u}", wv))
    run("v_rcp_f32", range(0, 8), att)
    a(f"s_cmp_eq_u32 s{S_HALF}, 1")
    pk("v_pk_mul_f32", 0)
    cvt(0)
    a(f"s_cbranch_scc1 L2_hf_{u}")
    def hf(a, u=u):
        a(sm[1]); a(f"s_mov_b32 s{S_HALF}, 0"); a(bp[2]); a(bp[3])
        a(f"s_branch L2_hf_{u}_r")
    OOL.append((f"L2_hf_{u}", hf))
    run("v_exp_f32", range(8, 16), {0: [sm[1]], 1: [bp[2]], 2: [bp[3]]})
    pk("v_pk_add_f32", 8)
    run("v_rcp_f32", range(8, 16), {})
    pk("v_pk_mul_f32", 8)
    cvt(8)
    a.label(f"L2_hf_{u}_r")
    a(f"s_cmp_eq_u32 s{S_T}, s{S_N}")
    a("s_cbranch_scc1 L2_win_end")

def constants_a(a, b=44, mk=52):
    a(f"v_and_b32 v{b+0}, 31, v1")
    a(f"v_lshrrev_b32 v{b+1}, 5, v1")
    a(f"v_mov_b32 v{ONE2}, 1.0")
    a(f"v_mov_b32 v{ONE2+1}, 1.0")
    for q in range(4): a(f"v_mov_b32 v{ZQ+q}, 0")
    a(f"s_mov_b32 s{S_M8}, 0xff")
    a(f"s_mov_b32 s{S_M8+1}, 0xff")
    a(f"v_lshlrev_b32 v{b+2}, 3, v{b+1}")
    a(f"v_sub_u32 v{b+2}, v{b+0}, v{b+2}")
    a(f"v_mov_b32 v{b+4}, 0x3f80")
    a(f"v_mov_b32 v{b+5}, 0x3f800000")
    a(f"v_and_b32 v{b+3}, 1, v{b+2}")
    a(f"v_cmp_eq_u32 vcc, 1, v{b+3}")
    a(f"v_lshrrev_b32 v{b+6}, 1, v{b+2}")
    a(f"v_add_u32 v{b+7}, -8, v{b+6}")
    a(f"v_cndmask_b32 v{b+3}, v{b+4}, v{b+5}, vcc")
    for I, r in ((I0, b + 6), (I1, b + 7)):
        for q0 in (0, 2):
            a(f"v_cmp_eq_u32 s[{mk}:{mk+1}], {q0}, v{r}")
            a(f"v_cmp_eq_u32 s[{mk+2}:{mk+3}], {q0+1}, v{r}")
            a("s_nop 0")
            a(f"v_cndmask_b32 v{I+q0}, 0, v{b+3}, s[{mk}:{mk+1}]")
            a(f"v_cndmask_b32 v{I+q0+1}, 0, v{b+3}, s[{mk+2}:{mk+3}]")

def constants_b(a, b=44):
    a(f"v_and_b32 v{b+0}, 31, v1")
    a(f"v_lshrrev_b32 v{b+1}, 5, v1")
    a(f"s_lshl_b32 s{S_STG}, s{W}, 13")
    a(f"s_add_u32 s{S_STG}, s{S_STG}, {L_STAGE}")
    a(f"v_bfe_u32 v{b+2}, v{b+0}, 2, 2")
    a(f"v_xor_b32 v{b+3}, v{b+1}, v{b+2}")
    a(f"v_lshlrev_b32 v{b+4}, 6, v{b+0}")
    a(f"v_add_u32 v{b+5}, s{S_STG}, v{b+4}")
    a(f"v_lshl_add_u32 v{vA0}, v{b+3}, 4, v{b+5}")
    a(f"v_xor_b32 v{b+3}, 2, v{b+3}")
    a(f"v_lshl_add_u32 v{vA1}, v{b+3}, 4, v{b+5}")
    a(f"v_lshlrev_b32 v{b+3}, 4, v{b+0}")
    a(f"v_add_u32 v{b+3}, 2048, v{b+3}")
    a(f"v_lshl_add_u32 v{b+4}, v{b+2}, 4, v{b+4}")
    a(f"v_cmp_eq_u32 vcc, 1, v{b+1}")
    a(f"v_bfe_u32 v{b+2}, v1, 2, 2")
    a(f"v_lshl_add_u32 v{b+2}, v{b+1}, 2, v{b+2}")
    a(f"v_cndmask_b32 v{cA2}, v{b+3}, v{b+4}, vcc")
    a(f"v_lshlrev_b32 v{b+2}, 6, v{b+2}")
    a(f"v_and_b32 v{b+3}, 1, v1")
    a(f"v_lshl_add_u32 v{b+2}, v{b+3}, 3, v{b+2}")
    a(f"v_bfe_u32 v{b+3}, v1, 4, 1")
    a(f"v_lshlrev_b32 v{b+3}, 1, v{b+3}")
    a(f"v_bfe_u32 v{b+4}, v1, 1, 1")
    a(f"v_or_b32 v{b+3}, v{b+3}, v{b+4}")
    a(f"v_xor_b32 v{b+3}, v{b+3}, v{b+1}")
    a(f"v_lshl_add_u32 v{cB0}, v{b+3}, 4, v{b+2}")
    a(f"v_xor_b32 v{b+3}, 2, v{b+3}")
    a(f"v_lshl_add_u32 v{b+4}, v{b+3}, 4, v{b+2}")
    a(f"v_add_u32 v{cB1}, 512, v{b+4}")
    a(f"v_and_b32 v{b+2}, 3, v1")
    a(f"v_bfe_u32 v{b+3}, v1, 4, 2")
    a(f"v_xor_b32 v{b+2}, v{b+2}, v{b+3}")
    a(f"v_lshlrev_b32 v{b+2}, 4, v{b+2}")
    a(f"s_lshl_b32 s{t0}, s{W}, 6")
    a(f"s_sub_u32 s{t1}, s{t0}, 512")
    a(f"v_add_u32 v{vLC}, s{t1}, v{b+2}")
    a(f"v_and_b32 v{b+2}, 7, v1")
    a(f"v_mul_u32_u24 v{b+2}, {S_ROW}, v{b+2}")
    a(f"v_lshl_add_u32 v{b+2}, v{b+1}, 5, v{b+2}")
    a(f"s_add_u32 s{t0}, s{t0}, {L_S}")
    a(f"v_add_u32 v{vS}, s{t0}, v{b+2}")
    a(f"v_lshlrev_b32 v{b+2}, 2, v{b+0}")
    a(f"v_add_u32 v{vT}, {L_T}, v{b+2}")
    a(f"v_lshrrev_b32 v{b+2}, 2, v1")
    a(f"v_lshlrev_b32 v{b+2}, 2, v{b+2}")
    a(f"v_add_u32 v{cSR}, {L_SRC}, v{b+2}")

def phase2(a):
    def entry(a):
        a("v_and_b32 v1, 63, v0")
        a(f"s_cmp_eq_u32 s{W}, 0")
        a("s_cbranch_scc0 2f")
        p1.arrive_issue(a, f"s{p1.S_INC}")
        a.label("2")
        srd(a, SWS, P_WS, 0, WS_USED)
        a(f"s_mul_i32 s{S_G5}, s2, 5")
    def table_load(a):
        srd(a, STAB, P_WS, WS_TAB, NCH * TAB_STRIDE)
        a("v_lshlrev_b32 v2, 12, v1")
        a(f"s_lshl_b32 s{t0}, s2, 4")
        a(f"buffer_load_dwordx3 v[60:62], v2, s[{STAB}:{STAB+3}], s{t0} offen sc1")
    def t_zero(a):
        a(f"v_add_u32 v41, {L_T}, v40")
        a("s_mov_b32 exec_lo, -1")
        a("s_mov_b32 exec_hi, 0xff")
        a("ds_write_b128 v41, v[36:39]")
        a("s_mov_b64 exec, -1")
    a.label("L_phase2_fast")
    a.stamp(5)
    entry(a)
    table_load(a)
    zero_fill(a)
    a(f"s_cmp_eq_u32 s{W}, 0")
    a("s_cbranch_scc0 L2_tab")
    t_zero(a)
    p1.arrive_finish(a, f"s{p1.S_INC}", "f")
    a("s_branch L2_tab")
    a.label("L_phase2")
    a.stamp(5)
    entry(a)
    zero_fill(a)
    a(f"s_cmp_eq_u32 s{W}, 0")
    a("s_cbranch_scc0 L2_w1")
    t_zero(a)
    p1.arrive_finish(a, f"s{p1.S_INC}", "a")
    a("s_and_b32 s52, s85, 1")
    a("s_cmp_eq_u32 s52, 1")
    a("s_cbranch_scc1 L2_inited")
    srd(a, SDBG, P_DBG, 0, 256)
    a("v_mov_b32 v8, 0")
    poll(a, "L2_poll0", SDBG, 8, 1, 16)
    a("s_mov_b32 s85, 0")
    a.label("L2_inited")
    a("s_and_b32 s52, s85, 0xffff")
    a(f"s_cmp_eq_u32 s52, {K1:#x}")
    a("s_cbranch_scc1 L2_w1")
    mailbox(a, 0)
    poll(a, "L2_poll1", R4, 8, 1, 2)
    a.label("L2_w1")
    a("s_barrier")
    table_load(a)
    a.label("L2_tab")
    a.stamp(6)
    a(f"s_mov_b32 s{S_IB}, 0")
    a(f"s_mov_b32 s{S_TG0}, 0")
    a(f"s_mov_b32 s{S_FIRST}, 1")
    a(mf32(ACC, ZQ, ZQ, "0"))
    a("s_waitcnt vmcnt(0)")
    if "chain" in EXP: a.stamp(2)
    a(f"v_and_b32 v46, 0xffff, v60")
    a(f"v_lshrrev_b32 v47, 16, v62")
    a(f"v_sub_u32 v47, v47, v46")
    rec_consts(a)
    a("v_add_u32 v45, 128, v40")
    a(f"ds_bpermute_b32 v{vOS}, v40, v46")
    a(f"ds_bpermute_b32 v{vSL}, v40, v47")
    a(f"ds_bpermute_b32 v{vOS1}, v45, v46")
    a(f"ds_bpermute_b32 v{vSL1}, v45, v47")
    a("s_waitcnt lgkmcnt(0)")
    rec_loads(a, "L2_ld0")
    if "chain" in EXP: a.stamp(3)
    a(f"s_cmp_ge_u32 s{W}, 5")
    a("s_cbranch_scc1 L2_noscan")
    a(f"s_cmp_lt_u32 s{W}, 2")
    a("s_cbranch_scc1 L2_sel")
    a("v_mov_b32 v60, v61")
    a("v_mov_b32 v61, v62")
    a(f"s_cmp_lt_u32 s{W}, 4")
    a("s_cbranch_scc1 L2_sel")
    a("v_mov_b32 v60, v61")
    a.label("L2_sel")
    a(f"s_and_b32 s{t0}, s{W}, 1")
    a(f"s_lshl_b32 s{t0}, s{t0}, 4")
    a(f"v_alignbit_b32 v61, v61, v60, s{t0}")
    a("v_and_b32 v60, 0xffff, v61")
    a("v_lshrrev_b32 v61, 16, v61")
    a("v_sub_u32 v62, v61, v60")
    a("v_mov_b32 v63, v62")
    for sh in (1, 2, 4, 8):
        a("s_nop 1")
        a(f"v_add_u32_dpp v63, v63, v63 row_shr:{sh} row_mask:0xf bank_mask:0xf")
    a("s_nop 1")
    a("v_add_u32_dpp v63, v63, v63 row_bcast:15 row_mask:0xa bank_mask:0xf")
    a("s_nop 1")
    a("v_add_u32_dpp v63, v63, v63 row_bcast:31 row_mask:0xc bank_mask:0xf")
    a("v_sub_u32 v62, v63, v62")
    a("v_sub_u32 v62, v62, v60")
    a(f"s_lshl_b32 s{t0}, s{W}, 8")
    a(f"s_add_u32 s{t0}, s{t0}, {L_REL}")
    a("v_lshlrev_b32 v45, 2, v1")
    a(f"v_add_u32 v45, s{t0}, v45")
    a("ds_write_b32 v45, v62")
    a(f"s_lshl_b32 s{t0}, s{W}, 2")
    a(f"s_add_u32 s{t0}, s{t0}, {L_NG}")
    a(f"v_mov_b32 v45, s{t0}")
    a("s_mov_b32 exec_lo, 0")
    a("s_mov_b32 exec_hi, 0x80000000")
    a("ds_write_b32 v45, v63")
    a("s_mov_b64 exec, -1")
    a.label("L2_noscan")
    a.label("L2_round_bar")
    a("s_waitcnt lgkmcnt(0)")
    a("s_barrier")
    a.stamp(7)
    a(f"s_cmp_eq_u32 s{S_FIRST}, 0")
    a("s_cbranch_scc1 L2_have_tb")
    a("v_lshlrev_b32 v45, 2, v1")
    a(f"v_add_u32 v45, {L_NG}, v45")
    a("s_mov_b32 exec_lo, 0xff")
    a("s_mov_b32 exec_hi, 0")
    a("ds_read_b32 v46, v45")
    a("s_waitcnt lgkmcnt(0)")
    a("v_max_u32 v46, 1, v46")
    a("v_add_u32 v47, -1, v46")
    a("v_and_b32 v47, 31, v47")
    a("v_cmp_gt_u32 vcc, 16, v47")
    a("v_add_u32 v46, 31, v46")
    a("v_lshrrev_b32 v46, 5, v46")
    a(f"s_and_b32 s{S_HF}, vcc_lo, 0x1f")
    NTG = (T[0], T[1], T[2], T[3], 85)
    for g in range(5): a(f"v_readlane_b32 s{NTG[g]}, v46, {g}")
    a(f"s_mov_b32 s{ZB}, s{NTG[0]}")
    for g in range(1, 4): a(f"s_add_u32 s{ZB+g}, s{ZB+g-1}, s{NTG[g]}")
    a(f"s_add_u32 s{S_NT}, s{ZB+3}, s85")
    a(f"s_mov_b32 s{ZB+4}, s{S_NT}")
    a(f"s_mov_b32 s{S_HALF}, 0")
    a("v_mov_b32 v46, 0")
    for g in range(1, 5):
        a(f"s_lshl_b32 s{t0}, s{ZB+g-1}, 5")
        a(f"v_writelane_b32 v46, s{t0}, {g}")
    for k in range(4): a(f"s_add_u32 s{FB+k}, s{ZB+k}, 1")
    a(f"s_mov_b32 s{FB+4}, 0x7ffffff0")
    for k in range(5): a(f"s_sub_u32 s{ZB+k}, s{ZB+k}, 1")
    a(f"s_lshl_b32 s{t0}, s{W}, 5")
    a(f"s_add_u32 s{t0}, s{t0}, {L_TB}")
    a("v_lshlrev_b32 v45, 2, v1")
    a(f"v_add_u32 v45, s{t0}, v45")
    a("ds_write_b32 v45, v46")
    a("s_mov_b64 exec, -1")
    a.label("L2_have_tb")
    a(f"s_lshl_b32 s{t0}, s{W}, 5")
    a(f"s_add_u32 s{t0}, s{t0}, {L_TB}")
    a(f"v_mov_b32 v59, s{t0}")
    a("s_waitcnt lgkmcnt(0)")
    if "chain" in EXP: a.stamp(4)
    build_recs(a, "L2_b0")
    a.label("L2_more")
    a(f"s_add_u32 s{S_IB}, s{S_IB}, 32")
    a(f"v_cmp_lt_u32 vcc, s{S_IB}, v{vSL}")
    a(f"v_cmp_lt_u32 s[52:53], s{S_IB}, v{vSL1}")
    a("s_or_b64 vcc, vcc, s[52:53]")
    a("s_cbranch_vccz L2_built0")
    rec_loads(a, "L2_ld1")
    build_recs(a, "L2_b1")
    a("s_branch L2_more")
    a.label("L2_built0")
    if "chain" in EXP: a.stamp(11)
    a(f"s_cmp_eq_u32 s{W}, 7")
    a("s_cbranch_scc0 L2_built")
    a(f"s_cmp_eq_u32 s{S_FIRST}, 0")
    a("s_cbranch_scc1 L2_built")
    mailbox(a, 1)
    poll(a, "L2_poll2", R4, 8, 1, 2)
    a.label("L2_built")
    a("s_waitcnt vmcnt(0) lgkmcnt(0)")
    a("s_barrier")
    a.stamp(8)
    a("s_setprio 3")
    a(f"v_mov_b32 v{vSR}, v{cSR}")
    for k in range(4):
        a(f"ds_read2_b32 v[{E+2*k}:{E+2*k+1}], v{vSR} offset0:{k*32} offset1:{k*32+16}")
    a(f"ds_read2_b32 v[{SR}:{SR+1}], v{vSR} offset0:128 offset1:144")
    a(f"s_cmp_eq_u32 s{S_FIRST}, 0")
    a("s_cbranch_scc1 L2_nob2")
    srd(a, SQ, P_WS, WS_Q, MAT_BYTES)
    a("v_and_b32 v3, 31, v1")
    a("v_lshrrev_b32 v4, 5, v1")
    a(f"s_lshl_b32 s{t0}, s{W}, 9")
    a("v_lshlrev_b32 v5, 4, v3")
    a(f"v_add_u32 v5, s{t0}, v5")
    a(f"s_lshl_b32 s{t1}, s{S_G5}, 12")
    a(f"s_add_u32 s{t1}, s{t1}, {WS_P - WS_WX}")
    a(f"v_mul_lo_u32 v6, s{t1}, v4")
    a("v_add_u32 v5, v5, v6")
    a(f"v_add_u32 v5, {WS_WX}, v5")
    a("v_lshlrev_b32 v6, 12, v4")
    a(f"buffer_load_dwordx4 v[{B2}:{B2+3}], v5, s[{SWS}:{SWS+3}], 0 offen")
    a.label("L2_nob2")
    a("s_waitcnt lgkmcnt(1)")
    def dma_k(k):
        a(f"v_add_u32 v{E+k}, v{E+k}, v{vLC}")
        a(f"s_add_u32 m0, s{S_STG}, {k*1024}")
        a("s_nop 0")
        a(f"buffer_load_dwordx4 v{E+k}, s[{SQ}:{SQ+3}], 0 offen lds")
    for k in range(4): dma_k(k)
    a(f"s_sub_u32 s{S_N}, s{S_NT}, s{S_TG0}")
    a(f"s_min_u32 s{S_N}, s{S_N}, {CAP}")
    a(f"s_mov_b32 s{S_T}, 0")
    a(f"s_mov_b32 s{S_TG}, s{S_TG0}")
    a(f"v_mov_b32 v{vA2}, v{cA2}")
    a(f"v_mov_b32 v{vB0}, v{cB0}")
    a(f"v_mov_b32 v{vB1}, v{cB1}")
    for k in range(8): a(f"v_mov_b32 v{M+k}, 0")
    for k in range(8): a(f"v_mov_b32 v{BP+k}, 0")
    a(f"s_cmp_eq_u32 s{S_FIRST}, 0")
    a(f"s_cselect_b32 s{S_WPH}, 2, 0")
    a("s_waitcnt vmcnt(2)")
    for x in a_reads(0): a(x)
    for k in range(4, 8): dma_k(k)
    a("s_waitcnt lgkmcnt(0)")
    dma(a, 0)
    for m in z_mfmas(Z[0]): a(m)
    a(f"ds_read2_b32 v[{SR}:{SR+1}], v{vSR} offset0:160 offset1:176")
    a(f"v_add_u32 v{vSR}, 768, v{vSR}")
    a(f"s_cmp_eq_u32 s{S_FIRST}, 0")
    a("s_cbranch_scc1 L2_nob3")
    for g in range(1, 5):
        d = B2Q + 4 * (g - 1)
        a("v_add_u32 v5, v5, v6")
        a(f"buffer_load_dwordx4 v[{d}:{d+3}], v5, s[{SWS}:{SWS+3}], 0 offen")
    a(f"s_lshl_b32 s{t0}, s{W}, 6")
    a(f"s_add_u32 s{t0}, s{t0}, {WS_WXP}")
    a("v_lshlrev_b32 v7, 4, v4")
    a(f"buffer_load_dwordx4 v[{WXA}:{WXA+3}], v7, s[{SWS}:{SWS+3}], s{t0} offen")
    a(f"buffer_load_dwordx4 v[{WXA+4}:{WXA+7}], v7, s[{SWS}:{SWS+3}], s{t0} offen offset:32")
    a("s_waitcnt vmcnt(12)")
    a("s_branch L2_pw3")
    a.label("L2_nob3")
    a("s_waitcnt vmcnt(6)")
    a.label("L2_pw3")
    a(f"s_mov_b32 s{S_FIRST}, 0")
    for x in a_reads(1): a(x)
    a("s_nop 7")
    a.stamp(9)
    if "cyc" in EXP: a.cstamp(2)
    a.label("L2_loop")
    OOL.clear()
    for u in range(4): iteration(a, u)
    a(f"v_add_u32 v{vA2}, {4*TILE}, v{vA2}")
    a(f"v_add_u32 v{vB0}, {4*TILE}, v{vB0}")
    a(f"v_add_u32 v{vB1}, {4*TILE}, v{vB1}")
    a(f"v_add_u32 v{vSR}, 512, v{vSR}")
    a(f"s_add_u32 s{S_WPH}, s{S_WPH}, 1")
    a(f"s_min_u32 s{S_WPH}, s{S_WPH}, 2")
    a("s_branch L2_loop")
    for lbl, fn in OOL:
        a.label(lbl); fn(a)
    a.label("L2_win_end")
    a("s_setprio 0")
    a("s_waitcnt lgkmcnt(0)")
    a(f"s_cmp_eq_u32 s{S_TG}, s{FB}")
    a("s_cbranch_scc0 L2_we_nf")
    a("s_nop 3")
    flush(a, Z[0])
    a.label("L2_we_nf")
    for m in seg_mfmas(): a(m)
    a(f"s_add_u32 s{S_TG0}, s{S_TG0}, s{S_N}")
    a(f"s_cmp_ge_u32 s{S_TG0}, s{S_NT}")
    a("s_cbranch_scc1 L2_final")
    a("s_waitcnt vmcnt(0) lgkmcnt(0)")
    a("s_barrier")
    a(f"s_mov_b32 s{S_IB}, 0")
    zero_fill(a)
    rec_consts(a)
    rec_loads(a, "L2_ld2")
    a("s_branch L2_round_bar")

    a.label("L2_final")
    if "df" in EXP: a("s_sleep 64")
    if "df2" in EXP: a("s_sleep 64"); a("s_sleep 64")
    if "dv" in EXP:
        for k in range(512): a(f"v_exp_f32 v{48+k%8}, v{56+k%8}")
    a.stamp(10)
    if "cyc" in EXP:
        a.cstamp(3)
        a(f"s_mov_b32 s92, s{S_NT}")
    RQ, HQ, O, BR = 88, 120, 16, 40
    SP, SPO = R4, R5
    srd(a, SH, P_H, 0, MAT_BYTES)
    srd(a, SO, P_OUT, 0, MAT_BYTES)
    srd(a, SP, P_POS, 0, 60000)
    srd(a, SPO, P_OUT, MAT_BYTES, 60000)
    sR, sN, sTmp, sP = T[4], T[5], T[6], T[7]
    a("v_and_b32 v3, 15, v1")
    a("v_lshrrev_b32 v4, 4, v1")
    a("v_lshrrev_b32 v5, 3, v3")
    a("v_lshlrev_b32 v5, 12, v5")
    a("v_and_b32 v6, 7, v3")
    a("v_lshl_add_u32 v5, v6, 4, v5")
    a("v_lshl_add_u32 v5, v4, 7, v5")
    a(f"s_lshl_b32 s{t0}, s{W}, 9")
    a(f"v_add_u32 v5, s{t0}, v5")
    a(f"s_lshl_b32 s{sR}, s{S_G5}, 12")
    a(f"s_add_u32 s{sR}, s{sR}, {WS_R}")
    a("v_lshlrev_b32 v6, 9, v3")
    a("v_lshl_add_u32 v6, v4, 4, v6")
    a(f"s_lshl_b32 s{t0}, s{W}, 6")
    a(f"v_add_u32 v6, s{t0}, v6")
    a(f"s_mul_i32 s{sN}, s2, 20480")
    for nb in range(3):
        a(f"buffer_load_dwordx4 v[{RQ+4*nb}:{RQ+4*nb+3}], v5, s[{SWS}:{SWS+3}], s{sR} offen")
        a(f"s_add_u32 s{sR}, s{sR}, 8192")
    for nb in range(3):
        a(f"s_add_u32 s{sTmp}, s{sN}, {nb*8192}")
        a(f"buffer_load_dwordx4 v[{HQ+4*nb}:{HQ+4*nb+3}], v6, s[{SH}:{SH+3}], s{sTmp} offen")
    a("v_lshlrev_b32 v7, 2, v1")
    a(f"s_mul_i32 s{sP}, s2, 240")
    a(f"buffer_load_dword v8, v7, s[{SP}:{SP+3}], s{sP} offen")
    flush(a, Z[1])
    a(f"v_mul_u32_u24 v9, {S_ROW}, v3")
    a("v_lshl_add_u32 v9, v4, 4, v9")
    a(f"v_add_u32 v9, {L_S}, v9")
    a("s_waitcnt lgkmcnt(0)")
    a("s_barrier")
    a.lds = []
    seq = [(nb, ks) for nb in range(3) for ks in range(8)]
    def bread(i):
        nb, ks = seq[i]; q = BR + 4 * (i % 6)
        a.ds(f"ds_read_b128 v[{q}:{q+3}], v9 offset:{nb*16*S_ROW + ks*64}", ("B", i))
    X, EE = 64, 72
    sM16, sLN2 = T[8], T[9]
    a(f"s_mov_b32 s{sM16}, 0xffff0000")
    a(f"s_mov_b32 s{sLN2}, {NLN2:#x}")
    def epilogue(nb):
        o = O + 8 * nb
        ops = []
        if nb == 2:
            ops += ["s_mov_b32 exec_lo, 0x00ff00ff", "s_mov_b32 exec_hi, 0x00ff00ff"]
        for i in range(4):
            ops.append(f"v_lshlrev_b32 v{X+2*i}, 16, v{RQ+4*nb+i}")
            ops.append(f"v_and_b32 v{X+2*i+1}, s{sM16}, v{RQ+4*nb+i}")
        for k in range(8): ops.append(f"v_add_f32 v{X+k}, v{X+k}, v{o+k}")
        for k in range(8): ops.append(f"v_exp_f32 v{EE+k}, v{X+k}")
        for k in range(8): ops.append(f"v_add_f32 v{EE+k}, 1.0, v{EE+k}")
        for k in range(8): ops.append(f"v_rcp_f32 v{EE+k}, v{EE+k}")
        for i in range(4):
            ops.append(f"v_lshlrev_b32 v{o+2*i}, 16, v{HQ+4*nb+i}")
            ops.append(f"v_and_b32 v{o+2*i+1}, s{sM16}, v{HQ+4*nb+i}")
        for k in range(8): ops.append(f"v_mul_f32 v{X+k}, v{X+k}, v{EE+k}")
        for k in range(8): ops.append(f"v_fma_f32 v{X+k}, v{X+k}, s{sLN2}, v{o+k}")
        d = 100 + 4 * nb
        for i in range(4): ops.append(f"v_cvt_pk_bf16_f32 v{d+i}, v{X+2*i}, v{X+2*i+1}")
        ops.append(f"s_add_u32 s{sTmp}, s{sN}, {nb*8192}")
        ops.append(f"buffer_store_dwordx4 v[{d}:{d+3}], v6, s[{SO}:{SO+3}], s{sTmp} offen{OST()}")
        return ops
    for i in range(5): bread(i)
    pend = []
    for i, (nb, ks) in enumerate(seq):
        q = BR + 4 * (i % 6)
        if ks == 3 and nb > 0:
            if nb == 1: a("s_waitcnt vmcnt(0)")
            pend = epilogue(nb - 1)
        a.wait_lds(("B", i))
        for cb in range(2):
            o = O + 8 * nb + 4 * cb; w = WH + 4 * (cb * 8 + ks)
            c = "0" if ks == 0 else f"v[{o}:{o+3}]"
            a(f"v_mfma_f32_16x16x32_bf16 v[{o}:{o+3}], v[{w}:{w+3}], v[{q}:{q+3}], {c}")
        if i + 5 < len(seq): bread(i + 5)
        left = 7 - ks if ks >= 3 else None
        if pend:
            k = -(-len(pend) // (8 - ks + 2))
            for op in pend[:k]: a(op)
            pend = pend[k:]
        if ks == 2:
            for op in pend: a(op)
            pend = []
    for op in pend: a(op)
    a.stamp(11)
    a("s_nop 7")
    for op in epilogue(2): a(op)
    a("s_mov_b64 exec, -1")
    a(f"s_cmp_lg_u32 s{W}, 0")
    a("s_cbranch_scc1 L2_done")
    a("s_mov_b32 exec_hi, 0x0fffffff")
    for k in range(2):
        a(f"v_lshlrev_b32 v10, 1, v1")
        if k: a("v_add_u32 v10, 1, v10")
        a("v_mul_u32_u24 v11, 171, v10")
        a("v_lshrrev_b32 v11, 9, v11")
        a("v_mul_u32_u24 v12, 3, v11")
        a("v_sub_u32 v12, v10, v12")
        a("v_lshrrev_b32 v13, 3, v11")
        a("v_lshlrev_b32 v13, 5, v13")
        a("v_lshl_add_u32 v13, v12, 3, v13")
        a("v_and_b32 v11, 7, v11")
        a("v_add3_u32 v13, v13, v11, 8")
        a("v_lshlrev_b32 v13, 2, v13")
        a(f"v_add_u32 v13, {L_T}, v13")
        a(f"ds_read_b32 v{14+k}, v13")
    a("v_lshlrev_b32 v10, 16, v8")
    a(f"v_and_b32 v11, s{sM16}, v8")
    a("s_waitcnt lgkmcnt(0)")
    a(f"v_fma_f32 v10, v14, s{sLN2}, v10")
    a(f"v_fma_f32 v11, v15, s{sLN2}, v11")
    a("v_cvt_pk_bf16_f32 v10, v10, v11")
    a(f"buffer_store_dword v10, v7, s[{SPO}:{SPO+3}], s{sP} offen")
    a.label("L2_done")
    if a.diag:
        a("s_waitcnt vmcnt(0)")
        a("s_memrealtime s[100:101]")
        a("s_waitcnt lgkmcnt(0)")
        a("s_mov_b32 s89, s100")
        a.dump_stamps(P_WS, WS_DIAG, W)
```

```python
N_NODES = 10000
N_EDGES = 160000
WS_Q    = 0
WS_P    = 0x500000
WS_R    = 0xA00000
WS_RECA = 0xF00000
WS_RECB = 0x1200000
WS_TAB  = 0x1300000
WS_WHP  = 0x1400000
WS_WX   = 0x1420000
WS_WXP  = 0x1421000
WS_USED = 0x1430000
WS_DIAG = 0x1500000
MAT_BYTES = 5120000
NCH = 60
CH_E = 2667
CH_STRIDE = 2688
TAB_STRIDE = 4096
NLOG2E = 0xBFB8AA3B
NLN2 = 0xBF317218
SRD3 = 0x00020000

def srd(a, d, base, off, size):
    if off:
        a(f"s_add_u32 s{d}, s{base}, {off}")
        a(f"s_addc_u32 s{d+1}, s{base+1}, 0")
    else:
        a(f"s_mov_b32 s{d}, s{base}")
        a(f"s_mov_b32 s{d+1}, s{base+1}")
    a(f"s_mov_b32 s{d+2}, {size}")
    a(f"s_mov_b32 s{d+3}, {SRD3:#x}")

def kernel_desc(name, nvgpr, nsgpr):
    return f""".section .rodata,"a"
.p2align 6
.amdhsa_kernel {name}
  .amdhsa_next_free_vgpr {nvgpr}
  .amdhsa_next_free_sgpr {nsgpr}
  .amdhsa_accum_offset {(nvgpr + 3) // 4 * 4}
  .amdhsa_group_segment_fixed_size 0
  .amdhsa_kernarg_size 88
  .amdhsa_user_sgpr_count 2
  .amdhsa_user_sgpr_kernarg_segment_ptr 1
  .amdhsa_system_sgpr_workgroup_id_x 1
  .amdhsa_float_denorm_mode_32 3
.end_amdhsa_kernel
"""

S_WAVE = 3
P_H, P_POS, P_EA, P_SRC, P_DST, P_WE, P_WX, P_WH, P_WS, P_OUT, P_DBG = 4, 6, 8, 10, 12, 14, 16, 18, 20, 22, 24
R0, R1, R2, R3, R4, R5 = 28, 32, 36, 40, 44, 48
T = list(range(52, 64))
N_RANGE = 63
N_GEMM = 3 * N_RANGE
import os
ORDER = os.environ.get("ORDER", "gemm_first")
if ORDER == "gemm_first":
    WG_GEMM0, WG_PACK, WG_SORT0 = 0, N_GEMM, N_GEMM + 1
else:
    WG_SORT0, WG_PACK, WG_GEMM0 = 0, NCH, NCH + 1
GRID = 250
INC_INIT, INC_SORT, INC_GEMM = 1, 1 << 8, 1 << 16
K1 = 1 | (NCH << 8)
K2 = N_GEMM + 1
WS_MBX = 0x1428000
```

```python
from asmlib import *
from common import *
CONSTS = None

ST = " sc1"
W = S_WAVE

S_CNT = 85

def broadcast(a, lbl, word):
    srd(a, R4, P_WS, WS_MBX, 2048)
    a("v_lshlrev_b32 v2, 7, v1")
    a("v_mov_b32 v3, 1")
    a("s_mov_b32 exec_lo, 0xffff")
    a("s_mov_b32 exec_hi, 0")
    a(f"buffer_store_dword v3, v2, s[{R4}:{R4+3}], 0 offen offset:{4*word} sc1")
    a("s_mov_b64 exec, -1")

def arrive_issue(a, inc):
    srd(a, R5, P_DBG, 0, 256)
    a("v_mov_b32 v2, 0")
    a(f"v_mov_b32 v3, {inc}")
    a("s_mov_b32 exec_lo, 1")
    a("s_mov_b32 exec_hi, 0")
    a(f"buffer_atomic_add v3, v2, s[{R5}:{R5+3}], 0 offen sc0 sc1")
    a("s_mov_b64 exec, -1")

def arrive_finish(a, inc, tag):
    a("s_waitcnt vmcnt(0)")
    a(f"v_readfirstlane_b32 s{T[0]}, v3")
    a(f"s_add_u32 s{S_CNT}, s{T[0]}, {inc}")
    a(f"s_and_b32 s{T[1]}, s{S_CNT}, 0xffff")
    a(f"s_cmp_eq_u32 s{T[1]}, {K1:#x}")
    a(f"s_cbranch_scc0 L_arr1_{tag}")
    a(f"s_and_b32 s{T[1]}, s{T[0]}, 0xffff")
    a(f"s_cmp_eq_u32 s{T[1]}, {K1:#x}")
    a(f"s_cbranch_scc1 L_arr1_{tag}")
    broadcast(a, tag, 0)
    a.label(f"L_arr1_{tag}")
    a(f"s_and_b32 s{T[1]}, s{S_CNT}, 0xffff00ff")
    a(f"s_cmp_eq_u32 s{T[1]}, {(K2 << 16) | 1:#x}")
    a(f"s_cbranch_scc0 L_arr2_{tag}")
    a(f"s_and_b32 s{T[1]}, s{T[0]}, 0xffff00ff")
    a(f"s_cmp_eq_u32 s{T[1]}, {(K2 << 16) | 1:#x}")
    a(f"s_cbranch_scc1 L_arr2_{tag}")
    broadcast(a, tag, 1)
    a.label(f"L_arr2_{tag}")

LDS_FLAG = 163824
S_INC = 84

def inv(a):
    a(f"s_cmp_eq_u32 s{W}, 7")
    a("s_cbranch_scc0 1f")
    a("buffer_inv sc1")
    a.label("1")

EXP = set()
ZFILL = None
def signal(a, inc, tag):
    if ("d" + tag) in EXP: a("s_sleep 64")
    a("s_waitcnt lgkmcnt(0)")
    a("s_barrier")
    ZFILL(a)
    a(f"s_mov_b32 s{S_INC}, {inc:#x}")
    inv(a)
    a("s_waitcnt vmcnt(0) lgkmcnt(0)")
    a("s_barrier")
    a("s_branch L_phase2")

def w_lane_offsets(a):
    a("v_lshrrev_b32 v2, 2, v1")
    a("v_lshlrev_b32 v2, 9, v2")
    a("v_and_b32 v3, 3, v1")
    a("v_lshl_add_u32 v2, v3, 4, v2")
    a(f"s_lshl_b32 s{T[0]}, s{W}, 6")
    a(f"v_add_u32 v2, s{T[0]}, v2")

def w_dma(a, srdw):
    a(f"s_lshl_b32 s{T[1]}, s{W}, 14")
    for i in range(16):
        a(f"s_add_u32 m0, s{T[1]}, {i*1024}")
        a(f"s_mov_b32 s{T[2]}, {i*8192}")
        a.mem(f"buffer_load_dwordx4 v2, s[{srdw}:{srdw+3}], s{T[2]} offen lds", ("W", i))

def gemm(a, mat):
    nm = "PQR"[mat]
    VW, VF, ACC, PK = 48, 112, (152, 168), 184
    QS, RING = 192, 10
    VA = 8
    vH = (3, 4)
    sRange, sH0, sHL, sO, sScale, sTmp = T[6], T[7], T[8], T[9], T[4], T[2]
    SW_, SH_, SO_ = R0, R1, R2
    a.label(f"L1_gemm_{nm}")
    if mat == 0: srd(a, SW_, P_WE, 0, 131072)
    if mat == 1: srd(a, SW_, P_WE, 131072, 131072)
    if mat == 2: srd(a, SW_, P_WH, 0, 131072)
    srd(a, SH_, P_H, 0, MAT_BYTES)
    w_lane_offsets(a)
    a("v_lshrrev_b32 v5, 5, v1")
    a(f"s_lshl_b32 s{T[0]}, s{W}, 2")
    a("v_and_b32 v6, 31, v1")
    for i in range(2):
        a(f"v_add_u32 v7, s{T[0]}, v5")
        if i: a("v_add_u32 v7, 2, v7")
        a("v_and_b32 v16, 15, v7")
        a("v_xor_b32 v16, v16, v6")
        a("v_lshlrev_b32 v16, 4, v16")
        a(f"v_lshl_add_u32 v{vH[i]}, v7, 9, v16")
    a(f"s_mul_i32 s{sH0}, s{sRange}, 81920")
    a(f"s_lshl_b32 s{sHL}, s{W}, 11")
    def h_dma(Tt, ldsbase):
        for i in range(2):
            a(f"s_add_u32 m0, s{sHL}, {ldsbase + i*1024}")
            a(f"s_add_u32 s{sTmp}, s{sH0}, {Tt*16384}")
            a.mem(f"buffer_load_dwordx4 v{vH[i]}, s[{SH_}:{SH_+3}], s{sTmp} offen lds", ("H", Tt))
    sWL = T[10]
    a(f"s_lshl_b32 s{sWL}, s{W}, 14")
    def w_one(i):
        a(f"s_add_u32 m0, s{sWL}, {i*1024}")
        a(f"s_mov_b32 s{sTmp}, {i*8192}")
        a.mem(f"buffer_load_dwordx4 v2, s[{SW_}:{SW_+3}], s{sTmp} offen lds", ("W", i))
    HP = 24
    def hp_load(Tt):
        a(f"s_add_u32 s{sTmp}, s{sH0}, {Tt*16384}")
        for i in range(2):
            q = HP + 8 * (Tt - 2) + 4 * i
            a.mem(f"buffer_load_dwordx4 v[{q}:{q+3}], v{vH[i]}, s[{SH_}:{SH_+3}], s{sTmp} offen", ("H", Tt))
    a("s_setprio 3")
    h_dma(0, 131072)
    for i in range(8): w_one(i)
    a("s_setprio 0")
    srd(a, SO_, P_WS, (WS_P, WS_Q, WS_R)[mat], MAT_BYTES)
    a("v_lshrrev_b32 v5, 5, v1")
    a("v_bfe_u32 v6, v1, 2, 2")
    a("v_lshl_add_u32 v6, v5, 3, v6")
    a("v_lshlrev_b32 v6, 6, v6")
    a("v_bfe_u32 v7, v1, 4, 1")
    a("v_and_b32 v16, 3, v1")
    a("v_lshl_add_u32 v7, v7, 2, v16")
    if mat == 0:
        a("v_lshlrev_b32 v7, 3, v7")
    else:
        a("v_and_b32 v16, 1, v7")
        a("v_lshlrev_b32 v16, 5, v16")
        a("v_lshrrev_b32 v7, 1, v7")
        a("v_lshl_add_u32 v7, v7, 3, v16")
    a("v_add_u32 v5, v6, v7")
    a(f"s_lshl_b32 s{T[1]}, s{W}, 14")
    a(f"v_add_u32 v5, s{T[1]}, v5")
    a("v_and_b32 v6, 31, v1")
    a("v_lshrrev_b32 v7, 5, v1")
    a("v_and_b32 v16, 15, v6")
    a("v_xor_b32 v7, v7, v16")
    a("v_lshlrev_b32 v6, 9, v6")
    a("v_add_u32 v6, 0x20000, v6")
    for k in range(8):
        a(f"v_xor_b32 v16, {2*k}, v7")
        a(f"v_lshl_add_u32 v{VA+k}, v16, 4, v6")
    a("v_and_b32 v6, 31, v1")
    a("v_lshrrev_b32 v7, 5, v1")
    a(f"s_mul_i32 s{sO}, s{sRange}, 81920")
    if mat == 0:
        a(f"s_lshl_b32 s{T[0]}, s{W}, 9")
        a("v_lshlrev_b32 v17, 4, v6")
        a("v_lshl_add_u32 v17, v7, 12, v17")
        a(f"v_add_u32 v17, s{T[0]}, v17")
    elif mat == 2:
        a(f"s_lshl_b32 s{T[0]}, s{W}, 9")
        a("v_lshrrev_b32 v17, 3, v6")
        a("v_lshlrev_b32 v17, 12, v17")
        a("v_lshl_add_u32 v17, v7, 8, v17")
        a("v_and_b32 v16, 7, v6")
        a("v_lshl_add_u32 v17, v16, 4, v17")
        a(f"v_add_u32 v17, s{T[0]}, v17")
    else:
        a(f"s_lshl_b32 s{T[0]}, s{W}, 11")
        a(f"s_add_u32 s{T[0]}, s{T[0]}, 81920")
        a("v_bfe_u32 v16, v6, 1, 2")
        a("v_lshlrev_b32 v19, 1, v7")
        a("v_xor_b32 v19, v19, v16")
        a("v_lshlrev_b32 v20, 6, v6")
        a(f"v_add_u32 v20, s{T[0]}, v20")
        a("v_lshl_add_u32 v17, v19, 4, v20")
        a("v_xor_b32 v19, 1, v19")
        a("v_lshl_add_u32 v18, v19, 4, v20")
        a("v_lshrrev_b32 v6, 2, v1")
        a("v_bfe_u32 v16, v1, 3, 2")
        a("v_and_b32 v7, 3, v1")
        a("v_xor_b32 v16, v16, v7")
        a("v_lshlrev_b32 v19, 6, v6")
        a("v_lshl_add_u32 v19, v16, 4, v19")
        a(f"v_add_u32 v19, s{T[0]}, v19")
        a(f"s_lshl_b32 s{T[0]}, s{W}, 6")
        a("v_lshlrev_b32 v20, 9, v6")
        a("v_lshl_add_u32 v20, v7, 4, v20")
        a(f"v_add_u32 v20, s{T[0]}, v20")
    a(f"s_mov_b32 s{sScale}, {NLOG2E:#x}")
    a.stamp(1)
    a.wait_vm(("H", 0))
    a("s_barrier")
    a.stamp(2)

    def trread(st):
        for i in range(2):
            a.ds(f"ds_read_b64_tr_b16 v[{VW+4*st+2*i}:{VW+4*st+2*i+1}], v5 offset:{st*1024+i*256}", ("TR", st))
    def fread(u):
        Tt, st = divmod(u, 16)
        base = Tt * 16384 if Tt < 2 else (Tt - 2) * 16384
        q = VF + 4 * (u % RING)
        a.ds(f"ds_read_b128 v[{q}:{q+3}], v{VA + (st & 7)} offset:{base + 256*(st >> 3)}", ("F", u))
    def mfma(u):
        Tt, st = divmod(u, 16)
        q = VF + 4 * (u % RING); w = VW + 4 * st; acc = ACC[Tt & 1]
        c = "0" if st == 0 else f"v[{acc}:{acc+15}]"
        A, B = (q, w) if mat == 0 else (w, q)
        a(f"v_mfma_f32_32x32x16_bf16 v[{acc}:{acc+15}], v[{A}:{A+3}], v[{B}:{B+3}], {c}")
    def epi(Tt):
        acc = ACC[Tt & 1]
        ops = []
        for j in range(8):
            ops.append(f"v_mul_f32 v{acc+2*j}, s{sScale}, v{acc+2*j}")
            ops.append(f"v_mul_f32 v{acc+2*j+1}, s{sScale}, v{acc+2*j+1}")
        for j in range(8):
            ops.append(f"v_cvt_pk_bf16_f32 v{PK+j}, v{acc+2*j}, v{acc+2*j+1}")
        if mat == 0:
            ops.append("s_nop 1")
            for q in (0, 2):
                ops.append(f"v_permlane32_swap_b32 v{PK+2*q}, v{PK+2*q+2}")
                ops.append(f"v_permlane32_swap_b32 v{PK+2*q+1}, v{PK+2*q+3}")
            for q in (0, 2):
                ops.append(f"s_add_u32 s{sTmp}, s{sO}, {Tt*16384 + q*4096}")
                ops.append(("vm", f"buffer_store_dwordx4 v[{PK+2*q}:{PK+2*q+3}], v17, s[{SO_}:{SO_+3}], s{sTmp} offen{ST}", ("S", Tt)))
        elif mat == 2:
            ops.append(f"s_add_u32 s{sTmp}, s{sO}, {Tt*16384}")
            for i in range(2):
                ops.append(("vm", f"buffer_store_dwordx4 v[{PK+4*i}:{PK+4*i+3}], v17, s[{SO_}:{SO_+3}], s{sTmp} offen offset:{i*128}{ST}", ("S", Tt)))
        else:
            ops.append(("ds", f"ds_write_b128 v17, v[{PK}:{PK+3}]", ("QW", Tt)))
            ops.append(("ds", f"ds_write_b128 v18, v[{PK+4}:{PK+7}]", ("QW", Tt)))
            ops.append(("waitlds", ("QW", Tt)))
            ops.append(("ds", f"ds_read_b128 v[{QS}:{QS+3}], v19", ("QR0", Tt)))
            ops.append(("ds", f"ds_read_b128 v[{QS+4}:{QS+7}], v19 offset:1024", ("QR1", Tt)))
            ops.append(f"s_add_u32 s{sTmp}, s{sO}, {Tt*16384}")
            ops.append(("waitlds", ("QR0", Tt)))
            ops.append(("vm", f"buffer_store_dwordx4 v[{QS}:{QS+3}], v20, s[{SO_}:{SO_+3}], s{sTmp} offen{ST}", ("S", Tt)))
            ops.append(f"s_add_u32 s{sTmp}, s{sO}, {Tt*16384 + 8192}")
            ops.append(("waitlds", ("QR1", Tt)))
            ops.append(("vm", f"buffer_store_dwordx4 v[{QS+4}:{QS+7}], v20, s[{SO_}:{SO_+3}], s{sTmp} offen{ST}", ("S", Tt)))
        return ops
    def emit(op):
        if isinstance(op, str): a(op)
        elif op[0] == "vm": a.mem(op[1], op[2])
        elif op[0] == "ds": a.ds(op[1], op[2])
        elif op[0] == "waitlds": a.wait_lds_if(op[1])
    PD = 8
    tmp = Asm(); CONSTS(tmp, 241, 64); filler = list(tmp.L)
    def stream(tiles, pend, first=False):
        u0, u1 = tiles[0] * 16, (tiles[-1] + 1) * 16
        for u in range(u0, u0 + (6 if first else PD)): fread(u)
        if first:
            for st in range(2):
                a.wait_vm(("W", st)); trread(st)
        nxt = u0 + (6 if first else PD)
        for u in range(u0, u1):
            Tt, st = divmod(u, 16)
            if st == 0 and u > u0:
                assert not pend
                pend = epi(Tt - 1)
            if first and Tt == 0:
                if st + 8 < 16: w_one(st + 8)
                elif st == 8: h_dma(1, 147456)
                elif st in (9, 10, 11): hp_load(st - 7)
                if st + 2 < 16:
                    a.wait_vm(("W", st + 2)); trread(st + 2)
                a.wait_lds_if(("TR", st))
            a.wait_lds_if(("F", u))
            mfma(u)
            if first and u == 15:
                a.wait_vm(("H", 1))
                a("s_barrier")
            depth = 6 if (first and Tt == 0) else PD
            while nxt < u1 and nxt <= u + depth and not (first and u < 15 and nxt >= 16):
                fread(nxt); nxt += 1
            if filler and st >= 2 and Tt == 3:
                k = -(-len(filler) // (16 - st))
                for op in filler[:k]: a(op)
                del filler[:k]
            if st >= 5 and pend:
                k = -(-len(pend) // (16 - st))
                for op in pend[:k]: emit(op)
                pend = pend[k:]
        assert not pend
        return epi(tiles[-1])
    pend = stream([0, 1], [], first=True)
    a.stamp(3)
    for k in range(8): a(f"v_add_u32 v{VA+k}, 0xfffe0000, v{VA+k}")
    a.wait_vm(("H", 4))
    a("v_lshlrev_b32 v21, 4, v1")
    a(f"v_add_u32 v21, s{sHL}, v21")
    for T2 in (2, 3, 4):
        for i in range(2):
            q = HP + 8 * (T2 - 2) + 4 * i
            a.ds(f"ds_write_b128 v21, v[{q}:{q+3}] offset:{(T2-2)*16384 + i*1024}", ("HW", T2))
    a.wait_lds_if(("HW", 4))
    a("s_barrier")
    a(f"s_cmp_lg_u32 s{W}, 0")
    a(f"s_cbranch_scc1 L1_peek_{nm}")
    srd(a, R5, P_DBG, 0, 256)
    a("v_mov_b32 v22, 0")
    a("s_mov_b32 exec_lo, 1")
    a("s_mov_b32 exec_hi, 0")
    a(f"buffer_load_dword v23, v22, s[{R5}:{R5+3}], 0 offen sc1")
    a("s_mov_b64 exec, -1")
    a.label(f"L1_peek_{nm}")
    pend = stream([2, 3, 4], pend)
    a.stamp(4)
    a("s_waitcnt lgkmcnt(0)")
    a.lds = []
    a("s_barrier")
    ZFILL(a)
    for op in pend: emit(op)
    if "dg" in EXP or ("dQ" in EXP and nm == "Q"): a("s_sleep 64")
    a(f"s_mov_b32 s{S_INC}, {INC_GEMM:#x}")
    inv(a)
    a(f"s_cmp_lg_u32 s{W}, 0")
    a(f"s_cbranch_scc1 L1_peek2_{nm}")
    a("s_waitcnt vmcnt(0)")
    a("v_and_b32 v23, 0xffff, v23")
    a(f"v_mov_b32 v22, {LDS_FLAG}")
    a("s_mov_b32 exec_lo, 1")
    a("s_mov_b32 exec_hi, 0")
    a("ds_write_b32 v22, v23")
    a("s_mov_b64 exec, -1")
    a.label(f"L1_peek2_{nm}")
    a("s_waitcnt vmcnt(0) lgkmcnt(0)")
    a("s_barrier")
    a(f"v_mov_b32 v22, {LDS_FLAG}")
    a("ds_read_b32 v23, v22")
    a("s_waitcnt lgkmcnt(0)")
    a(f"v_readfirstlane_b32 s{T[0]}, v23")
    a(f"s_cmp_eq_u32 s{T[0]}, {K1:#x}")
    a("s_cbranch_scc1 L_phase2_fast")
    a("s_branch L_phase2")

def sort(a):
    POS, HIST, WSUM, RECA = 0, 65536, 70656, 71680
    RECB = RECA + CH_STRIDE * 16
    NR = 6
    D, SX, EA = 8, 14, 20
    RA, RB, BA, RK = 32, 56, 62, 68
    t = 76
    sC, sE4, sE8, sTmp = T[6], T[7], T[8], T[2]
    MK = 62
    a.label("L1_sort")
    a(f"s_sub_u32 s{sC}, s2, {WG_SORT0}")
    srd(a, R0, P_DST, 0, N_EDGES * 4)
    a(f"s_mul_i32 s{sE4}, s{sC}, {CH_E*4}")
    a(f"s_mul_i32 s{sE8}, s{sC}, {CH_E*8}")
    a("v_lshlrev_b32 v2, 2, v0")
    a("s_setprio 3")
    for i in range(NR):
        a(f"s_add_u32 s{sTmp}, s{sE4}, {i*2048}")
        a.mem(f"buffer_load_dword v{D+i}, v2, s[{R0}:{R0+3}], s{sTmp} offen", "D")
    a("s_setprio 0")
    srd(a, R1, P_SRC, 0, N_EDGES * 4)
    for i in range(NR):
        a(f"s_add_u32 s{sTmp}, s{sE4}, {i*2048}")
        a.mem(f"buffer_load_dword v{SX+i}, v2, s[{R1}:{R1+3}], s{sTmp} offen", "S")
    srd(a, R3, P_POS, 0, 60000)
    a("v_lshlrev_b32 v4, 4, v1")
    for j in range(8):
        a(f"s_lshl_b32 s{T[0]}, s{W}, 10")
        a(f"s_add_u32 s{T[0]}, s{T[0]}, {j*8192}")
        a(f"s_mov_b32 m0, s{T[0]}")
        a("s_nop 0")
        a.mem(f"buffer_load_dwordx4 v4, s[{R3}:{R3+3}], s{T[0]} offen lds", "P")
    srd(a, R2, P_EA, 0, N_EDGES * 8)
    a("v_lshlrev_b32 v3, 3, v0")
    for i in range(NR):
        a(f"s_add_u32 s{sTmp}, s{sE8}, {i*4096}")
        a.mem(f"buffer_load_dwordx2 v[{EA+2*i}:{EA+2*i+1}], v3, s[{R2}:{R2+3}], s{sTmp} offen", "E")
    srd(a, R4, P_WS, 0, WS_USED)
    for k in range(4): a(f"v_mov_b32 v{t+k}, 0")
    a("v_lshlrev_b32 v5, 4, v0")
    a(f"v_add_u32 v5, {HIST}, v5")
    a(f"s_cmp_ge_u32 s{W}, 5")
    a("s_cbranch_scc1 L1_sort_z")
    a(f"ds_write_b128 v5, v[{t}:{t+3}]")
    a.label("L1_sort_z")
    a("v_mov_b32 v6, 1")
    a(f"s_mul_i32 s{T[0]}, s{sC}, {CH_E}")
    a(f"s_sub_u32 s{T[0]}, {N_EDGES}, s{T[0]}")
    a(f"s_min_u32 s{T[0]}, s{T[0]}, {CH_E}")
    a(f"s_sub_u32 s{T[0]}, s{T[0]}, {(NR-1)*512}")
    a(f"v_cmp_gt_u32 s[{MK}:{MK+1}], s{T[0]}, v0")
    a("s_waitcnt lgkmcnt(0)")
    a("s_barrier")
    a.wait_vm("D")
    def last_round(lbl):
        a(f"s_mov_b64 exec, s[{MK}:{MK+1}]")
        a(f"s_cbranch_execz {lbl}")
    for i in range(NR):
        if i == NR - 1: last_round("L1_sort_a")
        a(f"v_lshrrev_b32 v{t}, 3, v{D+i}")
        a(f"v_lshlrev_b32 v{BA+i}, 2, v{t}")
        a(f"v_add_u32 v{BA+i}, {HIST}, v{BA+i}")
        a(f"ds_add_rtn_u32 v{RK+i}, v{BA+i}, v6")
    a.label("L1_sort_a")
    a("s_mov_b64 exec, -1")
    CONSTS(a, 120, 64)
    a.wait_vm("P")
    a("s_waitcnt lgkmcnt(0)")
    a("s_barrier")
    a.stamp(2)
    a(f"s_cmp_lg_u32 s{W}, 0")
    a("s_cbranch_scc1 L1_sort_s1")
    C = 96
    a("v_mul_u32_u24 v7, 80, v1")
    a(f"v_add_u32 v7, {HIST}, v7")
    for q in range(5): a(f"ds_read_b128 v[{C+4*q}:{C+4*q+3}], v7 offset:{16*q}")
    a("s_waitcnt lgkmcnt(0)")
    a(f"v_mov_b32 v{t}, v{C}")
    a(f"v_mov_b32 v{C}, 0")
    for k in range(1, 20):
        a(f"v_add_u32 v{t+1}, v{t}, v{C+k}")
        a(f"v_mov_b32 v{C+k}, v{t}")
        a(f"v_mov_b32 v{t}, v{t+1}")
    a(f"v_mov_b32 v{t+2}, v{t}")
    for sh in (1, 2, 4, 8):
        a("s_nop 1")
        a(f"v_add_u32_dpp v{t+2}, v{t+2}, v{t+2} row_shr:{sh} row_mask:0xf bank_mask:0xf")
    a("s_nop 1")
    a(f"v_add_u32_dpp v{t+2}, v{t+2}, v{t+2} row_bcast:15 row_mask:0xa bank_mask:0xf")
    a("s_nop 1")
    a(f"v_add_u32_dpp v{t+2}, v{t+2}, v{t+2} row_bcast:31 row_mask:0xc bank_mask:0xf")
    a(f"v_sub_u32 v{t+2}, v{t+2}, v{t}")
    for k in range(20): a(f"v_add_u32 v{C+k}, v{C+k}, v{t+2}")
    for q in range(5): a(f"ds_write_b128 v7, v[{C+4*q}:{C+4*q+3}] offset:{16*q}")
    a.label("L1_sort_s1")
    PP = 96
    a(f"s_mov_b32 s{T[3]}, 0xffff0000")
    M16 = T[3]
    a("s_waitcnt lgkmcnt(0)")
    a("v_mov_b32 v7, 0")
    for i in range(NR):
        for j, X in enumerate((D + i, SX + i)):
            a(f"v_mul_u32_u24 v{t+4}, 6, v{X}")
            a(f"v_and_b32 v{t+4}, -4, v{t+4}")
            a(f"ds_read2_b32 v[{PP+4*i+2*j}:{PP+4*i+2*j+1}], v{t+4} offset0:0 offset1:1")
    a.wait_vm("E")
    for i in range(NR):
        PD_, PS_ = PP + 4 * i, PP + 4 * i + 2
        a(f"v_and_b32 v{t+5}, 7, v{D+i}")
        a(f"v_lshl_or_b32 v{RB+i}, v{t+5}, 14, v{SX+i}")
        a(f"v_lshrrev_b32 v{t+5}, 3, v{D+i}")
        a(f"v_lshl_or_b32 v{RB+i}, v{t+5}, 17, v{RB+i}")
        a(f"v_and_b32 v{t+6}, 1, v{D+i}")
        a(f"v_lshlrev_b32 v{t+6}, 4, v{t+6}")
        a(f"v_and_b32 v{t+7}, 1, v{SX+i}")
        a(f"v_lshlrev_b32 v{t+7}, 4, v{t+7}")
        if i == 0: a("s_waitcnt lgkmcnt(0)")
        for (P, sh) in ((PD_, t + 6), (PS_, t + 7)):
            a(f"v_alignbit_b32 v{P}, v{P+1}, v{P}, v{sh}")
            a(f"v_lshrrev_b32 v{P+1}, v{sh}, v{P+1}")
        a(f"v_lshlrev_b32 v{t+8}, 16, v{PD_}")
        a(f"v_lshlrev_b32 v{t+9}, 16, v{PS_}")
        a(f"v_sub_f32 v{t+8}, v{t+8}, v{t+9}")
        a(f"v_and_b32 v{t+9}, s{M16}, v{PD_}")
        a(f"v_and_b32 v{t+10}, s{M16}, v{PS_}")
        a(f"v_sub_f32 v{t+9}, v{t+9}, v{t+10}")
        a(f"v_lshlrev_b32 v{t+10}, 16, v{PD_+1}")
        a(f"v_lshlrev_b32 v{t+11}, 16, v{PS_+1}")
        a(f"v_sub_f32 v{t+10}, v{t+10}, v{t+11}")
        a(f"v_cvt_pk_bf16_f32 v{t+12}, v{t+8}, v{t+9}")
        a(f"v_cvt_pk_bf16_f32 v{t+13}, v{t+10}, v7")
        a(f"v_lshlrev_b32 v{t+8}, 16, v{t+12}")
        a(f"v_and_b32 v{t+9}, s{M16}, v{t+12}")
        a(f"v_lshlrev_b32 v{t+10}, 16, v{t+13}")
        a(f"v_mul_f32 v{t+8}, v{t+8}, v{t+8}")
        a(f"v_fmac_f32 v{t+8}, v{t+9}, v{t+9}")
        a(f"v_fmac_f32 v{t+8}, v{t+10}, v{t+10}")
        a(f"v_cvt_pk_bf16_f32 v{t+8}, v{t+8}, v7")
        r = RA + 4 * i
        a(f"v_lshl_or_b32 v{r}, v{EA+2*i}, 16, v{t+8}")
        a(f"v_alignbit_b32 v{r+1}, v{EA+2*i+1}, v{EA+2*i}, 16")
        a(f"v_alignbit_b32 v{r+2}, v{t+12}, v{EA+2*i+1}, 16")
        a(f"v_alignbit_b32 v{r+3}, v{t+13}, v{t+12}, 16")
    a("s_waitcnt lgkmcnt(0)")
    a("s_barrier")
    a.stamp(3)
    a(f"s_cmp_ge_u32 s{W}, 4")
    a("s_cbranch_scc1 L1_sort_t")
    a("v_mul_u32_u24 v7, 20, v0")
    a(f"v_add_u32 v7, {HIST}, v7")
    for k in range(6): a(f"ds_read_b32 v{t+8+k}, v7 offset:{4*k}")
    a.label("L1_sort_t")
    for i in range(NR):
        if i == NR - 1: last_round("L1_sort_b")
        a(f"ds_read_b32 v{t+i}, v{BA+i}")
    a.label("L1_sort_b")
    a("s_mov_b64 exec, -1")
    a("s_waitcnt lgkmcnt(0)")
    a(f"s_cmp_ge_u32 s{W}, 4")
    a("s_cbranch_scc1 L1_sort_t2")
    a(f"v_lshl_or_b32 v{t+16}, v{t+9}, 16, v{t+8}")
    a(f"v_lshl_or_b32 v{t+17}, v{t+11}, 16, v{t+10}")
    a(f"v_lshl_or_b32 v{t+18}, v{t+13}, 16, v{t+12}")
    a(f"v_mov_b32 v{t+19}, 0")
    a(f"s_mul_i32 s{T[0]}, s{sC}, {TAB_STRIDE}")
    a(f"s_add_u32 s{T[0]}, s{T[0]}, {WS_TAB}")
    a("v_lshlrev_b32 v7, 4, v0")
    a(f"buffer_store_dwordx4 v[{t+16}:{t+19}], v7, s[{R4}:{R4+3}], s{T[0]} offen{ST}")
    a.label("L1_sort_t2")
    for i in range(NR):
        if i == NR - 1: last_round("L1_sort_c")
        a(f"v_add_u32 v{t+i}, v{t+i}, v{RK+i}")
        a(f"v_lshlrev_b32 v{t+6}, 4, v{t+i}")
        a(f"v_add_u32 v{t+6}, {RECA}, v{t+6}")
        a(f"ds_write_b128 v{t+6}, v[{RA+4*i}:{RA+4*i+3}]")
        a(f"v_lshlrev_b32 v{t+7}, 2, v{t+i}")
        a(f"v_add_u32 v{t+7}, {RECB}, v{t+7}")
        a(f"ds_write_b32 v{t+7}, v{RB+i}")
    a.label("L1_sort_c")
    a("s_mov_b64 exec, -1")
    a("s_waitcnt lgkmcnt(0)")
    a("s_barrier")
    a.stamp(5)
    a("v_lshlrev_b32 v4, 4, v0")
    a(f"v_add_u32 v5, {RECA}, v4")
    for i in range(6):
        a(f"ds_read_b128 v[{RA+4*i}:{RA+4*i+3}], v5 offset:{i*8192}")
    a(f"v_add_u32 v7, {RECB}, v4")
    a(f"ds_read_b128 v[{t}:{t+3}], v7")
    a(f"ds_read_b128 v[{t+4}:{t+7}], v7 offset:8192")
    a(f"s_mul_i32 s{T[0]}, s{sC}, {CH_STRIDE*16}")
    a(f"s_add_u32 s{T[0]}, s{T[0]}, {WS_RECA}")
    a(f"s_mul_i32 s{T[1]}, s{sC}, {CH_STRIDE*4}")
    a(f"s_add_u32 s{T[1]}, s{T[1]}, {WS_RECB}")
    a("s_waitcnt lgkmcnt(0)")
    for i in range(5):
        a(f"buffer_store_dwordx4 v[{RA+4*i}:{RA+4*i+3}], v4, s[{R4}:{R4+3}], s{T[0]} offen{ST}")
        a(f"s_add_u32 s{T[0]}, s{T[0]}, 8192")
    a(f"buffer_store_dwordx4 v[{t}:{t+3}], v4, s[{R4}:{R4+3}], s{T[1]} offen{ST}")
    a(f"s_cmp_ge_u32 s{W}, 2")
    a("s_cbranch_scc1 L1_sort_r1")
    a(f"buffer_store_dwordx4 v[{RA+20}:{RA+23}], v4, s[{R4}:{R4+3}], s{T[0]} offen{ST}")
    a.label("L1_sort_r1")
    a(f"s_cmp_ge_u32 s{W}, 3")
    a("s_cbranch_scc1 L1_sort_r2")
    a(f"s_movk_i32 s{T[2]}, 160")
    a(f"v_cmp_gt_u32 vcc, s{T[2]}, v0")
    a("s_and_b64 exec, exec, vcc")
    a(f"s_add_u32 s{T[1]}, s{T[1]}, 8192")
    a(f"buffer_store_dwordx4 v[{t+4}:{t+7}], v4, s[{R4}:{R4+3}], s{T[1]} offen{ST}")
    a("s_mov_b64 exec, -1")
    a.label("L1_sort_r2")
    a.stamp(4)
    signal(a, INC_SORT, "s")

def pack(a):
    a.label("L1_pack")
    a(f"s_cmp_lg_u32 s{W}, 7")
    a("s_cbranch_scc1 L1_pack_go")
    srd(a, R4, P_WS, WS_MBX, 2048)
    a("v_lshlrev_b32 v2, 7, v1")
    a("v_mov_b32 v4, 0")
    a("v_mov_b32 v5, 0")
    a("s_mov_b32 exec_lo, 0xffff")
    a("s_mov_b32 exec_hi, 0")
    a(f"buffer_store_dwordx2 v[4:5], v2, s[{R4}:{R4+3}], 0 offen sc1")
    a("s_waitcnt vmcnt(0)")
    a("s_mov_b64 exec, -1")
    arrive_issue(a, f"{INC_INIT:#x}")
    arrive_finish(a, f"{INC_INIT:#x}", "i")
    a.label("L1_pack_go")
    srd(a, R0, P_WH, 131072, 131072)
    srd(a, R2, P_WS, WS_WHP, 131072)
    w_lane_offsets(a)
    w_dma(a, R0)
    srd(a, R1, P_WE, 0, 517 * 512)
    srd(a, R3, P_WX, 0, 512)
    srd(a, R4, P_WS, 0, WS_USED)
    a("v_lshlrev_b32 v9, 1, v0")
    a(f"s_mov_b32 s{T[0]}, 0x40000")
    for k in range(5):
        a(f"buffer_load_ushort v{24+k}, v9, s[{R1}:{R1+3}], s{T[0]} offen offset:{k*512}")
    a("v_lshrrev_b32 v10, 2, v1")
    a("v_lshlrev_b32 v10, 5, v10")
    a("v_bfe_u32 v11, v1, 1, 1")
    a("v_lshl_add_u32 v10, v11, 4, v10")
    a("v_and_b32 v11, 1, v1")
    a("v_lshl_add_u32 v10, v11, 2, v10")
    a("v_lshlrev_b32 v10, 1, v10")
    a(f"buffer_load_dwordx2 v[32:33], v10, s[{R3}:{R3+3}], 0 offen")
    a(f"buffer_load_dwordx2 v[34:35], v10, s[{R3}:{R3+3}], 0 offen offset:16")
    a("v_lshrrev_b32 v5, 4, v1")
    a("v_and_b32 v6, 1, v5")
    a("v_lshlrev_b32 v6, 4, v6")
    a("v_lshrrev_b32 v7, 1, v5")
    a("v_lshl_add_u32 v6, v7, 2, v6")
    a("v_bfe_u32 v7, v1, 2, 2")
    a("v_add_u32 v6, v6, v7")
    a("v_lshlrev_b32 v6, 6, v6")
    a("v_and_b32 v7, 3, v1")
    a("v_lshl_add_u32 v6, v7, 4, v6")
    a(f"s_lshl_b32 s{T[1]}, s{W}, 14")
    a(f"v_add_u32 v5, s{T[1]}, v6")
    a("v_lshlrev_b32 v8, 4, v1")
    CONSTS(a, 100, 64)
    a(f"s_lshl_b32 s{T[1]}, s{W}, 14")
    a.wait_all()
    for cb in range(2):
        for ks in range(8):
            q = 64 + 4 * (cb * 8 + ks)
            for i in range(2):
                a(f"ds_read_b64_tr_b16 v[{q+2*i}:{q+2*i+1}], v5 offset:{ks*2048 + i*512 + cb*8}")
            if ks % 4 == 3: a("s_waitcnt lgkmcnt(0)")
    for cb in range(2):
        for ks in range(8):
            q = 64 + 4 * (cb * 8 + ks)
            a(f"s_add_u32 s{T[2]}, s{T[1]}, {(cb*8+ks)*1024}")
            a(f"buffer_store_dwordx4 v[{q}:{q+3}], v8, s[{R2}:{R2+3}], s{T[2]} offen{ST}")
    a(f"s_cmp_ge_u32 s{W}, 4")
    a("s_cbranch_scc1 L1_pack_b")
    a(f"s_mov_b32 s{T[4]}, {NLOG2E:#x}")
    for k in range(5):
        a(f"v_lshlrev_b32 v{24+k}, 16, v{24+k}")
        a(f"v_mul_f32 v{24+k}, s{T[4]}, v{24+k}")
    a("v_mov_b32 v29, 0")
    a("v_cvt_pk_bf16_f32 v36, v24, v25")
    a("v_cvt_pk_bf16_f32 v37, v26, v27")
    a("v_cvt_pk_bf16_f32 v38, v28, v29")
    a("v_mov_b32 v39, 0")
    a("v_lshlrev_b32 v3, 4, v0")
    a(f"s_mov_b32 s{T[0]}, {WS_WX}")
    a(f"buffer_store_dwordx4 v[36:39], v3, s[{R4}:{R4+3}], s{T[0]} offen{ST}")
    a("s_branch L1_pack_e")
    a.label("L1_pack_b")
    a(f"s_cmp_gt_u32 s{W}, 4")
    a("s_cbranch_scc1 L1_pack_e")
    a("v_lshlrev_b32 v3, 4, v1")
    a(f"s_mov_b32 s{T[0]}, {WS_WXP}")
    a("s_mov_b32 exec_hi, 0")
    a(f"buffer_store_dwordx4 v[32:35], v3, s[{R4}:{R4+3}], s{T[0]} offen{ST}")
    a("s_mov_b64 exec, -1")
    a.label("L1_pack_e")
    signal(a, INC_GEMM, "p")
```

```python
from asmlib import *
from common import *
import p1

EXP = set()
CAP = 27
TILE = 2560
L_SRC = CAP * TILE
L_STAGE = L_SRC + 32 * 128
L_S = L_STAGE + 65536
S_ROW = 544
L_T = L_S + 40 * S_ROW
L_REL = L_T + 640
L_NG = L_REL + 1280
L_TB = L_NG + 32
W = S_WAVE
NRW = 7

SWS, SQ, SH, SO, STAB, SDBG = R0, R1, R2, R3, R4, R5
S_T, S_N, S_TG0, S_NT, S_WIN, S_TG = 64, 65, 66, 67, 68, 69
ZB, FB = 70, 75
S_STG, S_G5, S_IB, S_FIRST, S_WPH, S_M8 = 80, 81, 82, 83, 84, 86
S_RA, S_RB = 26, 27
S_HALF, S_HF = 85, 68
S_MK = 56
t0, t1, t2, t3 = T[0], T[1], T[2], T[3]

Z = (16, 32); E = 48; ACC = 64; M = 80; A0 = 88; A1 = 92; A2 = 96; BP = 100
I0 = 200; I1 = 204; B2 = 116; B2Q = 120; WXA = 108; WH = 136
ONE2 = 208; SR = 210; DV = 212
vA0, vA1, vA2, vB0, vB1, vSR, vLC, vS, vT = 214, 215, 216, 217, 218, 219, 220, 221, 222
vOS, vSL = 223, 224
vOS1, vSL1 = 12, 13
cA2, cB0, cB1 = 225, 226, 227
FL = 228
ZQ = 236
cSR = 240
NV = 241

def zero_fill(a):
    for k in range(4): a(f"v_mov_b32 v{36+k}, 0")
    a("v_lshlrev_b32 v40, 4, v0")
    a("v_add_u32 v41, 0x10000, v40")
    for k in range(8): a(f"ds_write_b128 v40, v[36:39] offset:{k*8192}")
    a("ds_write_b128 v41, v[36:39]")

def fill_tables(a):
    zero_fill(a)
    a(f"s_cmp_eq_u32 s{W}, 0")
    a("s_cbranch_scc0 1f")
    a(f"v_add_u32 v41, {L_T}, v40")
    a("s_mov_b32 exec_lo, -1")
    a("s_mov_b32 exec_hi, 0xff")
    a("ds_write_b128 v41, v[36:39]")
    a("s_mov_b64 exec, -1")
    a.label("1")

def mf32(d, x, y, c): return f"v_mfma_f32_32x32x16_bf16 v[{d}:{d+15}], v[{x}:{x+3}], v[{y}:{y+3}], {c}"
def z_mfmas(zn):
    return [mf32(zn, A0, I0, "0"), mf32(zn, A1, I1, f"v[{zn}:{zn+15}]"), mf32(zn, A2, B2, f"v[{zn}:{zn+15}]")]

def dma(a, slot):
    a(f"v_add_u32 v{DV}, v{SR}, v{vLC}")
    a(f"v_add_u32 v{DV+1}, v{SR+1}, v{vLC}")
    a(f"s_add_u32 m0, s{S_STG}, {slot*2048}")
    a("s_nop 0")
    a(f"buffer_load_dwordx4 v{DV}, s[{SQ}:{SQ+3}], 0 offen lds")
    a(f"s_add_u32 m0, s{S_STG}, {slot*2048+1024}")
    a("s_nop 0")
    a(f"buffer_load_dwordx4 v{DV+1}, s[{SQ}:{SQ+3}], 0 offen lds")

def shift_q(a, base):
    for k in range(4): a(f"s_mov_b32 s{base+k}, s{base+k+1}")

def flush(a, tmp):
    for q in range(8): a(f"v_cvt_pk_bf16_f32 v{FL+q}, v{ACC+2*q}, v{ACC+2*q+1}")
    a(f"s_mov_b64 exec, s[{S_M8}:{S_M8+1}]")
    a(f"ds_write_b128 v{vS}, v[{FL}:{FL+3}]")
    a(f"ds_write_b128 v{vS}, v[{FL+4}:{FL+7}] offset:16")
    a("s_mov_b64 exec, -1")
    a(mf32(tmp, WXA, FL, "0"))
    a(mf32(tmp, WXA + 4, FL + 4, f"v[{tmp}:{tmp+15}]"))
    a(mf32(ACC, ZQ, ZQ, "0"))
    a(f"v_add_u32 v{vS}, {8*S_ROW}, v{vS}")
    shift_q(a, FB)
    a("s_nop 6")
    a("s_mov_b32 exec_hi, 0")
    a(f"ds_add_f32 v{vT}, v{tmp}")
    a("s_mov_b64 exec, -1")
    a(f"v_add_u32 v{vT}, 128, v{vT}")

def rotate_b2(a):
    if "oldrot" in EXP:
        for q in range(4): a(f"v_mov_b32 v{B2+q}, v{B2Q+q}")
        for q in range(12): a(f"v_mov_b32 v{B2Q+q}, v{B2Q+4+q}")
        return
    for q in range(0, 4, 2): a(f"v_pk_mov_b32 v[{B2+q}:{B2+q+1}], v[{B2Q+q}:{B2Q+q+1}], v[{B2Q+q}:{B2Q+q+1}] op_sel:[0,1]")
    for q in range(0, 12, 2): a(f"v_pk_mov_b32 v[{B2Q+q}:{B2Q+q+1}], v[{B2Q+4+q}:{B2Q+4+q+1}], v[{B2Q+4+q}:{B2Q+4+q+1}] op_sel:[0,1]")

def rec_consts(a):
    a("v_lshrrev_b32 v44, 4, v1")
    a(f"s_lshl_b32 s{t0}, s{W}, 2")
    a(f"v_add_u32 v44, s{t0}, v44")
    a(f"s_mov_b32 s{t0}, {CH_STRIDE*16}")
    a(f"v_mul_lo_u32 v42, s{t0}, v44")
    a(f"s_movk_i32 s{t0}, {CH_STRIDE*4}")
    a(f"v_mul_lo_u32 v43, s{t0}, v44")
    a("v_lshlrev_b32 v40, 2, v44")
    a("v_and_b32 v41, 15, v1")

OSL = ((vOS, vSL), (vOS1, vSL1))

def rec_loads(a, lbl):
    for it in range(4):
        p, r = it >> 1, it & 1
        os_, sl_ = OSL[r]
        a(f"v_add_u32 v36, s{S_IB}, v41")
        if p: a("v_add_u32 v36, 16, v36")
        a(f"v_cmp_lt_u32 s[{S_MK+2*it}:{S_MK+2*it+1}], v36, v{sl_}")
        a(f"v_add_u32 v36, v36, v{os_}")
        a(f"v_lshl_add_u32 v37, v36, 4, v42")
        a(f"v_lshl_add_u32 v38, v36, 2, v43")
        a(f"s_mov_b32 s{S_RA}, {WS_RECA + r*32*CH_STRIDE*16}")
        a(f"s_mov_b32 s{S_RB}, {WS_RECB + r*32*CH_STRIDE*4}")
        a(f"s_mov_b64 exec, s[{S_MK+2*it}:{S_MK+2*it+1}]")
        a(f"s_cbranch_execz {lbl}_{it}")
        a(f"buffer_load_dwordx4 v[{16+4*it}:{19+4*it}], v37, s[{SWS}:{SWS+3}], s{S_RA} offen sc1")
        a(f"buffer_load_dword v{32+it}, v38, s[{SWS}:{SWS+3}], s{S_RB} offen sc1")
        a.label(f"{lbl}_{it}")
        a("s_mov_b64 exec, -1")

def build_recs(a, lbl):
    a("s_waitcnt vmcnt(0)")
    if "chain" in EXP and lbl == "L2_b0": a.stamp(0)
    a("v_mov_b32 v58, 0x3f80")
    for it in range(4):
        RB = 32 + it
        r = it & 1
        a(f"s_mov_b64 exec, s[{S_MK+2*it}:{S_MK+2*it+1}]")
        a(f"s_cbranch_execz {lbl}_a{it}")
        a(f"v_lshrrev_b32 v44, 17, v{RB}")
        a(f"v_subrev_u32 v44, s{S_G5}, v44")
        a(f"v_lshl_add_u32 v45, v44, 8, v40")
        a(f"v_add_u32 v45, {L_REL + 128*r}, v45")
        a(f"ds_read_b32 v{2+2*it}, v45")
        a(f"v_lshl_add_u32 v47, v44, 2, v59")
        a(f"ds_read_b32 v{3+2*it}, v47")
        a.label(f"{lbl}_a{it}")
    a("s_mov_b64 exec, -1")
    a(f"s_lshl_b32 s{t1}, s{S_TG0}, 5")
    a(f"s_sub_u32 s{t0}, s{S_IB}, s{t1}")
    a(f"v_add_u32 v49, s{t0}, v41")
    a(f"s_movk_i32 s{t1}, {CAP*32}")
    a("s_waitcnt lgkmcnt(0)")
    for it in range(4):
        RA, RB = 16 + 4 * it, 32 + it
        p, r = it >> 1, it & 1
        a(f"s_mov_b64 exec, s[{S_MK+2*it}:{S_MK+2*it+1}]")
        a(f"s_cbranch_execz {lbl}_{it}")
        a(f"v_add3_u32 v44, v49, v{2+2*it}, v{3+2*it}")
        a(f"v_add_u32 v44, v44, v{OSL[r][0]}")
        if p: a("v_add_u32 v44, 16, v44")
        a(f"v_and_b32 v50, 0x3fff, v{RB}")
        a(f"v_cmp_gt_u32 vcc, s{t1}, v44")
        a("v_lshlrev_b32 v50, 9, v50")
        a("v_add_u32 v50, 512, v50")
        a("s_and_b64 exec, exec, vcc")
        a(f"s_cbranch_execz {lbl}_{it}")
        a("v_lshlrev_b32 v51, 2, v44")
        a(f"v_add_u32 v51, {L_SRC}, v51")
        a("ds_write_b32 v51, v50")
        a("v_lshrrev_b32 v52, 5, v44")
        a(f"v_mul_u32_u24 v52, {TILE}, v52")
        a("v_and_b32 v53, 31, v44")
        a("v_lshl_add_u32 v55, v53, 4, v52")
        a(f"ds_write_b128 v55, v[{RA}:{RA+3}] offset:2048")
        a(f"v_bfe_u32 v54, v{RB}, 14, 3")
        a("v_lshl_add_u32 v52, v53, 6, v52")
        a("v_lshl_add_u32 v52, v54, 1, v52")
        a("v_bfe_u32 v53, v53, 2, 2")
        a("v_lshl_add_u32 v54, v53, 4, v52")
        a("ds_write_b16 v54, v58")
        a("v_xor_b32 v55, 1, v53")
        a("v_lshl_add_u32 v55, v55, 4, v52")
        a(f"ds_write_b16_d16_hi v55, v{RA+2}")
        a("v_xor_b32 v56, 2, v53")
        a("v_lshl_add_u32 v56, v56, 4, v52")
        a(f"ds_write_b16 v56, v{RA+3}")
        a("v_xor_b32 v57, 3, v53")
        a("v_lshl_add_u32 v57, v57, 4, v52")
        a(f"ds_write_b16_d16_hi v57, v{RA+3}")
        a.label(f"{lbl}_{it}")
    a("s_mov_b64 exec, -1")

def poll(a, lbl, srdreg, voff, want, sleep):
    a(f"s_mov_b32 s{t1}, 0x8000")
    a("s_mov_b32 exec_lo, 1")
    a("s_mov_b32 exec_hi, 0")
    a.label(lbl)
    a(f"buffer_load_dword v10, v{voff}, s[{srdreg}:{srdreg+3}], 0 offen sc1")
    a("s_waitcnt vmcnt(0)")
    a(f"v_readfirstlane_b32 s{t0}, v10")
    a(f"s_and_b32 s{t0}, s{t0}, {want:#x}")
    a(f"s_cmp_eq_u32 s{t0}, {want:#x}")
    a(f"s_cbranch_scc1 {lbl}_ok")
    a(f"s_sub_u32 s{t1}, s{t1}, 1")
    a(f"s_cmp_eq_u32 s{t1}, 0")
    a(f"s_cbranch_scc1 {lbl}_ok")
    a(f"s_sleep {sleep}")
    a(f"s_branch {lbl}")
    a.label(f"{lbl}_ok")
    a("s_mov_b64 exec, -1")

def mailbox(a, word):
    srd(a, R4, P_WS, WS_MBX, 2048)
    a(f"s_and_b32 s{t2}, s2, 15")
    a(f"s_lshl_b32 s{t2}, s{t2}, 7")
    a(f"s_add_u32 s{t2}, s{t2}, {4*word}")
    a(f"v_mov_b32 v8, s{t2}")

def a_reads(u1):
    sl = u1 % 4
    return [f"ds_read_b128 v[{A0}:{A0+3}], v{vA0} offset:{sl*2048}",
            f"ds_read_b128 v[{A1}:{A1+3}], v{vA1} offset:{sl*2048}",
            f"ds_read_b128 v[{A2}:{A2+3}], v{vA2} offset:{u1*TILE}"]
def bp_reads(u):
    return [f"ds_read_b64_tr_b16 v[{BP}:{BP+1}], v{vB0} offset:{u*TILE}",
            f"ds_read_b64_tr_b16 v[{BP+2}:{BP+3}], v{vB1} offset:{u*TILE}",
            f"ds_read_b64_tr_b16 v[{BP+4}:{BP+5}], v{vB0} offset:{u*TILE+1024}",
            f"ds_read_b64_tr_b16 v[{BP+6}:{BP+7}], v{vB1} offset:{u*TILE+1024}"]
def seg_mfmas():
    return [mf32(ACC, M, BP, f"v[{ACC}:{ACC+15}]"), mf32(ACC, M + 4, BP + 4, f"v[{ACC}:{ACC+15}]")]

OOL = []
def OST():
    return " sc1" if "osc1" in EXP else " nt" if "ont" in EXP else " sc0 sc1" if "osc01" in EXP else ""

def first_pass_wait(a, lbl):
    a(f"s_cmp_eq_u32 s{S_WPH}, 0")
    a(f"s_cbranch_scc0 {lbl}")
    a("s_waitcnt vmcnt(0)")
    a.label(lbl)

def iteration(a, u):
    zc, zn = Z[u & 1], Z[(u + 1) & 1]
    sl = (u + 1) % 4
    a(f"s_setprio {3-u}")
    a("s_waitcnt lgkmcnt(0)")
    a(f"s_cmp_eq_u32 s{S_TG}, s{FB}")
    a(f"s_cbranch_scc1 L2_fl_{u}")
    a.label(f"L2_fl_{u}_r")
    OOL.append((f"L2_fl_{u}", lambda a, zn=zn, u=u: (first_pass_wait(a, f"L2_flw_{u}"), flush(a, zn), a(f"s_branch L2_fl_{u}_r"))))
    a(f"s_cmp_eq_u32 s{S_TG}, s{ZB}")
    a(f"s_cbranch_scc1 L2_rt_{u}")
    a.label(f"L2_rt_{u}_r")
    def rt(a, u=u):
        first_pass_wait(a, f"L2_rtw_{u}")
        rotate_b2(a); shift_q(a, ZB)
        a(f"s_and_b32 s{S_HALF}, s{S_HF}, 1")
        a(f"s_lshr_b32 s{S_HF}, s{S_HF}, 1")
        a(f"s_branch L2_rt_{u}_r")
    OOL.append((f"L2_rt_{u}", rt))
    zm = z_mfmas(zn); sm = seg_mfmas(); bp = bp_reads(u); ar = a_reads(u + 2)
    def run(op, regs, att):
        for i, k in enumerate(regs):
            a(f"{op} v{E+k}, v{(zc if op == 'v_exp_f32' else E)+k}")
            for x in att.get(i, []): a(x)
    def pk(op, lo):
        for k in range(lo, lo + 8, 2):
            other = f"v[{ONE2}:{ONE2+1}]" if op == "v_pk_add_f32" else f"v[{zc+k}:{zc+k+1}]"
            a(f"{op} v[{E+k}:{E+k+1}], v[{E+k}:{E+k+1}], {other}")
    def cvt(lo):
        for k in range(lo, lo + 8, 2): a(f"v_cvt_pk_bf16_f32 v{M+k//2}, v{E+k}, v{E+k+1}")
    att = {0: [sm[0]],
           1: [f"v_add_u32 v{DV}, v{SR}, v{vLC}", f"s_add_u32 m0, s{S_STG}, {sl*2048}"],
           2: [f"v_add_u32 v{DV+1}, v{SR+1}, v{vLC}", f"buffer_load_dwordx4 v{DV}, s[{SQ}:{SQ+3}], 0 offen lds"],
           3: [bp[0], bp[1]],
           4: [zm[0]],
           5: [f"s_add_u32 m0, s{S_STG}, {sl*2048+1024}"],
           6: [f"buffer_load_dwordx4 v{DV+1}, s[{SQ}:{SQ+3}], 0 offen lds"],
           7: [f"s_cmp_eq_u32 s{S_WPH}, 0", f"s_cbranch_scc1 L2_wl_{u}", f"L2_wl_{u}_r:"]}
    def wl(a, u=u):
        a("v_lshlrev_b32 v5, 4, v1")
        a(f"s_lshl_b32 s{t0}, s{W}, 14")
        a(f"s_add_u32 s{t0}, s{t0}, {WS_WHP + u*4096}")
        for q in range(4 * u, 4 * u + 4):
            a(f"buffer_load_dwordx4 v[{WH+4*q}:{WH+4*q+3}], v5, s[{SWS}:{SWS+3}], s{t0} offen offset:{(q%4)*1024}")
        a(f"s_branch L2_wl_{u}_r")
    OOL.append((f"L2_wl_{u}", wl))
    run("v_exp_f32", range(0, 8), att)
    pk("v_pk_add_f32", 0)
    att = {0: [zm[1]],
           1: [f"s_add_u32 s{S_T}, s{S_T}, 1", f"s_add_u32 s{S_TG}, s{S_TG}, 1"],
           4: [zm[2]],
           5: [f"s_cmp_lt_u32 s{S_WPH}, 2", f"s_cbranch_scc1 L2_wv_{u}", "s_waitcnt vmcnt(6)", f"L2_wv_{u}_r:", ar[0]],
           6: [ar[1], ar[2]],
           7: [f"ds_read2_b32 v[{SR}:{SR+1}], v{vSR} offset0:{u*32} offset1:{u*32+16}"]}
    def wv(a, u=u):
        a(f"s_cmp_eq_u32 s{S_WPH}, 0")
        a(f"s_cbranch_scc1 L2_wv_{u}_0")
        a(f"s_waitcnt vmcnt({(18, 14, 10, 6)[u]})")
        a(f"s_branch L2_wv_{u}_r")
        a.label(f"L2_wv_{u}_0")
        a(f"s_waitcnt vmcnt({(16, 20, 24, 22)[u]})")
        a(f"s_branch L2_wv_{u}_r")
    OOL.append((f"L2_wv_{u}", wv))
    run("v_rcp_f32", range(0, 8), att)
    a(f"s_cmp_eq_u32 s{S_HALF}, 1")
    pk("v_pk_mul_f32", 0)
    cvt(0)
    a(f"s_cbranch_scc1 L2_hf_{u}")
    def hf(a, u=u):
        a(sm[1]); a(f"s_mov_b32 s{S_HALF}, 0"); a(bp[2]); a(bp[3])
        a(f"s_branch L2_hf_{u}_r")
    OOL.append((f"L2_hf_{u}", hf))
    run("v_exp_f32", range(8, 16), {0: [sm[1]], 1: [bp[2]], 2: [bp[3]]})
    pk("v_pk_add_f32", 8)
    run("v_rcp_f32", range(8, 16), {})
    pk("v_pk_mul_f32", 8)
    cvt(8)
    a.label(f"L2_hf_{u}_r")
    a(f"s_cmp_eq_u32 s{S_T}, s{S_N}")
    a("s_cbranch_scc1 L2_win_end")

def constants_a(a, b=44, mk=52):
    a(f"v_and_b32 v{b+0}, 31, v1")
    a(f"v_lshrrev_b32 v{b+1}, 5, v1")
    a(f"v_mov_b32 v{ONE2}, 1.0")
    a(f"v_mov_b32 v{ONE2+1}, 1.0")
    for q in range(4): a(f"v_mov_b32 v{ZQ+q}, 0")
    a(f"s_mov_b32 s{S_M8}, 0xff")
    a(f"s_mov_b32 s{S_M8+1}, 0xff")
    a(f"v_lshlrev_b32 v{b+2}, 3, v{b+1}")
    a(f"v_sub_u32 v{b+2}, v{b+0}, v{b+2}")
    a(f"v_mov_b32 v{b+4}, 0x3f80")
    a(f"v_mov_b32 v{b+5}, 0x3f800000")
    a(f"v_and_b32 v{b+3}, 1, v{b+2}")
    a(f"v_cmp_eq_u32 vcc, 1, v{b+3}")
    a(f"v_lshrrev_b32 v{b+6}, 1, v{b+2}")
    a(f"v_add_u32 v{b+7}, -8, v{b+6}")
    a(f"v_cndmask_b32 v{b+3}, v{b+4}, v{b+5}, vcc")
    for I, r in ((I0, b + 6), (I1, b + 7)):
        for q0 in (0, 2):
            a(f"v_cmp_eq_u32 s[{mk}:{mk+1}], {q0}, v{r}")
            a(f"v_cmp_eq_u32 s[{mk+2}:{mk+3}], {q0+1}, v{r}")
            a("s_nop 0")
            a(f"v_cndmask_b32 v{I+q0}, 0, v{b+3}, s[{mk}:{mk+1}]")
            a(f"v_cndmask_b32 v{I+q0+1}, 0, v{b+3}, s[{mk+2}:{mk+3}]")

def constants_b(a, b=44):
    a(f"v_and_b32 v{b+0}, 31, v1")
    a(f"v_lshrrev_b32 v{b+1}, 5, v1")
    a(f"s_lshl_b32 s{S_STG}, s{W}, 13")
    a(f"s_add_u32 s{S_STG}, s{S_STG}, {L_STAGE}")
    a(f"v_bfe_u32 v{b+2}, v{b+0}, 2, 2")
    a(f"v_xor_b32 v{b+3}, v{b+1}, v{b+2}")
    a(f"v_lshlrev_b32 v{b+4}, 6, v{b+0}")
    a(f"v_add_u32 v{b+5}, s{S_STG}, v{b+4}")
    a(f"v_lshl_add_u32 v{vA0}, v{b+3}, 4, v{b+5}")
    a(f"v_xor_b32 v{b+3}, 2, v{b+3}")
    a(f"v_lshl_add_u32 v{vA1}, v{b+3}, 4, v{b+5}")
    a(f"v_lshlrev_b32 v{b+3}, 4, v{b+0}")
    a(f"v_add_u32 v{b+3}, 2048, v{b+3}")
    a(f"v_lshl_add_u32 v{b+4}, v{b+2}, 4, v{b+4}")
    a(f"v_cmp_eq_u32 vcc, 1, v{b+1}")
    a(f"v_bfe_u32 v{b+2}, v1, 2, 2")
    a(f"v_lshl_add_u32 v{b+2}, v{b+1}, 2, v{b+2}")
    a(f"v_cndmask_b32 v{cA2}, v{b+3}, v{b+4}, vcc")
    a(f"v_lshlrev_b32 v{b+2}, 6, v{b+2}")
    a(f"v_and_b32 v{b+3}, 1, v1")
    a(f"v_lshl_add_u32 v{b+2}, v{b+3}, 3, v{b+2}")
    a(f"v_bfe_u32 v{b+3}, v1, 4, 1")
    a(f"v_lshlrev_b32 v{b+3}, 1, v{b+3}")
    a(f"v_bfe_u32 v{b+4}, v1, 1, 1")
    a(f"v_or_b32 v{b+3}, v{b+3}, v{b+4}")
    a(f"v_xor_b32 v{b+3}, v{b+3}, v{b+1}")
    a(f"v_lshl_add_u32 v{cB0}, v{b+3}, 4, v{b+2}")
    a(f"v_xor_b32 v{b+3}, 2, v{b+3}")
    a(f"v_lshl_add_u32 v{b+4}, v{b+3}, 4, v{b+2}")
    a(f"v_add_u32 v{cB1}, 512, v{b+4}")
    a(f"v_and_b32 v{b+2}, 3, v1")
    a(f"v_bfe_u32 v{b+3}, v1, 4, 2")
    a(f"v_xor_b32 v{b+2}, v{b+2}, v{b+3}")
    a(f"v_lshlrev_b32 v{b+2}, 4, v{b+2}")
    a(f"s_lshl_b32 s{t0}, s{W}, 6")
    a(f"s_sub_u32 s{t1}, s{t0}, 512")
    a(f"v_add_u32 v{vLC}, s{t1}, v{b+2}")
    a(f"v_and_b32 v{b+2}, 7, v1")
    a(f"v_mul_u32_u24 v{b+2}, {S_ROW}, v{b+2}")
    a(f"v_lshl_add_u32 v{b+2}, v{b+1}, 5, v{b+2}")
    a(f"s_add_u32 s{t0}, s{t0}, {L_S}")
    a(f"v_add_u32 v{vS}, s{t0}, v{b+2}")
    a(f"v_lshlrev_b32 v{b+2}, 2, v{b+0}")
    a(f"v_add_u32 v{vT}, {L_T}, v{b+2}")
    a(f"v_lshrrev_b32 v{b+2}, 2, v1")
    a(f"v_lshlrev_b32 v{b+2}, 2, v{b+2}")
    a(f"v_add_u32 v{cSR}, {L_SRC}, v{b+2}")

def phase2(a):
    def entry(a):
        a("v_and_b32 v1, 63, v0")
        a(f"s_cmp_eq_u32 s{W}, 0")
        a("s_cbranch_scc0 2f")
        p1.arrive_issue(a, f"s{p1.S_INC}")
        a.label("2")
        srd(a, SWS, P_WS, 0, WS_USED)
        a(f"s_mul_i32 s{S_G5}, s2, 5")
    def table_load(a):
        srd(a, STAB, P_WS, WS_TAB, NCH * TAB_STRIDE)
        a("v_lshlrev_b32 v2, 12, v1")
        a(f"s_lshl_b32 s{t0}, s2, 4")
        a(f"buffer_load_dwordx3 v[60:62], v2, s[{STAB}:{STAB+3}], s{t0} offen sc1")
    def t_zero(a):
        a(f"v_add_u32 v41, {L_T}, v40")
        a("s_mov_b32 exec_lo, -1")
        a("s_mov_b32 exec_hi, 0xff")
        a("ds_write_b128 v41, v[36:39]")
        a("s_mov_b64 exec, -1")
    a.label("L_phase2_fast")
    a.stamp(5)
    entry(a)
    table_load(a)
    a(f"s_cmp_eq_u32 s{W}, 0")
    a("s_cbranch_scc0 L2_tab")
    p1.arrive_finish(a, f"s{p1.S_INC}", "f")
    a("s_branch L2_tab")
    a.label("L_phase2")
    a.stamp(5)
    entry(a)
    a(f"s_cmp_eq_u32 s{W}, 0")
    a("s_cbranch_scc0 L2_w1")
    p1.arrive_finish(a, f"s{p1.S_INC}", "a")
    a("s_and_b32 s52, s85, 1")
    a("s_cmp_eq_u32 s52, 1")
    a("s_cbranch_scc1 L2_inited")
    srd(a, SDBG, P_DBG, 0, 256)
    a("v_mov_b32 v8, 0")
    poll(a, "L2_poll0", SDBG, 8, 1, 16)
    a("s_mov_b32 s85, 0")
    a.label("L2_inited")
    a("s_and_b32 s52, s85, 0xffff")
    a(f"s_cmp_eq_u32 s52, {K1:#x}")
    a("s_cbranch_scc1 L2_w1")
    mailbox(a, 0)
    poll(a, "L2_poll1", R4, 8, 1, 2)
    a.label("L2_w1")
    a("s_barrier")
    table_load(a)
    a.label("L2_tab")
    a.stamp(6)
    a(f"s_mov_b32 s{S_IB}, 0")
    a(f"s_mov_b32 s{S_TG0}, 0")
    a(f"s_mov_b32 s{S_FIRST}, 1")
    a(mf32(ACC, ZQ, ZQ, "0"))
    a("s_waitcnt vmcnt(0)")
    if "chain" in EXP: a.stamp(2)
    a(f"v_and_b32 v46, 0xffff, v60")
    a(f"v_lshrrev_b32 v47, 16, v62")
    a(f"v_sub_u32 v47, v47, v46")
    rec_consts(a)
    a("v_add_u32 v45, 128, v40")
    a(f"ds_bpermute_b32 v{vOS}, v40, v46")
    a(f"ds_bpermute_b32 v{vSL}, v40, v47")
    a(f"ds_bpermute_b32 v{vOS1}, v45, v46")
    a(f"ds_bpermute_b32 v{vSL1}, v45, v47")
    a("s_waitcnt lgkmcnt(0)")
    rec_loads(a, "L2_ld0")
    if "chain" in EXP: a.stamp(3)
    a(f"s_cmp_ge_u32 s{W}, 5")
    a("s_cbranch_scc1 L2_noscan")
    a(f"s_cmp_lt_u32 s{W}, 2")
    a("s_cbranch_scc1 L2_sel")
    a("v_mov_b32 v60, v61")
    a("v_mov_b32 v61, v62")
    a(f"s_cmp_lt_u32 s{W}, 4")
    a("s_cbranch_scc1 L2_sel")
    a("v_mov_b32 v60, v61")
    a.label("L2_sel")
    a(f"s_and_b32 s{t0}, s{W}, 1")
    a(f"s_lshl_b32 s{t0}, s{t0}, 4")
    a(f"v_alignbit_b32 v61, v61, v60, s{t0}")
    a("v_and_b32 v60, 0xffff, v61")
    a("v_lshrrev_b32 v61, 16, v61")
    a("v_sub_u32 v62, v61, v60")
    a("v_mov_b32 v63, v62")
    for sh in (1, 2, 4, 8):
        a("s_nop 1")
        a(f"v_add_u32_dpp v63, v63, v63 row_shr:{sh} row_mask:0xf bank_mask:0xf")
    a("s_nop 1")
    a("v_add_u32_dpp v63, v63, v63 row_bcast:15 row_mask:0xa bank_mask:0xf")
    a("s_nop 1")
    a("v_add_u32_dpp v63, v63, v63 row_bcast:31 row_mask:0xc bank_mask:0xf")
    a("v_sub_u32 v62, v63, v62")
    a("v_sub_u32 v62, v62, v60")
    a(f"s_lshl_b32 s{t0}, s{W}, 8")
    a(f"s_add_u32 s{t0}, s{t0}, {L_REL}")
    a("v_lshlrev_b32 v45, 2, v1")
    a(f"v_add_u32 v45, s{t0}, v45")
    a("ds_write_b32 v45, v62")
    a(f"s_lshl_b32 s{t0}, s{W}, 2")
    a(f"s_add_u32 s{t0}, s{t0}, {L_NG}")
    a(f"v_mov_b32 v45, s{t0}")
    a("s_mov_b32 exec_lo, 0")
    a("s_mov_b32 exec_hi, 0x80000000")
    a("ds_write_b32 v45, v63")
    a("s_mov_b64 exec, -1")
    a.label("L2_noscan")
    a.label("L2_round_bar")
    a("s_waitcnt lgkmcnt(0)")
    a("s_barrier")
    a.stamp(7)
    a(f"s_cmp_eq_u32 s{S_FIRST}, 0")
    a("s_cbranch_scc1 L2_have_tb")
    a("v_lshlrev_b32 v45, 2, v1")
    a(f"v_add_u32 v45, {L_NG}, v45")
    a("s_mov_b32 exec_lo, 0xff")
    a("s_mov_b32 exec_hi, 0")
    a("ds_read_b32 v46, v45")
    a("s_waitcnt lgkmcnt(0)")
    a("v_max_u32 v46, 1, v46")
    a("v_add_u32 v47, -1, v46")
    a("v_and_b32 v47, 31, v47")
    a("v_cmp_gt_u32 vcc, 16, v47")
    a("v_add_u32 v46, 31, v46")
    a("v_lshrrev_b32 v46, 5, v46")
    a(f"s_and_b32 s{S_HF}, vcc_lo, 0x1f")
    NTG = (T[0], T[1], T[2], T[3], 85)
    for g in range(5): a(f"v_readlane_b32 s{NTG[g]}, v46, {g}")
    a(f"s_mov_b32 s{ZB}, s{NTG[0]}")
    for g in range(1, 4): a(f"s_add_u32 s{ZB+g}, s{ZB+g-1}, s{NTG[g]}")
    a(f"s_add_u32 s{S_NT}, s{ZB+3}, s85")
    a(f"s_mov_b32 s{ZB+4}, s{S_NT}")
    a(f"s_mov_b32 s{S_HALF}, 0")
    a("v_mov_b32 v46, 0")
    for g in range(1, 5):
        a(f"s_lshl_b32 s{t0}, s{ZB+g-1}, 5")
        a(f"v_writelane_b32 v46, s{t0}, {g}")
    for k in range(4): a(f"s_add_u32 s{FB+k}, s{ZB+k}, 1")
    a(f"s_mov_b32 s{FB+4}, 0x7ffffff0")
    for k in range(5): a(f"s_sub_u32 s{ZB+k}, s{ZB+k}, 1")
    a(f"s_lshl_b32 s{t0}, s{W}, 5")
    a(f"s_add_u32 s{t0}, s{t0}, {L_TB}")
    a("v_lshlrev_b32 v45, 2, v1")
    a(f"v_add_u32 v45, s{t0}, v45")
    a("ds_write_b32 v45, v46")
    a("s_mov_b64 exec, -1")
    a.label("L2_have_tb")
    a(f"s_lshl_b32 s{t0}, s{W}, 5")
    a(f"s_add_u32 s{t0}, s{t0}, {L_TB}")
    a(f"v_mov_b32 v59, s{t0}")
    a("s_waitcnt lgkmcnt(0)")
    if "chain" in EXP: a.stamp(4)
    build_recs(a, "L2_b0")
    a.label("L2_more")
    a(f"s_add_u32 s{S_IB}, s{S_IB}, 32")
    a(f"v_cmp_lt_u32 vcc, s{S_IB}, v{vSL}")
    a(f"v_cmp_lt_u32 s[52:53], s{S_IB}, v{vSL1}")
    a("s_or_b64 vcc, vcc, s[52:53]")
    a("s_cbranch_vccz L2_built0")
    rec_loads(a, "L2_ld1")
    build_recs(a, "L2_b1")
    a("s_branch L2_more")
    a.label("L2_built0")
    if "chain" in EXP: a.stamp(11)
    a(f"s_cmp_eq_u32 s{W}, 7")
    a("s_cbranch_scc0 L2_built")
    a(f"s_cmp_eq_u32 s{S_FIRST}, 0")
    a("s_cbranch_scc1 L2_built")
    mailbox(a, 1)
    poll(a, "L2_poll2", R4, 8, 1, 2)
    a.label("L2_built")
    a("s_waitcnt vmcnt(0) lgkmcnt(0)")
    a("s_barrier")
    a.stamp(8)
    a("s_setprio 3")
    a(f"v_mov_b32 v{vSR}, v{cSR}")
    for k in range(4):
        a(f"ds_read2_b32 v[{E+2*k}:{E+2*k+1}], v{vSR} offset0:{k*32} offset1:{k*32+16}")
    a(f"ds_read2_b32 v[{SR}:{SR+1}], v{vSR} offset0:128 offset1:144")
    a(f"s_cmp_eq_u32 s{S_FIRST}, 0")
    a("s_cbranch_scc1 L2_nob2")
    srd(a, SQ, P_WS, WS_Q, MAT_BYTES)
    a("v_and_b32 v3, 31, v1")
    a("v_lshrrev_b32 v4, 5, v1")
    a(f"s_lshl_b32 s{t0}, s{W}, 9")
    a("v_lshlrev_b32 v5, 4, v3")
    a(f"v_add_u32 v5, s{t0}, v5")
    a(f"s_lshl_b32 s{t1}, s{S_G5}, 12")
    a(f"s_add_u32 s{t1}, s{t1}, {WS_P - WS_WX}")
    a(f"v_mul_lo_u32 v6, s{t1}, v4")
    a("v_add_u32 v5, v5, v6")
    a(f"v_add_u32 v5, {WS_WX}, v5")
    a("v_lshlrev_b32 v6, 12, v4")
    a(f"buffer_load_dwordx4 v[{B2}:{B2+3}], v5, s[{SWS}:{SWS+3}], 0 offen")
    a.label("L2_nob2")
    a("s_waitcnt lgkmcnt(1)")
    def dma_k(k):
        a(f"v_add_u32 v{E+k}, v{E+k}, v{vLC}")
        a(f"s_add_u32 m0, s{S_STG}, {k*1024}")
        a("s_nop 0")
        a(f"buffer_load_dwordx4 v{E+k}, s[{SQ}:{SQ+3}], 0 offen lds")
    for k in range(4): dma_k(k)
    a(f"s_sub_u32 s{S_N}, s{S_NT}, s{S_TG0}")
    a(f"s_min_u32 s{S_N}, s{S_N}, {CAP}")
    a(f"s_mov_b32 s{S_T}, 0")
    a(f"s_mov_b32 s{S_TG}, s{S_TG0}")
    a(f"v_mov_b32 v{vA2}, v{cA2}")
    a(f"v_mov_b32 v{vB0}, v{cB0}")
    a(f"v_mov_b32 v{vB1}, v{cB1}")
    for k in range(8): a(f"v_mov_b32 v{M+k}, 0")
    for k in range(8): a(f"v_mov_b32 v{BP+k}, 0")
    a(f"s_cmp_eq_u32 s{S_FIRST}, 0")
    a(f"s_cselect_b32 s{S_WPH}, 2, 0")
    a("s_waitcnt vmcnt(2)")
    for x in a_reads(0): a(x)
    for k in range(4, 8): dma_k(k)
    a("s_waitcnt lgkmcnt(0)")
    dma(a, 0)
    for m in z_mfmas(Z[0]): a(m)
    a(f"ds_read2_b32 v[{SR}:{SR+1}], v{vSR} offset0:160 offset1:176")
    a(f"v_add_u32 v{vSR}, 768, v{vSR}")
    a(f"s_cmp_eq_u32 s{S_FIRST}, 0")
    a("s_cbranch_scc1 L2_nob3")
    for g in range(1, 5):
        d = B2Q + 4 * (g - 1)
        a("v_add_u32 v5, v5, v6")
        a(f"buffer_load_dwordx4 v[{d}:{d+3}], v5, s[{SWS}:{SWS+3}], 0 offen")
    a(f"s_lshl_b32 s{t0}, s{W}, 6")
    a(f"s_add_u32 s{t0}, s{t0}, {WS_WXP}")
    a("v_lshlrev_b32 v7, 4, v4")
    a(f"buffer_load_dwordx4 v[{WXA}:{WXA+3}], v7, s[{SWS}:{SWS+3}], s{t0} offen")
    a(f"buffer_load_dwordx4 v[{WXA+4}:{WXA+7}], v7, s[{SWS}:{SWS+3}], s{t0} offen offset:32")
    a("s_waitcnt vmcnt(12)")
    a("s_branch L2_pw3")
    a.label("L2_nob3")
    a("s_waitcnt vmcnt(6)")
    a.label("L2_pw3")
    a(f"s_mov_b32 s{S_FIRST}, 0")
    for x in a_reads(1): a(x)
    a("s_nop 7")
    a.stamp(9)
    if "cyc" in EXP: a.cstamp(2)
    a.label("L2_loop")
    OOL.clear()
    for u in range(4): iteration(a, u)
    a(f"v_add_u32 v{vA2}, {4*TILE}, v{vA2}")
    a(f"v_add_u32 v{vB0}, {4*TILE}, v{vB0}")
    a(f"v_add_u32 v{vB1}, {4*TILE}, v{vB1}")
    a(f"v_add_u32 v{vSR}, 512, v{vSR}")
    a(f"s_add_u32 s{S_WPH}, s{S_WPH}, 1")
    a(f"s_min_u32 s{S_WPH}, s{S_WPH}, 2")
    a("s_branch L2_loop")
    for lbl, fn in OOL:
        a.label(lbl); fn(a)
    a.label("L2_win_end")
    a("s_setprio 0")
    a("s_waitcnt lgkmcnt(0)")
    a(f"s_cmp_eq_u32 s{S_TG}, s{FB}")
    a("s_cbranch_scc0 L2_we_nf")
    a("s_nop 3")
    flush(a, Z[0])
    a.label("L2_we_nf")
    for m in seg_mfmas(): a(m)
    a(f"s_add_u32 s{S_TG0}, s{S_TG0}, s{S_N}")
    a(f"s_cmp_ge_u32 s{S_TG0}, s{S_NT}")
    a("s_cbranch_scc1 L2_final")
    a("s_waitcnt vmcnt(0) lgkmcnt(0)")
    a("s_barrier")
    a(f"s_mov_b32 s{S_IB}, 0")
    zero_fill(a)
    rec_consts(a)
    rec_loads(a, "L2_ld2")
    a("s_branch L2_round_bar")

    a.label("L2_final")
    if "df" in EXP: a("s_sleep 64")
    if "df2" in EXP: a("s_sleep 64"); a("s_sleep 64")
    if "dv" in EXP:
        for k in range(512): a(f"v_exp_f32 v{48+k%8}, v{56+k%8}")
    a.stamp(10)
    if "cyc" in EXP:
        a.cstamp(3)
        a(f"s_mov_b32 s92, s{S_NT}")
    RQ, HQ, O, BR = 88, 120, 16, 40
    SP, SPO = R4, R5
    srd(a, SH, P_H, 0, MAT_BYTES)
    srd(a, SO, P_OUT, 0, MAT_BYTES)
    srd(a, SP, P_POS, 0, 60000)
    srd(a, SPO, P_OUT, MAT_BYTES, 60000)
    sR, sN, sTmp, sP = T[4], T[5], T[6], T[7]
    a("v_and_b32 v3, 15, v1")
    a("v_lshrrev_b32 v4, 4, v1")
    a("v_lshrrev_b32 v5, 3, v3")
    a("v_lshlrev_b32 v5, 12, v5")
    a("v_and_b32 v6, 7, v3")
    a("v_lshl_add_u32 v5, v6, 4, v5")
    a("v_lshl_add_u32 v5, v4, 7, v5")
    a(f"s_lshl_b32 s{t0}, s{W}, 9")
    a(f"v_add_u32 v5, s{t0}, v5")
    a(f"s_lshl_b32 s{sR}, s{S_G5}, 12")
    a(f"s_add_u32 s{sR}, s{sR}, {WS_R}")
    a("v_lshlrev_b32 v6, 9, v3")
    a("v_lshl_add_u32 v6, v4, 4, v6")
    a(f"s_lshl_b32 s{t0}, s{W}, 6")
    a(f"v_add_u32 v6, s{t0}, v6")
    a(f"s_mul_i32 s{sN}, s2, 20480")
    for nb in range(3):
        a(f"buffer_load_dwordx4 v[{RQ+4*nb}:{RQ+4*nb+3}], v5, s[{SWS}:{SWS+3}], s{sR} offen")
        a(f"s_add_u32 s{sR}, s{sR}, 8192")
    for nb in range(3):
        a(f"s_add_u32 s{sTmp}, s{sN}, {nb*8192}")
        a(f"buffer_load_dwordx4 v[{HQ+4*nb}:{HQ+4*nb+3}], v6, s[{SH}:{SH+3}], s{sTmp} offen")
    a("v_lshlrev_b32 v7, 2, v1")
    a(f"s_mul_i32 s{sP}, s2, 240")
    a(f"buffer_load_dword v8, v7, s[{SP}:{SP+3}], s{sP} offen")
    flush(a, Z[1])
    a(f"v_mul_u32_u24 v9, {S_ROW}, v3")
    a("v_lshl_add_u32 v9, v4, 4, v9")
    a(f"v_add_u32 v9, {L_S}, v9")
    a("s_waitcnt lgkmcnt(0)")
    a("s_barrier")
    a.lds = []
    seq = [(nb, ks) for nb in range(3) for ks in range(8)]
    def bread(i):
        nb, ks = seq[i]; q = BR + 4 * (i % 6)
        a.ds(f"ds_read_b128 v[{q}:{q+3}], v9 offset:{nb*16*S_ROW + ks*64}", ("B", i))
    X, EE = 64, 72
    sM16, sLN2 = T[8], T[9]
    a(f"s_mov_b32 s{sM16}, 0xffff0000")
    a(f"s_mov_b32 s{sLN2}, {NLN2:#x}")
    def epilogue(nb):
        o = O + 8 * nb
        ops = []
        if nb == 2:
            ops += ["s_mov_b32 exec_lo, 0x00ff00ff", "s_mov_b32 exec_hi, 0x00ff00ff"]
        for i in range(4):
            ops.append(f"v_lshlrev_b32 v{X+2*i}, 16, v{RQ+4*nb+i}")
            ops.append(f"v_and_b32 v{X+2*i+1}, s{sM16}, v{RQ+4*nb+i}")
        for k in range(8): ops.append(f"v_add_f32 v{X+k}, v{X+k}, v{o+k}")
        for k in range(8): ops.append(f"v_exp_f32 v{EE+k}, v{X+k}")
        for k in range(8): ops.append(f"v_add_f32 v{EE+k}, 1.0, v{EE+k}")
        for k in range(8): ops.append(f"v_rcp_f32 v{EE+k}, v{EE+k}")
        for i in range(4):
            ops.append(f"v_lshlrev_b32 v{o+2*i}, 16, v{HQ+4*nb+i}")
            ops.append(f"v_and_b32 v{o+2*i+1}, s{sM16}, v{HQ+4*nb+i}")
        for k in range(8): ops.append(f"v_mul_f32 v{X+k}, v{X+k}, v{EE+k}")
        for k in range(8): ops.append(f"v_fma_f32 v{X+k}, v{X+k}, s{sLN2}, v{o+k}")
        d = 100 + 4 * nb
        for i in range(4): ops.append(f"v_cvt_pk_bf16_f32 v{d+i}, v{X+2*i}, v{X+2*i+1}")
        ops.append(f"s_add_u32 s{sTmp}, s{sN}, {nb*8192}")
        ops.append(f"buffer_store_dwordx4 v[{d}:{d+3}], v6, s[{SO}:{SO+3}], s{sTmp} offen{OST()}")
        return ops
    for i in range(5): bread(i)
    pend = []
    for i, (nb, ks) in enumerate(seq):
        q = BR + 4 * (i % 6)
        if ks == 3 and nb > 0:
            if nb == 1: a("s_waitcnt vmcnt(0)")
            pend = epilogue(nb - 1)
        a.wait_lds(("B", i))
        for cb in range(2):
            o = O + 8 * nb + 4 * cb; w = WH + 4 * (cb * 8 + ks)
            c = "0" if ks == 0 else f"v[{o}:{o+3}]"
            a(f"v_mfma_f32_16x16x32_bf16 v[{o}:{o+3}], v[{w}:{w+3}], v[{q}:{q+3}], {c}")
        if i + 5 < len(seq): bread(i + 5)
        left = 7 - ks if ks >= 3 else None
        if pend:
            k = -(-len(pend) // (8 - ks + 2))
            for op in pend[:k]: a(op)
            pend = pend[k:]
        if ks == 2:
            for op in pend: a(op)
            pend = []
    for op in pend: a(op)
    a.stamp(11)
    a("s_nop 7")
    for op in epilogue(2): a(op)
    a("s_mov_b64 exec, -1")
    a(f"s_cmp_lg_u32 s{W}, 0")
    a("s_cbranch_scc1 L2_done")
    a("s_mov_b32 exec_hi, 0x0fffffff")
    for k in range(2):
        a(f"v_lshlrev_b32 v10, 1, v1")
        if k: a("v_add_u32 v10, 1, v10")
        a("v_mul_u32_u24 v11, 171, v10")
        a("v_lshrrev_b32 v11, 9, v11")
        a("v_mul_u32_u24 v12, 3, v11")
        a("v_sub_u32 v12, v10, v12")
        a("v_lshrrev_b32 v13, 3, v11")
        a("v_lshlrev_b32 v13, 5, v13")
        a("v_lshl_add_u32 v13, v12, 3, v13")
        a("v_and_b32 v11, 7, v11")
        a("v_add3_u32 v13, v13, v11, 8")
        a("v_lshlrev_b32 v13, 2, v13")
        a(f"v_add_u32 v13, {L_T}, v13")
        a(f"ds_read_b32 v{14+k}, v13")
    a("v_lshlrev_b32 v10, 16, v8")
    a(f"v_and_b32 v11, s{sM16}, v8")
    a("s_waitcnt lgkmcnt(0)")
    a(f"v_fma_f32 v10, v14, s{sLN2}, v10")
    a(f"v_fma_f32 v11, v15, s{sLN2}, v11")
    a("v_cvt_pk_bf16_f32 v10, v10, v11")
    a(f"buffer_store_dword v10, v7, s[{SPO}:{SPO+3}], s{sP} offen")
    a.label("L2_done")
    if a.diag:
        a("s_waitcnt vmcnt(0)")
        a("s_memrealtime s[100:101]")
        a("s_waitcnt lgkmcnt(0)")
        a("s_mov_b32 s89, s100")
        a.dump_stamps(P_WS, WS_DIAG, W)
```

```python
import sys
from asmlib import *
from common import *
import p1, p2
NAME = "standalone__cheap_equivariant_egnn__graph_kernel"
LDS = 163840
def build(diag=False):
    head = f"""; EGNN layer in one launch of 250 co-resident workgroups (one per CU, 160 KiB LDS each).
; @launch grid=({GRID},1,1) block=(512,1,1) lds={LDS}
"""
    a = Asm(); a.diag = diag; a.dbgmode = 'dbg' in p2.EXP; a.spanonly = 'span' in p2.EXP
    a(".text"); a(f".globl {NAME}"); a(".p2align 8"); a(f".type {NAME},@function")
    a.label(NAME)
    a(f"s_cmp_ge_u32 s2, {GRID}")
    a("s_cbranch_scc1 L_exit")
    a("s_load_dwordx4 s[4:7], s[0:1], 0")
    a("s_load_dwordx4 s[8:11], s[0:1], 16")
    a("s_load_dwordx4 s[12:15], s[0:1], 32")
    a("s_load_dwordx4 s[16:19], s[0:1], 48")
    a("s_load_dwordx2 s[22:23], s[0:1], 64")
    a("s_load_dwordx2 s[24:25], s[0:1], 72")
    a("s_load_dwordx2 s[20:21], s[0:1], 80")
    a("v_and_b32 v1, 63, v0")
    a("v_lshrrev_b32 v2, 6, v0")
    a(f"s_sub_u32 s{T[4]}, s2, {WG_GEMM0}")
    a(f"v_readfirstlane_b32 s{S_WAVE}, v2")
    a(f"s_lshr_b32 s{T[1]}, s{T[4]}, 3")
    a(f"s_and_b32 s{T[2]}, s{T[4]}, 7")
    a(f"s_mul_hi_u32 s{T[3]}, s{T[1]}, 0x55555556")
    a(f"s_mul_i32 s{T[0]}, s{T[3]}, 3")
    a(f"s_sub_u32 s{T[5]}, s{T[1]}, s{T[0]}")
    a(f"s_mul_i32 s{T[6]}, s{T[2]}, 7")
    a(f"s_add_u32 s{T[6]}, s{T[6]}, s{T[3]}")
    a(f"s_cmp_lt_u32 s{T[4]}, 168")
    a("s_cbranch_scc1 1f")
    a(f"s_sub_u32 s{T[4]}, s{T[4]}, 168")
    a(f"s_mul_hi_u32 s{T[6]}, s{T[4]}, 0x55555556")
    a(f"s_mul_i32 s{T[0]}, s{T[6]}, 3")
    a(f"s_sub_u32 s{T[5]}, s{T[4]}, s{T[0]}")
    a(f"s_add_u32 s{T[6]}, s{T[6]}, 56")
    a.label("1")
    a("s_waitcnt lgkmcnt(0)")
    a.stamp(0)
    a(f"s_cmp_{'gt' if ORDER == 'gemm_first' else 'lt'}_u32 s2, {WG_PACK}")
    a("s_cbranch_scc1 L1_sort")
    a(f"s_cmp_eq_u32 s2, {WG_PACK}")
    a("s_cbranch_scc1 L1_pack")
    a(f"s_cmp_eq_u32 s{T[5]}, 1")
    a("s_cbranch_scc1 L1_gemm_Q")
    a(f"s_cmp_eq_u32 s{T[5]}, 2")
    a("s_cbranch_scc1 L1_gemm_R")
    p1.ZFILL = p2.fill_tables
    p1.CONSTS = lambda a, b, mk: (p2.constants_b(a, b), p2.constants_a(a, b, mk))
    for mat in range(3):
        a.lds = []; a.vm = []
        p1.gemm(a, mat)
    a.lds = []; a.vm = []
    p1.sort(a)
    a.lds = []; a.vm = []
    p1.pack(a)
    a.lds = []; a.vm = []
    p2.phase2(a)
    a.label("L_exit")
    a("s_endpgm")
    txt = head + '.amdgcn_target "amdgcn-amd-amdhsa--gfx950"\n' + a.text() + kernel_desc(NAME, 256 if diag else 249, 102 if diag else 88)
    for p in check_hazards(txt): print("HAZARD", p)
    return txt
if __name__ == "__main__":
    out = sys.argv[1] if len(sys.argv) > 1 else "../cdna_kernels/standalone__cheap_equivariant_egnn__graph.s"
    diag = len(sys.argv) > 2 and sys.argv[2] == "diag"
    if len(sys.argv) > 3:
        for x in sys.argv[3].split(","):
            p2.EXP.add(x); p1.EXP.add(x)
            if x.startswith("st_"): p1.ST = " " + x[3:].replace("+", " ")
    open(out, "w").write(build(diag))
    print("wrote", out)
```

```python
from asmlib import *
from common import *
CONSTS = None

ST = " sc1"
W = S_WAVE

S_CNT = 85

def broadcast(a, lbl, word):
    srd(a, R4, P_WS, WS_MBX, 2048)
    a("v_lshlrev_b32 v2, 7, v1")
    a("v_mov_b32 v3, 1")
    a("s_mov_b32 exec_lo, 0xffff")
    a("s_mov_b32 exec_hi, 0")
    a(f"buffer_store_dword v3, v2, s[{R4}:{R4+3}], 0 offen offset:{4*word} sc1")
    a("s_mov_b64 exec, -1")

def arrive_issue(a, inc):
    srd(a, R5, P_DBG, 0, 256)
    a("v_mov_b32 v2, 0")
    a(f"v_mov_b32 v3, {inc}")
    a("s_mov_b32 exec_lo, 1")
    a("s_mov_b32 exec_hi, 0")
    a(f"buffer_atomic_add v3, v2, s[{R5}:{R5+3}], 0 offen sc0 sc1")
    a("s_mov_b64 exec, -1")

def arrive_finish(a, inc, tag):
    a("s_waitcnt vmcnt(0)")
    a(f"v_readfirstlane_b32 s{T[0]}, v3")
    a(f"s_add_u32 s{S_CNT}, s{T[0]}, {inc}")
    a(f"s_and_b32 s{T[1]}, s{S_CNT}, 0xffff")
    a(f"s_cmp_eq_u32 s{T[1]}, {K1:#x}")
    a(f"s_cbranch_scc0 L_arr1_{tag}")
    a(f"s_and_b32 s{T[1]}, s{T[0]}, 0xffff")
    a(f"s_cmp_eq_u32 s{T[1]}, {K1:#x}")
    a(f"s_cbranch_scc1 L_arr1_{tag}")
    broadcast(a, tag, 0)
    a.label(f"L_arr1_{tag}")
    a(f"s_and_b32 s{T[1]}, s{S_CNT}, 0xffff00ff")
    a(f"s_cmp_eq_u32 s{T[1]}, {(K2 << 16) | 1:#x}")
    a(f"s_cbranch_scc0 L_arr2_{tag}")
    a(f"s_and_b32 s{T[1]}, s{T[0]}, 0xffff00ff")
    a(f"s_cmp_eq_u32 s{T[1]}, {(K2 << 16) | 1:#x}")
    a(f"s_cbranch_scc1 L_arr2_{tag}")
    broadcast(a, tag, 1)
    a.label(f"L_arr2_{tag}")

LDS_FLAG = 163824
S_INC = 84

EXP = set()
def inv(a):
    if "inv" not in EXP: return
    a(f"s_cmp_eq_u32 s{W}, 7")
    a("s_cbranch_scc0 1f")
    a("buffer_inv sc1")
    a.label("1")

ZFILL = None
def signal(a, inc, tag):
    if ("d" + tag) in EXP: a("s_sleep 64")
    a("s_waitcnt lgkmcnt(0)")
    a("s_barrier")
    ZFILL(a)
    a(f"s_mov_b32 s{S_INC}, {inc:#x}")
    inv(a)
    a("s_waitcnt vmcnt(0) lgkmcnt(0)")
    a("s_barrier")
    a("s_branch L_phase2")

def w_lane_offsets(a):
    a("v_lshrrev_b32 v2, 2, v1")
    a("v_lshlrev_b32 v2, 9, v2")
    a("v_and_b32 v3, 3, v1")
    a("v_lshl_add_u32 v2, v3, 4, v2")
    a(f"s_lshl_b32 s{T[0]}, s{W}, 6")
    a(f"v_add_u32 v2, s{T[0]}, v2")

def w_dma(a, srdw):
    a(f"s_lshl_b32 s{T[1]}, s{W}, 14")
    for i in range(16):
        a(f"s_add_u32 m0, s{T[1]}, {i*1024}")
        a(f"s_mov_b32 s{T[2]}, {i*8192}")
        a.mem(f"buffer_load_dwordx4 v2, s[{srdw}:{srdw+3}], s{T[2]} offen lds", ("W", i))

def gemm(a, mat):
    nm = "PQR"[mat]
    VW, VF, ACC, PK = 48, 112, (152, 168), 184
    QS, RING = 192, 10
    VA = 8
    vH = (3, 4)
    sRange, sH0, sHL, sO, sScale, sTmp = T[6], T[7], T[8], T[9], T[4], T[2]
    SW_, SH_, SO_ = R0, R1, R2
    a.label(f"L1_gemm_{nm}")
    if mat == 0: srd(a, SW_, P_WE, 0, 131072)
    if mat == 1: srd(a, SW_, P_WE, 131072, 131072)
    if mat == 2: srd(a, SW_, P_WH, 0, 131072)
    srd(a, SH_, P_H, 0, MAT_BYTES)
    w_lane_offsets(a)
    a("v_lshrrev_b32 v5, 5, v1")
    a(f"s_lshl_b32 s{T[0]}, s{W}, 2")
    a("v_and_b32 v6, 31, v1")
    for i in range(2):
        a(f"v_add_u32 v7, s{T[0]}, v5")
        if i: a("v_add_u32 v7, 2, v7")
        a("v_and_b32 v16, 15, v7")
        a("v_xor_b32 v16, v16, v6")
        a("v_lshlrev_b32 v16, 4, v16")
        a(f"v_lshl_add_u32 v{vH[i]}, v7, 9, v16")
    a(f"s_mul_i32 s{sH0}, s{sRange}, 81920")
    a(f"s_lshl_b32 s{sHL}, s{W}, 11")
    def h_dma(Tt, ldsbase):
        for i in range(2):
            a(f"s_add_u32 m0, s{sHL}, {ldsbase + i*1024}")
            a(f"s_add_u32 s{sTmp}, s{sH0}, {Tt*16384}")
            a.mem(f"buffer_load_dwordx4 v{vH[i]}, s[{SH_}:{SH_+3}], s{sTmp} offen lds", ("H", Tt))
    sWL = T[10]
    a(f"s_lshl_b32 s{sWL}, s{W}, 14")
    def w_one(i):
        a(f"s_add_u32 m0, s{sWL}, {i*1024}")
        a(f"s_mov_b32 s{sTmp}, {i*8192}")
        a.mem(f"buffer_load_dwordx4 v2, s[{SW_}:{SW_+3}], s{sTmp} offen lds", ("W", i))
    HP = 24
    def hp_load(Tt):
        a(f"s_add_u32 s{sTmp}, s{sH0}, {Tt*16384}")
        for i in range(2):
            q = HP + 8 * (Tt - 2) + 4 * i
            a.mem(f"buffer_load_dwordx4 v[{q}:{q+3}], v{vH[i]}, s[{SH_}:{SH_+3}], s{sTmp} offen", ("H", Tt))
    a("s_setprio 3")
    h_dma(0, 131072)
    for i in range(8): w_one(i)
    a("s_setprio 0")
    srd(a, SO_, P_WS, (WS_P, WS_Q, WS_R)[mat], MAT_BYTES)
    a("v_lshrrev_b32 v5, 5, v1")
    a("v_bfe_u32 v6, v1, 2, 2")
    a("v_lshl_add_u32 v6, v5, 3, v6")
    a("v_lshlrev_b32 v6, 6, v6")
    a("v_bfe_u32 v7, v1, 4, 1")
    a("v_and_b32 v16, 3, v1")
    a("v_lshl_add_u32 v7, v7, 2, v16")
    if mat == 0:
        a("v_lshlrev_b32 v7, 3, v7")
    else:
        a("v_and_b32 v16, 1, v7")
        a("v_lshlrev_b32 v16, 5, v16")
        a("v_lshrrev_b32 v7, 1, v7")
        a("v_lshl_add_u32 v7, v7, 3, v16")
    a("v_add_u32 v5, v6, v7")
    a(f"s_lshl_b32 s{T[1]}, s{W}, 14")
    a(f"v_add_u32 v5, s{T[1]}, v5")
    a("v_and_b32 v6, 31, v1")
    a("v_lshrrev_b32 v7, 5, v1")
    a("v_and_b32 v16, 15, v6")
    a("v_xor_b32 v7, v7, v16")
    a("v_lshlrev_b32 v6, 9, v6")
    a("v_add_u32 v6, 0x20000, v6")
    for k in range(8):
        a(f"v_xor_b32 v16, {2*k}, v7")
        a(f"v_lshl_add_u32 v{VA+k}, v16, 4, v6")
    a("v_and_b32 v6, 31, v1")
    a("v_lshrrev_b32 v7, 5, v1")
    a(f"s_mul_i32 s{sO}, s{sRange}, 81920")
    if mat == 0:
        a(f"s_lshl_b32 s{T[0]}, s{W}, 9")
        a("v_lshlrev_b32 v17, 4, v6")
        a("v_lshl_add_u32 v17, v7, 12, v17")
        a(f"v_add_u32 v17, s{T[0]}, v17")
    elif mat == 2:
        a(f"s_lshl_b32 s{T[0]}, s{W}, 9")
        a("v_lshrrev_b32 v17, 3, v6")
        a("v_lshlrev_b32 v17, 12, v17")
        a("v_lshl_add_u32 v17, v7, 8, v17")
        a("v_and_b32 v16, 7, v6")
        a("v_lshl_add_u32 v17, v16, 4, v17")
        a(f"v_add_u32 v17, s{T[0]}, v17")
    else:
        a(f"s_lshl_b32 s{T[0]}, s{W}, 11")
        a(f"s_add_u32 s{T[0]}, s{T[0]}, 81920")
        a("v_bfe_u32 v16, v6, 1, 2")
        a("v_lshlrev_b32 v19, 1, v7")
        a("v_xor_b32 v19, v19, v16")
        a("v_lshlrev_b32 v20, 6, v6")
        a(f"v_add_u32 v20, s{T[0]}, v20")
        a("v_lshl_add_u32 v17, v19, 4, v20")
        a("v_xor_b32 v19, 1, v19")
        a("v_lshl_add_u32 v18, v19, 4, v20")
        a("v_lshrrev_b32 v6, 2, v1")
        a("v_bfe_u32 v16, v1, 3, 2")
        a("v_and_b32 v7, 3, v1")
        a("v_xor_b32 v16, v16, v7")
        a("v_lshlrev_b32 v19, 6, v6")
        a("v_lshl_add_u32 v19, v16, 4, v19")
        a(f"v_add_u32 v19, s{T[0]}, v19")
        a(f"s_lshl_b32 s{T[0]}, s{W}, 6")
        a("v_lshlrev_b32 v20, 9, v6")
        a("v_lshl_add_u32 v20, v7, 4, v20")
        a(f"v_add_u32 v20, s{T[0]}, v20")
    a(f"s_mov_b32 s{sScale}, {NLOG2E:#x}")
    a.stamp(1)
    a.wait_vm(("H", 0))
    a("s_barrier")
    a.stamp(2)

    def trread(st):
        for i in range(2):
            a.ds(f"ds_read_b64_tr_b16 v[{VW+4*st+2*i}:{VW+4*st+2*i+1}], v5 offset:{st*1024+i*256}", ("TR", st))
    def fread(u):
        Tt, st = divmod(u, 16)
        base = Tt * 16384 if Tt < 2 else (Tt - 2) * 16384
        q = VF + 4 * (u % RING)
        a.ds(f"ds_read_b128 v[{q}:{q+3}], v{VA + (st & 7)} offset:{base + 256*(st >> 3)}", ("F", u))
    def mfma(u):
        Tt, st = divmod(u, 16)
        q = VF + 4 * (u % RING); w = VW + 4 * st; acc = ACC[Tt & 1]
        c = "0" if st == 0 else f"v[{acc}:{acc+15}]"
        A, B = (q, w) if mat == 0 else (w, q)
        a(f"v_mfma_f32_32x32x16_bf16 v[{acc}:{acc+15}], v[{A}:{A+3}], v[{B}:{B+3}], {c}")
    def epi(Tt):
        acc = ACC[Tt & 1]
        ops = []
        for j in range(8):
            ops.append(f"v_mul_f32 v{acc+2*j}, s{sScale}, v{acc+2*j}")
            ops.append(f"v_mul_f32 v{acc+2*j+1}, s{sScale}, v{acc+2*j+1}")
        for j in range(8):
            ops.append(f"v_cvt_pk_bf16_f32 v{PK+j}, v{acc+2*j}, v{acc+2*j+1}")
        if mat == 0:
            ops.append("s_nop 1")
            for q in (0, 2):
                ops.append(f"v_permlane32_swap_b32 v{PK+2*q}, v{PK+2*q+2}")
                ops.append(f"v_permlane32_swap_b32 v{PK+2*q+1}, v{PK+2*q+3}")
            for q in (0, 2):
                ops.append(f"s_add_u32 s{sTmp}, s{sO}, {Tt*16384 + q*4096}")
                ops.append(("vm", f"buffer_store_dwordx4 v[{PK+2*q}:{PK+2*q+3}], v17, s[{SO_}:{SO_+3}], s{sTmp} offen{ST}", ("S", Tt)))
        elif mat == 2:
            ops.append(f"s_add_u32 s{sTmp}, s{sO}, {Tt*16384}")
            for i in range(2):
                ops.append(("vm", f"buffer_store_dwordx4 v[{PK+4*i}:{PK+4*i+3}], v17, s[{SO_}:{SO_+3}], s{sTmp} offen offset:{i*128}{ST}", ("S", Tt)))
        else:
            ops.append(("ds", f"ds_write_b128 v17, v[{PK}:{PK+3}]", ("QW", Tt)))
            ops.append(("ds", f"ds_write_b128 v18, v[{PK+4}:{PK+7}]", ("QW", Tt)))
            ops.append(("waitlds", ("QW", Tt)))
            ops.append(("ds", f"ds_read_b128 v[{QS}:{QS+3}], v19", ("QR0", Tt)))
            ops.append(("ds", f"ds_read_b128 v[{QS+4}:{QS+7}], v19 offset:1024", ("QR1", Tt)))
            ops.append(f"s_add_u32 s{sTmp}, s{sO}, {Tt*16384}")
            ops.append(("waitlds", ("QR0", Tt)))
            ops.append(("vm", f"buffer_store_dwordx4 v[{QS}:{QS+3}], v20, s[{SO_}:{SO_+3}], s{sTmp} offen{ST}", ("S", Tt)))
            ops.append(f"s_add_u32 s{sTmp}, s{sO}, {Tt*16384 + 8192}")
            ops.append(("waitlds", ("QR1", Tt)))
            ops.append(("vm", f"buffer_store_dwordx4 v[{QS+4}:{QS+7}], v20, s[{SO_}:{SO_+3}], s{sTmp} offen{ST}", ("S", Tt)))
        return ops
    def emit(op):
        if isinstance(op, str): a(op)
        elif op[0] == "vm": a.mem(op[1], op[2])
        elif op[0] == "ds": a.ds(op[1], op[2])
        elif op[0] == "waitlds": a.wait_lds_if(op[1])
    PD = 8
    tmp = Asm(); CONSTS(tmp, 241, 64); filler = list(tmp.L)
    def stream(tiles, pend, first=False):
        u0, u1 = tiles[0] * 16, (tiles[-1] + 1) * 16
        for u in range(u0, u0 + (6 if first else PD)): fread(u)
        if first:
            for st in range(2):
                a.wait_vm(("W", st)); trread(st)
        nxt = u0 + (6 if first else PD)
        for u in range(u0, u1):
            Tt, st = divmod(u, 16)
            if st == 0 and u > u0:
                assert not pend
                pend = epi(Tt - 1)
            if first and Tt == 0:
                if st + 8 < 16: w_one(st + 8)
                elif st == 8: h_dma(1, 147456)
                elif st in (9, 10, 11): hp_load(st - 7)
                if st + 2 < 16:
                    a.wait_vm(("W", st + 2)); trread(st + 2)
                a.wait_lds_if(("TR", st))
            a.wait_lds_if(("F", u))
            mfma(u)
            if first and u == 15:
                a.wait_vm(("H", 1))
                a("s_barrier")
            depth = 6 if (first and Tt == 0) else PD
            while nxt < u1 and nxt <= u + depth and not (first and u < 15 and nxt >= 16):
                fread(nxt); nxt += 1
            if filler and st >= 2 and Tt == 3:
                k = -(-len(filler) // (16 - st))
                for op in filler[:k]: a(op)
                del filler[:k]
            if st >= 5 and pend:
                k = -(-len(pend) // (16 - st))
                for op in pend[:k]: emit(op)
                pend = pend[k:]
        assert not pend
        return epi(tiles[-1])
    pend = stream([0, 1], [], first=True)
    a.stamp(3)
    for k in range(8): a(f"v_add_u32 v{VA+k}, 0xfffe0000, v{VA+k}")
    a.wait_vm(("H", 4))
    a("v_lshlrev_b32 v21, 4, v1")
    a(f"v_add_u32 v21, s{sHL}, v21")
    for T2 in (2, 3, 4):
        for i in range(2):
            q = HP + 8 * (T2 - 2) + 4 * i
            a.ds(f"ds_write_b128 v21, v[{q}:{q+3}] offset:{(T2-2)*16384 + i*1024}", ("HW", T2))
    a.wait_lds_if(("HW", 4))
    a("s_barrier")
    a(f"s_cmp_lg_u32 s{W}, 0")
    a(f"s_cbranch_scc1 L1_peek_{nm}")
    srd(a, R5, P_DBG, 0, 256)
    a("v_mov_b32 v22, 0")
    a("s_mov_b32 exec_lo, 1")
    a("s_mov_b32 exec_hi, 0")
    a(f"buffer_load_dword v23, v22, s[{R5}:{R5+3}], 0 offen sc1")
    a("s_mov_b64 exec, -1")
    a.label(f"L1_peek_{nm}")
    pend = stream([2, 3, 4], pend)
    a.stamp(4)
    a("s_nop 7"); a("s_nop 3")
    for op in pend: emit(op)
    a("s_waitcnt lgkmcnt(0)")
    a.lds = []
    a("s_barrier")
    ZFILL(a)
    if "dg" in EXP or ("dQ" in EXP and nm == "Q"): a("s_sleep 64")
    a(f"s_mov_b32 s{S_INC}, {INC_GEMM:#x}")
    inv(a)
    a(f"s_cmp_lg_u32 s{W}, 0")
    a(f"s_cbranch_scc1 L1_peek2_{nm}")
    a("s_waitcnt vmcnt(0)")
    a("v_and_b32 v23, 0xffff, v23")
    a(f"v_mov_b32 v22, {LDS_FLAG}")
    a("s_mov_b32 exec_lo, 1")
    a("s_mov_b32 exec_hi, 0")
    a("ds_write_b32 v22, v23")
    a("s_mov_b64 exec, -1")
    a.label(f"L1_peek2_{nm}")
    a("s_waitcnt vmcnt(0) lgkmcnt(0)")
    a("s_barrier")
    a(f"v_mov_b32 v22, {LDS_FLAG}")
    a("ds_read_b32 v23, v22")
    a("s_waitcnt lgkmcnt(0)")
    a(f"v_readfirstlane_b32 s{T[0]}, v23")
    a(f"s_cmp_eq_u32 s{T[0]}, {K1:#x}")
    a("s_cbranch_scc1 L_phase2_fast")
    a("s_branch L_phase2")

def sort(a):
    POS, HIST, WSUM, RECA = 0, 65536, 70656, 71680
    RECB = RECA + CH_STRIDE * 16
    NR = 6
    D, SX, EA = 8, 14, 20
    RA, RB, BA, RK = 32, 56, 62, 68
    t = 76
    sC, sE4, sE8, sTmp = T[6], T[7], T[8], T[2]
    MK = 62
    a.label("L1_sort")
    a(f"s_sub_u32 s{sC}, s2, {WG_SORT0}")
    srd(a, R0, P_DST, 0, N_EDGES * 4)
    a(f"s_mul_i32 s{sE4}, s{sC}, {CH_E*4}")
    a(f"s_mul_i32 s{sE8}, s{sC}, {CH_E*8}")
    a("v_lshlrev_b32 v2, 2, v0")
    a("s_setprio 3")
    for i in range(NR):
        a(f"s_add_u32 s{sTmp}, s{sE4}, {i*2048}")
        a.mem(f"buffer_load_dword v{D+i}, v2, s[{R0}:{R0+3}], s{sTmp} offen", "D")
    a("s_setprio 0")
    srd(a, R1, P_SRC, 0, N_EDGES * 4)
    for i in range(NR):
        a(f"s_add_u32 s{sTmp}, s{sE4}, {i*2048}")
        a.mem(f"buffer_load_dword v{SX+i}, v2, s[{R1}:{R1+3}], s{sTmp} offen", "S")
    srd(a, R3, P_POS, 0, 60000)
    a("v_lshlrev_b32 v4, 4, v1")
    for j in range(8):
        a(f"s_lshl_b32 s{T[0]}, s{W}, 10")
        a(f"s_add_u32 s{T[0]}, s{T[0]}, {j*8192}")
        a(f"s_mov_b32 m0, s{T[0]}")
        a("s_nop 0")
        a.mem(f"buffer_load_dwordx4 v4, s[{R3}:{R3+3}], s{T[0]} offen lds", "P")
    srd(a, R2, P_EA, 0, N_EDGES * 8)
    a("v_lshlrev_b32 v3, 3, v0")
    for i in range(NR):
        a(f"s_add_u32 s{sTmp}, s{sE8}, {i*4096}")
        a.mem(f"buffer_load_dwordx2 v[{EA+2*i}:{EA+2*i+1}], v3, s[{R2}:{R2+3}], s{sTmp} offen", "E")
    srd(a, R4, P_WS, 0, WS_USED)
    for k in range(4): a(f"v_mov_b32 v{t+k}, 0")
    a("v_lshlrev_b32 v5, 4, v0")
    a(f"v_add_u32 v5, {HIST}, v5")
    a(f"s_cmp_ge_u32 s{W}, 5")
    a("s_cbranch_scc1 L1_sort_z")
    a(f"ds_write_b128 v5, v[{t}:{t+3}]")
    a.label("L1_sort_z")
    a("v_mov_b32 v6, 1")
    a(f"s_mul_i32 s{T[0]}, s{sC}, {CH_E}")
    a(f"s_sub_u32 s{T[0]}, {N_EDGES}, s{T[0]}")
    a(f"s_min_u32 s{T[0]}, s{T[0]}, {CH_E}")
    a(f"s_sub_u32 s{T[0]}, s{T[0]}, {(NR-1)*512}")
    a(f"v_cmp_gt_u32 s[{MK}:{MK+1}], s{T[0]}, v0")
    a("s_waitcnt lgkmcnt(0)")
    a("s_barrier")
    a.wait_vm("D")
    def last_round(lbl):
        a(f"s_mov_b64 exec, s[{MK}:{MK+1}]")
        a(f"s_cbranch_execz {lbl}")
    for i in range(NR):
        if i == NR - 1: last_round("L1_sort_a")
        a(f"v_lshrrev_b32 v{t}, 3, v{D+i}")
        a(f"v_lshlrev_b32 v{BA+i}, 2, v{t}")
        a(f"v_add_u32 v{BA+i}, {HIST}, v{BA+i}")
        a(f"ds_add_rtn_u32 v{RK+i}, v{BA+i}, v6")
    a.label("L1_sort_a")
    a("s_mov_b64 exec, -1")
    CONSTS(a, 120, 64)
    a.wait_vm("P")
    a("s_waitcnt lgkmcnt(0)")
    a("s_barrier")
    a.stamp(2)
    a(f"s_cmp_lg_u32 s{W}, 0")
    a("s_cbranch_scc1 L1_sort_s1")
    C = 96
    a("v_mul_u32_u24 v7, 80, v1")
    a(f"v_add_u32 v7, {HIST}, v7")
    for q in range(5): a(f"ds_read_b128 v[{C+4*q}:{C+4*q+3}], v7 offset:{16*q}")
    a("s_waitcnt lgkmcnt(0)")
    a(f"v_mov_b32 v{t}, v{C}")
    a(f"v_mov_b32 v{C}, 0")
    for k in range(1, 20):
        a(f"v_add_u32 v{t+1}, v{t}, v{C+k}")
        a(f"v_mov_b32 v{C+k}, v{t}")
        a(f"v_mov_b32 v{t}, v{t+1}")
    a(f"v_mov_b32 v{t+2}, v{t}")
    for sh in (1, 2, 4, 8):
        a("s_nop 1")
        a(f"v_add_u32_dpp v{t+2}, v{t+2}, v{t+2} row_shr:{sh} row_mask:0xf bank_mask:0xf")
    a("s_nop 1")
    a(f"v_add_u32_dpp v{t+2}, v{t+2}, v{t+2} row_bcast:15 row_mask:0xa bank_mask:0xf")
    a("s_nop 1")
    a(f"v_add_u32_dpp v{t+2}, v{t+2}, v{t+2} row_bcast:31 row_mask:0xc bank_mask:0xf")
    a(f"v_sub_u32 v{t+2}, v{t+2}, v{t}")
    for k in range(20): a(f"v_add_u32 v{C+k}, v{C+k}, v{t+2}")
    for q in range(5): a(f"ds_write_b128 v7, v[{C+4*q}:{C+4*q+3}] offset:{16*q}")
    a.label("L1_sort_s1")
    PP = 96
    a(f"s_mov_b32 s{T[3]}, 0xffff0000")
    M16 = T[3]
    a("s_waitcnt lgkmcnt(0)")
    a("v_mov_b32 v7, 0")
    for i in range(NR):
        for j, X in enumerate((D + i, SX + i)):
            a(f"v_mul_u32_u24 v{t+4}, 6, v{X}")
            a(f"v_and_b32 v{t+4}, -4, v{t+4}")
            a(f"ds_read2_b32 v[{PP+4*i+2*j}:{PP+4*i+2*j+1}], v{t+4} offset0:0 offset1:1")
    a.wait_vm("E")
    for i in range(NR):
        PD_, PS_ = PP + 4 * i, PP + 4 * i + 2
        a(f"v_and_b32 v{t+5}, 7, v{D+i}")
        a(f"v_lshl_or_b32 v{RB+i}, v{t+5}, 14, v{SX+i}")
        a(f"v_lshrrev_b32 v{t+5}, 3, v{D+i}")
        a(f"v_lshl_or_b32 v{RB+i}, v{t+5}, 17, v{RB+i}")
        a(f"v_and_b32 v{t+6}, 1, v{D+i}")
        a(f"v_lshlrev_b32 v{t+6}, 4, v{t+6}")
        a(f"v_and_b32 v{t+7}, 1, v{SX+i}")
        a(f"v_lshlrev_b32 v{t+7}, 4, v{t+7}")
        if i == 0: a("s_waitcnt lgkmcnt(0)")
        for (P, sh) in ((PD_, t + 6), (PS_, t + 7)):
            a(f"v_alignbit_b32 v{P}, v{P+1}, v{P}, v{sh}")
            a(f"v_lshrrev_b32 v{P+1}, v{sh}, v{P+1}")
        a(f"v_lshlrev_b32 v{t+8}, 16, v{PD_}")
        a(f"v_lshlrev_b32 v{t+9}, 16, v{PS_}")
        a(f"v_sub_f32 v{t+8}, v{t+8}, v{t+9}")
        a(f"v_and_b32 v{t+9}, s{M16}, v{PD_}")
        a(f"v_and_b32 v{t+10}, s{M16}, v{PS_}")
        a(f"v_sub_f32 v{t+9}, v{t+9}, v{t+10}")
        a(f"v_lshlrev_b32 v{t+10}, 16, v{PD_+1}")
        a(f"v_lshlrev_b32 v{t+11}, 16, v{PS_+1}")
        a(f"v_sub_f32 v{t+10}, v{t+10}, v{t+11}")
        a(f"v_cvt_pk_bf16_f32 v{t+12}, v{t+8}, v{t+9}")
        a(f"v_cvt_pk_bf16_f32 v{t+13}, v{t+10}, v7")
        a(f"v_lshlrev_b32 v{t+8}, 16, v{t+12}")
        a(f"v_and_b32 v{t+9}, s{M16}, v{t+12}")
        a(f"v_lshlrev_b32 v{t+10}, 16, v{t+13}")
        a(f"v_mul_f32 v{t+8}, v{t+8}, v{t+8}")
        a(f"v_fmac_f32 v{t+8}, v{t+9}, v{t+9}")
        a(f"v_fmac_f32 v{t+8}, v{t+10}, v{t+10}")
        a(f"v_cvt_pk_bf16_f32 v{t+8}, v{t+8}, v7")
        r = RA + 4 * i
        a(f"v_lshl_or_b32 v{r}, v{EA+2*i}, 16, v{t+8}")
        a(f"v_alignbit_b32 v{r+1}, v{EA+2*i+1}, v{EA+2*i}, 16")
        a(f"v_alignbit_b32 v{r+2}, v{t+12}, v{EA+2*i+1}, 16")
        a(f"v_alignbit_b32 v{r+3}, v{t+13}, v{t+12}, 16")
    a("s_waitcnt lgkmcnt(0)")
    a("s_barrier")
    a.stamp(3)
    a(f"s_cmp_ge_u32 s{W}, 4")
    a("s_cbranch_scc1 L1_sort_t")
    a("v_mul_u32_u24 v7, 20, v0")
    a(f"v_add_u32 v7, {HIST}, v7")
    for k in range(6): a(f"ds_read_b32 v{t+8+k}, v7 offset:{4*k}")
    a.label("L1_sort_t")
    for i in range(NR):
        if i == NR - 1: last_round("L1_sort_b")
        a(f"ds_read_b32 v{t+i}, v{BA+i}")
    a.label("L1_sort_b")
    a("s_mov_b64 exec, -1")
    a("s_waitcnt lgkmcnt(0)")
    a(f"s_cmp_ge_u32 s{W}, 4")
    a("s_cbranch_scc1 L1_sort_t2")
    a(f"v_lshl_or_b32 v{t+16}, v{t+9}, 16, v{t+8}")
    a(f"v_lshl_or_b32 v{t+17}, v{t+11}, 16, v{t+10}")
    a(f"v_lshl_or_b32 v{t+18}, v{t+13}, 16, v{t+12}")
    a(f"v_mov_b32 v{t+19}, 0")
    a(f"s_mul_i32 s{T[0]}, s{sC}, {TAB_STRIDE}")
    a(f"s_add_u32 s{T[0]}, s{T[0]}, {WS_TAB}")
    a("v_lshlrev_b32 v7, 4, v0")
    a(f"buffer_store_dwordx4 v[{t+16}:{t+19}], v7, s[{R4}:{R4+3}], s{T[0]} offen{ST}")
    a.label("L1_sort_t2")
    for i in range(NR):
        if i == NR - 1: last_round("L1_sort_c")
        a(f"v_add_u32 v{t+i}, v{t+i}, v{RK+i}")
        a(f"v_lshlrev_b32 v{t+6}, 4, v{t+i}")
        a(f"v_add_u32 v{t+6}, {RECA}, v{t+6}")
        a(f"ds_write_b128 v{t+6}, v[{RA+4*i}:{RA+4*i+3}]")
        a(f"v_lshlrev_b32 v{t+7}, 2, v{t+i}")
        a(f"v_add_u32 v{t+7}, {RECB}, v{t+7}")
        a(f"ds_write_b32 v{t+7}, v{RB+i}")
    a.label("L1_sort_c")
    a("s_mov_b64 exec, -1")
    a("s_waitcnt lgkmcnt(0)")
    a("s_barrier")
    a.stamp(5)
    a("v_lshlrev_b32 v4, 4, v0")
    a(f"v_add_u32 v5, {RECA}, v4")
    for i in range(6):
        a(f"ds_read_b128 v[{RA+4*i}:{RA+4*i+3}], v5 offset:{i*8192}")
    a(f"v_add_u32 v7, {RECB}, v4")
    a(f"ds_read_b128 v[{t}:{t+3}], v7")
    a(f"ds_read_b128 v[{t+4}:{t+7}], v7 offset:8192")
    a(f"s_mul_i32 s{T[0]}, s{sC}, {CH_STRIDE*16}")
    a(f"s_add_u32 s{T[0]}, s{T[0]}, {WS_RECA}")
    a(f"s_mul_i32 s{T[1]}, s{sC}, {CH_STRIDE*4}")
    a(f"s_add_u32 s{T[1]}, s{T[1]}, {WS_RECB}")
    a("s_waitcnt lgkmcnt(0)")
    for i in range(5):
        a(f"buffer_store_dwordx4 v[{RA+4*i}:{RA+4*i+3}], v4, s[{R4}:{R4+3}], s{T[0]} offen{ST}")
        a(f"s_add_u32 s{T[0]}, s{T[0]}, 8192")
    a(f"buffer_store_dwordx4 v[{t}:{t+3}], v4, s[{R4}:{R4+3}], s{T[1]} offen{ST}")
    a(f"s_cmp_ge_u32 s{W}, 2")
    a("s_cbranch_scc1 L1_sort_r1")
    a(f"buffer_store_dwordx4 v[{RA+20}:{RA+23}], v4, s[{R4}:{R4+3}], s{T[0]} offen{ST}")
    a.label("L1_sort_r1")
    a(f"s_cmp_ge_u32 s{W}, 3")
    a("s_cbranch_scc1 L1_sort_r2")
    a(f"s_movk_i32 s{T[2]}, 160")
    a(f"v_cmp_gt_u32 vcc, s{T[2]}, v0")
    a("s_and_b64 exec, exec, vcc")
    a(f"s_add_u32 s{T[1]}, s{T[1]}, 8192")
    a(f"buffer_store_dwordx4 v[{t+4}:{t+7}], v4, s[{R4}:{R4+3}], s{T[1]} offen{ST}")
    a("s_mov_b64 exec, -1")
    a.label("L1_sort_r2")
    a.stamp(4)
    signal(a, INC_SORT, "s")

def pack(a):
    a.label("L1_pack")
    a(f"s_cmp_lg_u32 s{W}, 7")
    a("s_cbranch_scc1 L1_pack_go")
    srd(a, R4, P_WS, WS_MBX, 2048)
    a("v_lshlrev_b32 v2, 7, v1")
    a("v_mov_b32 v4, 0")
    a("v_mov_b32 v5, 0")
    a("s_mov_b32 exec_lo, 0xffff")
    a("s_mov_b32 exec_hi, 0")
    a(f"buffer_store_dwordx2 v[4:5], v2, s[{R4}:{R4+3}], 0 offen sc1")
    a("s_waitcnt vmcnt(0)")
    a("s_mov_b64 exec, -1")
    arrive_issue(a, f"{INC_INIT:#x}")
    arrive_finish(a, f"{INC_INIT:#x}", "i")
    a.label("L1_pack_go")
    srd(a, R0, P_WH, 131072, 131072)
    srd(a, R2, P_WS, WS_WHP, 131072)
    w_lane_offsets(a)
    w_dma(a, R0)
    srd(a, R1, P_WE, 0, 517 * 512)
    srd(a, R3, P_WX, 0, 512)
    srd(a, R4, P_WS, 0, WS_USED)
    a("v_lshlrev_b32 v9, 1, v0")
    a(f"s_mov_b32 s{T[0]}, 0x40000")
    for k in range(5):
        a(f"buffer_load_ushort v{24+k}, v9, s[{R1}:{R1+3}], s{T[0]} offen offset:{k*512}")
    a("v_lshrrev_b32 v10, 2, v1")
    a("v_lshlrev_b32 v10, 5, v10")
    a("v_bfe_u32 v11, v1, 1, 1")
    a("v_lshl_add_u32 v10, v11, 4, v10")
    a("v_and_b32 v11, 1, v1")
    a("v_lshl_add_u32 v10, v11, 2, v10")
    a("v_lshlrev_b32 v10, 1, v10")
    a(f"buffer_load_dwordx2 v[32:33], v10, s[{R3}:{R3+3}], 0 offen")
    a(f"buffer_load_dwordx2 v[34:35], v10, s[{R3}:{R3+3}], 0 offen offset:16")
    a("v_lshrrev_b32 v5, 4, v1")
    a("v_and_b32 v6, 1, v5")
    a("v_lshlrev_b32 v6, 4, v6")
    a("v_lshrrev_b32 v7, 1, v5")
    a("v_lshl_add_u32 v6, v7, 2, v6")
    a("v_bfe_u32 v7, v1, 2, 2")
    a("v_add_u32 v6, v6, v7")
    a("v_lshlrev_b32 v6, 6, v6")
    a("v_and_b32 v7, 3, v1")
    a("v_lshl_add_u32 v6, v7, 4, v6")
    a(f"s_lshl_b32 s{T[1]}, s{W}, 14")
    a(f"v_add_u32 v5, s{T[1]}, v6")
    a("v_lshlrev_b32 v8, 4, v1")
    CONSTS(a, 100, 64)
    a(f"s_lshl_b32 s{T[1]}, s{W}, 14")
    a.wait_all()
    for cb in range(2):
        for ks in range(8):
            q = 64 + 4 * (cb * 8 + ks)
            for i in range(2):
                a(f"ds_read_b64_tr_b16 v[{q+2*i}:{q+2*i+1}], v5 offset:{ks*2048 + i*512 + cb*8}")
            if ks % 4 == 3: a("s_waitcnt lgkmcnt(0)")
    for cb in range(2):
        for ks in range(8):
            q = 64 + 4 * (cb * 8 + ks)
            a(f"s_add_u32 s{T[2]}, s{T[1]}, {(cb*8+ks)*1024}")
            a(f"buffer_store_dwordx4 v[{q}:{q+3}], v8, s[{R2}:{R2+3}], s{T[2]} offen{ST}")
    a(f"s_cmp_ge_u32 s{W}, 4")
    a("s_cbranch_scc1 L1_pack_b")
    a(f"s_mov_b32 s{T[4]}, {NLOG2E:#x}")
    for k in range(5):
        a(f"v_lshlrev_b32 v{24+k}, 16, v{24+k}")
        a(f"v_mul_f32 v{24+k}, s{T[4]}, v{24+k}")
    a("v_mov_b32 v29, 0")
    a("v_cvt_pk_bf16_f32 v36, v24, v25")
    a("v_cvt_pk_bf16_f32 v37, v26, v27")
    a("v_cvt_pk_bf16_f32 v38, v28, v29")
    a("v_mov_b32 v39, 0")
    a("v_lshlrev_b32 v3, 4, v0")
    a(f"s_mov_b32 s{T[0]}, {WS_WX}")
    a(f"buffer_store_dwordx4 v[36:39], v3, s[{R4}:{R4+3}], s{T[0]} offen{ST}")
    a("s_branch L1_pack_e")
    a.label("L1_pack_b")
    a(f"s_cmp_gt_u32 s{W}, 4")
    a("s_cbranch_scc1 L1_pack_e")
    a("v_lshlrev_b32 v3, 4, v1")
    a(f"s_mov_b32 s{T[0]}, {WS_WXP}")
    a("s_mov_b32 exec_hi, 0")
    a(f"buffer_store_dwordx4 v[32:35], v3, s[{R4}:{R4+3}], s{T[0]} offen{ST}")
    a("s_mov_b64 exec, -1")
    a.label("L1_pack_e")
    signal(a, INC_GEMM, "p")
```

```python
from asmlib import *
from common import *
import p1

EXP = set()
CAP = 27
TILE = 2560
L_SRC = CAP * TILE
L_STAGE = L_SRC + 32 * 128
L_S = L_STAGE + 65536
S_ROW = 544
L_T = L_S + 40 * S_ROW
L_REL = L_T + 640
L_NG = L_REL + 1280
L_TB = L_NG + 32
W = S_WAVE
NRW = 7

SWS, SQ, SH, SO, STAB, SDBG = R0, R1, R2, R3, R4, R5
S_T, S_N, S_TG0, S_NT, S_WIN, S_TG = 64, 65, 66, 67, 68, 69
ZB, FB = 70, 75
S_STG, S_G5, S_IB, S_FIRST, S_WPH, S_M8 = 80, 81, 82, 83, 84, 86
S_RA, S_RB = 26, 27
S_HALF, S_HF = 85, 68
S_MK = 56
t0, t1, t2, t3 = T[0], T[1], T[2], T[3]

Z = (16, 32); E = 48; ACC = 64; M = 80; A0 = 88; A1 = 92; A2 = 96; BP = 100
I0 = 200; I1 = 204; B2 = 116; B2Q = 120; WXA = 108; WH = 136
ONE2 = 208; SR = 210; DV = 212
vA0, vA1, vA2, vB0, vB1, vSR, vLC, vS, vT = 214, 215, 216, 217, 218, 219, 220, 221, 222
vOS, vSL = 223, 224
vOS1, vSL1 = 12, 13
cA2, cB0, cB1 = 225, 226, 227
FL = 228
ZQ = 236
cSR = 240
NV = 241

def zero_fill(a):
    for k in range(4): a(f"v_mov_b32 v{36+k}, 0")
    a("v_lshlrev_b32 v40, 4, v0")
    a("v_add_u32 v41, 0x10000, v40")
    for k in range(8): a(f"ds_write_b128 v40, v[36:39] offset:{k*8192}")
    a("ds_write_b128 v41, v[36:39]")

def fill_tables(a):
    zero_fill(a)
    a(f"s_cmp_eq_u32 s{W}, 0")
    a("s_cbranch_scc0 1f")
    a(f"v_add_u32 v41, {L_T}, v40")
    a("s_mov_b32 exec_lo, -1")
    a("s_mov_b32 exec_hi, 0xff")
    a("ds_write_b128 v41, v[36:39]")
    a("s_mov_b64 exec, -1")
    a.label("1")

def mf32(d, x, y, c): return f"v_mfma_f32_32x32x16_bf16 v[{d}:{d+15}], v[{x}:{x+3}], v[{y}:{y+3}], {c}"
def z_mfmas(zn):
    return [mf32(zn, A0, I0, "0"), mf32(zn, A1, I1, f"v[{zn}:{zn+15}]"), mf32(zn, A2, B2, f"v[{zn}:{zn+15}]")]

def dma(a, slot):
    a(f"v_add_u32 v{DV}, v{SR}, v{vLC}")
    a(f"v_add_u32 v{DV+1}, v{SR+1}, v{vLC}")
    a(f"s_add_u32 m0, s{S_STG}, {slot*2048}")
    a("s_nop 0")
    a(f"buffer_load_dwordx4 v{DV}, s[{SQ}:{SQ+3}], 0 offen lds")
    a(f"s_add_u32 m0, s{S_STG}, {slot*2048+1024}")
    a("s_nop 0")
    a(f"buffer_load_dwordx4 v{DV+1}, s[{SQ}:{SQ+3}], 0 offen lds")

def shift_q(a, base):
    for k in range(4): a(f"s_mov_b32 s{base+k}, s{base+k+1}")

def flush(a, tmp):
    for q in range(8): a(f"v_cvt_pk_bf16_f32 v{FL+q}, v{ACC+2*q}, v{ACC+2*q+1}")
    a(f"s_mov_b64 exec, s[{S_M8}:{S_M8+1}]")
    a(f"ds_write_b128 v{vS}, v[{FL}:{FL+3}]")
    a(f"ds_write_b128 v{vS}, v[{FL+4}:{FL+7}] offset:16")
    a("s_mov_b64 exec, -1")
    a(mf32(tmp, WXA, FL, "0"))
    a(mf32(tmp, WXA + 4, FL + 4, f"v[{tmp}:{tmp+15}]"))
    a(mf32(ACC, ZQ, ZQ, "0"))
    a(f"v_add_u32 v{vS}, {8*S_ROW}, v{vS}")
    shift_q(a, FB)
    a("s_nop 6")
    a("s_mov_b32 exec_hi, 0")
    a(f"ds_add_f32 v{vT}, v{tmp}")
    a("s_mov_b64 exec, -1")
    a(f"v_add_u32 v{vT}, 128, v{vT}")

def rotate_b2(a):
    if "oldrot" in EXP:
        for q in range(4): a(f"v_mov_b32 v{B2+q}, v{B2Q+q}")
        for q in range(12): a(f"v_mov_b32 v{B2Q+q}, v{B2Q+4+q}")
        return
    for q in range(0, 4, 2): a(f"v_pk_mov_b32 v[{B2+q}:{B2+q+1}], v[{B2Q+q}:{B2Q+q+1}], v[{B2Q+q}:{B2Q+q+1}] op_sel:[0,1]")
    for q in range(0, 12, 2): a(f"v_pk_mov_b32 v[{B2Q+q}:{B2Q+q+1}], v[{B2Q+4+q}:{B2Q+4+q+1}], v[{B2Q+4+q}:{B2Q+4+q+1}] op_sel:[0,1]")

def rec_consts(a):
    a("v_lshrrev_b32 v44, 4, v1")
    a(f"s_lshl_b32 s{t0}, s{W}, 2")
    a(f"v_add_u32 v44, s{t0}, v44")
    a(f"s_mov_b32 s{t0}, {CH_STRIDE*16}")
    a(f"v_mul_lo_u32 v42, s{t0}, v44")
    a(f"s_movk_i32 s{t0}, {CH_STRIDE*4}")
    a(f"v_mul_lo_u32 v43, s{t0}, v44")
    a("v_lshlrev_b32 v40, 2, v44")
    a("v_and_b32 v41, 15, v1")

OSL = ((vOS, vSL), (vOS1, vSL1))

def rec_loads(a, lbl):
    for it in range(4):
        p, r = it >> 1, it & 1
        os_, sl_ = OSL[r]
        a(f"v_add_u32 v36, s{S_IB}, v41")
        if p: a("v_add_u32 v36, 16, v36")
        a(f"v_cmp_lt_u32 s[{S_MK+2*it}:{S_MK+2*it+1}], v36, v{sl_}")
        a(f"v_add_u32 v36, v36, v{os_}")
        a(f"v_lshl_add_u32 v37, v36, 4, v42")
        a(f"v_lshl_add_u32 v38, v36, 2, v43")
        a(f"s_mov_b32 s{S_RA}, {WS_RECA + r*32*CH_STRIDE*16}")
        a(f"s_mov_b32 s{S_RB}, {WS_RECB + r*32*CH_STRIDE*4}")
        a(f"s_mov_b64 exec, s[{S_MK+2*it}:{S_MK+2*it+1}]")
        a(f"s_cbranch_execz {lbl}_{it}")
        a(f"buffer_load_dwordx4 v[{16+4*it}:{19+4*it}], v37, s[{SWS}:{SWS+3}], s{S_RA} offen sc1")
        a(f"buffer_load_dword v{32+it}, v38, s[{SWS}:{SWS+3}], s{S_RB} offen sc1")
        a.label(f"{lbl}_{it}")
        a("s_mov_b64 exec, -1")

def build_recs(a, lbl):
    a("s_waitcnt vmcnt(0)")
    if "chain" in EXP and lbl == "L2_b0": a.stamp(0)
    a("v_mov_b32 v58, 0x3f80")
    for it in range(4):
        RB = 32 + it
        r = it & 1
        a(f"s_mov_b64 exec, s[{S_MK+2*it}:{S_MK+2*it+1}]")
        a(f"s_cbranch_execz {lbl}_a{it}")
        a(f"v_lshrrev_b32 v44, 17, v{RB}")
        a(f"v_subrev_u32 v44, s{S_G5}, v44")
        a(f"v_lshl_add_u32 v45, v44, 8, v40")
        a(f"v_add_u32 v45, {L_REL + 128*r}, v45")
        a(f"ds_read_b32 v{2+2*it}, v45")
        a(f"v_lshl_add_u32 v47, v44, 2, v59")
        a(f"ds_read_b32 v{3+2*it}, v47")
        a.label(f"{lbl}_a{it}")
    a("s_mov_b64 exec, -1")
    a(f"s_lshl_b32 s{t1}, s{S_TG0}, 5")
    a(f"s_sub_u32 s{t0}, s{S_IB}, s{t1}")
    a(f"v_add_u32 v49, s{t0}, v41")
    a(f"s_movk_i32 s{t1}, {CAP*32}")
    a("s_waitcnt lgkmcnt(0)")
    for it in range(4):
        RA, RB = 16 + 4 * it, 32 + it
        p, r = it >> 1, it & 1
        a(f"s_mov_b64 exec, s[{S_MK+2*it}:{S_MK+2*it+1}]")
        a(f"s_cbranch_execz {lbl}_{it}")
        a(f"v_add3_u32 v44, v49, v{2+2*it}, v{3+2*it}")
        a(f"v_add_u32 v44, v44, v{OSL[r][0]}")
        if p: a("v_add_u32 v44, 16, v44")
        a(f"v_and_b32 v50, 0x3fff, v{RB}")
        a(f"v_cmp_gt_u32 vcc, s{t1}, v44")
        a("v_lshlrev_b32 v50, 9, v50")
        a("v_add_u32 v50, 512, v50")
        a("s_and_b64 exec, exec, vcc")
        a(f"s_cbranch_execz {lbl}_{it}")
        a("v_lshlrev_b32 v51, 2, v44")
        a(f"v_add_u32 v51, {L_SRC}, v51")
        a("ds_write_b32 v51, v50")
        a("v_lshrrev_b32 v52, 5, v44")
        a(f"v_mul_u32_u24 v52, {TILE}, v52")
        a("v_and_b32 v53, 31, v44")
        a("v_lshl_add_u32 v55, v53, 4, v52")
        a(f"ds_write_b128 v55, v[{RA}:{RA+3}] offset:2048")
        a(f"v_bfe_u32 v54, v{RB}, 14, 3")
        a("v_lshl_add_u32 v52, v53, 6, v52")
        a("v_lshl_add_u32 v52, v54, 1, v52")
        a("v_bfe_u32 v53, v53, 2, 2")
        a("v_lshl_add_u32 v54, v53, 4, v52")
        a("ds_write_b16 v54, v58")
        a("v_xor_b32 v55, 1, v53")
        a("v_lshl_add_u32 v55, v55, 4, v52")
        a(f"ds_write_b16_d16_hi v55, v{RA+2}")
        a("v_xor_b32 v56, 2, v53")
        a("v_lshl_add_u32 v56, v56, 4, v52")
        a(f"ds_write_b16 v56, v{RA+3}")
        a("v_xor_b32 v57, 3, v53")
        a("v_lshl_add_u32 v57, v57, 4, v52")
        a(f"ds_write_b16_d16_hi v57, v{RA+3}")
        a.label(f"{lbl}_{it}")
    a("s_mov_b64 exec, -1")

def poll(a, lbl, srdreg, voff, want, sleep):
    a(f"s_mov_b32 s{t1}, 0x8000")
    a("s_mov_b32 exec_lo, 1")
    a("s_mov_b32 exec_hi, 0")
    a.label(lbl)
    a(f"buffer_load_dword v10, v{voff}, s[{srdreg}:{srdreg+3}], 0 offen sc1")
    a("s_waitcnt vmcnt(0)")
    a(f"v_readfirstlane_b32 s{t0}, v10")
    a(f"s_and_b32 s{t0}, s{t0}, {want:#x}")
    a(f"s_cmp_eq_u32 s{t0}, {want:#x}")
    a(f"s_cbranch_scc1 {lbl}_ok")
    a(f"s_sub_u32 s{t1}, s{t1}, 1")
    a(f"s_cmp_eq_u32 s{t1}, 0")
    a(f"s_cbranch_scc1 {lbl}_ok")
    a(f"s_sleep {sleep}")
    a(f"s_branch {lbl}")
    a.label(f"{lbl}_ok")
    a("s_mov_b64 exec, -1")

def mailbox(a, word):
    srd(a, R4, P_WS, WS_MBX, 2048)
    a(f"s_and_b32 s{t2}, s2, 15")
    a(f"s_lshl_b32 s{t2}, s{t2}, 7")
    a(f"s_add_u32 s{t2}, s{t2}, {4*word}")
    a(f"v_mov_b32 v8, s{t2}")

def a_reads(u1):
    sl = u1 % 4
    return [f"ds_read_b128 v[{A0}:{A0+3}], v{vA0} offset:{sl*2048}",
            f"ds_read_b128 v[{A1}:{A1+3}], v{vA1} offset:{sl*2048}",
            f"ds_read_b128 v[{A2}:{A2+3}], v{vA2} offset:{u1*TILE}"]
def bp_reads(u):
    return [f"ds_read_b64_tr_b16 v[{BP}:{BP+1}], v{vB0} offset:{u*TILE}",
            f"ds_read_b64_tr_b16 v[{BP+2}:{BP+3}], v{vB1} offset:{u*TILE}",
            f"ds_read_b64_tr_b16 v[{BP+4}:{BP+5}], v{vB0} offset:{u*TILE+1024}",
            f"ds_read_b64_tr_b16 v[{BP+6}:{BP+7}], v{vB1} offset:{u*TILE+1024}"]
def seg_mfmas():
    return [mf32(ACC, M, BP, f"v[{ACC}:{ACC+15}]"), mf32(ACC, M + 4, BP + 4, f"v[{ACC}:{ACC+15}]")]

OOL = []
def OST():
    return " sc1" if "osc1" in EXP else " nt" if "ont" in EXP else " sc0 sc1" if "osc01" in EXP else ""

def first_pass_wait(a, lbl):
    a(f"s_cmp_eq_u32 s{S_WPH}, 0")
    a(f"s_cbranch_scc0 {lbl}")
    a("s_waitcnt vmcnt(0)")
    a.label(lbl)

def iteration(a, u):
    zc, zn = Z[u & 1], Z[(u + 1) & 1]
    sl = (u + 1) % 4
    if "prio0" in EXP: pass
    elif "prio2" in EXP: a(f"s_setprio {(1, 0, 1, 0)[u]}")
    elif "prioh" in EXP: a(f"s_setprio {(3, 2, 1, 0)[u]}")
    else: a(f"s_setprio {3-u}")
    a("s_waitcnt lgkmcnt(0)")
    a(f"s_cmp_eq_u32 s{S_TG}, s{FB}")
    a(f"s_cbranch_scc1 L2_fl_{u}")
    a.label(f"L2_fl_{u}_r")
    OOL.append((f"L2_fl_{u}", lambda a, zn=zn, u=u: (first_pass_wait(a, f"L2_flw_{u}"), flush(a, zn), a(f"s_branch L2_fl_{u}_r"))))
    a(f"s_cmp_eq_u32 s{S_TG}, s{ZB}")
    a(f"s_cbranch_scc1 L2_rt_{u}")
    a.label(f"L2_rt_{u}_r")
    def rt(a, u=u):
        first_pass_wait(a, f"L2_rtw_{u}")
        rotate_b2(a); shift_q(a, ZB)
        a(f"s_and_b32 s{S_HALF}, s{S_HF}, 1")
        a(f"s_lshr_b32 s{S_HF}, s{S_HF}, 1")
        a(f"s_branch L2_rt_{u}_r")
    OOL.append((f"L2_rt_{u}", rt))
    zm = z_mfmas(zn); sm = seg_mfmas(); bp = bp_reads(u); ar = a_reads(u + 2)
    def run(op, regs, att):
        for i, k in enumerate(regs):
            a(f"{op} v{E+k}, v{(zc if op == 'v_exp_f32' else E)+k}")
            for x in att.get(i, []): a(x)
    def pk(op, lo):
        for k in range(lo, lo + 8, 2):
            other = f"v[{ONE2}:{ONE2+1}]" if op == "v_pk_add_f32" else f"v[{zc+k}:{zc+k+1}]"
            a(f"{op} v[{E+k}:{E+k+1}], v[{E+k}:{E+k+1}], {other}")
    def cvt(lo):
        for k in range(lo, lo + 8, 2): a(f"v_cvt_pk_bf16_f32 v{M+k//2}, v{E+k}, v{E+k+1}")
    att = {0: [sm[0]],
           1: [f"v_add_u32 v{DV}, v{SR}, v{vLC}", f"s_add_u32 m0, s{S_STG}, {sl*2048}"],
           2: [f"v_add_u32 v{DV+1}, v{SR+1}, v{vLC}", f"buffer_load_dwordx4 v{DV}, s[{SQ}:{SQ+3}], 0 offen lds"],
           3: [bp[0], bp[1]],
           4: [zm[0]],
           5: [f"s_add_u32 m0, s{S_STG}, {sl*2048+1024}"],
           6: [f"buffer_load_dwordx4 v{DV+1}, s[{SQ}:{SQ+3}], 0 offen lds"],
           7: [f"s_cmp_eq_u32 s{S_WPH}, 0", f"s_cbranch_scc1 L2_wl_{u}", f"L2_wl_{u}_r:"]}
    def wl(a, u=u):
        a("v_lshlrev_b32 v5, 4, v1")
        a(f"s_lshl_b32 s{t0}, s{W}, 14")
        a(f"s_add_u32 s{t0}, s{t0}, {WS_WHP + u*4096}")
        for q in range(4 * u, 4 * u + 4):
            a(f"buffer_load_dwordx4 v[{WH+4*q}:{WH+4*q+3}], v5, s[{SWS}:{SWS+3}], s{t0} offen offset:{(q%4)*1024}")
        a(f"s_branch L2_wl_{u}_r")
    OOL.append((f"L2_wl_{u}", wl))
    run("v_exp_f32", range(0, 8), att)
    pk("v_pk_add_f32", 0)
    att = {0: [zm[1]],
           1: [f"s_add_u32 s{S_T}, s{S_T}, 1", f"s_add_u32 s{S_TG}, s{S_TG}, 1"],
           4: [zm[2]],
           5: [f"s_cmp_lt_u32 s{S_WPH}, 2", f"s_cbranch_scc1 L2_wv_{u}", "s_waitcnt vmcnt(6)", f"L2_wv_{u}_r:", ar[0]],
           6: [ar[1], ar[2]],
           7: [f"ds_read2_b32 v[{SR}:{SR+1}], v{vSR} offset0:{u*32} offset1:{u*32+16}"]}
    def wv(a, u=u):
        a(f"s_cmp_eq_u32 s{S_WPH}, 0")
        a(f"s_cbranch_scc1 L2_wv_{u}_0")
        a(f"s_waitcnt vmcnt({(18, 14, 10, 6)[u]})")
        a(f"s_branch L2_wv_{u}_r")
        a.label(f"L2_wv_{u}_0")
        a(f"s_waitcnt vmcnt({(16, 20, 24, 22)[u]})")
        a(f"s_branch L2_wv_{u}_r")
    OOL.append((f"L2_wv_{u}", wv))
    run("v_rcp_f32", range(0, 8), att)
    a(f"s_cmp_eq_u32 s{S_HALF}, 1")
    pk("v_pk_mul_f32", 0)
    cvt(0)
    a(f"s_cbranch_scc1 L2_hf_{u}")
    def hf(a, u=u):
        a(sm[1]); a(f"s_mov_b32 s{S_HALF}, 0"); a(bp[2]); a(bp[3])
        a(f"s_branch L2_hf_{u}_r")
    OOL.append((f"L2_hf_{u}", hf))
    if "prioh" in EXP: a("s_setprio 0")
    run("v_exp_f32", range(8, 16), {0: [sm[1]], 1: [bp[2]], 2: [bp[3]]})
    pk("v_pk_add_f32", 8)
    run("v_rcp_f32", range(8, 16), {})
    pk("v_pk_mul_f32", 8)
    cvt(8)
    a.label(f"L2_hf_{u}_r")
    a(f"s_cmp_eq_u32 s{S_T}, s{S_N}")
    a("s_cbranch_scc1 L2_win_end")

def constants_a(a, b=44, mk=52):
    a(f"v_and_b32 v{b+0}, 31, v1")
    a(f"v_lshrrev_b32 v{b+1}, 5, v1")
    a(f"v_mov_b32 v{ONE2}, 1.0")
    a(f"v_mov_b32 v{ONE2+1}, 1.0")
    for q in range(4): a(f"v_mov_b32 v{ZQ+q}, 0")
    a(f"s_mov_b32 s{S_M8}, 0xff")
    a(f"s_mov_b32 s{S_M8+1}, 0xff")
    a(f"v_lshlrev_b32 v{b+2}, 3, v{b+1}")
    a(f"v_sub_u32 v{b+2}, v{b+0}, v{b+2}")
    a(f"v_mov_b32 v{b+4}, 0x3f80")
    a(f"v_mov_b32 v{b+5}, 0x3f800000")
    a(f"v_and_b32 v{b+3}, 1, v{b+2}")
    a(f"v_cmp_eq_u32 vcc, 1, v{b+3}")
    a(f"v_lshrrev_b32 v{b+6}, 1, v{b+2}")
    a(f"v_add_u32 v{b+7}, -8, v{b+6}")
    a(f"v_cndmask_b32 v{b+3}, v{b+4}, v{b+5}, vcc")
    for I, r in ((I0, b + 6), (I1, b + 7)):
        for q0 in (0, 2):
            a(f"v_cmp_eq_u32 s[{mk}:{mk+1}], {q0}, v{r}")
            a(f"v_cmp_eq_u32 s[{mk+2}:{mk+3}], {q0+1}, v{r}")
            a("s_nop 0")
            a(f"v_cndmask_b32 v{I+q0}, 0, v{b+3}, s[{mk}:{mk+1}]")
            a(f"v_cndmask_b32 v{I+q0+1}, 0, v{b+3}, s[{mk+2}:{mk+3}]")

def constants_b(a, b=44):
    a(f"v_and_b32 v{b+0}, 31, v1")
    a(f"v_lshrrev_b32 v{b+1}, 5, v1")
    a(f"s_lshl_b32 s{S_STG}, s{W}, 13")
    a(f"s_add_u32 s{S_STG}, s{S_STG}, {L_STAGE}")
    a(f"v_bfe_u32 v{b+2}, v{b+0}, 2, 2")
    a(f"v_xor_b32 v{b+3}, v{b+1}, v{b+2}")
    a(f"v_lshlrev_b32 v{b+4}, 6, v{b+0}")
    a(f"v_add_u32 v{b+5}, s{S_STG}, v{b+4}")
    a(f"v_lshl_add_u32 v{vA0}, v{b+3}, 4, v{b+5}")
    a(f"v_xor_b32 v{b+3}, 2, v{b+3}")
    a(f"v_lshl_add_u32 v{vA1}, v{b+3}, 4, v{b+5}")
    a(f"v_lshlrev_b32 v{b+3}, 4, v{b+0}")
    a(f"v_add_u32 v{b+3}, 2048, v{b+3}")
    a(f"v_lshl_add_u32 v{b+4}, v{b+2}, 4, v{b+4}")
    a(f"v_cmp_eq_u32 vcc, 1, v{b+1}")
    a(f"v_bfe_u32 v{b+2}, v1, 2, 2")
    a(f"v_lshl_add_u32 v{b+2}, v{b+1}, 2, v{b+2}")
    a(f"v_cndmask_b32 v{cA2}, v{b+3}, v{b+4}, vcc")
    a(f"v_lshlrev_b32 v{b+2}, 6, v{b+2}")
    a(f"v_and_b32 v{b+3}, 1, v1")
    a(f"v_lshl_add_u32 v{b+2}, v{b+3}, 3, v{b+2}")
    a(f"v_bfe_u32 v{b+3}, v1, 4, 1")
    a(f"v_lshlrev_b32 v{b+3}, 1, v{b+3}")
    a(f"v_bfe_u32 v{b+4}, v1, 1, 1")
    a(f"v_or_b32 v{b+3}, v{b+3}, v{b+4}")
    a(f"v_xor_b32 v{b+3}, v{b+3}, v{b+1}")
    a(f"v_lshl_add_u32 v{cB0}, v{b+3}, 4, v{b+2}")
    a(f"v_xor_b32 v{b+3}, 2, v{b+3}")
    a(f"v_lshl_add_u32 v{b+4}, v{b+3}, 4, v{b+2}")
    a(f"v_add_u32 v{cB1}, 512, v{b+4}")
    a(f"v_and_b32 v{b+2}, 3, v1")
    a(f"v_bfe_u32 v{b+3}, v1, 4, 2")
    a(f"v_xor_b32 v{b+2}, v{b+2}, v{b+3}")
    a(f"v_lshlrev_b32 v{b+2}, 4, v{b+2}")
    a(f"s_lshl_b32 s{t0}, s{W}, 6")
    a(f"s_sub_u32 s{t1}, s{t0}, 512")
    a(f"v_add_u32 v{vLC}, s{t1}, v{b+2}")
    a(f"v_and_b32 v{b+2}, 7, v1")
    a(f"v_mul_u32_u24 v{b+2}, {S_ROW}, v{b+2}")
    a(f"v_lshl_add_u32 v{b+2}, v{b+1}, 5, v{b+2}")
    a(f"s_add_u32 s{t0}, s{t0}, {L_S}")
    a(f"v_add_u32 v{vS}, s{t0}, v{b+2}")
    a(f"v_lshlrev_b32 v{b+2}, 2, v{b+0}")
    a(f"v_add_u32 v{vT}, {L_T}, v{b+2}")
    a(f"v_lshrrev_b32 v{b+2}, 2, v1")
    a(f"v_lshlrev_b32 v{b+2}, 2, v{b+2}")
    a(f"v_add_u32 v{cSR}, {L_SRC}, v{b+2}")

def phase2(a):
    def entry(a):
        a("v_and_b32 v1, 63, v0")
        a(f"s_cmp_eq_u32 s{W}, 0")
        a("s_cbranch_scc0 2f")
        p1.arrive_issue(a, f"s{p1.S_INC}")
        a.label("2")
        srd(a, SWS, P_WS, 0, WS_USED)
        a(f"s_mul_i32 s{S_G5}, s2, 5")
    def table_load(a):
        srd(a, STAB, P_WS, WS_TAB, NCH * TAB_STRIDE)
        a("v_lshlrev_b32 v2, 12, v1")
        a(f"s_lshl_b32 s{t0}, s2, 4")
        a(f"buffer_load_dwordx3 v[60:62], v2, s[{STAB}:{STAB+3}], s{t0} offen sc1")
    def t_zero(a):
        a(f"v_add_u32 v41, {L_T}, v40")
        a("s_mov_b32 exec_lo, -1")
        a("s_mov_b32 exec_hi, 0xff")
        a("ds_write_b128 v41, v[36:39]")
        a("s_mov_b64 exec, -1")
    a.label("L_phase2_fast")
    a.stamp(5)
    entry(a)
    table_load(a)
    a(f"s_cmp_eq_u32 s{W}, 0")
    a("s_cbranch_scc0 L2_tab")
    p1.arrive_finish(a, f"s{p1.S_INC}", "f")
    a("s_branch L2_tab")
    a.label("L_phase2")
    a.stamp(5)
    entry(a)
    a(f"s_cmp_eq_u32 s{W}, 0")
    a("s_cbranch_scc0 L2_w1")
    p1.arrive_finish(a, f"s{p1.S_INC}", "a")
    a("s_and_b32 s52, s85, 1")
    a("s_cmp_eq_u32 s52, 1")
    a("s_cbranch_scc1 L2_inited")
    srd(a, SDBG, P_DBG, 0, 256)
    a("v_mov_b32 v8, 0")
    poll(a, "L2_poll0", SDBG, 8, 1, 16)
    a("s_mov_b32 s85, 0")
    a.label("L2_inited")
    a("s_and_b32 s52, s85, 0xffff")
    a(f"s_cmp_eq_u32 s52, {K1:#x}")
    a("s_cbranch_scc1 L2_w1")
    mailbox(a, 0)
    poll(a, "L2_poll1", R4, 8, 1, 2)
    a.label("L2_w1")
    a("s_barrier")
    table_load(a)
    a.label("L2_tab")
    a.stamp(6)
    a(f"s_mov_b32 s{S_IB}, 0")
    a(f"s_mov_b32 s{S_TG0}, 0")
    a(f"s_mov_b32 s{S_FIRST}, 1")
    a(mf32(ACC, ZQ, ZQ, "0"))
    a("s_waitcnt vmcnt(0)")
    if "chain" in EXP: a.stamp(2)
    a(f"v_and_b32 v46, 0xffff, v60")
    a(f"v_lshrrev_b32 v47, 16, v62")
    a(f"v_sub_u32 v47, v47, v46")
    rec_consts(a)
    a("v_add_u32 v45, 128, v40")
    a(f"ds_bpermute_b32 v{vOS}, v40, v46")
    a(f"ds_bpermute_b32 v{vSL}, v40, v47")
    a(f"ds_bpermute_b32 v{vOS1}, v45, v46")
    a(f"ds_bpermute_b32 v{vSL1}, v45, v47")
    a("s_waitcnt lgkmcnt(0)")
    rec_loads(a, "L2_ld0")
    if "chain" in EXP: a.stamp(3)
    a(f"s_cmp_ge_u32 s{W}, 5")
    a("s_cbranch_scc1 L2_noscan")
    a(f"s_cmp_lt_u32 s{W}, 2")
    a("s_cbranch_scc1 L2_sel")
    a("v_mov_b32 v60, v61")
    a("v_mov_b32 v61, v62")
    a(f"s_cmp_lt_u32 s{W}, 4")
    a("s_cbranch_scc1 L2_sel")
    a("v_mov_b32 v60, v61")
    a.label("L2_sel")
    a(f"s_and_b32 s{t0}, s{W}, 1")
    a(f"s_lshl_b32 s{t0}, s{t0}, 4")
    a(f"v_alignbit_b32 v61, v61, v60, s{t0}")
    a("v_and_b32 v60, 0xffff, v61")
    a("v_lshrrev_b32 v61, 16, v61")
    a("v_sub_u32 v62, v61, v60")
    a("v_mov_b32 v63, v62")
    for sh in (1, 2, 4, 8):
        a("s_nop 1")
        a(f"v_add_u32_dpp v63, v63, v63 row_shr:{sh} row_mask:0xf bank_mask:0xf")
    a("s_nop 1")
    a("v_add_u32_dpp v63, v63, v63 row_bcast:15 row_mask:0xa bank_mask:0xf")
    a("s_nop 1")
    a("v_add_u32_dpp v63, v63, v63 row_bcast:31 row_mask:0xc bank_mask:0xf")
    a("v_sub_u32 v62, v63, v62")
    a("v_sub_u32 v62, v62, v60")
    a(f"s_lshl_b32 s{t0}, s{W}, 8")
    a(f"s_add_u32 s{t0}, s{t0}, {L_REL}")
    a("v_lshlrev_b32 v45, 2, v1")
    a(f"v_add_u32 v45, s{t0}, v45")
    a("ds_write_b32 v45, v62")
    a(f"s_lshl_b32 s{t0}, s{W}, 2")
    a(f"s_add_u32 s{t0}, s{t0}, {L_NG}")
    a(f"v_mov_b32 v45, s{t0}")
    a("s_mov_b32 exec_lo, 0")
    a("s_mov_b32 exec_hi, 0x80000000")
    a("ds_write_b32 v45, v63")
    a("s_mov_b64 exec, -1")
    a.label("L2_noscan")
    a.label("L2_round_bar")
    a("s_waitcnt lgkmcnt(0)")
    a("s_barrier")
    a.stamp(7)
    a(f"s_cmp_eq_u32 s{S_FIRST}, 0")
    a("s_cbranch_scc1 L2_have_tb")
    a("v_lshlrev_b32 v45, 2, v1")
    a(f"v_add_u32 v45, {L_NG}, v45")
    a("s_mov_b32 exec_lo, 0xff")
    a("s_mov_b32 exec_hi, 0")
    a("ds_read_b32 v46, v45")
    a("s_waitcnt lgkmcnt(0)")
    a("v_max_u32 v46, 1, v46")
    a("v_add_u32 v47, -1, v46")
    a("v_and_b32 v47, 31, v47")
    a("v_cmp_gt_u32 vcc, 16, v47")
    a("v_add_u32 v46, 31, v46")
    a("v_lshrrev_b32 v46, 5, v46")
    a(f"s_and_b32 s{S_HF}, vcc_lo, 0x1f")
    NTG = (T[0], T[1], T[2], T[3], 85)
    for g in range(5): a(f"v_readlane_b32 s{NTG[g]}, v46, {g}")
    a(f"s_mov_b32 s{ZB}, s{NTG[0]}")
    for g in range(1, 4): a(f"s_add_u32 s{ZB+g}, s{ZB+g-1}, s{NTG[g]}")
    a(f"s_add_u32 s{S_NT}, s{ZB+3}, s85")
    a(f"s_mov_b32 s{ZB+4}, s{S_NT}")
    a(f"s_mov_b32 s{S_HALF}, 0")
    a("v_mov_b32 v46, 0")
    for g in range(1, 5):
        a(f"s_lshl_b32 s{t0}, s{ZB+g-1}, 5")
        a(f"v_writelane_b32 v46, s{t0}, {g}")
    for k in range(4): a(f"s_add_u32 s{FB+k}, s{ZB+k}, 1")
    a(f"s_mov_b32 s{FB+4}, 0x7ffffff0")
    for k in range(5): a(f"s_sub_u32 s{ZB+k}, s{ZB+k}, 1")
    a(f"s_lshl_b32 s{t0}, s{W}, 5")
    a(f"s_add_u32 s{t0}, s{t0}, {L_TB}")
    a("v_lshlrev_b32 v45, 2, v1")
    a(f"v_add_u32 v45, s{t0}, v45")
    a("ds_write_b32 v45, v46")
    a("s_mov_b64 exec, -1")
    a.label("L2_have_tb")
    a(f"s_lshl_b32 s{t0}, s{W}, 5")
    a(f"s_add_u32 s{t0}, s{t0}, {L_TB}")
    a(f"v_mov_b32 v59, s{t0}")
    a("s_waitcnt lgkmcnt(0)")
    if "chain" in EXP: a.stamp(4)
    build_recs(a, "L2_b0")
    a.label("L2_more")
    a(f"s_add_u32 s{S_IB}, s{S_IB}, 32")
    a(f"v_cmp_lt_u32 vcc, s{S_IB}, v{vSL}")
    a(f"v_cmp_lt_u32 s[52:53], s{S_IB}, v{vSL1}")
    a("s_or_b64 vcc, vcc, s[52:53]")
    a("s_cbranch_vccz L2_built0")
    rec_loads(a, "L2_ld1")
    build_recs(a, "L2_b1")
    a("s_branch L2_more")
    a.label("L2_built0")
    if "chain" in EXP: a.stamp(11)
    a(f"s_cmp_eq_u32 s{W}, 7")
    a("s_cbranch_scc0 L2_built")
    a(f"s_cmp_eq_u32 s{S_FIRST}, 0")
    a("s_cbranch_scc1 L2_built")
    mailbox(a, 1)
    poll(a, "L2_poll2", R4, 8, 1, 2)
    a.label("L2_built")
    a("s_waitcnt vmcnt(0) lgkmcnt(0)")
    a("s_barrier")
    a.stamp(8)
    a("s_setprio 3")
    a(f"v_mov_b32 v{vSR}, v{cSR}")
    for k in range(4):
        a(f"ds_read2_b32 v[{E+2*k}:{E+2*k+1}], v{vSR} offset0:{k*32} offset1:{k*32+16}")
    a(f"ds_read2_b32 v[{SR}:{SR+1}], v{vSR} offset0:128 offset1:144")
    a(f"s_cmp_eq_u32 s{S_FIRST}, 0")
    a("s_cbranch_scc1 L2_nob2")
    srd(a, SQ, P_WS, WS_Q, MAT_BYTES)
    a("v_and_b32 v3, 31, v1")
    a("v_lshrrev_b32 v4, 5, v1")
    a(f"s_lshl_b32 s{t0}, s{W}, 9")
    a("v_lshlrev_b32 v5, 4, v3")
    a(f"v_add_u32 v5, s{t0}, v5")
    a(f"s_lshl_b32 s{t1}, s{S_G5}, 12")
    a(f"s_add_u32 s{t1}, s{t1}, {WS_P - WS_WX}")
    a(f"v_mul_lo_u32 v6, s{t1}, v4")
    a("v_add_u32 v5, v5, v6")
    a(f"v_add_u32 v5, {WS_WX}, v5")
    a("v_lshlrev_b32 v6, 12, v4")
    a(f"buffer_load_dwordx4 v[{B2}:{B2+3}], v5, s[{SWS}:{SWS+3}], 0 offen")
    a.label("L2_nob2")
    a("s_waitcnt lgkmcnt(1)")
    def dma_k(k):
        a(f"v_add_u32 v{E+k}, v{E+k}, v{vLC}")
        a(f"s_add_u32 m0, s{S_STG}, {k*1024}")
        a("s_nop 0")
        a(f"buffer_load_dwordx4 v{E+k}, s[{SQ}:{SQ+3}], 0 offen lds")
    for k in range(4): dma_k(k)
    a(f"s_sub_u32 s{S_N}, s{S_NT}, s{S_TG0}")
    a(f"s_min_u32 s{S_N}, s{S_N}, {CAP}")
    a(f"s_mov_b32 s{S_T}, 0")
    a(f"s_mov_b32 s{S_TG}, s{S_TG0}")
    a(f"v_mov_b32 v{vA2}, v{cA2}")
    a(f"v_mov_b32 v{vB0}, v{cB0}")
    a(f"v_mov_b32 v{vB1}, v{cB1}")
    for k in range(8): a(f"v_mov_b32 v{M+k}, 0")
    for k in range(8): a(f"v_mov_b32 v{BP+k}, 0")
    a(f"s_cmp_eq_u32 s{S_FIRST}, 0")
    a(f"s_cselect_b32 s{S_WPH}, 2, 0")
    a("s_waitcnt vmcnt(2)")
    for x in a_reads(0): a(x)
    for k in range(4, 8): dma_k(k)
    a("s_waitcnt lgkmcnt(0)")
    dma(a, 0)
    for m in z_mfmas(Z[0]): a(m)
    a(f"ds_read2_b32 v[{SR}:{SR+1}], v{vSR} offset0:160 offset1:176")
    a(f"v_add_u32 v{vSR}, 768, v{vSR}")
    a(f"s_cmp_eq_u32 s{S_FIRST}, 0")
    a("s_cbranch_scc1 L2_nob3")
    for g in range(1, 5):
        d = B2Q + 4 * (g - 1)
        a("v_add_u32 v5, v5, v6")
        a(f"buffer_load_dwordx4 v[{d}:{d+3}], v5, s[{SWS}:{SWS+3}], 0 offen")
    a(f"s_lshl_b32 s{t0}, s{W}, 6")
    a(f"s_add_u32 s{t0}, s{t0}, {WS_WXP}")
    a("v_lshlrev_b32 v7, 4, v4")
    a(f"buffer_load_dwordx4 v[{WXA}:{WXA+3}], v7, s[{SWS}:{SWS+3}], s{t0} offen")
    a(f"buffer_load_dwordx4 v[{WXA+4}:{WXA+7}], v7, s[{SWS}:{SWS+3}], s{t0} offen offset:32")
    a("s_waitcnt vmcnt(12)")
    a("s_branch L2_pw3")
    a.label("L2_nob3")
    a("s_waitcnt vmcnt(6)")
    a.label("L2_pw3")
    a(f"s_mov_b32 s{S_FIRST}, 0")
    for x in a_reads(1): a(x)
    a("s_nop 7")
    a.stamp(9)
    if "cyc" in EXP: a.cstamp(2)
    a.label("L2_loop")
    OOL.clear()
    for u in range(4): iteration(a, u)
    a(f"v_add_u32 v{vA2}, {4*TILE}, v{vA2}")
    a(f"v_add_u32 v{vB0}, {4*TILE}, v{vB0}")
    a(f"v_add_u32 v{vB1}, {4*TILE}, v{vB1}")
    a(f"v_add_u32 v{vSR}, 512, v{vSR}")
    a(f"s_add_u32 s{S_WPH}, s{S_WPH}, 1")
    a(f"s_min_u32 s{S_WPH}, s{S_WPH}, 2")
    a("s_branch L2_loop")
    for lbl, fn in OOL:
        a.label(lbl); fn(a)
    a.label("L2_win_end")
    a("s_setprio 0")
    a("s_waitcnt lgkmcnt(0)")
    a(f"s_cmp_eq_u32 s{S_TG}, s{FB}")
    a("s_cbranch_scc0 L2_we_nf")
    a("s_nop 3")
    flush(a, Z[0])
    a.label("L2_we_nf")
    for m in seg_mfmas(): a(m)
    a(f"s_add_u32 s{S_TG0}, s{S_TG0}, s{S_N}")
    a(f"s_cmp_ge_u32 s{S_TG0}, s{S_NT}")
    a("s_cbranch_scc1 L2_final")
    a("s_waitcnt vmcnt(0) lgkmcnt(0)")
    a("s_barrier")
    a(f"s_mov_b32 s{S_IB}, 0")
    zero_fill(a)
    rec_consts(a)
    rec_loads(a, "L2_ld2")
    a("s_branch L2_round_bar")

    a.label("L2_final")
    if "df" in EXP: a("s_sleep 64")
    if "df2" in EXP: a("s_sleep 64"); a("s_sleep 64")
    if "dv" in EXP:
        for k in range(512): a(f"v_exp_f32 v{48+k%8}, v{56+k%8}")
    a.stamp(10)
    if "cyc" in EXP:
        a.cstamp(3)
        a(f"s_mov_b32 s92, s{S_NT}")
    RQ, HQ, O, BR = 88, 120, 16, 40
    SP, SPO = R4, R5
    srd(a, SH, P_H, 0, MAT_BYTES)
    srd(a, SO, P_OUT, 0, MAT_BYTES)
    srd(a, SP, P_POS, 0, 60000)
    srd(a, SPO, P_OUT, MAT_BYTES, 60000)
    sR, sN, sTmp, sP = T[4], T[5], T[6], T[7]
    a("v_and_b32 v3, 15, v1")
    a("v_lshrrev_b32 v4, 4, v1")
    a("v_lshrrev_b32 v5, 3, v3")
    a("v_lshlrev_b32 v5, 12, v5")
    a("v_and_b32 v6, 7, v3")
    a("v_lshl_add_u32 v5, v6, 4, v5")
    a("v_lshl_add_u32 v5, v4, 7, v5")
    a(f"s_lshl_b32 s{t0}, s{W}, 9")
    a(f"v_add_u32 v5, s{t0}, v5")
    a(f"s_lshl_b32 s{sR}, s{S_G5}, 12")
    a(f"s_add_u32 s{sR}, s{sR}, {WS_R}")
    a("v_lshlrev_b32 v6, 9, v3")
    a("v_lshl_add_u32 v6, v4, 4, v6")
    a(f"s_lshl_b32 s{t0}, s{W}, 6")
    a(f"v_add_u32 v6, s{t0}, v6")
    a(f"s_mul_i32 s{sN}, s2, 20480")
    for nb in range(3):
        a(f"buffer_load_dwordx4 v[{RQ+4*nb}:{RQ+4*nb+3}], v5, s[{SWS}:{SWS+3}], s{sR} offen")
        a(f"s_add_u32 s{sR}, s{sR}, 8192")
    for nb in range(3):
        a(f"s_add_u32 s{sTmp}, s{sN}, {nb*8192}")
        a(f"buffer_load_dwordx4 v[{HQ+4*nb}:{HQ+4*nb+3}], v6, s[{SH}:{SH+3}], s{sTmp} offen")
    a("v_lshlrev_b32 v7, 2, v1")
    a(f"s_mul_i32 s{sP}, s2, 240")
    a(f"buffer_load_dword v8, v7, s[{SP}:{SP+3}], s{sP} offen")
    flush(a, Z[1])
    a(f"v_mul_u32_u24 v9, {S_ROW}, v3")
    a("v_lshl_add_u32 v9, v4, 4, v9")
    a(f"v_add_u32 v9, {L_S}, v9")
    a("s_waitcnt lgkmcnt(0)")
    a("s_barrier")
    a.lds = []
    seq = [(nb, ks) for nb in range(3) for ks in range(8)]
    def bread(i):
        nb, ks = seq[i]; q = BR + 4 * (i % 6)
        a.ds(f"ds_read_b128 v[{q}:{q+3}], v9 offset:{nb*16*S_ROW + ks*64}", ("B", i))
    X, EE = 64, 72
    sM16, sLN2 = T[8], T[9]
    a(f"s_mov_b32 s{sM16}, 0xffff0000")
    a(f"s_mov_b32 s{sLN2}, {NLN2:#x}")
    def epilogue(nb):
        o = O + 8 * nb
        ops = []
        if nb == 2:
            ops += ["s_mov_b32 exec_lo, 0x00ff00ff", "s_mov_b32 exec_hi, 0x00ff00ff"]
        for i in range(4):
            ops.append(f"v_lshlrev_b32 v{X+2*i}, 16, v{RQ+4*nb+i}")
            ops.append(f"v_and_b32 v{X+2*i+1}, s{sM16}, v{RQ+4*nb+i}")
        for k in range(8): ops.append(f"v_add_f32 v{X+k}, v{X+k}, v{o+k}")
        for k in range(8): ops.append(f"v_exp_f32 v{EE+k}, v{X+k}")
        for k in range(8): ops.append(f"v_add_f32 v{EE+k}, 1.0, v{EE+k}")
        for k in range(8): ops.append(f"v_rcp_f32 v{EE+k}, v{EE+k}")
        for i in range(4):
            ops.append(f"v_lshlrev_b32 v{o+2*i}, 16, v{HQ+4*nb+i}")
            ops.append(f"v_and_b32 v{o+2*i+1}, s{sM16}, v{HQ+4*nb+i}")
        for k in range(8): ops.append(f"v_mul_f32 v{X+k}, v{X+k}, v{EE+k}")
        for k in range(8): ops.append(f"v_fma_f32 v{X+k}, v{X+k}, s{sLN2}, v{o+k}")
        d = 100 + 4 * nb
        for i in range(4): ops.append(f"v_cvt_pk_bf16_f32 v{d+i}, v{X+2*i}, v{X+2*i+1}")
        ops.append(f"s_add_u32 s{sTmp}, s{sN}, {nb*8192}")
        ops.append(f"buffer_store_dwordx4 v[{d}:{d+3}], v6, s[{SO}:{SO+3}], s{sTmp} offen{OST()}")
        return ops
    for i in range(5): bread(i)
    pend = []
    for i, (nb, ks) in enumerate(seq):
        q = BR + 4 * (i % 6)
        if ks == 3 and nb > 0:
            if nb == 1: a("s_waitcnt vmcnt(0)")
            pend = epilogue(nb - 1)
        a.wait_lds(("B", i))
        for cb in range(2):
            o = O + 8 * nb + 4 * cb; w = WH + 4 * (cb * 8 + ks)
            c = "0" if ks == 0 else f"v[{o}:{o+3}]"
            a(f"v_mfma_f32_16x16x32_bf16 v[{o}:{o+3}], v[{w}:{w+3}], v[{q}:{q+3}], {c}")
        if i + 5 < len(seq): bread(i + 5)
        left = 7 - ks if ks >= 3 else None
        if pend:
            k = -(-len(pend) // (8 - ks + 2))
            for op in pend[:k]: a(op)
            pend = pend[k:]
        if ks == 2:
            for op in pend: a(op)
            pend = []
    for op in pend: a(op)
    a.stamp(11)
    a("s_nop 7")
    for op in epilogue(2): a(op)
    a("s_mov_b64 exec, -1")
    a(f"s_cmp_lg_u32 s{W}, 0")
    a("s_cbranch_scc1 L2_done")
    a("s_mov_b32 exec_hi, 0x0fffffff")
    for k in range(2):
        a(f"v_lshlrev_b32 v10, 1, v1")
        if k: a("v_add_u32 v10, 1, v10")
        a("v_mul_u32_u24 v11, 171, v10")
        a("v_lshrrev_b32 v11, 9, v11")
        a("v_mul_u32_u24 v12, 3, v11")
        a("v_sub_u32 v12, v10, v12")
        a("v_lshrrev_b32 v13, 3, v11")
        a("v_lshlrev_b32 v13, 5, v13")
        a("v_lshl_add_u32 v13, v12, 3, v13")
        a("v_and_b32 v11, 7, v11")
        a("v_add3_u32 v13, v13, v11, 8")
        a("v_lshlrev_b32 v13, 2, v13")
        a(f"v_add_u32 v13, {L_T}, v13")
        a(f"ds_read_b32 v{14+k}, v13")
    a("v_lshlrev_b32 v10, 16, v8")
    a(f"v_and_b32 v11, s{sM16}, v8")
    a("s_waitcnt lgkmcnt(0)")
    a(f"v_fma_f32 v10, v14, s{sLN2}, v10")
    a(f"v_fma_f32 v11, v15, s{sLN2}, v11")
    a("v_cvt_pk_bf16_f32 v10, v10, v11")
    a(f"buffer_store_dword v10, v7, s[{SPO}:{SPO+3}], s{sP} offen")
    a.label("L2_done")
    if a.diag:
        a("s_waitcnt vmcnt(0)")
        a("s_memrealtime s[100:101]")
        a("s_waitcnt lgkmcnt(0)")
        a("s_mov_b32 s89, s100")
        a.dump_stamps(P_WS, WS_DIAG, W)
```

```python
from asmlib import *
from common import *
import p1

EXP = set()
CAP = 27
TILE = 2560
L_SRC = CAP * TILE
L_STAGE = L_SRC + 32 * 128
L_S = L_STAGE + 65536
S_ROW = 544
L_T = L_S + 40 * S_ROW
L_REL = L_T + 640
L_NG = L_REL + 1280
L_TB = L_NG + 32
W = S_WAVE
NRW = 7

SWS, SQ, SH, SO, STAB, SDBG = R0, R1, R2, R3, R4, R5
S_T, S_N, S_TG0, S_NT, S_WIN, S_TG = 64, 65, 66, 67, 68, 69
ZB, FB = 70, 75
S_STG, S_G5, S_IB, S_FIRST, S_WPH, S_M8 = 80, 81, 82, 83, 84, 86
S_RA, S_RB = 26, 27
S_HALF, S_HF = 85, 68
S_MK = 56
t0, t1, t2, t3 = T[0], T[1], T[2], T[3]

Z = (16, 32); E = 48; ACC = 64; M = 80; A0 = 88; A1 = 92; A2 = 96; BP = 100
I0 = 200; I1 = 204; B2 = 116; B2Q = 120; WXA = 108; WH = 136
ONE2 = 208; SR = 210; DV = 212
vA0, vA1, vA2, vB0, vB1, vSR, vLC, vS, vT = 214, 215, 216, 217, 218, 219, 220, 221, 222
vOS, vSL = 223, 224
vOS1, vSL1 = 12, 13
cA2, cB0, cB1 = 225, 226, 227
FL = 228
ZQ = 236
cSR = 240
NV = 241
QQ = 244
GA = (4, 8, 12)

def zero_fill(a):
    for k in range(4): a(f"v_mov_b32 v{36+k}, 0")
    a("v_lshlrev_b32 v40, 4, v0")
    a("v_add_u32 v41, 0x10000, v40")
    for k in range(8): a(f"ds_write_b128 v40, v[36:39] offset:{k*8192}")
    a("ds_write_b128 v41, v[36:39]")

def fill_tables(a):
    zero_fill(a)
    a(f"s_cmp_eq_u32 s{W}, 0")
    a("s_cbranch_scc0 1f")
    a(f"v_add_u32 v41, {L_T}, v40")
    a("s_mov_b32 exec_lo, -1")
    a("s_mov_b32 exec_hi, 0xff")
    a("ds_write_b128 v41, v[36:39]")
    a("s_mov_b64 exec, -1")
    a.label("1")

def mf32(d, x, y, c): return f"v_mfma_f32_32x32x16_bf16 v[{d}:{d+15}], v[{x}:{x+3}], v[{y}:{y+3}], {c}"
def z_mfmas(zn):
    return [mf32(zn, A0, I0, "0"), mf32(zn, A1, I1, f"v[{zn}:{zn+15}]"), mf32(zn, A2, B2, f"v[{zn}:{zn+15}]")]

def dma(a, slot):
    a(f"v_add_u32 v{DV}, v{SR}, v{vLC}")
    a(f"v_add_u32 v{DV+1}, v{SR+1}, v{vLC}")
    a(f"s_add_u32 m0, s{S_STG}, {slot*2048}")
    a("s_nop 0")
    a(f"buffer_load_dwordx4 v{DV}, s[{SQ}:{SQ+3}], 0 offen lds")
    a(f"s_add_u32 m0, s{S_STG}, {slot*2048+1024}")
    a("s_nop 0")
    a(f"buffer_load_dwordx4 v{DV+1}, s[{SQ}:{SQ+3}], 0 offen lds")

def shift_q(a, base):
    for k in range(4): a(f"s_mov_b32 s{base+k}, s{base+k+1}")

def flush(a, tmp):
    for q in range(8): a(f"v_cvt_pk_bf16_f32 v{FL+q}, v{ACC+2*q}, v{ACC+2*q+1}")
    a(f"s_mov_b64 exec, s[{S_M8}:{S_M8+1}]")
    a(f"ds_write_b128 v{vS}, v[{FL}:{FL+3}]")
    a(f"ds_write_b128 v{vS}, v[{FL+4}:{FL+7}] offset:16")
    a("s_mov_b64 exec, -1")
    a(mf32(tmp, WXA, FL, "0"))
    a(mf32(tmp, WXA + 4, FL + 4, f"v[{tmp}:{tmp+15}]"))
    a(mf32(ACC, ZQ, ZQ, "0"))
    a(f"v_add_u32 v{vS}, {8*S_ROW}, v{vS}")
    shift_q(a, FB)
    a("s_nop 6")
    a("s_mov_b32 exec_hi, 0")
    a(f"ds_add_f32 v{vT}, v{tmp}")
    a("s_mov_b64 exec, -1")
    a(f"v_add_u32 v{vT}, 128, v{vT}")

def rotate_b2(a):
    if "oldrot" in EXP:
        for q in range(4): a(f"v_mov_b32 v{B2+q}, v{B2Q+q}")
        for q in range(12): a(f"v_mov_b32 v{B2Q+q}, v{B2Q+4+q}")
        return
    for q in range(0, 4, 2): a(f"v_pk_mov_b32 v[{B2+q}:{B2+q+1}], v[{B2Q+q}:{B2Q+q+1}], v[{B2Q+q}:{B2Q+q+1}] op_sel:[0,1]")
    for q in range(0, 12, 2): a(f"v_pk_mov_b32 v[{B2Q+q}:{B2Q+q+1}], v[{B2Q+4+q}:{B2Q+4+q+1}], v[{B2Q+4+q}:{B2Q+4+q+1}] op_sel:[0,1]")

def rec_consts(a):
    a("v_lshrrev_b32 v44, 4, v1")
    a(f"s_lshl_b32 s{t0}, s{W}, 2")
    a(f"v_add_u32 v44, s{t0}, v44")
    a(f"s_mov_b32 s{t0}, {CH_STRIDE*16}")
    a(f"v_mul_lo_u32 v42, s{t0}, v44")
    a(f"s_movk_i32 s{t0}, {CH_STRIDE*4}")
    a(f"v_mul_lo_u32 v43, s{t0}, v44")
    a("v_lshlrev_b32 v40, 2, v44")
    a("v_and_b32 v41, 15, v1")

OSL = ((vOS, vSL), (vOS1, vSL1))

def rec_loads(a, lbl):
    for it in range(4):
        p, r = it >> 1, it & 1
        os_, sl_ = OSL[r]
        a(f"v_add_u32 v36, s{S_IB}, v41")
        if p: a("v_add_u32 v36, 16, v36")
        a(f"v_cmp_lt_u32 s[{S_MK+2*it}:{S_MK+2*it+1}], v36, v{sl_}")
        a(f"v_add_u32 v36, v36, v{os_}")
        a(f"v_lshl_add_u32 v37, v36, 4, v42")
        a(f"v_lshl_add_u32 v38, v36, 2, v43")
        a(f"s_mov_b32 s{S_RA}, {WS_RECA + r*32*CH_STRIDE*16}")
        a(f"s_mov_b32 s{S_RB}, {WS_RECB + r*32*CH_STRIDE*4}")
        a(f"s_mov_b64 exec, s[{S_MK+2*it}:{S_MK+2*it+1}]")
        a(f"s_cbranch_execz {lbl}_{it}")
        a(f"buffer_load_dwordx4 v[{16+4*it}:{19+4*it}], v37, s[{SWS}:{SWS+3}], s{S_RA} offen sc1")
        a(f"buffer_load_dword v{32+it}, v38, s[{SWS}:{SWS+3}], s{S_RB} offen sc1")
        a.label(f"{lbl}_{it}")
        a("s_mov_b64 exec, -1")

def build_recs(a, lbl):
    a("s_waitcnt vmcnt(0)")
    if "chain" in EXP and lbl == "L2_b0": a.stamp(0)
    a("v_mov_b32 v58, 0x3f80")
    for it in range(4):
        RB = 32 + it
        r = it & 1
        a(f"s_mov_b64 exec, s[{S_MK+2*it}:{S_MK+2*it+1}]")
        a(f"s_cbranch_execz {lbl}_a{it}")
        a(f"v_lshrrev_b32 v44, 17, v{RB}")
        a(f"v_subrev_u32 v44, s{S_G5}, v44")
        a(f"v_lshl_add_u32 v45, v44, 8, v40")
        a(f"v_add_u32 v45, {L_REL + 128*r}, v45")
        a(f"ds_read_b32 v{2+2*it}, v45")
        a(f"v_lshl_add_u32 v47, v44, 2, v59")
        a(f"ds_read_b32 v{3+2*it}, v47")
        a.label(f"{lbl}_a{it}")
    a("s_mov_b64 exec, -1")
    a(f"s_lshl_b32 s{t1}, s{S_TG0}, 5")
    a(f"s_sub_u32 s{t0}, s{S_IB}, s{t1}")
    a(f"v_add_u32 v49, s{t0}, v41")
    a(f"s_movk_i32 s{t1}, {CAP*32}")
    a("s_waitcnt lgkmcnt(0)")
    for it in range(4):
        RA, RB = 16 + 4 * it, 32 + it
        p, r = it >> 1, it & 1
        a(f"s_mov_b64 exec, s[{S_MK+2*it}:{S_MK+2*it+1}]")
        a(f"s_cbranch_execz {lbl}_{it}")
        a(f"v_add3_u32 v44, v49, v{2+2*it}, v{3+2*it}")
        a(f"v_add_u32 v44, v44, v{OSL[r][0]}")
        if p: a("v_add_u32 v44, 16, v44")
        a(f"v_and_b32 v50, 0x3fff, v{RB}")
        a(f"v_cmp_gt_u32 vcc, s{t1}, v44")
        a("v_lshlrev_b32 v50, 9, v50")
        a("v_add_u32 v50, 512, v50")
        a("s_and_b64 exec, exec, vcc")
        a(f"s_cbranch_execz {lbl}_{it}")
        a("v_lshlrev_b32 v51, 2, v44")
        a(f"v_add_u32 v51, {L_SRC}, v51")
        a("ds_write_b32 v51, v50")
        a("v_lshrrev_b32 v52, 5, v44")
        a(f"v_mul_u32_u24 v52, {TILE}, v52")
        a("v_and_b32 v53, 31, v44")
        a("v_lshl_add_u32 v55, v53, 4, v52")
        a(f"ds_write_b128 v55, v[{RA}:{RA+3}] offset:2048")
        a(f"v_bfe_u32 v54, v{RB}, 14, 3")
        a("v_lshl_add_u32 v52, v53, 6, v52")
        a("v_lshl_add_u32 v52, v54, 1, v52")
        a("v_bfe_u32 v53, v53, 2, 2")
        a("v_lshl_add_u32 v54, v53, 4, v52")
        a("ds_write_b16 v54, v58")
        a("v_xor_b32 v55, 1, v53")
        a("v_lshl_add_u32 v55, v55, 4, v52")
        a(f"ds_write_b16_d16_hi v55, v{RA+2}")
        a("v_xor_b32 v56, 2, v53")
        a("v_lshl_add_u32 v56, v56, 4, v52")
        a(f"ds_write_b16 v56, v{RA+3}")
        a("v_xor_b32 v57, 3, v53")
        a("v_lshl_add_u32 v57, v57, 4, v52")
        a(f"ds_write_b16_d16_hi v57, v{RA+3}")
        a.label(f"{lbl}_{it}")
    a("s_mov_b64 exec, -1")

def poll(a, lbl, srdreg, voff, want, sleep):
    a(f"s_mov_b32 s{t1}, 0x8000")
    a("s_mov_b32 exec_lo, 1")
    a("s_mov_b32 exec_hi, 0")
    a.label(lbl)
    a(f"buffer_load_dword v10, v{voff}, s[{srdreg}:{srdreg+3}], 0 offen sc1")
    a("s_waitcnt vmcnt(0)")
    a(f"v_readfirstlane_b32 s{t0}, v10")
    a(f"s_and_b32 s{t0}, s{t0}, {want:#x}")
    a(f"s_cmp_eq_u32 s{t0}, {want:#x}")
    a(f"s_cbranch_scc1 {lbl}_ok")
    a(f"s_sub_u32 s{t1}, s{t1}, 1")
    a(f"s_cmp_eq_u32 s{t1}, 0")
    a(f"s_cbranch_scc1 {lbl}_ok")
    a(f"s_sleep {sleep}")
    a(f"s_branch {lbl}")
    a.label(f"{lbl}_ok")
    a("s_mov_b64 exec, -1")

def mailbox(a, word):
    srd(a, R4, P_WS, WS_MBX, 2048)
    a(f"s_and_b32 s{t2}, s2, 15")
    a(f"s_lshl_b32 s{t2}, s{t2}, 7")
    a(f"s_add_u32 s{t2}, s{t2}, {4*word}")
    a(f"v_mov_b32 v8, s{t2}")

def a_reads(u1):
    sl = u1 % 4
    return [f"ds_read_b128 v[{A0}:{A0+3}], v{vA0} offset:{sl*2048}",
            f"ds_read_b128 v[{A1}:{A1+3}], v{vA1} offset:{sl*2048}",
            f"ds_read_b128 v[{A2}:{A2+3}], v{vA2} offset:{u1*TILE}"]
def bp_reads(u):
    return [f"ds_read_b64_tr_b16 v[{BP}:{BP+1}], v{vB0} offset:{u*TILE}",
            f"ds_read_b64_tr_b16 v[{BP+2}:{BP+3}], v{vB1} offset:{u*TILE}",
            f"ds_read_b64_tr_b16 v[{BP+4}:{BP+5}], v{vB0} offset:{u*TILE+1024}",
            f"ds_read_b64_tr_b16 v[{BP+6}:{BP+7}], v{vB1} offset:{u*TILE+1024}"]
def seg_mfmas():
    return [mf32(ACC, M, BP, f"v[{ACC}:{ACC+15}]"), mf32(ACC, M + 4, BP + 4, f"v[{ACC}:{ACC+15}]")]

OOL = []
def OST():
    return " sc1" if "osc1" in EXP else " nt" if "ont" in EXP else " sc0 sc1" if "osc01" in EXP else ""

def first_pass_wait(a, lbl):
    a(f"s_cmp_eq_u32 s{S_WPH}, 0")
    a(f"s_cbranch_scc0 {lbl}")
    a("s_waitcnt vmcnt(0)")
    a.label(lbl)

def iteration(a, u):
    zc, zn = Z[u & 1], Z[(u + 1) & 1]
    sl = (u + 1) % 4
    a(f"s_setprio {3-u}")
    a("s_waitcnt lgkmcnt(0)")
    a(f"s_cmp_eq_u32 s{S_TG}, s{FB}")
    a(f"s_cbranch_scc1 L2_fl_{u}")
    a.label(f"L2_fl_{u}_r")
    OOL.append((f"L2_fl_{u}", lambda a, zn=zn, u=u: (first_pass_wait(a, f"L2_flw_{u}"), flush(a, zn), a(f"s_branch L2_fl_{u}_r"))))
    a(f"s_cmp_eq_u32 s{S_TG}, s{ZB}")
    a(f"s_cbranch_scc1 L2_rt_{u}")
    a.label(f"L2_rt_{u}_r")
    def rt(a, u=u):
        first_pass_wait(a, f"L2_rtw_{u}")
        rotate_b2(a); shift_q(a, ZB)
        a(f"s_and_b32 s{S_HALF}, s{S_HF}, 1")
        a(f"s_lshr_b32 s{S_HF}, s{S_HF}, 1")
        a(f"s_cmp_eq_u32 s{S_HALF}, 1")
        a(f"s_cbranch_scc0 L2_rt_{u}_r")
        a(f"s_branch L2_ha_{u}")
    OOL.append((f"L2_rt_{u}", rt))
    zm = z_mfmas(zn); sm = seg_mfmas(); bp = bp_reads(u); ar = a_reads(u + 2)
    def run(a, op, regs, att):
        for i, k in enumerate(regs):
            a(f"{op} v{E+k}, v{(zc if op == 'v_exp_f32' else E)+k}")
            for x in att.get(i, []): a(x)
    def pk(a, op, lo, n=8):
        for k in range(lo, lo + n, 2):
            other = f"v[{ONE2}:{ONE2+1}]" if op == "v_pk_add_f32" else f"v[{zc+k}:{zc+k+1}]"
            a(f"{op} v[{E+k}:{E+k+1}], v[{E+k}:{E+k+1}], {other}")
    def cvt(a, lo, n=8):
        for k in range(lo, lo + n, 2): a(f"v_cvt_pk_bf16_f32 v{M+k//2}, v{E+k}, v{E+k+1}")
    def parts(a, x):
        dv0 = [f"v_add_u32 v{DV}, v{SR}, v{vLC}", f"s_add_u32 m0, s{S_STG}, {sl*2048}"]
        dm0 = [f"v_add_u32 v{DV+1}, v{SR+1}, v{vLC}", f"buffer_load_dwordx4 v{DV}, s[{SQ}:{SQ+3}], 0 offen lds"]
        m1 = [f"s_add_u32 m0, s{S_STG}, {sl*2048+1024}"]
        dm1 = [f"buffer_load_dwordx4 v{DV+1}, s[{SQ}:{SQ+3}], 0 offen lds"]
        wlc = [f"s_cmp_eq_u32 s{S_WPH}, 0", f"s_cbranch_scc1 L2_wl{x}_{u}", f"L2_wl{x}_{u}_r:"]
        cnt = [f"s_add_u32 s{S_T}, s{S_T}, 1", f"s_add_u32 s{S_TG}, s{S_TG}, 1"]
        wvc = [f"s_cmp_lt_u32 s{S_WPH}, 2", f"s_cbranch_scc1 L2_wv{x}_{u}", "s_waitcnt vmcnt(6)", f"L2_wv{x}_{u}_r:"]
        srr = [f"ds_read2_b32 v[{SR}:{SR+1}], v{vSR} offset0:{u*32} offset1:{u*32+16}"]
        def wl(a, u=u):
            a("v_lshlrev_b32 v5, 4, v1")
            a(f"s_lshl_b32 s{t0}, s{W}, 14")
            a(f"s_add_u32 s{t0}, s{t0}, {WS_WHP + u*4096}")
            for q in range(4 * u, 4 * u + 4):
                a(f"buffer_load_dwordx4 v[{WH+4*q}:{WH+4*q+3}], v5, s[{SWS}:{SWS+3}], s{t0} offen offset:{(q%4)*1024}")
            a(f"s_branch L2_wl{x}_{u}_r")
        OOL.append((f"L2_wl{x}_{u}", wl))
        def wv(a, u=u):
            a(f"s_cmp_eq_u32 s{S_WPH}, 0")
            a(f"s_cbranch_scc1 L2_wv{x}_{u}_0")
            a(f"s_waitcnt vmcnt({(18, 14, 10, 6)[u]})")
            a(f"s_branch L2_wv{x}_{u}_r")
            a.label(f"L2_wv{x}_{u}_0")
            a(f"s_waitcnt vmcnt({(16, 20, 24, 22)[u]})")
            a(f"s_branch L2_wv{x}_{u}_r")
        OOL.append((f"L2_wv{x}_{u}", wv))
        return dv0, dm0, m1, dm1, wlc, cnt, wvc, srr
    def first_half(a, n, x):
        dv0, dm0, m1, dm1, wlc, cnt, wvc, srr = parts(a, x)
        if n == 8:
            ae = {0: [sm[0]], 1: dv0, 2: dm0, 3: [bp[0], bp[1]], 4: [zm[0]], 5: m1, 6: dm1, 7: wlc}
            ar_ = {0: [zm[1]], 1: cnt, 4: [zm[2]], 5: wvc + [ar[0]], 6: [ar[1], ar[2]], 7: srr}
        else:
            ae = {0: [sm[0]] + dv0, 1: dm0 + [bp[0], bp[1]], 2: [zm[0]] + m1, 3: dm1 + wlc}
            ar_ = {0: [zm[1]] + cnt, 2: [zm[2]], 3: wvc + [ar[0], ar[1], ar[2]] + srr}
        run(a, "v_exp_f32", range(0, n), ae)
        pk(a, "v_pk_add_f32", 0, n)
        run(a, "v_rcp_f32", range(0, n), ar_)
        pk(a, "v_pk_mul_f32", 0, n)
        cvt(a, 0, n)
    def hf(a, u=u):
        a(sm[1]); a(f"s_mov_b32 s{S_HALF}, 0"); a(bp[2]); a(bp[3])
        a(f"s_branch L2_hf_{u}_r")
    OOL.append((f"L2_hf_{u}", hf))
    def ha(a, u=u):
        first_half(a, 8, "h")
        a(f"s_branch L2_hf_{u}")
    OOL.append((f"L2_ha_{u}", ha))
    dv0, dm0, m1, dm1, wlc, cnt, wvc, srr = parts(a, "")
    ae = {0: [sm[0]], 1: dv0, 2: dm0, 3: [bp[0], bp[1]], 5: m1, 6: dm1, 7: wlc}
    for pos, ops in ((GA[0], [sm[1]]), (GA[0] + 2, [bp[2], bp[3]]), (GA[1], [zm[0]]), (GA[2], [zm[1]])):
        ae[pos] = ae.get(pos, []) + ops
    run(a, "v_exp_f32", range(0, 16), ae)
    for x in cnt: a(x)
    a(mf32(E, QQ, QQ, f"v[{E}:{E+15}]"))
    for x in wvc + [ar[0], ar[1]] + srr: a(x)
    a("s_nop 0")
    a(zm[2]); a(ar[2])
    a("s_nop 2")
    run(a, "v_rcp_f32", range(0, 16), {})
    pk(a, "v_pk_mul_f32", 0, 16)
    cvt(a, 0, 16)
    a.label(f"L2_hf_{u}_r")
    a(f"s_cmp_eq_u32 s{S_T}, s{S_N}")
    a("s_cbranch_scc1 L2_win_end")

def constants_a(a, b=44, mk=52):
    a(f"v_and_b32 v{b+0}, 31, v1")
    a(f"v_lshrrev_b32 v{b+1}, 5, v1")
    a(f"v_mov_b32 v{ONE2}, 1.0")
    a(f"v_mov_b32 v{ONE2+1}, 1.0")
    for q in range(4): a(f"v_mov_b32 v{ZQ+q}, 0")
    a(f"s_mov_b32 s{S_M8}, 0xff")
    a(f"s_mov_b32 s{S_M8+1}, 0xff")
    a(f"v_lshlrev_b32 v{b+2}, 3, v{b+1}")
    a(f"v_sub_u32 v{b+2}, v{b+0}, v{b+2}")
    a(f"v_mov_b32 v{b+4}, 0x3f80")
    a(f"v_mov_b32 v{b+5}, 0x3f800000")
    a(f"v_and_b32 v{b+3}, 1, v{b+2}")
    a(f"v_cmp_eq_u32 vcc, 1, v{b+3}")
    a(f"v_lshrrev_b32 v{b+6}, 1, v{b+2}")
    a(f"v_add_u32 v{b+7}, -8, v{b+6}")
    a(f"v_cndmask_b32 v{b+3}, v{b+4}, v{b+5}, vcc")
    for I, r in ((I0, b + 6), (I1, b + 7)):
        for q0 in (0, 2):
            a(f"v_cmp_eq_u32 s[{mk}:{mk+1}], {q0}, v{r}")
            a(f"v_cmp_eq_u32 s[{mk+2}:{mk+3}], {q0+1}, v{r}")
            a("s_nop 0")
            a(f"v_cndmask_b32 v{I+q0}, 0, v{b+3}, s[{mk}:{mk+1}]")
            a(f"v_cndmask_b32 v{I+q0+1}, 0, v{b+3}, s[{mk+2}:{mk+3}]")

def constants_b(a, b=44):
    a(f"v_and_b32 v{b+0}, 31, v1")
    a(f"v_lshrrev_b32 v{b+1}, 5, v1")
    a(f"s_lshl_b32 s{S_STG}, s{W}, 13")
    a(f"s_add_u32 s{S_STG}, s{S_STG}, {L_STAGE}")
    a(f"v_bfe_u32 v{b+2}, v{b+0}, 2, 2")
    a(f"v_xor_b32 v{b+3}, v{b+1}, v{b+2}")
    a(f"v_lshlrev_b32 v{b+4}, 6, v{b+0}")
    a(f"v_add_u32 v{b+5}, s{S_STG}, v{b+4}")
    a(f"v_lshl_add_u32 v{vA0}, v{b+3}, 4, v{b+5}")
    a(f"v_xor_b32 v{b+3}, 2, v{b+3}")
    a(f"v_lshl_add_u32 v{vA1}, v{b+3}, 4, v{b+5}")
    a(f"v_lshlrev_b32 v{b+3}, 4, v{b+0}")
    a(f"v_add_u32 v{b+3}, 2048, v{b+3}")
    a(f"v_lshl_add_u32 v{b+4}, v{b+2}, 4, v{b+4}")
    a(f"v_cmp_eq_u32 vcc, 1, v{b+1}")
    a(f"v_bfe_u32 v{b+2}, v1, 2, 2")
    a(f"v_lshl_add_u32 v{b+2}, v{b+1}, 2, v{b+2}")
    a(f"v_cndmask_b32 v{cA2}, v{b+3}, v{b+4}, vcc")
    a(f"v_lshlrev_b32 v{b+2}, 6, v{b+2}")
    a(f"v_and_b32 v{b+3}, 1, v1")
    a(f"v_lshl_add_u32 v{b+2}, v{b+3}, 3, v{b+2}")
    a(f"v_bfe_u32 v{b+3}, v1, 4, 1")
    a(f"v_lshlrev_b32 v{b+3}, 1, v{b+3}")
    a(f"v_bfe_u32 v{b+4}, v1, 1, 1")
    a(f"v_or_b32 v{b+3}, v{b+3}, v{b+4}")
    a(f"v_xor_b32 v{b+3}, v{b+3}, v{b+1}")
    a(f"v_lshl_add_u32 v{cB0}, v{b+3}, 4, v{b+2}")
    a(f"v_xor_b32 v{b+3}, 2, v{b+3}")
    a(f"v_lshl_add_u32 v{b+4}, v{b+3}, 4, v{b+2}")
    a(f"v_add_u32 v{cB1}, 512, v{b+4}")
    a(f"v_and_b32 v{b+2}, 3, v1")
    a(f"v_bfe_u32 v{b+3}, v1, 4, 2")
    a(f"v_xor_b32 v{b+2}, v{b+2}, v{b+3}")
    a(f"v_lshlrev_b32 v{b+2}, 4, v{b+2}")
    a(f"s_lshl_b32 s{t0}, s{W}, 6")
    a(f"s_sub_u32 s{t1}, s{t0}, 512")
    a(f"v_add_u32 v{vLC}, s{t1}, v{b+2}")
    a(f"v_and_b32 v{b+2}, 7, v1")
    a(f"v_mul_u32_u24 v{b+2}, {S_ROW}, v{b+2}")
    a(f"v_lshl_add_u32 v{b+2}, v{b+1}, 5, v{b+2}")
    a(f"s_add_u32 s{t0}, s{t0}, {L_S}")
    a(f"v_add_u32 v{vS}, s{t0}, v{b+2}")
    a(f"v_lshlrev_b32 v{b+2}, 2, v{b+0}")
    a(f"v_add_u32 v{vT}, {L_T}, v{b+2}")
    a(f"v_lshrrev_b32 v{b+2}, 2, v1")
    a(f"v_lshlrev_b32 v{b+2}, 2, v{b+2}")
    a(f"v_add_u32 v{cSR}, {L_SRC}, v{b+2}")

def phase2(a):
    def entry(a):
        a("v_and_b32 v1, 63, v0")
        a(f"s_cmp_eq_u32 s{W}, 0")
        a("s_cbranch_scc0 2f")
        p1.arrive_issue(a, f"s{p1.S_INC}")
        a.label("2")
        srd(a, SWS, P_WS, 0, WS_USED)
        a(f"s_mul_i32 s{S_G5}, s2, 5")
    def table_load(a):
        srd(a, STAB, P_WS, WS_TAB, NCH * TAB_STRIDE)
        a("v_lshlrev_b32 v2, 12, v1")
        a(f"s_lshl_b32 s{t0}, s2, 4")
        a(f"buffer_load_dwordx3 v[60:62], v2, s[{STAB}:{STAB+3}], s{t0} offen sc1")
    def t_zero(a):
        a(f"v_add_u32 v41, {L_T}, v40")
        a("s_mov_b32 exec_lo, -1")
        a("s_mov_b32 exec_hi, 0xff")
        a("ds_write_b128 v41, v[36:39]")
        a("s_mov_b64 exec, -1")
    a.label("L_phase2_fast")
    a.stamp(5)
    entry(a)
    table_load(a)
    a(f"s_cmp_eq_u32 s{W}, 0")
    a("s_cbranch_scc0 L2_tab")
    p1.arrive_finish(a, f"s{p1.S_INC}", "f")
    a("s_branch L2_tab")
    a.label("L_phase2")
    a.stamp(5)
    entry(a)
    a(f"s_cmp_eq_u32 s{W}, 0")
    a("s_cbranch_scc0 L2_w1")
    p1.arrive_finish(a, f"s{p1.S_INC}", "a")
    a("s_and_b32 s52, s85, 1")
    a("s_cmp_eq_u32 s52, 1")
    a("s_cbranch_scc1 L2_inited")
    srd(a, SDBG, P_DBG, 0, 256)
    a("v_mov_b32 v8, 0")
    poll(a, "L2_poll0", SDBG, 8, 1, 16)
    a("s_mov_b32 s85, 0")
    a.label("L2_inited")
    a("s_and_b32 s52, s85, 0xffff")
    a(f"s_cmp_eq_u32 s52, {K1:#x}")
    a("s_cbranch_scc1 L2_w1")
    mailbox(a, 0)
    poll(a, "L2_poll1", R4, 8, 1, 2)
    a.label("L2_w1")
    a("s_barrier")
    table_load(a)
    a.label("L2_tab")
    a.stamp(6)
    a(f"s_mov_b32 s{S_IB}, 0")
    a(f"s_mov_b32 s{S_TG0}, 0")
    a(f"s_mov_b32 s{S_FIRST}, 1")
    a(mf32(ACC, ZQ, ZQ, "0"))
    a("s_waitcnt vmcnt(0)")
    if "chain" in EXP: a.stamp(2)
    a(f"v_and_b32 v46, 0xffff, v60")
    a(f"v_lshrrev_b32 v47, 16, v62")
    a(f"v_sub_u32 v47, v47, v46")
    rec_consts(a)
    a("v_add_u32 v45, 128, v40")
    a(f"ds_bpermute_b32 v{vOS}, v40, v46")
    a(f"ds_bpermute_b32 v{vSL}, v40, v47")
    a(f"ds_bpermute_b32 v{vOS1}, v45, v46")
    a(f"ds_bpermute_b32 v{vSL1}, v45, v47")
    a("s_waitcnt lgkmcnt(0)")
    rec_loads(a, "L2_ld0")
    if "chain" in EXP: a.stamp(3)
    a(f"s_cmp_ge_u32 s{W}, 5")
    a("s_cbranch_scc1 L2_noscan")
    a(f"s_cmp_lt_u32 s{W}, 2")
    a("s_cbranch_scc1 L2_sel")
    a("v_mov_b32 v60, v61")
    a("v_mov_b32 v61, v62")
    a(f"s_cmp_lt_u32 s{W}, 4")
    a("s_cbranch_scc1 L2_sel")
    a("v_mov_b32 v60, v61")
    a.label("L2_sel")
    a(f"s_and_b32 s{t0}, s{W}, 1")
    a(f"s_lshl_b32 s{t0}, s{t0}, 4")
    a(f"v_alignbit_b32 v61, v61, v60, s{t0}")
    a("v_and_b32 v60, 0xffff, v61")
    a("v_lshrrev_b32 v61, 16, v61")
    a("v_sub_u32 v62, v61, v60")
    a("v_mov_b32 v63, v62")
    for sh in (1, 2, 4, 8):
        a("s_nop 1")
        a(f"v_add_u32_dpp v63, v63, v63 row_shr:{sh} row_mask:0xf bank_mask:0xf")
    a("s_nop 1")
    a("v_add_u32_dpp v63, v63, v63 row_bcast:15 row_mask:0xa bank_mask:0xf")
    a("s_nop 1")
    a("v_add_u32_dpp v63, v63, v63 row_bcast:31 row_mask:0xc bank_mask:0xf")
    a("v_sub_u32 v62, v63, v62")
    a("v_sub_u32 v62, v62, v60")
    a(f"s_lshl_b32 s{t0}, s{W}, 8")
    a(f"s_add_u32 s{t0}, s{t0}, {L_REL}")
    a("v_lshlrev_b32 v45, 2, v1")
    a(f"v_add_u32 v45, s{t0}, v45")
    a("ds_write_b32 v45, v62")
    a(f"s_lshl_b32 s{t0}, s{W}, 2")
    a(f"s_add_u32 s{t0}, s{t0}, {L_NG}")
    a(f"v_mov_b32 v45, s{t0}")
    a("s_mov_b32 exec_lo, 0")
    a("s_mov_b32 exec_hi, 0x80000000")
    a("ds_write_b32 v45, v63")
    a("s_mov_b64 exec, -1")
    a.label("L2_noscan")
    a.label("L2_round_bar")
    a("s_waitcnt lgkmcnt(0)")
    a("s_barrier")
    a.stamp(7)
    a(f"s_cmp_eq_u32 s{S_FIRST}, 0")
    a("s_cbranch_scc1 L2_have_tb")
    a("v_lshlrev_b32 v45, 2, v1")
    a(f"v_add_u32 v45, {L_NG}, v45")
    a("s_mov_b32 exec_lo, 0xff")
    a("s_mov_b32 exec_hi, 0")
    a("ds_read_b32 v46, v45")
    a("s_waitcnt lgkmcnt(0)")
    a("v_max_u32 v46, 1, v46")
    a("v_add_u32 v47, -1, v46")
    a("v_and_b32 v47, 31, v47")
    a("v_cmp_gt_u32 vcc, 16, v47")
    a("v_add_u32 v46, 31, v46")
    a("v_lshrrev_b32 v46, 5, v46")
    a(f"s_and_b32 s{S_HF}, vcc_lo, 0x1f")
    NTG = (T[0], T[1], T[2], T[3], 85)
    for g in range(5): a(f"v_readlane_b32 s{NTG[g]}, v46, {g}")
    a(f"s_mov_b32 s{ZB}, s{NTG[0]}")
    for g in range(1, 4): a(f"s_add_u32 s{ZB+g}, s{ZB+g-1}, s{NTG[g]}")
    a(f"s_add_u32 s{S_NT}, s{ZB+3}, s85")
    a(f"s_mov_b32 s{ZB+4}, s{S_NT}")
    a(f"s_mov_b32 s{S_HALF}, 0")
    a("v_mov_b32 v46, 0")
    for g in range(1, 5):
        a(f"s_lshl_b32 s{t0}, s{ZB+g-1}, 5")
        a(f"v_writelane_b32 v46, s{t0}, {g}")
    for k in range(4): a(f"s_add_u32 s{FB+k}, s{ZB+k}, 1")
    a(f"s_mov_b32 s{FB+4}, 0x7ffffff0")
    for k in range(5): a(f"s_sub_u32 s{ZB+k}, s{ZB+k}, 1")
    a(f"s_lshl_b32 s{t0}, s{W}, 5")
    a(f"s_add_u32 s{t0}, s{t0}, {L_TB}")
    a("v_lshlrev_b32 v45, 2, v1")
    a(f"v_add_u32 v45, s{t0}, v45")
    a("ds_write_b32 v45, v46")
    a("s_mov_b64 exec, -1")
    a.label("L2_have_tb")
    a(f"s_lshl_b32 s{t0}, s{W}, 5")
    a(f"s_add_u32 s{t0}, s{t0}, {L_TB}")
    a(f"v_mov_b32 v59, s{t0}")
    a("s_waitcnt lgkmcnt(0)")
    if "chain" in EXP: a.stamp(4)
    build_recs(a, "L2_b0")
    a.label("L2_more")
    a(f"s_add_u32 s{S_IB}, s{S_IB}, 32")
    a(f"v_cmp_lt_u32 vcc, s{S_IB}, v{vSL}")
    a(f"v_cmp_lt_u32 s[52:53], s{S_IB}, v{vSL1}")
    a("s_or_b64 vcc, vcc, s[52:53]")
    a("s_cbranch_vccz L2_built0")
    rec_loads(a, "L2_ld1")
    build_recs(a, "L2_b1")
    a("s_branch L2_more")
    a.label("L2_built0")
    if "chain" in EXP: a.stamp(11)
    a(f"s_cmp_eq_u32 s{W}, 7")
    a("s_cbranch_scc0 L2_built")
    a(f"s_cmp_eq_u32 s{S_FIRST}, 0")
    a("s_cbranch_scc1 L2_built")
    mailbox(a, 1)
    poll(a, "L2_poll2", R4, 8, 1, 2)
    a.label("L2_built")
    a("s_waitcnt vmcnt(0) lgkmcnt(0)")
    a("s_barrier")
    a.stamp(8)
    a("s_setprio 3")
    a(f"v_mov_b32 v{vSR}, v{cSR}")
    for k in range(4):
        a(f"ds_read2_b32 v[{E+2*k}:{E+2*k+1}], v{vSR} offset0:{k*32} offset1:{k*32+16}")
    a(f"ds_read2_b32 v[{SR}:{SR+1}], v{vSR} offset0:128 offset1:144")
    a(f"s_cmp_eq_u32 s{S_FIRST}, 0")
    a("s_cbranch_scc1 L2_nob2")
    srd(a, SQ, P_WS, WS_Q, MAT_BYTES)
    a("v_and_b32 v3, 31, v1")
    a("v_lshrrev_b32 v4, 5, v1")
    a(f"s_lshl_b32 s{t0}, s{W}, 9")
    a("v_lshlrev_b32 v5, 4, v3")
    a(f"v_add_u32 v5, s{t0}, v5")
    a(f"s_lshl_b32 s{t1}, s{S_G5}, 12")
    a(f"s_add_u32 s{t1}, s{t1}, {WS_P - WS_WX}")
    a(f"v_mul_lo_u32 v6, s{t1}, v4")
    a("v_add_u32 v5, v5, v6")
    a(f"v_add_u32 v5, {WS_WX}, v5")
    a("v_lshlrev_b32 v6, 12, v4")
    a(f"buffer_load_dwordx4 v[{B2}:{B2+3}], v5, s[{SWS}:{SWS+3}], 0 offen")
    a.label("L2_nob2")
    a("s_waitcnt lgkmcnt(1)")
    def dma_k(k):
        a(f"v_add_u32 v{E+k}, v{E+k}, v{vLC}")
        a(f"s_add_u32 m0, s{S_STG}, {k*1024}")
        a("s_nop 0")
        a(f"buffer_load_dwordx4 v{E+k}, s[{SQ}:{SQ+3}], 0 offen lds")
    for k in range(4): dma_k(k)
    a(f"s_sub_u32 s{S_N}, s{S_NT}, s{S_TG0}")
    a(f"s_min_u32 s{S_N}, s{S_N}, {CAP}")
    a(f"s_mov_b32 s{S_T}, 0")
    a(f"s_mov_b32 s{S_TG}, s{S_TG0}")
    a(f"v_mov_b32 v{vA2}, v{cA2}")
    a(f"v_mov_b32 v{vB0}, v{cB0}")
    a(f"v_mov_b32 v{vB1}, v{cB1}")
    for k in range(8): a(f"v_mov_b32 v{M+k}, 0")
    for k in range(4): a(f"v_mov_b32 v{QQ+k}, 0x3e803e80")
    for k in range(8): a(f"v_mov_b32 v{BP+k}, 0")
    a(f"s_cmp_eq_u32 s{S_FIRST}, 0")
    a(f"s_cselect_b32 s{S_WPH}, 2, 0")
    a("s_waitcnt vmcnt(2)")
    for x in a_reads(0): a(x)
    for k in range(4, 8): dma_k(k)
    a("s_waitcnt lgkmcnt(0)")
    dma(a, 0)
    for m in z_mfmas(Z[0]): a(m)
    a(f"ds_read2_b32 v[{SR}:{SR+1}], v{vSR} offset0:160 offset1:176")
    a(f"v_add_u32 v{vSR}, 768, v{vSR}")
    a(f"s_cmp_eq_u32 s{S_FIRST}, 0")
    a("s_cbranch_scc1 L2_nob3")
    for g in range(1, 5):
        d = B2Q + 4 * (g - 1)
        a("v_add_u32 v5, v5, v6")
        a(f"buffer_load_dwordx4 v[{d}:{d+3}], v5, s[{SWS}:{SWS+3}], 0 offen")
    a(f"s_lshl_b32 s{t0}, s{W}, 6")
    a(f"s_add_u32 s{t0}, s{t0}, {WS_WXP}")
    a("v_lshlrev_b32 v7, 4, v4")
    a(f"buffer_load_dwordx4 v[{WXA}:{WXA+3}], v7, s[{SWS}:{SWS+3}], s{t0} offen")
    a(f"buffer_load_dwordx4 v[{WXA+4}:{WXA+7}], v7, s[{SWS}:{SWS+3}], s{t0} offen offset:32")
    a("s_waitcnt vmcnt(12)")
    a("s_branch L2_pw3")
    a.label("L2_nob3")
    a("s_waitcnt vmcnt(6)")
    a.label("L2_pw3")
    a(f"s_mov_b32 s{S_FIRST}, 0")
    for x in a_reads(1): a(x)
    a("s_nop 7")
    a.stamp(9)
    if "cyc" in EXP: a.cstamp(2)
    a.label("L2_loop")
    OOL.clear()
    for u in range(4): iteration(a, u)
    a(f"v_add_u32 v{vA2}, {4*TILE}, v{vA2}")
    a(f"v_add_u32 v{vB0}, {4*TILE}, v{vB0}")
    a(f"v_add_u32 v{vB1}, {4*TILE}, v{vB1}")
    a(f"v_add_u32 v{vSR}, 512, v{vSR}")
    a(f"s_add_u32 s{S_WPH}, s{S_WPH}, 1")
    a(f"s_min_u32 s{S_WPH}, s{S_WPH}, 2")
    a("s_branch L2_loop")
    k = 0
    while k < len(OOL):
        lbl, fn = OOL[k]; k += 1
        a.label(lbl); fn(a)
    a.label("L2_win_end")
    a("s_setprio 0")
    a("s_waitcnt lgkmcnt(0)")
    a(f"s_cmp_eq_u32 s{S_TG}, s{FB}")
    a("s_cbranch_scc0 L2_we_nf")
    a("s_nop 3")
    flush(a, Z[0])
    a.label("L2_we_nf")
    for m in seg_mfmas(): a(m)
    a(f"s_add_u32 s{S_TG0}, s{S_TG0}, s{S_N}")
    a(f"s_cmp_ge_u32 s{S_TG0}, s{S_NT}")
    a("s_cbranch_scc1 L2_final")
    a("s_waitcnt vmcnt(0) lgkmcnt(0)")
    a("s_barrier")
    a(f"s_mov_b32 s{S_IB}, 0")
    zero_fill(a)
    rec_consts(a)
    rec_loads(a, "L2_ld2")
    a("s_branch L2_round_bar")

    a.label("L2_final")
    if "df" in EXP: a("s_sleep 64")
    if "df2" in EXP: a("s_sleep 64"); a("s_sleep 64")
    if "dv" in EXP:
        for k in range(512): a(f"v_exp_f32 v{48+k%8}, v{56+k%8}")
    a.stamp(10)
    if "cyc" in EXP:
        a.cstamp(3)
        a(f"s_mov_b32 s92, s{S_NT}")
    RQ, HQ, O, BR = 88, 120, 16, 40
    SP, SPO = R4, R5
    srd(a, SH, P_H, 0, MAT_BYTES)
    srd(a, SO, P_OUT, 0, MAT_BYTES)
    srd(a, SP, P_POS, 0, 60000)
    srd(a, SPO, P_OUT, MAT_BYTES, 60000)
    sR, sN, sTmp, sP = T[4], T[5], T[6], T[7]
    a("v_and_b32 v3, 15, v1")
    a("v_lshrrev_b32 v4, 4, v1")
    a("v_lshrrev_b32 v5, 3, v3")
    a("v_lshlrev_b32 v5, 12, v5")
    a("v_and_b32 v6, 7, v3")
    a("v_lshl_add_u32 v5, v6, 4, v5")
    a("v_lshl_add_u32 v5, v4, 7, v5")
    a(f"s_lshl_b32 s{t0}, s{W}, 9")
    a(f"v_add_u32 v5, s{t0}, v5")
    a(f"s_lshl_b32 s{sR}, s{S_G5}, 12")
    a(f"s_add_u32 s{sR}, s{sR}, {WS_R}")
    a("v_lshlrev_b32 v6, 9, v3")
    a("v_lshl_add_u32 v6, v4, 4, v6")
    a(f"s_lshl_b32 s{t0}, s{W}, 6")
    a(f"v_add_u32 v6, s{t0}, v6")
    a(f"s_mul_i32 s{sN}, s2, 20480")
    for nb in range(3):
        a(f"buffer_load_dwordx4 v[{RQ+4*nb}:{RQ+4*nb+3}], v5, s[{SWS}:{SWS+3}], s{sR} offen")
        a(f"s_add_u32 s{sR}, s{sR}, 8192")
    for nb in range(3):
        a(f"s_add_u32 s{sTmp}, s{sN}, {nb*8192}")
        a(f"buffer_load_dwordx4 v[{HQ+4*nb}:{HQ+4*nb+3}], v6, s[{SH}:{SH+3}], s{sTmp} offen")
    a("v_lshlrev_b32 v7, 2, v1")
    a(f"s_mul_i32 s{sP}, s2, 240")
    a(f"buffer_load_dword v8, v7, s[{SP}:{SP+3}], s{sP} offen")
    flush(a, Z[1])
    a(f"v_mul_u32_u24 v9, {S_ROW}, v3")
    a("v_lshl_add_u32 v9, v4, 4, v9")
    a(f"v_add_u32 v9, {L_S}, v9")
    a("s_waitcnt lgkmcnt(0)")
    a("s_barrier")
    a.lds = []
    seq = [(nb, ks) for nb in range(3) for ks in range(8)]
    def bread(i):
        nb, ks = seq[i]; q = BR + 4 * (i % 6)
        a.ds(f"ds_read_b128 v[{q}:{q+3}], v9 offset:{nb*16*S_ROW + ks*64}", ("B", i))
    X, EE = 64, 72
    sM16, sLN2 = T[8], T[9]
    a(f"s_mov_b32 s{sM16}, 0xffff0000")
    a(f"s_mov_b32 s{sLN2}, {NLN2:#x}")
    def epilogue(nb):
        o = O + 8 * nb
        ops = []
        if nb == 2:
            ops += ["s_mov_b32 exec_lo, 0x00ff00ff", "s_mov_b32 exec_hi, 0x00ff00ff"]
        for i in range(4):
            ops.append(f"v_lshlrev_b32 v{X+2*i}, 16, v{RQ+4*nb+i}")
            ops.append(f"v_and_b32 v{X+2*i+1}, s{sM16}, v{RQ+4*nb+i}")
        for k in range(8): ops.append(f"v_add_f32 v{X+k}, v{X+k}, v{o+k}")
        for k in range(8): ops.append(f"v_exp_f32 v{EE+k}, v{X+k}")
        for k in range(8): ops.append(f"v_add_f32 v{EE+k}, 1.0, v{EE+k}")
        for k in range(8): ops.append(f"v_rcp_f32 v{EE+k}, v{EE+k}")
        for i in range(4):
            ops.append(f"v_lshlrev_b32 v{o+2*i}, 16, v{HQ+4*nb+i}")
            ops.append(f"v_and_b32 v{o+2*i+1}, s{sM16}, v{HQ+4*nb+i}")
        for k in range(8): ops.append(f"v_mul_f32 v{X+k}, v{X+k}, v{EE+k}")
        for k in range(8): ops.append(f"v_fma_f32 v{X+k}, v{X+k}, s{sLN2}, v{o+k}")
        d = 100 + 4 * nb
        for i in range(4): ops.append(f"v_cvt_pk_bf16_f32 v{d+i}, v{X+2*i}, v{X+2*i+1}")
        ops.append(f"s_add_u32 s{sTmp}, s{sN}, {nb*8192}")
        ops.append(f"buffer_store_dwordx4 v[{d}:{d+3}], v6, s[{SO}:{SO+3}], s{sTmp} offen{OST()}")
        return ops
    for i in range(5): bread(i)
    pend = []
    for i, (nb, ks) in enumerate(seq):
        q = BR + 4 * (i % 6)
        if ks == 3 and nb > 0:
            if nb == 1: a("s_waitcnt vmcnt(0)")
            pend = epilogue(nb - 1)
        a.wait_lds(("B", i))
        for cb in range(2):
            o = O + 8 * nb + 4 * cb; w = WH + 4 * (cb * 8 + ks)
            c = "0" if ks == 0 else f"v[{o}:{o+3}]"
            a(f"v_mfma_f32_16x16x32_bf16 v[{o}:{o+3}], v[{w}:{w+3}], v[{q}:{q+3}], {c}")
        if i + 5 < len(seq): bread(i + 5)
        left = 7 - ks if ks >= 3 else None
        if pend:
            k = -(-len(pend) // (8 - ks + 2))
            for op in pend[:k]: a(op)
            pend = pend[k:]
        if ks == 2:
            for op in pend: a(op)
            pend = []
    for op in pend: a(op)
    a.stamp(11)
    a("s_nop 7")
    for op in epilogue(2): a(op)
    a("s_mov_b64 exec, -1")
    a(f"s_cmp_lg_u32 s{W}, 0")
    a("s_cbranch_scc1 L2_done")
    a("s_mov_b32 exec_hi, 0x0fffffff")
    for k in range(2):
        a(f"v_lshlrev_b32 v10, 1, v1")
        if k: a("v_add_u32 v10, 1, v10")
        a("v_mul_u32_u24 v11, 171, v10")
        a("v_lshrrev_b32 v11, 9, v11")
        a("v_mul_u32_u24 v12, 3, v11")
        a("v_sub_u32 v12, v10, v12")
        a("v_lshrrev_b32 v13, 3, v11")
        a("v_lshlrev_b32 v13, 5, v13")
        a("v_lshl_add_u32 v13, v12, 3, v13")
        a("v_and_b32 v11, 7, v11")
        a("v_add3_u32 v13, v13, v11, 8")
        a("v_lshlrev_b32 v13, 2, v13")
        a(f"v_add_u32 v13, {L_T}, v13")
        a(f"ds_read_b32 v{14+k}, v13")
    a("v_lshlrev_b32 v10, 16, v8")
    a(f"v_and_b32 v11, s{sM16}, v8")
    a("s_waitcnt lgkmcnt(0)")
    a(f"v_fma_f32 v10, v14, s{sLN2}, v10")
    a(f"v_fma_f32 v11, v15, s{sLN2}, v11")
    a("v_cvt_pk_bf16_f32 v10, v10, v11")
    a(f"buffer_store_dword v10, v7, s[{SPO}:{SPO+3}], s{sP} offen")
    a.label("L2_done")
    if a.diag:
        a("s_waitcnt vmcnt(0)")
        a("s_memrealtime s[100:101]")
        a("s_waitcnt lgkmcnt(0)")
        a("s_mov_b32 s89, s100")
        a.dump_stamps(P_WS, WS_DIAG, W)
```

```python
from asmlib import *
from common import *
import p1

EXP = set()
CAP = 27
TILE = 2560
L_SRC = CAP * TILE
L_STAGE = L_SRC + 32 * 128
L_S = L_STAGE + 65536
S_ROW = 544
L_T = L_S + 40 * S_ROW
L_REL = L_T + 640
L_NG = L_REL + 1280
L_TB = L_NG + 32
W = S_WAVE
NRW = 7

SWS, SQ, SH, SO, STAB, SDBG = R0, R1, R2, R3, R4, R5
S_T, S_N, S_TG0, S_NT, S_WIN, S_TG = 64, 65, 66, 67, 68, 69
ZB, FB = 70, 75
S_STG, S_G5, S_IB, S_FIRST, S_WPH, S_M8 = 80, 81, 82, 83, 84, 86
S_RA, S_RB = 26, 27
S_HALF, S_HF = 85, 68
S_MK = 56
t0, t1, t2, t3 = T[0], T[1], T[2], T[3]

Z = (16, 32); E = 48; ACC = 64; M = 80; A0 = 88; A1 = 92; A2 = 96; BP = 100
I0 = 200; I1 = 204; B2 = 116; B2Q = 120; WXA = 108; WH = 136
ONE2 = 208; SR = 210; DV = 212
vA0, vA1, vA2, vB0, vB1, vSR, vLC, vS, vT = 214, 215, 216, 217, 218, 219, 220, 221, 222
vOS, vSL = 223, 224
vOS1, vSL1 = 12, 13
cA2, cB0, cB1 = 225, 226, 227
FL = 228
ZQ = 236
cSR = 240
NV = 241
QQ = 244

def zero_fill(a):
    for k in range(4): a(f"v_mov_b32 v{36+k}, 0")
    a("v_lshlrev_b32 v40, 4, v0")
    a("v_add_u32 v41, 0x10000, v40")
    for k in range(8): a(f"ds_write_b128 v40, v[36:39] offset:{k*8192}")
    a("ds_write_b128 v41, v[36:39]")

def fill_tables(a):
    zero_fill(a)
    a(f"s_cmp_eq_u32 s{W}, 0")
    a("s_cbranch_scc0 1f")
    a(f"v_add_u32 v41, {L_T}, v40")
    a("s_mov_b32 exec_lo, -1")
    a("s_mov_b32 exec_hi, 0xff")
    a("ds_write_b128 v41, v[36:39]")
    a("s_mov_b64 exec, -1")
    a.label("1")

def mf32(d, x, y, c): return f"v_mfma_f32_32x32x16_bf16 v[{d}:{d+15}], v[{x}:{x+3}], v[{y}:{y+3}], {c}"
def z_mfmas(zn):
    return [mf32(zn, A0, I0, "0"), mf32(zn, A1, I1, f"v[{zn}:{zn+15}]"), mf32(zn, A2, B2, f"v[{zn}:{zn+15}]")]

def dma(a, slot):
    a(f"v_add_u32 v{DV}, v{SR}, v{vLC}")
    a(f"v_add_u32 v{DV+1}, v{SR+1}, v{vLC}")
    a(f"s_add_u32 m0, s{S_STG}, {slot*2048}")
    a("s_nop 0")
    a(f"buffer_load_dwordx4 v{DV}, s[{SQ}:{SQ+3}], 0 offen lds")
    a(f"s_add_u32 m0, s{S_STG}, {slot*2048+1024}")
    a("s_nop 0")
    a(f"buffer_load_dwordx4 v{DV+1}, s[{SQ}:{SQ+3}], 0 offen lds")

def shift_q(a, base):
    for k in range(4): a(f"s_mov_b32 s{base+k}, s{base+k+1}")

def flush(a, tmp):
    for q in range(8): a(f"v_cvt_pk_bf16_f32 v{FL+q}, v{ACC+2*q}, v{ACC+2*q+1}")
    a(f"s_mov_b64 exec, s[{S_M8}:{S_M8+1}]")
    a(f"ds_write_b128 v{vS}, v[{FL}:{FL+3}]")
    a(f"ds_write_b128 v{vS}, v[{FL+4}:{FL+7}] offset:16")
    a("s_mov_b64 exec, -1")
    a(mf32(tmp, WXA, FL, "0"))
    a(mf32(tmp, WXA + 4, FL + 4, f"v[{tmp}:{tmp+15}]"))
    a(mf32(ACC, ZQ, ZQ, "0"))
    a(f"v_add_u32 v{vS}, {8*S_ROW}, v{vS}")
    shift_q(a, FB)
    a("s_nop 6")
    a("s_mov_b32 exec_hi, 0")
    a(f"ds_add_f32 v{vT}, v{tmp}")
    a("s_mov_b64 exec, -1")
    a(f"v_add_u32 v{vT}, 128, v{vT}")

def rotate_b2(a):
    if "oldrot" in EXP:
        for q in range(4): a(f"v_mov_b32 v{B2+q}, v{B2Q+q}")
        for q in range(12): a(f"v_mov_b32 v{B2Q+q}, v{B2Q+4+q}")
        return
    for q in range(0, 4, 2): a(f"v_pk_mov_b32 v[{B2+q}:{B2+q+1}], v[{B2Q+q}:{B2Q+q+1}], v[{B2Q+q}:{B2Q+q+1}] op_sel:[0,1]")
    for q in range(0, 12, 2): a(f"v_pk_mov_b32 v[{B2Q+q}:{B2Q+q+1}], v[{B2Q+4+q}:{B2Q+4+q+1}], v[{B2Q+4+q}:{B2Q+4+q+1}] op_sel:[0,1]")

def rec_consts(a):
    a("v_lshrrev_b32 v44, 4, v1")
    a(f"s_lshl_b32 s{t0}, s{W}, 2")
    a(f"v_add_u32 v44, s{t0}, v44")
    a(f"s_mov_b32 s{t0}, {CH_STRIDE*16}")
    a(f"v_mul_lo_u32 v42, s{t0}, v44")
    a(f"s_movk_i32 s{t0}, {CH_STRIDE*4}")
    a(f"v_mul_lo_u32 v43, s{t0}, v44")
    a("v_lshlrev_b32 v40, 2, v44")
    a("v_and_b32 v41, 15, v1")

OSL = ((vOS, vSL), (vOS1, vSL1))

def rec_loads(a, lbl):
    for it in range(4):
        p, r = it >> 1, it & 1
        os_, sl_ = OSL[r]
        a(f"v_add_u32 v36, s{S_IB}, v41")
        if p: a("v_add_u32 v36, 16, v36")
        a(f"v_cmp_lt_u32 s[{S_MK+2*it}:{S_MK+2*it+1}], v36, v{sl_}")
        a(f"v_add_u32 v36, v36, v{os_}")
        a(f"v_lshl_add_u32 v37, v36, 4, v42")
        a(f"v_lshl_add_u32 v38, v36, 2, v43")
        a(f"s_mov_b32 s{S_RA}, {WS_RECA + r*32*CH_STRIDE*16}")
        a(f"s_mov_b32 s{S_RB}, {WS_RECB + r*32*CH_STRIDE*4}")
        a(f"s_mov_b64 exec, s[{S_MK+2*it}:{S_MK+2*it+1}]")
        a(f"s_cbranch_execz {lbl}_{it}")
        a(f"buffer_load_dwordx4 v[{16+4*it}:{19+4*it}], v37, s[{SWS}:{SWS+3}], s{S_RA} offen sc1")
        a(f"buffer_load_dword v{32+it}, v38, s[{SWS}:{SWS+3}], s{S_RB} offen sc1")
        a.label(f"{lbl}_{it}")
        a("s_mov_b64 exec, -1")

def build_recs(a, lbl):
    a("s_waitcnt vmcnt(0)")
    if "chain" in EXP and lbl == "L2_b0": a.stamp(0)
    a("v_mov_b32 v58, 0x3f80")
    for it in range(4):
        RB = 32 + it
        r = it & 1
        a(f"s_mov_b64 exec, s[{S_MK+2*it}:{S_MK+2*it+1}]")
        a(f"s_cbranch_execz {lbl}_a{it}")
        a(f"v_lshrrev_b32 v44, 17, v{RB}")
        a(f"v_subrev_u32 v44, s{S_G5}, v44")
        a(f"v_lshl_add_u32 v45, v44, 8, v40")
        a(f"v_add_u32 v45, {L_REL + 128*r}, v45")
        a(f"ds_read_b32 v{2+2*it}, v45")
        a(f"v_lshl_add_u32 v47, v44, 2, v59")
        a(f"ds_read_b32 v{3+2*it}, v47")
        a.label(f"{lbl}_a{it}")
    a("s_mov_b64 exec, -1")
    a(f"s_lshl_b32 s{t1}, s{S_TG0}, 5")
    a(f"s_sub_u32 s{t0}, s{S_IB}, s{t1}")
    a(f"v_add_u32 v49, s{t0}, v41")
    a(f"s_movk_i32 s{t1}, {CAP*32}")
    a("s_waitcnt lgkmcnt(0)")
    for it in range(4):
        RA, RB = 16 + 4 * it, 32 + it
        p, r = it >> 1, it & 1
        a(f"s_mov_b64 exec, s[{S_MK+2*it}:{S_MK+2*it+1}]")
        a(f"s_cbranch_execz {lbl}_{it}")
        a(f"v_add3_u32 v44, v49, v{2+2*it}, v{3+2*it}")
        a(f"v_add_u32 v44, v44, v{OSL[r][0]}")
        if p: a("v_add_u32 v44, 16, v44")
        a(f"v_and_b32 v50, 0x3fff, v{RB}")
        a(f"v_cmp_gt_u32 vcc, s{t1}, v44")
        a("v_lshlrev_b32 v50, 9, v50")
        a("v_add_u32 v50, 512, v50")
        a("s_and_b64 exec, exec, vcc")
        a(f"s_cbranch_execz {lbl}_{it}")
        a("v_lshlrev_b32 v51, 2, v44")
        a(f"v_add_u32 v51, {L_SRC}, v51")
        a("ds_write_b32 v51, v50")
        a("v_lshrrev_b32 v52, 5, v44")
        a(f"v_mul_u32_u24 v52, {TILE}, v52")
        a("v_and_b32 v53, 31, v44")
        a("v_lshl_add_u32 v55, v53, 4, v52")
        a(f"ds_write_b128 v55, v[{RA}:{RA+3}] offset:2048")
        a(f"v_bfe_u32 v54, v{RB}, 14, 3")
        a("v_lshl_add_u32 v52, v53, 6, v52")
        a("v_lshl_add_u32 v52, v54, 1, v52")
        a("v_bfe_u32 v53, v53, 2, 2")
        a("v_lshl_add_u32 v54, v53, 4, v52")
        a("ds_write_b16 v54, v58")
        a("v_xor_b32 v55, 1, v53")
        a("v_lshl_add_u32 v55, v55, 4, v52")
        a(f"ds_write_b16_d16_hi v55, v{RA+2}")
        a("v_xor_b32 v56, 2, v53")
        a("v_lshl_add_u32 v56, v56, 4, v52")
        a(f"ds_write_b16 v56, v{RA+3}")
        a("v_xor_b32 v57, 3, v53")
        a("v_lshl_add_u32 v57, v57, 4, v52")
        a(f"ds_write_b16_d16_hi v57, v{RA+3}")
        a.label(f"{lbl}_{it}")
    a("s_mov_b64 exec, -1")

def poll(a, lbl, srdreg, voff, want, sleep):
    a(f"s_mov_b32 s{t1}, 0x8000")
    a("s_mov_b32 exec_lo, 1")
    a("s_mov_b32 exec_hi, 0")
    a.label(lbl)
    a(f"buffer_load_dword v10, v{voff}, s[{srdreg}:{srdreg+3}], 0 offen sc1")
    a("s_waitcnt vmcnt(0)")
    a(f"v_readfirstlane_b32 s{t0}, v10")
    a(f"s_and_b32 s{t0}, s{t0}, {want:#x}")
    a(f"s_cmp_eq_u32 s{t0}, {want:#x}")
    a(f"s_cbranch_scc1 {lbl}_ok")
    a(f"s_sub_u32 s{t1}, s{t1}, 1")
    a(f"s_cmp_eq_u32 s{t1}, 0")
    a(f"s_cbranch_scc1 {lbl}_ok")
    a(f"s_sleep {sleep}")
    a(f"s_branch {lbl}")
    a.label(f"{lbl}_ok")
    a("s_mov_b64 exec, -1")

def mailbox(a, word):
    srd(a, R4, P_WS, WS_MBX, 2048)
    a(f"s_and_b32 s{t2}, s2, 15")
    a(f"s_lshl_b32 s{t2}, s{t2}, 7")
    a(f"s_add_u32 s{t2}, s{t2}, {4*word}")
    a(f"v_mov_b32 v8, s{t2}")

def a_reads(u1):
    sl = u1 % 4
    return [f"ds_read_b128 v[{A0}:{A0+3}], v{vA0} offset:{sl*2048}",
            f"ds_read_b128 v[{A1}:{A1+3}], v{vA1} offset:{sl*2048}",
            f"ds_read_b128 v[{A2}:{A2+3}], v{vA2} offset:{u1*TILE}"]
def bp_reads(u):
    return [f"ds_read_b64_tr_b16 v[{BP}:{BP+1}], v{vB0} offset:{u*TILE}",
            f"ds_read_b64_tr_b16 v[{BP+2}:{BP+3}], v{vB1} offset:{u*TILE}",
            f"ds_read_b64_tr_b16 v[{BP+4}:{BP+5}], v{vB0} offset:{u*TILE+1024}",
            f"ds_read_b64_tr_b16 v[{BP+6}:{BP+7}], v{vB1} offset:{u*TILE+1024}"]
def seg_mfmas():
    return [mf32(ACC, M, BP, f"v[{ACC}:{ACC+15}]"), mf32(ACC, M + 4, BP + 4, f"v[{ACC}:{ACC+15}]")]

OOL = []
def OST():
    return " sc1" if "osc1" in EXP else " nt" if "ont" in EXP else " sc0 sc1" if "osc01" in EXP else ""

def first_pass_wait(a, lbl):
    a(f"s_cmp_eq_u32 s{S_WPH}, 0")
    a(f"s_cbranch_scc0 {lbl}")
    a("s_waitcnt vmcnt(0)")
    a.label(lbl)

def iteration(a, u):
    zc, zn = Z[u & 1], Z[(u + 1) & 1]
    sl = (u + 1) % 4
    a(f"s_setprio {3-u}")
    a("s_waitcnt lgkmcnt(0)")
    a(f"s_cmp_eq_u32 s{S_TG}, s{FB}")
    a(f"s_cbranch_scc1 L2_fl_{u}")
    a.label(f"L2_fl_{u}_r")
    OOL.append((f"L2_fl_{u}", lambda a, zn=zn, u=u: (first_pass_wait(a, f"L2_flw_{u}"), flush(a, zn), a(f"s_branch L2_fl_{u}_r"))))
    a(f"s_cmp_eq_u32 s{S_TG}, s{ZB}")
    a(f"s_cbranch_scc1 L2_rt_{u}")
    a.label(f"L2_rt_{u}_r")
    def rt(a, u=u):
        first_pass_wait(a, f"L2_rtw_{u}")
        rotate_b2(a); shift_q(a, ZB)
        a(f"s_and_b32 s{S_HALF}, s{S_HF}, 1")
        a(f"s_lshr_b32 s{S_HF}, s{S_HF}, 1")
        a(f"s_cmp_eq_u32 s{S_HALF}, 1")
        a(f"s_cbranch_scc0 L2_rt_{u}_r")
        a(f"s_branch L2_ha_{u}")
    OOL.append((f"L2_rt_{u}", rt))
    zm = z_mfmas(zn); sm = seg_mfmas(); bp = bp_reads(u); ar = a_reads(u + 2)
    def run(a, op, regs, att):
        for i, k in enumerate(regs):
            a(f"{op} v{E+k}, v{(zc if op == 'v_exp_f32' else E)+k}")
            for x in att.get(i, []): a(x)
    def pk(a, op, lo, n=8):
        for k in range(lo, lo + n, 2):
            other = f"v[{ONE2}:{ONE2+1}]" if op == "v_pk_add_f32" else f"v[{zc+k}:{zc+k+1}]"
            a(f"{op} v[{E+k}:{E+k+1}], v[{E+k}:{E+k+1}], {other}")
    def cvt(a, lo, n=8):
        for k in range(lo, lo + n, 2): a(f"v_cvt_pk_bf16_f32 v{M+k//2}, v{E+k}, v{E+k+1}")
    def parts(a, x):
        dv0 = [f"v_add_u32 v{DV}, v{SR}, v{vLC}", f"s_add_u32 m0, s{S_STG}, {sl*2048}"]
        dm0 = [f"v_add_u32 v{DV+1}, v{SR+1}, v{vLC}", f"buffer_load_dwordx4 v{DV}, s[{SQ}:{SQ+3}], 0 offen lds"]
        m1 = [f"s_add_u32 m0, s{S_STG}, {sl*2048+1024}"]
        dm1 = [f"buffer_load_dwordx4 v{DV+1}, s[{SQ}:{SQ+3}], 0 offen lds"]
        wlc = [f"s_cmp_eq_u32 s{S_WPH}, 0", f"s_cbranch_scc1 L2_wl{x}_{u}", f"L2_wl{x}_{u}_r:"]
        cnt = [f"s_add_u32 s{S_T}, s{S_T}, 1", f"s_add_u32 s{S_TG}, s{S_TG}, 1"]
        wvc = [f"s_cmp_lt_u32 s{S_WPH}, 2", f"s_cbranch_scc1 L2_wv{x}_{u}", "s_waitcnt vmcnt(6)", f"L2_wv{x}_{u}_r:"]
        srr = [f"ds_read2_b32 v[{SR}:{SR+1}], v{vSR} offset0:{u*32} offset1:{u*32+16}"]
        def wl(a, u=u):
            a("v_lshlrev_b32 v5, 4, v1")
            a(f"s_lshl_b32 s{t0}, s{W}, 14")
            a(f"s_add_u32 s{t0}, s{t0}, {WS_WHP + u*4096}")
            for q in range(4 * u, 4 * u + 4):
                a(f"buffer_load_dwordx4 v[{WH+4*q}:{WH+4*q+3}], v5, s[{SWS}:{SWS+3}], s{t0} offen offset:{(q%4)*1024}")
            a(f"s_branch L2_wl{x}_{u}_r")
        OOL.append((f"L2_wl{x}_{u}", wl))
        def wv(a, u=u):
            a(f"s_cmp_eq_u32 s{S_WPH}, 0")
            a(f"s_cbranch_scc1 L2_wv{x}_{u}_0")
            a(f"s_waitcnt vmcnt({(18, 14, 10, 6)[u]})")
            a(f"s_branch L2_wv{x}_{u}_r")
            a.label(f"L2_wv{x}_{u}_0")
            a(f"s_waitcnt vmcnt({(16, 20, 24, 22)[u]})")
            a(f"s_branch L2_wv{x}_{u}_r")
        OOL.append((f"L2_wv{x}_{u}", wv))
        return dv0, dm0, m1, dm1, wlc, cnt, wvc, srr
    def first_half(a, n, x):
        dv0, dm0, m1, dm1, wlc, cnt, wvc, srr = parts(a, x)
        if n == 8:
            ae = {0: [sm[0]], 1: dv0, 2: dm0, 3: [bp[0], bp[1]], 4: [zm[0]], 5: m1, 6: dm1, 7: wlc}
            ar_ = {0: [zm[1]], 1: cnt, 4: [zm[2]], 5: wvc + [ar[0]], 6: [ar[1], ar[2]], 7: srr}
        else:
            ae = {0: [sm[0]] + dv0, 1: dm0 + [bp[0], bp[1]], 2: [zm[0]] + m1, 3: dm1 + wlc}
            ar_ = {0: [zm[1]] + cnt, 2: [zm[2]], 3: wvc + [ar[0], ar[1], ar[2]] + srr}
        run(a, "v_exp_f32", range(0, n), ae)
        pk(a, "v_pk_add_f32", 0, n)
        run(a, "v_rcp_f32", range(0, n), ar_)
        pk(a, "v_pk_mul_f32", 0, n)
        cvt(a, 0, n)
    def hf(a, u=u):
        a(sm[1]); a(f"s_mov_b32 s{S_HALF}, 0"); a(bp[2]); a(bp[3])
        a(f"s_branch L2_hf_{u}_r")
    OOL.append((f"L2_hf_{u}", hf))
    def ha(a, u=u):
        first_half(a, 8, "h")
        a(f"s_branch L2_hf_{u}")
    OOL.append((f"L2_ha_{u}", ha))
    dv0, dm0, m1, dm1, wlc, cnt, wvc, srr = parts(a, "")
    run(a, "v_exp_f32", range(0, 16), {0: [sm[0]], 4: [sm[1]]})
    for x in cnt: a(x)
    a(mf32(E, QQ, QQ, f"v[{E}:{E+15}]"))
    for x in [bp[0], bp[1]] + dv0 + dm0 + [bp[2], bp[3]] + m1 + srr + dm1 + wlc + [zm[0]] + wvc: a(x)
    run(a, "v_rcp_f32", range(0, 16), {2: [zm[1]], 6: [zm[2]], 7: [ar[0], ar[1], ar[2]]})
    pk(a, "v_pk_mul_f32", 0, 16)
    cvt(a, 0, 16)
    a.label(f"L2_hf_{u}_r")
    a(f"s_cmp_eq_u32 s{S_T}, s{S_N}")
    a("s_cbranch_scc1 L2_win_end")

def constants_a(a, b=44, mk=52):
    a(f"v_and_b32 v{b+0}, 31, v1")
    a(f"v_lshrrev_b32 v{b+1}, 5, v1")
    a(f"v_mov_b32 v{ONE2}, 1.0")
    a(f"v_mov_b32 v{ONE2+1}, 1.0")
    for q in range(4): a(f"v_mov_b32 v{ZQ+q}, 0")
    a(f"s_mov_b32 s{S_M8}, 0xff")
    a(f"s_mov_b32 s{S_M8+1}, 0xff")
    a(f"v_lshlrev_b32 v{b+2}, 3, v{b+1}")
    a(f"v_sub_u32 v{b+2}, v{b+0}, v{b+2}")
    a(f"v_mov_b32 v{b+4}, 0x3f80")
    a(f"v_mov_b32 v{b+5}, 0x3f800000")
    a(f"v_and_b32 v{b+3}, 1, v{b+2}")
    a(f"v_cmp_eq_u32 vcc, 1, v{b+3}")
    a(f"v_lshrrev_b32 v{b+6}, 1, v{b+2}")
    a(f"v_add_u32 v{b+7}, -8, v{b+6}")
    a(f"v_cndmask_b32 v{b+3}, v{b+4}, v{b+5}, vcc")
    for I, r in ((I0, b + 6), (I1, b + 7)):
        for q0 in (0, 2):
            a(f"v_cmp_eq_u32 s[{mk}:{mk+1}], {q0}, v{r}")
            a(f"v_cmp_eq_u32 s[{mk+2}:{mk+3}], {q0+1}, v{r}")
            a("s_nop 0")
            a(f"v_cndmask_b32 v{I+q0}, 0, v{b+3}, s[{mk}:{mk+1}]")
            a(f"v_cndmask_b32 v{I+q0+1}, 0, v{b+3}, s[{mk+2}:{mk+3}]")

def constants_b(a, b=44):
    a(f"v_and_b32 v{b+0}, 31, v1")
    a(f"v_lshrrev_b32 v{b+1}, 5, v1")
    a(f"s_lshl_b32 s{S_STG}, s{W}, 13")
    a(f"s_add_u32 s{S_STG}, s{S_STG}, {L_STAGE}")
    a(f"v_bfe_u32 v{b+2}, v{b+0}, 2, 2")
    a(f"v_xor_b32 v{b+3}, v{b+1}, v{b+2}")
    a(f"v_lshlrev_b32 v{b+4}, 6, v{b+0}")
    a(f"v_add_u32 v{b+5}, s{S_STG}, v{b+4}")
    a(f"v_lshl_add_u32 v{vA0}, v{b+3}, 4, v{b+5}")
    a(f"v_xor_b32 v{b+3}, 2, v{b+3}")
    a(f"v_lshl_add_u32 v{vA1}, v{b+3}, 4, v{b+5}")
    a(f"v_lshlrev_b32 v{b+3}, 4, v{b+0}")
    a(f"v_add_u32 v{b+3}, 2048, v{b+3}")
    a(f"v_lshl_add_u32 v{b+4}, v{b+2}, 4, v{b+4}")
    a(f"v_cmp_eq_u32 vcc, 1, v{b+1}")
    a(f"v_bfe_u32 v{b+2}, v1, 2, 2")
    a(f"v_lshl_add_u32 v{b+2}, v{b+1}, 2, v{b+2}")
    a(f"v_cndmask_b32 v{cA2}, v{b+3}, v{b+4}, vcc")
    a(f"v_lshlrev_b32 v{b+2}, 6, v{b+2}")
    a(f"v_and_b32 v{b+3}, 1, v1")
    a(f"v_lshl_add_u32 v{b+2}, v{b+3}, 3, v{b+2}")
    a(f"v_bfe_u32 v{b+3}, v1, 4, 1")
    a(f"v_lshlrev_b32 v{b+3}, 1, v{b+3}")
    a(f"v_bfe_u32 v{b+4}, v1, 1, 1")
    a(f"v_or_b32 v{b+3}, v{b+3}, v{b+4}")
    a(f"v_xor_b32 v{b+3}, v{b+3}, v{b+1}")
    a(f"v_lshl_add_u32 v{cB0}, v{b+3}, 4, v{b+2}")
    a(f"v_xor_b32 v{b+3}, 2, v{b+3}")
    a(f"v_lshl_add_u32 v{b+4}, v{b+3}, 4, v{b+2}")
    a(f"v_add_u32 v{cB1}, 512, v{b+4}")
    a(f"v_and_b32 v{b+2}, 3, v1")
    a(f"v_bfe_u32 v{b+3}, v1, 4, 2")
    a(f"v_xor_b32 v{b+2}, v{b+2}, v{b+3}")
    a(f"v_lshlrev_b32 v{b+2}, 4, v{b+2}")
    a(f"s_lshl_b32 s{t0}, s{W}, 6")
    a(f"s_sub_u32 s{t1}, s{t0}, 512")
    a(f"v_add_u32 v{vLC}, s{t1}, v{b+2}")
    a(f"v_and_b32 v{b+2}, 7, v1")
    a(f"v_mul_u32_u24 v{b+2}, {S_ROW}, v{b+2}")
    a(f"v_lshl_add_u32 v{b+2}, v{b+1}, 5, v{b+2}")
    a(f"s_add_u32 s{t0}, s{t0}, {L_S}")
    a(f"v_add_u32 v{vS}, s{t0}, v{b+2}")
    a(f"v_lshlrev_b32 v{b+2}, 2, v{b+0}")
    a(f"v_add_u32 v{vT}, {L_T}, v{b+2}")
    a(f"v_lshrrev_b32 v{b+2}, 2, v1")
    a(f"v_lshlrev_b32 v{b+2}, 2, v{b+2}")
    a(f"v_add_u32 v{cSR}, {L_SRC}, v{b+2}")

def phase2(a):
    def entry(a):
        a("v_and_b32 v1, 63, v0")
        a(f"s_cmp_eq_u32 s{W}, 0")
        a("s_cbranch_scc0 2f")
        p1.arrive_issue(a, f"s{p1.S_INC}")
        a.label("2")
        srd(a, SWS, P_WS, 0, WS_USED)
        a(f"s_mul_i32 s{S_G5}, s2, 5")
    def table_load(a):
        srd(a, STAB, P_WS, WS_TAB, NCH * TAB_STRIDE)
        a("v_lshlrev_b32 v2, 12, v1")
        a(f"s_lshl_b32 s{t0}, s2, 4")
        a(f"buffer_load_dwordx3 v[60:62], v2, s[{STAB}:{STAB+3}], s{t0} offen sc1")
    def t_zero(a):
        a(f"v_add_u32 v41, {L_T}, v40")
        a("s_mov_b32 exec_lo, -1")
        a("s_mov_b32 exec_hi, 0xff")
        a("ds_write_b128 v41, v[36:39]")
        a("s_mov_b64 exec, -1")
    a.label("L_phase2_fast")
    a.stamp(5)
    entry(a)
    table_load(a)
    a(f"s_cmp_eq_u32 s{W}, 0")
    a("s_cbranch_scc0 L2_tab")
    p1.arrive_finish(a, f"s{p1.S_INC}", "f")
    a("s_branch L2_tab")
    a.label("L_phase2")
    a.stamp(5)
    entry(a)
    a(f"s_cmp_eq_u32 s{W}, 0")
    a("s_cbranch_scc0 L2_w1")
    p1.arrive_finish(a, f"s{p1.S_INC}", "a")
    a("s_and_b32 s52, s85, 1")
    a("s_cmp_eq_u32 s52, 1")
    a("s_cbranch_scc1 L2_inited")
    srd(a, SDBG, P_DBG, 0, 256)
    a("v_mov_b32 v8, 0")
    poll(a, "L2_poll0", SDBG, 8, 1, 16)
    a("s_mov_b32 s85, 0")
    a.label("L2_inited")
    a("s_and_b32 s52, s85, 0xffff")
    a(f"s_cmp_eq_u32 s52, {K1:#x}")
    a("s_cbranch_scc1 L2_w1")
    mailbox(a, 0)
    poll(a, "L2_poll1", R4, 8, 1, 2)
    a.label("L2_w1")
    a("s_barrier")
    table_load(a)
    a.label("L2_tab")
    a.stamp(6)
    a(f"s_mov_b32 s{S_IB}, 0")
    a(f"s_mov_b32 s{S_TG0}, 0")
    a(f"s_mov_b32 s{S_FIRST}, 1")
    a(mf32(ACC, ZQ, ZQ, "0"))
    a("s_waitcnt vmcnt(0)")
    if "chain" in EXP: a.stamp(2)
    a(f"v_and_b32 v46, 0xffff, v60")
    a(f"v_lshrrev_b32 v47, 16, v62")
    a(f"v_sub_u32 v47, v47, v46")
    rec_consts(a)
    a("v_add_u32 v45, 128, v40")
    a(f"ds_bpermute_b32 v{vOS}, v40, v46")
    a(f"ds_bpermute_b32 v{vSL}, v40, v47")
    a(f"ds_bpermute_b32 v{vOS1}, v45, v46")
    a(f"ds_bpermute_b32 v{vSL1}, v45, v47")
    a("s_waitcnt lgkmcnt(0)")
    rec_loads(a, "L2_ld0")
    if "chain" in EXP: a.stamp(3)
    a(f"s_cmp_ge_u32 s{W}, 5")
    a("s_cbranch_scc1 L2_noscan")
    a(f"s_cmp_lt_u32 s{W}, 2")
    a("s_cbranch_scc1 L2_sel")
    a("v_mov_b32 v60, v61")
    a("v_mov_b32 v61, v62")
    a(f"s_cmp_lt_u32 s{W}, 4")
    a("s_cbranch_scc1 L2_sel")
    a("v_mov_b32 v60, v61")
    a.label("L2_sel")
    a(f"s_and_b32 s{t0}, s{W}, 1")
    a(f"s_lshl_b32 s{t0}, s{t0}, 4")
    a(f"v_alignbit_b32 v61, v61, v60, s{t0}")
    a("v_and_b32 v60, 0xffff, v61")
    a("v_lshrrev_b32 v61, 16, v61")
    a("v_sub_u32 v62, v61, v60")
    a("v_mov_b32 v63, v62")
    for sh in (1, 2, 4, 8):
        a("s_nop 1")
        a(f"v_add_u32_dpp v63, v63, v63 row_shr:{sh} row_mask:0xf bank_mask:0xf")
    a("s_nop 1")
    a("v_add_u32_dpp v63, v63, v63 row_bcast:15 row_mask:0xa bank_mask:0xf")
    a("s_nop 1")
    a("v_add_u32_dpp v63, v63, v63 row_bcast:31 row_mask:0xc bank_mask:0xf")
    a("v_sub_u32 v62, v63, v62")
    a("v_sub_u32 v62, v62, v60")
    a(f"s_lshl_b32 s{t0}, s{W}, 8")
    a(f"s_add_u32 s{t0}, s{t0}, {L_REL}")
    a("v_lshlrev_b32 v45, 2, v1")
    a(f"v_add_u32 v45, s{t0}, v45")
    a("ds_write_b32 v45, v62")
    a(f"s_lshl_b32 s{t0}, s{W}, 2")
    a(f"s_add_u32 s{t0}, s{t0}, {L_NG}")
    a(f"v_mov_b32 v45, s{t0}")
    a("s_mov_b32 exec_lo, 0")
    a("s_mov_b32 exec_hi, 0x80000000")
    a("ds_write_b32 v45, v63")
    a("s_mov_b64 exec, -1")
    a.label("L2_noscan")
    a.label("L2_round_bar")
    a("s_waitcnt lgkmcnt(0)")
    a("s_barrier")
    a.stamp(7)
    a(f"s_cmp_eq_u32 s{S_FIRST}, 0")
    a("s_cbranch_scc1 L2_have_tb")
    a("v_lshlrev_b32 v45, 2, v1")
    a(f"v_add_u32 v45, {L_NG}, v45")
    a("s_mov_b32 exec_lo, 0xff")
    a("s_mov_b32 exec_hi, 0")
    a("ds_read_b32 v46, v45")
    a("s_waitcnt lgkmcnt(0)")
    a("v_max_u32 v46, 1, v46")
    a("v_add_u32 v47, -1, v46")
    a("v_and_b32 v47, 31, v47")
    a("v_cmp_gt_u32 vcc, 16, v47")
    a("v_add_u32 v46, 31, v46")
    a("v_lshrrev_b32 v46, 5, v46")
    a(f"s_and_b32 s{S_HF}, vcc_lo, 0x1f")
    NTG = (T[0], T[1], T[2], T[3], 85)
    for g in range(5): a(f"v_readlane_b32 s{NTG[g]}, v46, {g}")
    a(f"s_mov_b32 s{ZB}, s{NTG[0]}")
    for g in range(1, 4): a(f"s_add_u32 s{ZB+g}, s{ZB+g-1}, s{NTG[g]}")
    a(f"s_add_u32 s{S_NT}, s{ZB+3}, s85")
    a(f"s_mov_b32 s{ZB+4}, s{S_NT}")
    a(f"s_mov_b32 s{S_HALF}, 0")
    a("v_mov_b32 v46, 0")
    for g in range(1, 5):
        a(f"s_lshl_b32 s{t0}, s{ZB+g-1}, 5")
        a(f"v_writelane_b32 v46, s{t0}, {g}")
    for k in range(4): a(f"s_add_u32 s{FB+k}, s{ZB+k}, 1")
    a(f"s_mov_b32 s{FB+4}, 0x7ffffff0")
    for k in range(5): a(f"s_sub_u32 s{ZB+k}, s{ZB+k}, 1")
    a(f"s_lshl_b32 s{t0}, s{W}, 5")
    a(f"s_add_u32 s{t0}, s{t0}, {L_TB}")
    a("v_lshlrev_b32 v45, 2, v1")
    a(f"v_add_u32 v45, s{t0}, v45")
    a("ds_write_b32 v45, v46")
    a("s_mov_b64 exec, -1")
    a.label("L2_have_tb")
    a(f"s_lshl_b32 s{t0}, s{W}, 5")
    a(f"s_add_u32 s{t0}, s{t0}, {L_TB}")
    a(f"v_mov_b32 v59, s{t0}")
    a("s_waitcnt lgkmcnt(0)")
    if "chain" in EXP: a.stamp(4)
    build_recs(a, "L2_b0")
    a.label("L2_more")
    a(f"s_add_u32 s{S_IB}, s{S_IB}, 32")
    a(f"v_cmp_lt_u32 vcc, s{S_IB}, v{vSL}")
    a(f"v_cmp_lt_u32 s[52:53], s{S_IB}, v{vSL1}")
    a("s_or_b64 vcc, vcc, s[52:53]")
    a("s_cbranch_vccz L2_built0")
    rec_loads(a, "L2_ld1")
    build_recs(a, "L2_b1")
    a("s_branch L2_more")
    a.label("L2_built0")
    if "chain" in EXP: a.stamp(11)
    a(f"s_cmp_eq_u32 s{W}, 7")
    a("s_cbranch_scc0 L2_built")
    a(f"s_cmp_eq_u32 s{S_FIRST}, 0")
    a("s_cbranch_scc1 L2_built")
    mailbox(a, 1)
    poll(a, "L2_poll2", R4, 8, 1, 2)
    a.label("L2_built")
    a("s_waitcnt vmcnt(0) lgkmcnt(0)")
    a("s_barrier")
    a.stamp(8)
    a("s_setprio 3")
    a(f"v_mov_b32 v{vSR}, v{cSR}")
    for k in range(4):
        a(f"ds_read2_b32 v[{E+2*k}:{E+2*k+1}], v{vSR} offset0:{k*32} offset1:{k*32+16}")
    a(f"ds_read2_b32 v[{SR}:{SR+1}], v{vSR} offset0:128 offset1:144")
    a(f"s_cmp_eq_u32 s{S_FIRST}, 0")
    a("s_cbranch_scc1 L2_nob2")
    srd(a, SQ, P_WS, WS_Q, MAT_BYTES)
    a("v_and_b32 v3, 31, v1")
    a("v_lshrrev_b32 v4, 5, v1")
    a(f"s_lshl_b32 s{t0}, s{W}, 9")
    a("v_lshlrev_b32 v5, 4, v3")
    a(f"v_add_u32 v5, s{t0}, v5")
    a(f"s_lshl_b32 s{t1}, s{S_G5}, 12")
    a(f"s_add_u32 s{t1}, s{t1}, {WS_P - WS_WX}")
    a(f"v_mul_lo_u32 v6, s{t1}, v4")
    a("v_add_u32 v5, v5, v6")
    a(f"v_add_u32 v5, {WS_WX}, v5")
    a("v_lshlrev_b32 v6, 12, v4")
    a(f"buffer_load_dwordx4 v[{B2}:{B2+3}], v5, s[{SWS}:{SWS+3}], 0 offen")
    a.label("L2_nob2")
    a("s_waitcnt lgkmcnt(1)")
    def dma_k(k):
        a(f"v_add_u32 v{E+k}, v{E+k}, v{vLC}")
        a(f"s_add_u32 m0, s{S_STG}, {k*1024}")
        a("s_nop 0")
        a(f"buffer_load_dwordx4 v{E+k}, s[{SQ}:{SQ+3}], 0 offen lds")
    for k in range(4): dma_k(k)
    a(f"s_sub_u32 s{S_N}, s{S_NT}, s{S_TG0}")
    a(f"s_min_u32 s{S_N}, s{S_N}, {CAP}")
    a(f"s_mov_b32 s{S_T}, 0")
    a(f"s_mov_b32 s{S_TG}, s{S_TG0}")
    a(f"v_mov_b32 v{vA2}, v{cA2}")
    a(f"v_mov_b32 v{vB0}, v{cB0}")
    a(f"v_mov_b32 v{vB1}, v{cB1}")
    for k in range(8): a(f"v_mov_b32 v{M+k}, 0")
    for k in range(4): a(f"v_mov_b32 v{QQ+k}, 0x3e803e80")
    for k in range(8): a(f"v_mov_b32 v{BP+k}, 0")
    a(f"s_cmp_eq_u32 s{S_FIRST}, 0")
    a(f"s_cselect_b32 s{S_WPH}, 2, 0")
    a("s_waitcnt vmcnt(2)")
    for x in a_reads(0): a(x)
    for k in range(4, 8): dma_k(k)
    a("s_waitcnt lgkmcnt(0)")
    dma(a, 0)
    for m in z_mfmas(Z[0]): a(m)
    a(f"ds_read2_b32 v[{SR}:{SR+1}], v{vSR} offset0:160 offset1:176")
    a(f"v_add_u32 v{vSR}, 768, v{vSR}")
    a(f"s_cmp_eq_u32 s{S_FIRST}, 0")
    a("s_cbranch_scc1 L2_nob3")
    for g in range(1, 5):
        d = B2Q + 4 * (g - 1)
        a("v_add_u32 v5, v5, v6")
        a(f"buffer_load_dwordx4 v[{d}:{d+3}], v5, s[{SWS}:{SWS+3}], 0 offen")
    a(f"s_lshl_b32 s{t0}, s{W}, 6")
    a(f"s_add_u32 s{t0}, s{t0}, {WS_WXP}")
    a("v_lshlrev_b32 v7, 4, v4")
    a(f"buffer_load_dwordx4 v[{WXA}:{WXA+3}], v7, s[{SWS}:{SWS+3}], s{t0} offen")
    a(f"buffer_load_dwordx4 v[{WXA+4}:{WXA+7}], v7, s[{SWS}:{SWS+3}], s{t0} offen offset:32")
    a("s_waitcnt vmcnt(12)")
    a("s_branch L2_pw3")
    a.label("L2_nob3")
    a("s_waitcnt vmcnt(6)")
    a.label("L2_pw3")
    a(f"s_mov_b32 s{S_FIRST}, 0")
    for x in a_reads(1): a(x)
    a("s_nop 7")
    a.stamp(9)
    if "cyc" in EXP: a.cstamp(2)
    a.label("L2_loop")
    OOL.clear()
    for u in range(4): iteration(a, u)
    a(f"v_add_u32 v{vA2}, {4*TILE}, v{vA2}")
    a(f"v_add_u32 v{vB0}, {4*TILE}, v{vB0}")
    a(f"v_add_u32 v{vB1}, {4*TILE}, v{vB1}")
    a(f"v_add_u32 v{vSR}, 512, v{vSR}")
    a(f"s_add_u32 s{S_WPH}, s{S_WPH}, 1")
    a(f"s_min_u32 s{S_WPH}, s{S_WPH}, 2")
    a("s_branch L2_loop")
    k = 0
    while k < len(OOL):
        lbl, fn = OOL[k]; k += 1
        a.label(lbl); fn(a)
    a.label("L2_win_end")
    a("s_setprio 0")
    a("s_waitcnt lgkmcnt(0)")
    a(f"s_cmp_eq_u32 s{S_TG}, s{FB}")
    a("s_cbranch_scc0 L2_we_nf")
    a("s_nop 3")
    flush(a, Z[0])
    a.label("L2_we_nf")
    for m in seg_mfmas(): a(m)
    a(f"s_add_u32 s{S_TG0}, s{S_TG0}, s{S_N}")
    a(f"s_cmp_ge_u32 s{S_TG0}, s{S_NT}")
    a("s_cbranch_scc1 L2_final")
    a("s_waitcnt vmcnt(0) lgkmcnt(0)")
    a("s_barrier")
    a(f"s_mov_b32 s{S_IB}, 0")
    zero_fill(a)
    rec_consts(a)
    rec_loads(a, "L2_ld2")
    a("s_branch L2_round_bar")

    a.label("L2_final")
    if "df" in EXP: a("s_sleep 64")
    if "df2" in EXP: a("s_sleep 64"); a("s_sleep 64")
    if "dv" in EXP:
        for k in range(512): a(f"v_exp_f32 v{48+k%8}, v{56+k%8}")
    a.stamp(10)
    if "cyc" in EXP:
        a.cstamp(3)
        a(f"s_mov_b32 s92, s{S_NT}")
    RQ, HQ, O, BR = 88, 120, 16, 40
    SP, SPO = R4, R5
    srd(a, SH, P_H, 0, MAT_BYTES)
    srd(a, SO, P_OUT, 0, MAT_BYTES)
    srd(a, SP, P_POS, 0, 60000)
    srd(a, SPO, P_OUT, MAT_BYTES, 60000)
    sR, sN, sTmp, sP = T[4], T[5], T[6], T[7]
    a("v_and_b32 v3, 15, v1")
    a("v_lshrrev_b32 v4, 4, v1")
    a("v_lshrrev_b32 v5, 3, v3")
    a("v_lshlrev_b32 v5, 12, v5")
    a("v_and_b32 v6, 7, v3")
    a("v_lshl_add_u32 v5, v6, 4, v5")
    a("v_lshl_add_u32 v5, v4, 7, v5")
    a(f"s_lshl_b32 s{t0}, s{W}, 9")
    a(f"v_add_u32 v5, s{t0}, v5")
    a(f"s_lshl_b32 s{sR}, s{S_G5}, 12")
    a(f"s_add_u32 s{sR}, s{sR}, {WS_R}")
    a("v_lshlrev_b32 v6, 9, v3")
    a("v_lshl_add_u32 v6, v4, 4, v6")
    a(f"s_lshl_b32 s{t0}, s{W}, 6")
    a(f"v_add_u32 v6, s{t0}, v6")
    a(f"s_mul_i32 s{sN}, s2, 20480")
    for nb in range(3):
        a(f"buffer_load_dwordx4 v[{RQ+4*nb}:{RQ+4*nb+3}], v5, s[{SWS}:{SWS+3}], s{sR} offen")
        a(f"s_add_u32 s{sR}, s{sR}, 8192")
    for nb in range(3):
        a(f"s_add_u32 s{sTmp}, s{sN}, {nb*8192}")
        a(f"buffer_load_dwordx4 v[{HQ+4*nb}:{HQ+4*nb+3}], v6, s[{SH}:{SH+3}], s{sTmp} offen")
    a("v_lshlrev_b32 v7, 2, v1")
    a(f"s_mul_i32 s{sP}, s2, 240")
    a(f"buffer_load_dword v8, v7, s[{SP}:{SP+3}], s{sP} offen")
    flush(a, Z[1])
    a(f"v_mul_u32_u24 v9, {S_ROW}, v3")
    a("v_lshl_add_u32 v9, v4, 4, v9")
    a(f"v_add_u32 v9, {L_S}, v9")
    a("s_waitcnt lgkmcnt(0)")
    a("s_barrier")
    a.lds = []
    seq = [(nb, ks) for nb in range(3) for ks in range(8)]
    def bread(i):
        nb, ks = seq[i]; q = BR + 4 * (i % 6)
        a.ds(f"ds_read_b128 v[{q}:{q+3}], v9 offset:{nb*16*S_ROW + ks*64}", ("B", i))
    X, EE = 64, 72
    sM16, sLN2 = T[8], T[9]
    a(f"s_mov_b32 s{sM16}, 0xffff0000")
    a(f"s_mov_b32 s{sLN2}, {NLN2:#x}")
    def epilogue(nb):
        o = O + 8 * nb
        ops = []
        if nb == 2:
            ops += ["s_mov_b32 exec_lo, 0x00ff00ff", "s_mov_b32 exec_hi, 0x00ff00ff"]
        for i in range(4):
            ops.append(f"v_lshlrev_b32 v{X+2*i}, 16, v{RQ+4*nb+i}")
            ops.append(f"v_and_b32 v{X+2*i+1}, s{sM16}, v{RQ+4*nb+i}")
        for k in range(8): ops.append(f"v_add_f32 v{X+k}, v{X+k}, v{o+k}")
        for k in range(8): ops.append(f"v_exp_f32 v{EE+k}, v{X+k}")
        for k in range(8): ops.append(f"v_add_f32 v{EE+k}, 1.0, v{EE+k}")
        for k in range(8): ops.append(f"v_rcp_f32 v{EE+k}, v{EE+k}")
        for i in range(4):
            ops.append(f"v_lshlrev_b32 v{o+2*i}, 16, v{HQ+4*nb+i}")
            ops.append(f"v_and_b32 v{o+2*i+1}, s{sM16}, v{HQ+4*nb+i}")
        for k in range(8): ops.append(f"v_mul_f32 v{X+k}, v{X+k}, v{EE+k}")
        for k in range(8): ops.append(f"v_fma_f32 v{X+k}, v{X+k}, s{sLN2}, v{o+k}")
        d = 100 + 4 * nb
        for i in range(4): ops.append(f"v_cvt_pk_bf16_f32 v{d+i}, v{X+2*i}, v{X+2*i+1}")
        ops.append(f"s_add_u32 s{sTmp}, s{sN}, {nb*8192}")
        ops.append(f"buffer_store_dwordx4 v[{d}:{d+3}], v6, s[{SO}:{SO+3}], s{sTmp} offen{OST()}")
        return ops
    for i in range(5): bread(i)
    pend = []
    for i, (nb, ks) in enumerate(seq):
        q = BR + 4 * (i % 6)
        if ks == 3 and nb > 0:
            if nb == 1: a("s_waitcnt vmcnt(0)")
            pend = epilogue(nb - 1)
        a.wait_lds(("B", i))
        for cb in range(2):
            o = O + 8 * nb + 4 * cb; w = WH + 4 * (cb * 8 + ks)
            c = "0" if ks == 0 else f"v[{o}:{o+3}]"
            a(f"v_mfma_f32_16x16x32_bf16 v[{o}:{o+3}], v[{w}:{w+3}], v[{q}:{q+3}], {c}")
        if i + 5 < len(seq): bread(i + 5)
        left = 7 - ks if ks >= 3 else None
        if pend:
            k = -(-len(pend) // (8 - ks + 2))
            for op in pend[:k]: a(op)
            pend = pend[k:]
        if ks == 2:
            for op in pend: a(op)
            pend = []
    for op in pend: a(op)
    a.stamp(11)
    a("s_nop 7")
    for op in epilogue(2): a(op)
    a("s_mov_b64 exec, -1")
    a(f"s_cmp_lg_u32 s{W}, 0")
    a("s_cbranch_scc1 L2_done")
    a("s_mov_b32 exec_hi, 0x0fffffff")
    for k in range(2):
        a(f"v_lshlrev_b32 v10, 1, v1")
        if k: a("v_add_u32 v10, 1, v10")
        a("v_mul_u32_u24 v11, 171, v10")
        a("v_lshrrev_b32 v11, 9, v11")
        a("v_mul_u32_u24 v12, 3, v11")
        a("v_sub_u32 v12, v10, v12")
        a("v_lshrrev_b32 v13, 3, v11")
        a("v_lshlrev_b32 v13, 5, v13")
        a("v_lshl_add_u32 v13, v12, 3, v13")
        a("v_and_b32 v11, 7, v11")
        a("v_add3_u32 v13, v13, v11, 8")
        a("v_lshlrev_b32 v13, 2, v13")
        a(f"v_add_u32 v13, {L_T}, v13")
        a(f"ds_read_b32 v{14+k}, v13")
    a("v_lshlrev_b32 v10, 16, v8")
    a(f"v_and_b32 v11, s{sM16}, v8")
    a("s_waitcnt lgkmcnt(0)")
    a(f"v_fma_f32 v10, v14, s{sLN2}, v10")
    a(f"v_fma_f32 v11, v15, s{sLN2}, v11")
    a("v_cvt_pk_bf16_f32 v10, v10, v11")
    a(f"buffer_store_dword v10, v7, s[{SPO}:{SPO+3}], s{sP} offen")
    a.label("L2_done")
    if a.diag:
        a("s_waitcnt vmcnt(0)")
        a("s_memrealtime s[100:101]")
        a("s_waitcnt lgkmcnt(0)")
        a("s_mov_b32 s89, s100")
        a.dump_stamps(P_WS, WS_DIAG, W)
```

```python
from asmlib import *
from common import *
import p1

EXP = set()
CAP = 27
TILE = 2560
L_SRC = CAP * TILE
L_STAGE = L_SRC + 32 * 128
L_S = L_STAGE + 65536
S_ROW = 544
L_T = L_S + 40 * S_ROW
L_REL = L_T + 640
L_NG = L_REL + 1280
L_TB = L_NG + 32
W = S_WAVE
NRW = 7

SWS, SQ, SH, SO, STAB, SDBG = R0, R1, R2, R3, R4, R5
S_T, S_N, S_TG0, S_NT, S_WIN, S_TG = 64, 65, 66, 67, 68, 69
ZB, FB = 70, 75
S_STG, S_G5, S_IB, S_FIRST, S_WPH, S_M8 = 80, 81, 82, 83, 84, 86
S_RA, S_RB = 26, 27
S_HALF, S_HF = 85, 68
S_MK = 56
t0, t1, t2, t3 = T[0], T[1], T[2], T[3]

Z = (16, 32); E = 48; ACC = 64; M = 80; A0 = 88; A1 = 92; A2 = 96; BP = 100
I0 = 200; I1 = 204; B2 = 116; B2Q = 120; WXA = 108; WH = 136
ONE2 = 208; SR = 210; DV = 212
vA0, vA1, vA2, vB0, vB1, vSR, vLC, vS, vT = 214, 215, 216, 217, 218, 219, 220, 221, 222
vOS, vSL = 223, 224
vOS1, vSL1 = 12, 13
cA2, cB0, cB1 = 225, 226, 227
FL = 228
ZQ = 236
cSR = 240
NV = 241
QQ = 244

def zero_fill(a):
    for k in range(4): a(f"v_mov_b32 v{36+k}, 0")
    a("v_lshlrev_b32 v40, 4, v0")
    a("v_add_u32 v41, 0x10000, v40")
    for k in range(8): a(f"ds_write_b128 v40, v[36:39] offset:{k*8192}")
    a("ds_write_b128 v41, v[36:39]")

def fill_tables(a):
    zero_fill(a)
    a(f"s_cmp_eq_u32 s{W}, 0")
    a("s_cbranch_scc0 1f")
    a(f"v_add_u32 v41, {L_T}, v40")
    a("s_mov_b32 exec_lo, -1")
    a("s_mov_b32 exec_hi, 0xff")
    a("ds_write_b128 v41, v[36:39]")
    a("s_mov_b64 exec, -1")
    a.label("1")

def mf32(d, x, y, c): return f"v_mfma_f32_32x32x16_bf16 v[{d}:{d+15}], v[{x}:{x+3}], v[{y}:{y+3}], {c}"
def z_mfmas(zn):
    return [mf32(zn, A0, I0, "0"), mf32(zn, A1, I1, f"v[{zn}:{zn+15}]"), mf32(zn, A2, B2, f"v[{zn}:{zn+15}]")]

def dma(a, slot):
    a(f"v_add_u32 v{DV}, v{SR}, v{vLC}")
    a(f"v_add_u32 v{DV+1}, v{SR+1}, v{vLC}")
    a(f"s_add_u32 m0, s{S_STG}, {slot*2048}")
    a("s_nop 0")
    a(f"buffer_load_dwordx4 v{DV}, s[{SQ}:{SQ+3}], 0 offen lds")
    a(f"s_add_u32 m0, s{S_STG}, {slot*2048+1024}")
    a("s_nop 0")
    a(f"buffer_load_dwordx4 v{DV+1}, s[{SQ}:{SQ+3}], 0 offen lds")

def shift_q(a, base):
    for k in range(4): a(f"s_mov_b32 s{base+k}, s{base+k+1}")

def flush(a, tmp):
    for q in range(8): a(f"v_cvt_pk_bf16_f32 v{FL+q}, v{ACC+2*q}, v{ACC+2*q+1}")
    a(f"s_mov_b64 exec, s[{S_M8}:{S_M8+1}]")
    a(f"ds_write_b128 v{vS}, v[{FL}:{FL+3}]")
    a(f"ds_write_b128 v{vS}, v[{FL+4}:{FL+7}] offset:16")
    a("s_mov_b64 exec, -1")
    a(mf32(tmp, WXA, FL, "0"))
    a(mf32(tmp, WXA + 4, FL + 4, f"v[{tmp}:{tmp+15}]"))
    a(mf32(ACC, ZQ, ZQ, "0"))
    a(f"v_add_u32 v{vS}, {8*S_ROW}, v{vS}")
    shift_q(a, FB)
    a("s_nop 6")
    a("s_mov_b32 exec_hi, 0")
    a(f"ds_add_f32 v{vT}, v{tmp}")
    a("s_mov_b64 exec, -1")
    a(f"v_add_u32 v{vT}, 128, v{vT}")

def rotate_b2(a):
    if "oldrot" in EXP:
        for q in range(4): a(f"v_mov_b32 v{B2+q}, v{B2Q+q}")
        for q in range(12): a(f"v_mov_b32 v{B2Q+q}, v{B2Q+4+q}")
        return
    for q in range(0, 4, 2): a(f"v_pk_mov_b32 v[{B2+q}:{B2+q+1}], v[{B2Q+q}:{B2Q+q+1}], v[{B2Q+q}:{B2Q+q+1}] op_sel:[0,1]")
    for q in range(0, 12, 2): a(f"v_pk_mov_b32 v[{B2Q+q}:{B2Q+q+1}], v[{B2Q+4+q}:{B2Q+4+q+1}], v[{B2Q+4+q}:{B2Q+4+q+1}] op_sel:[0,1]")

def rec_consts(a):
    a("v_lshrrev_b32 v44, 4, v1")
    a(f"s_lshl_b32 s{t0}, s{W}, 2")
    a(f"v_add_u32 v44, s{t0}, v44")
    a(f"s_mov_b32 s{t0}, {CH_STRIDE*16}")
    a(f"v_mul_lo_u32 v42, s{t0}, v44")
    a(f"s_movk_i32 s{t0}, {CH_STRIDE*4}")
    a(f"v_mul_lo_u32 v43, s{t0}, v44")
    a("v_lshlrev_b32 v40, 2, v44")
    a("v_and_b32 v41, 15, v1")

OSL = ((vOS, vSL), (vOS1, vSL1))

def rec_loads(a, lbl):
    for it in range(4):
        p, r = it >> 1, it & 1
        os_, sl_ = OSL[r]
        a(f"v_add_u32 v36, s{S_IB}, v41")
        if p: a("v_add_u32 v36, 16, v36")
        a(f"v_cmp_lt_u32 s[{S_MK+2*it}:{S_MK+2*it+1}], v36, v{sl_}")
        a(f"v_add_u32 v36, v36, v{os_}")
        a(f"v_lshl_add_u32 v37, v36, 4, v42")
        a(f"v_lshl_add_u32 v38, v36, 2, v43")
        a(f"s_mov_b32 s{S_RA}, {WS_RECA + r*32*CH_STRIDE*16}")
        a(f"s_mov_b32 s{S_RB}, {WS_RECB + r*32*CH_STRIDE*4}")
        a(f"s_mov_b64 exec, s[{S_MK+2*it}:{S_MK+2*it+1}]")
        a(f"s_cbranch_execz {lbl}_{it}")
        a(f"buffer_load_dwordx4 v[{16+4*it}:{19+4*it}], v37, s[{SWS}:{SWS+3}], s{S_RA} offen sc1")
        a(f"buffer_load_dword v{32+it}, v38, s[{SWS}:{SWS+3}], s{S_RB} offen sc1")
        a.label(f"{lbl}_{it}")
        a("s_mov_b64 exec, -1")

def build_recs(a, lbl):
    a("s_waitcnt vmcnt(0)")
    if "chain" in EXP and lbl == "L2_b0": a.stamp(0)
    a("v_mov_b32 v58, 0x3f80")
    for it in range(4):
        RB = 32 + it
        r = it & 1
        a(f"s_mov_b64 exec, s[{S_MK+2*it}:{S_MK+2*it+1}]")
        a(f"s_cbranch_execz {lbl}_a{it}")
        a(f"v_lshrrev_b32 v44, 17, v{RB}")
        a(f"v_subrev_u32 v44, s{S_G5}, v44")
        a(f"v_lshl_add_u32 v45, v44, 8, v40")
        a(f"v_add_u32 v45, {L_REL + 128*r}, v45")
        a(f"ds_read_b32 v{2+2*it}, v45")
        a(f"v_lshl_add_u32 v47, v44, 2, v59")
        a(f"ds_read_b32 v{3+2*it}, v47")
        a.label(f"{lbl}_a{it}")
    a("s_mov_b64 exec, -1")
    a(f"s_lshl_b32 s{t1}, s{S_TG0}, 5")
    a(f"s_sub_u32 s{t0}, s{S_IB}, s{t1}")
    a(f"v_add_u32 v49, s{t0}, v41")
    a(f"s_movk_i32 s{t1}, {CAP*32}")
    a("s_waitcnt lgkmcnt(0)")
    for it in range(4):
        RA, RB = 16 + 4 * it, 32 + it
        p, r = it >> 1, it & 1
        a(f"s_mov_b64 exec, s[{S_MK+2*it}:{S_MK+2*it+1}]")
        a(f"s_cbranch_execz {lbl}_{it}")
        a(f"v_add3_u32 v44, v49, v{2+2*it}, v{3+2*it}")
        a(f"v_add_u32 v44, v44, v{OSL[r][0]}")
        if p: a("v_add_u32 v44, 16, v44")
        a(f"v_and_b32 v50, 0x3fff, v{RB}")
        a(f"v_cmp_gt_u32 vcc, s{t1}, v44")
        a("v_lshlrev_b32 v50, 9, v50")
        a("v_add_u32 v50, 512, v50")
        a("s_and_b64 exec, exec, vcc")
        a(f"s_cbranch_execz {lbl}_{it}")
        a("v_lshlrev_b32 v51, 2, v44")
        a(f"v_add_u32 v51, {L_SRC}, v51")
        a("ds_write_b32 v51, v50")
        a("v_lshrrev_b32 v52, 5, v44")
        a(f"v_mul_u32_u24 v52, {TILE}, v52")
        a("v_and_b32 v53, 31, v44")
        a("v_lshl_add_u32 v55, v53, 4, v52")
        a(f"ds_write_b128 v55, v[{RA}:{RA+3}] offset:2048")
        a(f"v_bfe_u32 v54, v{RB}, 14, 3")
        a("v_lshl_add_u32 v52, v53, 6, v52")
        a("v_lshl_add_u32 v52, v54, 1, v52")
        a("v_bfe_u32 v53, v53, 2, 2")
        a("v_lshl_add_u32 v54, v53, 4, v52")
        a("ds_write_b16 v54, v58")
        a("v_xor_b32 v55, 1, v53")
        a("v_lshl_add_u32 v55, v55, 4, v52")
        a(f"ds_write_b16_d16_hi v55, v{RA+2}")
        a("v_xor_b32 v56, 2, v53")
        a("v_lshl_add_u32 v56, v56, 4, v52")
        a(f"ds_write_b16 v56, v{RA+3}")
        a("v_xor_b32 v57, 3, v53")
        a("v_lshl_add_u32 v57, v57, 4, v52")
        a(f"ds_write_b16_d16_hi v57, v{RA+3}")
        a.label(f"{lbl}_{it}")
    a("s_mov_b64 exec, -1")

def poll(a, lbl, srdreg, voff, want, sleep):
    a(f"s_mov_b32 s{t1}, 0x8000")
    a("s_mov_b32 exec_lo, 1")
    a("s_mov_b32 exec_hi, 0")
    a.label(lbl)
    a(f"buffer_load_dword v10, v{voff}, s[{srdreg}:{srdreg+3}], 0 offen sc1")
    a("s_waitcnt vmcnt(0)")
    a(f"v_readfirstlane_b32 s{t0}, v10")
    a(f"s_and_b32 s{t0}, s{t0}, {want:#x}")
    a(f"s_cmp_eq_u32 s{t0}, {want:#x}")
    a(f"s_cbranch_scc1 {lbl}_ok")
    a(f"s_sub_u32 s{t1}, s{t1}, 1")
    a(f"s_cmp_eq_u32 s{t1}, 0")
    a(f"s_cbranch_scc1 {lbl}_ok")
    a(f"s_sleep {sleep}")
    a(f"s_branch {lbl}")
    a.label(f"{lbl}_ok")
    a("s_mov_b64 exec, -1")

def mailbox(a, word):
    srd(a, R4, P_WS, WS_MBX, 2048)
    a(f"s_and_b32 s{t2}, s2, 15")
    a(f"s_lshl_b32 s{t2}, s{t2}, 7")
    a(f"s_add_u32 s{t2}, s{t2}, {4*word}")
    a(f"v_mov_b32 v8, s{t2}")

def a_reads(u1):
    sl = u1 % 4
    return [f"ds_read_b128 v[{A0}:{A0+3}], v{vA0} offset:{sl*2048}",
            f"ds_read_b128 v[{A1}:{A1+3}], v{vA1} offset:{sl*2048}",
            f"ds_read_b128 v[{A2}:{A2+3}], v{vA2} offset:{u1*TILE}"]
def bp_reads(u):
    return [f"ds_read_b64_tr_b16 v[{BP}:{BP+1}], v{vB0} offset:{u*TILE}",
            f"ds_read_b64_tr_b16 v[{BP+2}:{BP+3}], v{vB1} offset:{u*TILE}",
            f"ds_read_b64_tr_b16 v[{BP+4}:{BP+5}], v{vB0} offset:{u*TILE+1024}",
            f"ds_read_b64_tr_b16 v[{BP+6}:{BP+7}], v{vB1} offset:{u*TILE+1024}"]
def seg_mfmas():
    return [mf32(ACC, M, BP, f"v[{ACC}:{ACC+15}]"), mf32(ACC, M + 4, BP + 4, f"v[{ACC}:{ACC+15}]")]

OOL = []
def OST():
    return " sc1" if "osc1" in EXP else " nt" if "ont" in EXP else " sc0 sc1" if "osc01" in EXP else ""

def first_pass_wait(a, lbl):
    a(f"s_cmp_eq_u32 s{S_WPH}, 0")
    a(f"s_cbranch_scc0 {lbl}")
    a("s_waitcnt vmcnt(0)")
    a.label(lbl)

def iteration(a, u):
    zc, zn = Z[u & 1], Z[(u + 1) & 1]
    sl = (u + 1) % 4
    a(f"s_setprio {3-u}")
    a("s_waitcnt lgkmcnt(0)")
    a(f"s_cmp_eq_u32 s{S_TG}, s{FB}")
    a(f"s_cbranch_scc1 L2_fl_{u}")
    a.label(f"L2_fl_{u}_r")
    OOL.append((f"L2_fl_{u}", lambda a, zn=zn, u=u: (first_pass_wait(a, f"L2_flw_{u}"), flush(a, zn), a(f"s_branch L2_fl_{u}_r"))))
    a(f"s_cmp_eq_u32 s{S_TG}, s{ZB}")
    a(f"s_cbranch_scc1 L2_rt_{u}")
    a.label(f"L2_rt_{u}_r")
    def rt(a, u=u):
        first_pass_wait(a, f"L2_rtw_{u}")
        rotate_b2(a); shift_q(a, ZB)
        a(f"s_and_b32 s{S_HALF}, s{S_HF}, 1")
        a(f"s_lshr_b32 s{S_HF}, s{S_HF}, 1")
        a(f"s_cmp_eq_u32 s{S_HALF}, 1")
        a(f"s_cbranch_scc0 L2_rt_{u}_r")
        a(f"s_branch L2_ha_{u}")
    OOL.append((f"L2_rt_{u}", rt))
    zm = z_mfmas(zn); sm = seg_mfmas(); bp = bp_reads(u); ar = a_reads(u + 2)
    def run(a, op, regs, att):
        for i, k in enumerate(regs):
            a(f"{op} v{E+k}, v{(zc if op == 'v_exp_f32' else E)+k}")
            for x in att.get(i, []): a(x)
    def pk(a, op, lo, n=8):
        for k in range(lo, lo + n, 2):
            other = f"v[{ONE2}:{ONE2+1}]" if op == "v_pk_add_f32" else f"v[{zc+k}:{zc+k+1}]"
            a(f"{op} v[{E+k}:{E+k+1}], v[{E+k}:{E+k+1}], {other}")
    def cvt(a, lo, n=8):
        for k in range(lo, lo + n, 2): a(f"v_cvt_pk_bf16_f32 v{M+k//2}, v{E+k}, v{E+k+1}")
    def parts(a, x):
        dv0 = [f"v_add_u32 v{DV}, v{SR}, v{vLC}", f"s_add_u32 m0, s{S_STG}, {sl*2048}"]
        dm0 = [f"v_add_u32 v{DV+1}, v{SR+1}, v{vLC}", f"buffer_load_dwordx4 v{DV}, s[{SQ}:{SQ+3}], 0 offen lds"]
        m1 = [f"s_add_u32 m0, s{S_STG}, {sl*2048+1024}"]
        dm1 = [f"buffer_load_dwordx4 v{DV+1}, s[{SQ}:{SQ+3}], 0 offen lds"]
        wlc = [f"s_cmp_eq_u32 s{S_WPH}, 0", f"s_cbranch_scc1 L2_wl{x}_{u}", f"L2_wl{x}_{u}_r:"]
        cnt = [f"s_add_u32 s{S_T}, s{S_T}, 1", f"s_add_u32 s{S_TG}, s{S_TG}, 1"]
        wvc = [f"s_cmp_lt_u32 s{S_WPH}, 2", f"s_cbranch_scc1 L2_wv{x}_{u}", "s_waitcnt vmcnt(6)", f"L2_wv{x}_{u}_r:"]
        srr = [f"ds_read2_b32 v[{SR}:{SR+1}], v{vSR} offset0:{u*32} offset1:{u*32+16}"]
        def wl(a, u=u):
            a("v_lshlrev_b32 v5, 4, v1")
            a(f"s_lshl_b32 s{t0}, s{W}, 14")
            a(f"s_add_u32 s{t0}, s{t0}, {WS_WHP + u*4096}")
            for q in range(4 * u, 4 * u + 4):
                a(f"buffer_load_dwordx4 v[{WH+4*q}:{WH+4*q+3}], v5, s[{SWS}:{SWS+3}], s{t0} offen offset:{(q%4)*1024}")
            a(f"s_branch L2_wl{x}_{u}_r")
        OOL.append((f"L2_wl{x}_{u}", wl))
        def wv(a, u=u):
            a(f"s_cmp_eq_u32 s{S_WPH}, 0")
            a(f"s_cbranch_scc1 L2_wv{x}_{u}_0")
            a(f"s_waitcnt vmcnt({(18, 14, 10, 6)[u]})")
            a(f"s_branch L2_wv{x}_{u}_r")
            a.label(f"L2_wv{x}_{u}_0")
            a(f"s_waitcnt vmcnt({(16, 20, 24, 22)[u]})")
            a(f"s_branch L2_wv{x}_{u}_r")
        OOL.append((f"L2_wv{x}_{u}", wv))
        return dv0, dm0, m1, dm1, wlc, cnt, wvc, srr
    def first_half(a, n, x):
        dv0, dm0, m1, dm1, wlc, cnt, wvc, srr = parts(a, x)
        if n == 8:
            ae = {0: [sm[0]], 1: dv0, 2: dm0, 3: [bp[0], bp[1]], 4: [zm[0]], 5: m1, 6: dm1, 7: wlc}
            ar_ = {0: [zm[1]], 1: cnt, 4: [zm[2]], 5: wvc + [ar[0]], 6: [ar[1], ar[2]], 7: srr}
        else:
            ae = {0: [sm[0]] + dv0, 1: dm0 + [bp[0], bp[1]], 2: [zm[0]] + m1, 3: dm1 + wlc}
            ar_ = {0: [zm[1]] + cnt, 2: [zm[2]], 3: wvc + [ar[0], ar[1], ar[2]] + srr}
        run(a, "v_exp_f32", range(0, n), ae)
        pk(a, "v_pk_add_f32", 0, n)
        run(a, "v_rcp_f32", range(0, n), ar_)
        pk(a, "v_pk_mul_f32", 0, n)
        cvt(a, 0, n)
    def hf(a, u=u):
        a(sm[1]); a(f"s_mov_b32 s{S_HALF}, 0"); a(bp[2]); a(bp[3])
        a(f"s_branch L2_hf_{u}_r")
    OOL.append((f"L2_hf_{u}", hf))
    def ha(a, u=u):
        first_half(a, 8, "h")
        a(f"s_branch L2_hf_{u}")
    OOL.append((f"L2_ha_{u}", ha))
    dv0, dm0, m1, dm1, wlc, cnt, wvc, srr = parts(a, "")
    run(a, "v_exp_f32", range(0, 16), {0: [sm[0]], 4: [sm[1]]})
    for x in cnt: a(x)
    a(mf32(E, QQ, QQ, f"v[{E}:{E+15}]"))
    for x in [bp[0], bp[1]] + dv0 + dm0 + [bp[2], bp[3]] + m1 + srr + dm1 + wlc + [zm[0]] + wvc: a(x)
    run(a, "v_rcp_f32", range(0, 16), {2: [zm[1]], 6: [zm[2]], 7: [ar[0], ar[1], ar[2]]})
    pk(a, "v_pk_mul_f32", 0, 16)
    cvt(a, 0, 16)
    a.label(f"L2_hf_{u}_r")
    a(f"s_cmp_eq_u32 s{S_T}, s{S_N}")
    a("s_cbranch_scc1 L2_win_end")

def constants_a(a, b=44, mk=52):
    a(f"v_and_b32 v{b+0}, 31, v1")
    a(f"v_lshrrev_b32 v{b+1}, 5, v1")
    a(f"v_mov_b32 v{ONE2}, 1.0")
    a(f"v_mov_b32 v{ONE2+1}, 1.0")
    for q in range(4): a(f"v_mov_b32 v{ZQ+q}, 0")
    a(f"s_mov_b32 s{S_M8}, 0xff")
    a(f"s_mov_b32 s{S_M8+1}, 0xff")
    a(f"v_lshlrev_b32 v{b+2}, 3, v{b+1}")
    a(f"v_sub_u32 v{b+2}, v{b+0}, v{b+2}")
    a(f"v_mov_b32 v{b+4}, 0x3f80")
    a(f"v_mov_b32 v{b+5}, 0x3f800000")
    a(f"v_and_b32 v{b+3}, 1, v{b+2}")
    a(f"v_cmp_eq_u32 vcc, 1, v{b+3}")
    a(f"v_lshrrev_b32 v{b+6}, 1, v{b+2}")
    a(f"v_add_u32 v{b+7}, -8, v{b+6}")
    a(f"v_cndmask_b32 v{b+3}, v{b+4}, v{b+5}, vcc")
    for I, r in ((I0, b + 6), (I1, b + 7)):
        for q0 in (0, 2):
            a(f"v_cmp_eq_u32 s[{mk}:{mk+1}], {q0}, v{r}")
            a(f"v_cmp_eq_u32 s[{mk+2}:{mk+3}], {q0+1}, v{r}")
            a("s_nop 0")
            a(f"v_cndmask_b32 v{I+q0}, 0, v{b+3}, s[{mk}:{mk+1}]")
            a(f"v_cndmask_b32 v{I+q0+1}, 0, v{b+3}, s[{mk+2}:{mk+3}]")

def constants_b(a, b=44):
    a(f"v_and_b32 v{b+0}, 31, v1")
    a(f"v_lshrrev_b32 v{b+1}, 5, v1")
    a(f"s_lshl_b32 s{S_STG}, s{W}, 13")
    a(f"s_add_u32 s{S_STG}, s{S_STG}, {L_STAGE}")
    a(f"v_bfe_u32 v{b+2}, v{b+0}, 2, 2")
    a(f"v_xor_b32 v{b+3}, v{b+1}, v{b+2}")
    a(f"v_lshlrev_b32 v{b+4}, 6, v{b+0}")
    a(f"v_add_u32 v{b+5}, s{S_STG}, v{b+4}")
    a(f"v_lshl_add_u32 v{vA0}, v{b+3}, 4, v{b+5}")
    a(f"v_xor_b32 v{b+3}, 2, v{b+3}")
    a(f"v_lshl_add_u32 v{vA1}, v{b+3}, 4, v{b+5}")
    a(f"v_lshlrev_b32 v{b+3}, 4, v{b+0}")
    a(f"v_add_u32 v{b+3}, 2048, v{b+3}")
    a(f"v_lshl_add_u32 v{b+4}, v{b+2}, 4, v{b+4}")
    a(f"v_cmp_eq_u32 vcc, 1, v{b+1}")
    a(f"v_bfe_u32 v{b+2}, v1, 2, 2")
    a(f"v_lshl_add_u32 v{b+2}, v{b+1}, 2, v{b+2}")
    a(f"v_cndmask_b32 v{cA2}, v{b+3}, v{b+4}, vcc")
    a(f"v_lshlrev_b32 v{b+2}, 6, v{b+2}")
    a(f"v_and_b32 v{b+3}, 1, v1")
    a(f"v_lshl_add_u32 v{b+2}, v{b+3}, 3, v{b+2}")
    a(f"v_bfe_u32 v{b+3}, v1, 4, 1")
    a(f"v_lshlrev_b32 v{b+3}, 1, v{b+3}")
    a(f"v_bfe_u32 v{b+4}, v1, 1, 1")
    a(f"v_or_b32 v{b+3}, v{b+3}, v{b+4}")
    a(f"v_xor_b32 v{b+3}, v{b+3}, v{b+1}")
    a(f"v_lshl_add_u32 v{cB0}, v{b+3}, 4, v{b+2}")
    a(f"v_xor_b32 v{b+3}, 2, v{b+3}")
    a(f"v_lshl_add_u32 v{b+4}, v{b+3}, 4, v{b+2}")
    a(f"v_add_u32 v{cB1}, 512, v{b+4}")
    a(f"v_and_b32 v{b+2}, 3, v1")
    a(f"v_bfe_u32 v{b+3}, v1, 4, 2")
    a(f"v_xor_b32 v{b+2}, v{b+2}, v{b+3}")
    a(f"v_lshlrev_b32 v{b+2}, 4, v{b+2}")
    a(f"s_lshl_b32 s{t0}, s{W}, 6")
    a(f"s_sub_u32 s{t1}, s{t0}, 512")
    a(f"v_add_u32 v{vLC}, s{t1}, v{b+2}")
    a(f"v_and_b32 v{b+2}, 7, v1")
    a(f"v_mul_u32_u24 v{b+2}, {S_ROW}, v{b+2}")
    a(f"v_lshl_add_u32 v{b+2}, v{b+1}, 5, v{b+2}")
    a(f"s_add_u32 s{t0}, s{t0}, {L_S}")
    a(f"v_add_u32 v{vS}, s{t0}, v{b+2}")
    a(f"v_lshlrev_b32 v{b+2}, 2, v{b+0}")
    a(f"v_add_u32 v{vT}, {L_T}, v{b+2}")
    a(f"v_lshrrev_b32 v{b+2}, 2, v1")
    a(f"v_lshlrev_b32 v{b+2}, 2, v{b+2}")
    a(f"v_add_u32 v{cSR}, {L_SRC}, v{b+2}")

def phase2(a):
    def entry(a):
        a("v_and_b32 v1, 63, v0")
        a(f"s_cmp_eq_u32 s{W}, 0")
        a("s_cbranch_scc0 2f")
        p1.arrive_issue(a, f"s{p1.S_INC}")
        a.label("2")
        srd(a, SWS, P_WS, 0, WS_USED)
        a(f"s_mul_i32 s{S_G5}, s2, 5")
    def table_load(a):
        srd(a, STAB, P_WS, WS_TAB, NCH * TAB_STRIDE)
        a("v_lshlrev_b32 v2, 12, v1")
        a(f"s_lshl_b32 s{t0}, s2, 4")
        a(f"buffer_load_dwordx3 v[60:62], v2, s[{STAB}:{STAB+3}], s{t0} offen sc1")
    def t_zero(a):
        a(f"v_add_u32 v41, {L_T}, v40")
        a("s_mov_b32 exec_lo, -1")
        a("s_mov_b32 exec_hi, 0xff")
        a("ds_write_b128 v41, v[36:39]")
        a("s_mov_b64 exec, -1")
    a.label("L_phase2_fast")
    a.stamp(5)
    entry(a)
    table_load(a)
    a(f"s_cmp_eq_u32 s{W}, 0")
    a("s_cbranch_scc0 L2_tab")
    p1.arrive_finish(a, f"s{p1.S_INC}", "f")
    a("s_branch L2_tab")
    a.label("L_phase2")
    a.stamp(5)
    entry(a)
    a(f"s_cmp_eq_u32 s{W}, 0")
    a("s_cbranch_scc0 L2_w1")
    p1.arrive_finish(a, f"s{p1.S_INC}", "a")
    a("s_and_b32 s52, s85, 1")
    a("s_cmp_eq_u32 s52, 1")
    a("s_cbranch_scc1 L2_inited")
    srd(a, SDBG, P_DBG, 0, 256)
    a("v_mov_b32 v8, 0")
    poll(a, "L2_poll0", SDBG, 8, 1, 16)
    a("s_mov_b32 s85, 0")
    a.label("L2_inited")
    a("s_and_b32 s52, s85, 0xffff")
    a(f"s_cmp_eq_u32 s52, {K1:#x}")
    a("s_cbranch_scc1 L2_w1")
    mailbox(a, 0)
    poll(a, "L2_poll1", R4, 8, 1, 2)
    a.label("L2_w1")
    a("s_barrier")
    table_load(a)
    a.label("L2_tab")
    a.stamp(6)
    a(f"s_mov_b32 s{S_IB}, 0")
    a(f"s_mov_b32 s{S_TG0}, 0")
    a(f"s_mov_b32 s{S_FIRST}, 1")
    a(mf32(ACC, ZQ, ZQ, "0"))
    a("s_waitcnt vmcnt(0)")
    if "chain" in EXP: a.stamp(2)
    a(f"v_and_b32 v46, 0xffff, v60")
    a(f"v_lshrrev_b32 v47, 16, v62")
    a(f"v_sub_u32 v47, v47, v46")
    rec_consts(a)
    a("v_add_u32 v45, 128, v40")
    a(f"ds_bpermute_b32 v{vOS}, v40, v46")
    a(f"ds_bpermute_b32 v{vSL}, v40, v47")
    a(f"ds_bpermute_b32 v{vOS1}, v45, v46")
    a(f"ds_bpermute_b32 v{vSL1}, v45, v47")
    a("s_waitcnt lgkmcnt(0)")
    rec_loads(a, "L2_ld0")
    if "chain" in EXP: a.stamp(3)
    a(f"s_cmp_ge_u32 s{W}, 5")
    a("s_cbranch_scc1 L2_noscan")
    a(f"s_cmp_lt_u32 s{W}, 2")
    a("s_cbranch_scc1 L2_sel")
    a("v_mov_b32 v60, v61")
    a("v_mov_b32 v61, v62")
    a(f"s_cmp_lt_u32 s{W}, 4")
    a("s_cbranch_scc1 L2_sel")
    a("v_mov_b32 v60, v61")
    a.label("L2_sel")
    a(f"s_and_b32 s{t0}, s{W}, 1")
    a(f"s_lshl_b32 s{t0}, s{t0}, 4")
    a(f"v_alignbit_b32 v61, v61, v60, s{t0}")
    a("v_and_b32 v60, 0xffff, v61")
    a("v_lshrrev_b32 v61, 16, v61")
    a("v_sub_u32 v62, v61, v60")
    a("v_mov_b32 v63, v62")
    for sh in (1, 2, 4, 8):
        a("s_nop 1")
        a(f"v_add_u32_dpp v63, v63, v63 row_shr:{sh} row_mask:0xf bank_mask:0xf")
    a("s_nop 1")
    a("v_add_u32_dpp v63, v63, v63 row_bcast:15 row_mask:0xa bank_mask:0xf")
    a("s_nop 1")
    a("v_add_u32_dpp v63, v63, v63 row_bcast:31 row_mask:0xc bank_mask:0xf")
    a("v_sub_u32 v62, v63, v62")
    a("v_sub_u32 v62, v62, v60")
    a(f"s_lshl_b32 s{t0}, s{W}, 8")
    a(f"s_add_u32 s{t0}, s{t0}, {L_REL}")
    a("v_lshlrev_b32 v45, 2, v1")
    a(f"v_add_u32 v45, s{t0}, v45")
    a("ds_write_b32 v45, v62")
    a(f"s_lshl_b32 s{t0}, s{W}, 2")
    a(f"s_add_u32 s{t0}, s{t0}, {L_NG}")
    a(f"v_mov_b32 v45, s{t0}")
    a("s_mov_b32 exec_lo, 0")
    a("s_mov_b32 exec_hi, 0x80000000")
    a("ds_write_b32 v45, v63")
    a("s_mov_b64 exec, -1")
    a.label("L2_noscan")
    a.label("L2_round_bar")
    a("s_waitcnt lgkmcnt(0)")
    a("s_barrier")
    a.stamp(7)
    a(f"s_cmp_eq_u32 s{S_FIRST}, 0")
    a("s_cbranch_scc1 L2_have_tb")
    a("v_lshlrev_b32 v45, 2, v1")
    a(f"v_add_u32 v45, {L_NG}, v45")
    a("s_mov_b32 exec_lo, 0xff")
    a("s_mov_b32 exec_hi, 0")
    a("ds_read_b32 v46, v45")
    a("s_waitcnt lgkmcnt(0)")
    a("v_max_u32 v46, 1, v46")
    a("v_add_u32 v47, -1, v46")
    a("v_and_b32 v47, 31, v47")
    a("v_cmp_gt_u32 vcc, 16, v47")
    a("v_add_u32 v46, 31, v46")
    a("v_lshrrev_b32 v46, 5, v46")
    a(f"s_and_b32 s{S_HF}, vcc_lo, 0x1f")
    NTG = (T[0], T[1], T[2], T[3], 85)
    for g in range(5): a(f"v_readlane_b32 s{NTG[g]}, v46, {g}")
    a(f"s_mov_b32 s{ZB}, s{NTG[0]}")
    for g in range(1, 4): a(f"s_add_u32 s{ZB+g}, s{ZB+g-1}, s{NTG[g]}")
    a(f"s_add_u32 s{S_NT}, s{ZB+3}, s85")
    a(f"s_mov_b32 s{ZB+4}, s{S_NT}")
    a(f"s_mov_b32 s{S_HALF}, 0")
    a("v_mov_b32 v46, 0")
    for g in range(1, 5):
        a(f"s_lshl_b32 s{t0}, s{ZB+g-1}, 5")
        a(f"v_writelane_b32 v46, s{t0}, {g}")
    for k in range(4): a(f"s_add_u32 s{FB+k}, s{ZB+k}, 1")
    a(f"s_mov_b32 s{FB+4}, 0x7ffffff0")
    for k in range(5): a(f"s_sub_u32 s{ZB+k}, s{ZB+k}, 1")
    a(f"s_lshl_b32 s{t0}, s{W}, 5")
    a(f"s_add_u32 s{t0}, s{t0}, {L_TB}")
    a("v_lshlrev_b32 v45, 2, v1")
    a(f"v_add_u32 v45, s{t0}, v45")
    a("ds_write_b32 v45, v46")
    a("s_mov_b64 exec, -1")
    a.label("L2_have_tb")
    a(f"s_lshl_b32 s{t0}, s{W}, 5")
    a(f"s_add_u32 s{t0}, s{t0}, {L_TB}")
    a(f"v_mov_b32 v59, s{t0}")
    a("s_waitcnt lgkmcnt(0)")
    if "chain" in EXP: a.stamp(4)
    build_recs(a, "L2_b0")
    a.label("L2_more")
    a(f"s_add_u32 s{S_IB}, s{S_IB}, 32")
    a(f"v_cmp_lt_u32 vcc, s{S_IB}, v{vSL}")
    a(f"v_cmp_lt_u32 s[52:53], s{S_IB}, v{vSL1}")
    a("s_or_b64 vcc, vcc, s[52:53]")
    a("s_cbranch_vccz L2_built0")
    rec_loads(a, "L2_ld1")
    build_recs(a, "L2_b1")
    a("s_branch L2_more")
    a.label("L2_built0")
    if "chain" in EXP: a.stamp(11)
    a(f"s_cmp_eq_u32 s{W}, 7")
    a("s_cbranch_scc0 L2_built")
    a(f"s_cmp_eq_u32 s{S_FIRST}, 0")
    a("s_cbranch_scc1 L2_built")
    mailbox(a, 1)
    poll(a, "L2_poll2", R4, 8, 1, 2)
    a.label("L2_built")
    a("s_waitcnt vmcnt(0) lgkmcnt(0)")
    a("s_barrier")
    a.stamp(8)
    a("s_setprio 3")
    a(f"v_mov_b32 v{vSR}, v{cSR}")
    for k in range(4):
        a(f"ds_read2_b32 v[{E+2*k}:{E+2*k+1}], v{vSR} offset0:{k*32} offset1:{k*32+16}")
    a(f"ds_read2_b32 v[{SR}:{SR+1}], v{vSR} offset0:128 offset1:144")
    a(f"s_cmp_eq_u32 s{S_FIRST}, 0")
    a("s_cbranch_scc1 L2_nob2")
    srd(a, SQ, P_WS, WS_Q, MAT_BYTES)
    a("v_and_b32 v3, 31, v1")
    a("v_lshrrev_b32 v4, 5, v1")
    a(f"s_lshl_b32 s{t0}, s{W}, 9")
    a("v_lshlrev_b32 v5, 4, v3")
    a(f"v_add_u32 v5, s{t0}, v5")
    a(f"s_lshl_b32 s{t1}, s{S_G5}, 12")
    a(f"s_add_u32 s{t1}, s{t1}, {WS_P - WS_WX}")
    a(f"v_mul_lo_u32 v6, s{t1}, v4")
    a("v_add_u32 v5, v5, v6")
    a(f"v_add_u32 v5, {WS_WX}, v5")
    a("v_lshlrev_b32 v6, 12, v4")
    a(f"buffer_load_dwordx4 v[{B2}:{B2+3}], v5, s[{SWS}:{SWS+3}], 0 offen")
    a.label("L2_nob2")
    a("s_waitcnt lgkmcnt(1)")
    def dma_k(k):
        a(f"v_add_u32 v{E+k}, v{E+k}, v{vLC}")
        a(f"s_add_u32 m0, s{S_STG}, {k*1024}")
        a("s_nop 0")
        a(f"buffer_load_dwordx4 v{E+k}, s[{SQ}:{SQ+3}], 0 offen lds")
    for k in range(4): dma_k(k)
    a(f"s_sub_u32 s{S_N}, s{S_NT}, s{S_TG0}")
    a(f"s_min_u32 s{S_N}, s{S_N}, {CAP}")
    a(f"s_mov_b32 s{S_T}, 0")
    a(f"s_mov_b32 s{S_TG}, s{S_TG0}")
    a(f"v_mov_b32 v{vA2}, v{cA2}")
    a(f"v_mov_b32 v{vB0}, v{cB0}")
    a(f"v_mov_b32 v{vB1}, v{cB1}")
    for k in range(8): a(f"v_mov_b32 v{M+k}, 0")
    for k in range(4): a(f"v_mov_b32 v{QQ+k}, 0x3e803e80")
    for k in range(8): a(f"v_mov_b32 v{BP+k}, 0")
    a(f"s_cmp_eq_u32 s{S_FIRST}, 0")
    a(f"s_cselect_b32 s{S_WPH}, 2, 0")
    a("s_waitcnt vmcnt(2)")
    for x in a_reads(0): a(x)
    for k in range(4, 8): dma_k(k)
    a("s_waitcnt lgkmcnt(0)")
    dma(a, 0)
    for m in z_mfmas(Z[0]): a(m)
    a(f"ds_read2_b32 v[{SR}:{SR+1}], v{vSR} offset0:160 offset1:176")
    a(f"v_add_u32 v{vSR}, 768, v{vSR}")
    a(f"s_cmp_eq_u32 s{S_FIRST}, 0")
    a("s_cbranch_scc1 L2_nob3")
    for g in range(1, 5):
        d = B2Q + 4 * (g - 1)
        a("v_add_u32 v5, v5, v6")
        a(f"buffer_load_dwordx4 v[{d}:{d+3}], v5, s[{SWS}:{SWS+3}], 0 offen")
    a(f"s_lshl_b32 s{t0}, s{W}, 6")
    a(f"s_add_u32 s{t0}, s{t0}, {WS_WXP}")
    a("v_lshlrev_b32 v7, 4, v4")
    a(f"buffer_load_dwordx4 v[{WXA}:{WXA+3}], v7, s[{SWS}:{SWS+3}], s{t0} offen")
    a(f"buffer_load_dwordx4 v[{WXA+4}:{WXA+7}], v7, s[{SWS}:{SWS+3}], s{t0} offen offset:32")
    a("s_waitcnt vmcnt(12)")
    a("s_branch L2_pw3")
    a.label("L2_nob3")
    a("s_waitcnt vmcnt(6)")
    a.label("L2_pw3")
    a(f"s_mov_b32 s{S_FIRST}, 0")
    for x in a_reads(1): a(x)
    a("s_nop 7")
    a.stamp(9)
    if "cyc" in EXP: a.cstamp(2)
    a.label("L2_loop")
    OOL.clear()
    for u in range(4): iteration(a, u)
    a(f"v_add_u32 v{vA2}, {4*TILE}, v{vA2}")
    a(f"v_add_u32 v{vB0}, {4*TILE}, v{vB0}")
    a(f"v_add_u32 v{vB1}, {4*TILE}, v{vB1}")
    a(f"v_add_u32 v{vSR}, 512, v{vSR}")
    a(f"s_add_u32 s{S_WPH}, s{S_WPH}, 1")
    a(f"s_min_u32 s{S_WPH}, s{S_WPH}, 2")
    a("s_branch L2_loop")
    k = 0
    while k < len(OOL):
        lbl, fn = OOL[k]; k += 1
        a.label(lbl); fn(a)
    a.label("L2_win_end")
    a("s_setprio 0")
    a("s_waitcnt lgkmcnt(0)")
    a(f"s_cmp_eq_u32 s{S_TG}, s{FB}")
    a("s_cbranch_scc0 L2_we_nf")
    a("s_nop 3")
    flush(a, Z[0])
    a.label("L2_we_nf")
    for m in seg_mfmas(): a(m)
    a(f"s_add_u32 s{S_TG0}, s{S_TG0}, s{S_N}")
    a(f"s_cmp_ge_u32 s{S_TG0}, s{S_NT}")
    a("s_cbranch_scc1 L2_final")
    a("s_waitcnt vmcnt(0) lgkmcnt(0)")
    a("s_barrier")
    a(f"s_mov_b32 s{S_IB}, 0")
    zero_fill(a)
    rec_consts(a)
    rec_loads(a, "L2_ld2")
    a("s_branch L2_round_bar")

    a.label("L2_final")
    if "df" in EXP: a("s_sleep 64")
    if "df2" in EXP: a("s_sleep 64"); a("s_sleep 64")
    if "dv" in EXP:
        for k in range(512): a(f"v_exp_f32 v{48+k%8}, v{56+k%8}")
    a.stamp(10)
    if "cyc" in EXP:
        a.cstamp(3)
        a(f"s_mov_b32 s92, s{S_NT}")
    RQ, HQ, O, BR = 88, 120, 16, 40
    SP, SPO = R4, R5
    srd(a, SH, P_H, 0, MAT_BYTES)
    srd(a, SO, P_OUT, 0, MAT_BYTES)
    srd(a, SP, P_POS, 0, 60000)
    srd(a, SPO, P_OUT, MAT_BYTES, 60000)
    sR, sN, sTmp, sP = T[4], T[5], T[6], T[7]
    a("v_and_b32 v3, 15, v1")
    a("v_lshrrev_b32 v4, 4, v1")
    a("v_lshrrev_b32 v5, 3, v3")
    a("v_lshlrev_b32 v5, 12, v5")
    a("v_and_b32 v6, 7, v3")
    a("v_lshl_add_u32 v5, v6, 4, v5")
    a("v_lshl_add_u32 v5, v4, 7, v5")
    a(f"s_lshl_b32 s{t0}, s{W}, 9")
    a(f"v_add_u32 v5, s{t0}, v5")
    a(f"s_lshl_b32 s{sR}, s{S_G5}, 12")
    a(f"s_add_u32 s{sR}, s{sR}, {WS_R}")
    a("v_lshlrev_b32 v6, 9, v3")
    a("v_lshl_add_u32 v6, v4, 4, v6")
    a(f"s_lshl_b32 s{t0}, s{W}, 6")
    a(f"v_add_u32 v6, s{t0}, v6")
    a(f"s_mul_i32 s{sN}, s2, 20480")
    a("v_bfe_u32 v10, v1, 3, 1")
    a("v_mul_u32_u24 v10, 4088, v10")
    a("v_sub_u32 v11, v5, v10")
    a("v_sub_u32 v10, v6, v10")
    for nb in range(2):
        a(f"buffer_load_dwordx4 v[{RQ+4*nb}:{RQ+4*nb+3}], v5, s[{SWS}:{SWS+3}], s{sR} offen")
        a(f"s_add_u32 s{sR}, s{sR}, 8192")
    a(f"buffer_load_dwordx2 v[{RQ+8}:{RQ+9}], v11, s[{SWS}:{SWS+3}], s{sR} offen")
    for nb in range(2):
        a(f"s_add_u32 s{sTmp}, s{sN}, {nb*8192}")
        a(f"buffer_load_dwordx4 v[{HQ+4*nb}:{HQ+4*nb+3}], v6, s[{SH}:{SH+3}], s{sTmp} offen")
    a(f"s_add_u32 s{sTmp}, s{sN}, 16384")
    a(f"buffer_load_dwordx2 v[{HQ+8}:{HQ+9}], v10, s[{SH}:{SH+3}], s{sTmp} offen")
    a("v_lshlrev_b32 v7, 2, v1")
    a(f"s_mul_i32 s{sP}, s2, 240")
    a(f"buffer_load_dword v8, v7, s[{SP}:{SP+3}], s{sP} offen")
    flush(a, Z[1])
    a(f"v_mul_u32_u24 v9, {S_ROW}, v3")
    a("v_lshl_add_u32 v9, v4, 4, v9")
    a(f"v_add_u32 v9, {L_S}, v9")
    a("s_waitcnt lgkmcnt(0)")
    a("s_barrier")
    a.lds = []
    seq = [(nb, ks) for nb in range(3) for ks in range(8)]
    def bread(i):
        nb, ks = seq[i]; q = BR + 4 * (i % 6)
        a.ds(f"ds_read_b128 v[{q}:{q+3}], v9 offset:{nb*16*S_ROW + ks*64}", ("B", i))
    X, EE = 64, 72
    sM16, sLN2 = T[8], T[9]
    a(f"s_mov_b32 s{sM16}, 0xffff0000")
    a(f"s_mov_b32 s{sLN2}, {NLN2:#x}")
    def epilogue(nb):
        o = O + 8 * nb
        n = 4 if nb == 2 else 8
        ops = []
        if nb == 2:
            for k in range(4): ops.append(f"v_mov_b32_dpp v{o+k}, v{o+4+k} row_shr:8 row_mask:0xf bank_mask:0xc")
        for i in range(n // 2):
            ops.append(f"v_lshlrev_b32 v{X+2*i}, 16, v{RQ+4*nb+i}")
            ops.append(f"v_and_b32 v{X+2*i+1}, s{sM16}, v{RQ+4*nb+i}")
        for k in range(n): ops.append(f"v_add_f32 v{X+k}, v{X+k}, v{o+k}")
        for k in range(n): ops.append(f"v_exp_f32 v{EE+k}, v{X+k}")
        for k in range(n): ops.append(f"v_add_f32 v{EE+k}, 1.0, v{EE+k}")
        for k in range(n): ops.append(f"v_rcp_f32 v{EE+k}, v{EE+k}")
        for i in range(n // 2):
            ops.append(f"v_lshlrev_b32 v{o+2*i}, 16, v{HQ+4*nb+i}")
            ops.append(f"v_and_b32 v{o+2*i+1}, s{sM16}, v{HQ+4*nb+i}")
        for k in range(n): ops.append(f"v_mul_f32 v{X+k}, v{X+k}, v{EE+k}")
        for k in range(n): ops.append(f"v_fma_f32 v{X+k}, v{X+k}, s{sLN2}, v{o+k}")
        d = 100 + 4 * nb
        for i in range(n // 2): ops.append(f"v_cvt_pk_bf16_f32 v{d+i}, v{X+2*i}, v{X+2*i+1}")
        ops.append(f"s_add_u32 s{sTmp}, s{sN}, {nb*8192}")
        if nb == 2: ops.append(f"buffer_store_dwordx2 v[{d}:{d+1}], v10, s[{SO}:{SO+3}], s{sTmp} offen{OST()}")
        else: ops.append(f"buffer_store_dwordx4 v[{d}:{d+3}], v6, s[{SO}:{SO+3}], s{sTmp} offen{OST()}")
        return ops
    for i in range(5): bread(i)
    pend = []
    for i, (nb, ks) in enumerate(seq):
        q = BR + 4 * (i % 6)
        if ks == 3 and nb > 0:
            if nb == 1: a("s_waitcnt vmcnt(0)")
            pend = epilogue(nb - 1)
        a.wait_lds(("B", i))
        for cb in range(2):
            o = O + 8 * nb + 4 * cb; w = WH + 4 * (cb * 8 + ks)
            c = "0" if ks == 0 else f"v[{o}:{o+3}]"
            a(f"v_mfma_f32_16x16x32_bf16 v[{o}:{o+3}], v[{w}:{w+3}], v[{q}:{q+3}], {c}")
        if i + 5 < len(seq): bread(i + 5)
        left = 7 - ks if ks >= 3 else None
        if pend:
            k = -(-len(pend) // (8 - ks + 2))
            for op in pend[:k]: a(op)
            pend = pend[k:]
        if ks == 2:
            for op in pend: a(op)
            pend = []
    for op in pend: a(op)
    a.stamp(11)
    a("s_nop 7")
    for op in epilogue(2): a(op)
    a("s_mov_b64 exec, -1")
    a(f"s_cmp_lg_u32 s{W}, 0")
    a("s_cbranch_scc1 L2_done")
    a("s_mov_b32 exec_hi, 0x0fffffff")
    for k in range(2):
        a(f"v_lshlrev_b32 v10, 1, v1")
        if k: a("v_add_u32 v10, 1, v10")
        a("v_mul_u32_u24 v11, 171, v10")
        a("v_lshrrev_b32 v11, 9, v11")
        a("v_mul_u32_u24 v12, 3, v11")
        a("v_sub_u32 v12, v10, v12")
        a("v_lshrrev_b32 v13, 3, v11")
        a("v_lshlrev_b32 v13, 5, v13")
        a("v_lshl_add_u32 v13, v12, 3, v13")
        a("v_and_b32 v11, 7, v11")
        a("v_add3_u32 v13, v13, v11, 8")
        a("v_lshlrev_b32 v13, 2, v13")
        a(f"v_add_u32 v13, {L_T}, v13")
        a(f"ds_read_b32 v{14+k}, v13")
    a("v_lshlrev_b32 v10, 16, v8")
    a(f"v_and_b32 v11, s{sM16}, v8")
    a("s_waitcnt lgkmcnt(0)")
    a(f"v_fma_f32 v10, v14, s{sLN2}, v10")
    a(f"v_fma_f32 v11, v15, s{sLN2}, v11")
    a("v_cvt_pk_bf16_f32 v10, v10, v11")
    a(f"buffer_store_dword v10, v7, s[{SPO}:{SPO+3}], s{sP} offen")
    a.label("L2_done")
    if a.diag:
        a("s_waitcnt vmcnt(0)")
        a("s_memrealtime s[100:101]")
        a("s_waitcnt lgkmcnt(0)")
        a("s_mov_b32 s89, s100")
        a.dump_stamps(P_WS, WS_DIAG, W)
```

```python
from asmlib import *
from common import *
import p1

EXP = set()
CAP = 27
TILE = 2560
L_SRC = CAP * TILE
L_STAGE = L_SRC + 32 * 128
L_S = L_STAGE + 65536
S_ROW = 544
L_T = L_S + 40 * S_ROW
L_REL = L_T + 640
L_NG = L_REL + 1280
L_TB = L_NG + 32
W = S_WAVE
NRW = 7

SWS, SQ, SH, SO, STAB, SDBG = R0, R1, R2, R3, R4, R5
S_T, S_N, S_TG0, S_NT, S_WIN, S_TG = 64, 65, 66, 67, 68, 69
ZB, FB = 70, 75
S_STG, S_G5, S_IB, S_FIRST, S_WPH, S_M8 = 80, 81, 82, 83, 84, 86
S_RA, S_RB = 26, 27
S_HALF, S_HF = 85, 68
S_MK = 56
t0, t1, t2, t3 = T[0], T[1], T[2], T[3]

Z = (16, 32); E = 48; ACC = 64; M = 80; A0 = 88; A1 = 92; A2 = 96; BP = 100
I0 = 200; I1 = 204; B2 = 116; B2Q = 120; WXA = 108; WH = 136
ONE2 = 208; SR = 210; DV = 212
vA0, vA1, vA2, vB0, vB1, vSR, vLC, vS, vT = 214, 215, 216, 217, 218, 219, 220, 221, 222
vOS, vSL = 223, 224
vOS1, vSL1 = 12, 13
cA2, cB0, cB1 = 225, 226, 227
FL = 228
ZQ = 236
cSR = 240
NV = 241
QQ = 244

def zero_fill(a):
    for k in range(4): a(f"v_mov_b32 v{36+k}, 0")
    a("v_lshlrev_b32 v40, 4, v0")
    a("v_add_u32 v41, 0x10000, v40")
    for k in range(8): a(f"ds_write_b128 v40, v[36:39] offset:{k*8192}")
    a("ds_write_b128 v41, v[36:39]")

def fill_tables(a):
    zero_fill(a)
    a(f"s_cmp_eq_u32 s{W}, 0")
    a("s_cbranch_scc0 1f")
    a(f"v_add_u32 v41, {L_T}, v40")
    a("s_mov_b32 exec_lo, -1")
    a("s_mov_b32 exec_hi, 0xff")
    a("ds_write_b128 v41, v[36:39]")
    a("s_mov_b64 exec, -1")
    a.label("1")

def mf32(d, x, y, c): return f"v_mfma_f32_32x32x16_bf16 v[{d}:{d+15}], v[{x}:{x+3}], v[{y}:{y+3}], {c}"
def z_mfmas(zn):
    return [mf32(zn, A0, I0, "0"), mf32(zn, A1, I1, f"v[{zn}:{zn+15}]"), mf32(zn, A2, B2, f"v[{zn}:{zn+15}]")]

def dma(a, slot):
    a(f"v_add_u32 v{DV}, v{SR}, v{vLC}")
    a(f"v_add_u32 v{DV+1}, v{SR+1}, v{vLC}")
    a(f"s_add_u32 m0, s{S_STG}, {slot*2048}")
    a("s_nop 0")
    a(f"buffer_load_dwordx4 v{DV}, s[{SQ}:{SQ+3}], 0 offen lds")
    a(f"s_add_u32 m0, s{S_STG}, {slot*2048+1024}")
    a("s_nop 0")
    a(f"buffer_load_dwordx4 v{DV+1}, s[{SQ}:{SQ+3}], 0 offen lds")

def shift_q(a, base):
    for k in range(4): a(f"s_mov_b32 s{base+k}, s{base+k+1}")

def flush(a, tmp):
    for q in range(8): a(f"v_cvt_pk_bf16_f32 v{FL+q}, v{ACC+2*q}, v{ACC+2*q+1}")
    a(f"s_mov_b64 exec, s[{S_M8}:{S_M8+1}]")
    a(f"ds_write_b128 v{vS}, v[{FL}:{FL+3}]")
    a(f"ds_write_b128 v{vS}, v[{FL+4}:{FL+7}] offset:16")
    a("s_mov_b64 exec, -1")
    a(mf32(tmp, WXA, FL, "0"))
    a(mf32(tmp, WXA + 4, FL + 4, f"v[{tmp}:{tmp+15}]"))
    a(mf32(ACC, ZQ, ZQ, "0"))
    a(f"v_add_u32 v{vS}, {8*S_ROW}, v{vS}")
    shift_q(a, FB)
    a("s_nop 6")
    a("s_mov_b32 exec_hi, 0")
    a(f"ds_add_f32 v{vT}, v{tmp}")
    a("s_mov_b64 exec, -1")
    a(f"v_add_u32 v{vT}, 128, v{vT}")

def rotate_b2(a):
    if "oldrot" in EXP:
        for q in range(4): a(f"v_mov_b32 v{B2+q}, v{B2Q+q}")
        for q in range(12): a(f"v_mov_b32 v{B2Q+q}, v{B2Q+4+q}")
        return
    for q in range(0, 4, 2): a(f"v_pk_mov_b32 v[{B2+q}:{B2+q+1}], v[{B2Q+q}:{B2Q+q+1}], v[{B2Q+q}:{B2Q+q+1}] op_sel:[0,1]")
    for q in range(0, 12, 2): a(f"v_pk_mov_b32 v[{B2Q+q}:{B2Q+q+1}], v[{B2Q+4+q}:{B2Q+4+q+1}], v[{B2Q+4+q}:{B2Q+4+q+1}] op_sel:[0,1]")

def rec_consts(a):
    a("v_lshrrev_b32 v44, 4, v1")
    a(f"s_lshl_b32 s{t0}, s{W}, 2")
    a(f"v_add_u32 v44, s{t0}, v44")
    a(f"s_mov_b32 s{t0}, {CH_STRIDE*16}")
    a(f"v_mul_lo_u32 v42, s{t0}, v44")
    a(f"s_movk_i32 s{t0}, {CH_STRIDE*4}")
    a(f"v_mul_lo_u32 v43, s{t0}, v44")
    a("v_lshlrev_b32 v40, 2, v44")
    a("v_and_b32 v41, 15, v1")

OSL = ((vOS, vSL), (vOS1, vSL1))

def rec_loads(a, lbl):
    for it in range(4):
        p, r = it >> 1, it & 1
        os_, sl_ = OSL[r]
        a(f"v_add_u32 v36, s{S_IB}, v41")
        if p: a("v_add_u32 v36, 16, v36")
        a(f"v_cmp_lt_u32 s[{S_MK+2*it}:{S_MK+2*it+1}], v36, v{sl_}")
        a(f"v_add_u32 v36, v36, v{os_}")
        a(f"v_lshl_add_u32 v37, v36, 4, v42")
        a(f"v_lshl_add_u32 v38, v36, 2, v43")
        a(f"s_mov_b32 s{S_RA}, {WS_RECA + r*32*CH_STRIDE*16}")
        a(f"s_mov_b32 s{S_RB}, {WS_RECB + r*32*CH_STRIDE*4}")
        a(f"s_mov_b64 exec, s[{S_MK+2*it}:{S_MK+2*it+1}]")
        a(f"s_cbranch_execz {lbl}_{it}")
        a(f"buffer_load_dwordx4 v[{16+4*it}:{19+4*it}], v37, s[{SWS}:{SWS+3}], s{S_RA} offen sc1")
        a(f"buffer_load_dword v{32+it}, v38, s[{SWS}:{SWS+3}], s{S_RB} offen sc1")
        a.label(f"{lbl}_{it}")
        a("s_mov_b64 exec, -1")

def build_recs(a, lbl):
    a("s_waitcnt vmcnt(0)")
    if "chain" in EXP and lbl == "L2_b0": a.stamp(0)
    a("v_mov_b32 v58, 0x3f80")
    for it in range(4):
        RB = 32 + it
        r = it & 1
        a(f"s_mov_b64 exec, s[{S_MK+2*it}:{S_MK+2*it+1}]")
        a(f"s_cbranch_execz {lbl}_a{it}")
        a(f"v_lshrrev_b32 v44, 17, v{RB}")
        a(f"v_subrev_u32 v44, s{S_G5}, v44")
        a(f"v_lshl_add_u32 v45, v44, 8, v40")
        a(f"v_add_u32 v45, {L_REL + 128*r}, v45")
        a(f"ds_read_b32 v{2+2*it}, v45")
        a(f"v_lshl_add_u32 v47, v44, 2, v59")
        a(f"ds_read_b32 v{3+2*it}, v47")
        a.label(f"{lbl}_a{it}")
    a("s_mov_b64 exec, -1")
    a(f"s_lshl_b32 s{t1}, s{S_TG0}, 5")
    a(f"s_sub_u32 s{t0}, s{S_IB}, s{t1}")
    a(f"v_add_u32 v49, s{t0}, v41")
    a(f"s_movk_i32 s{t1}, {CAP*32}")
    a("s_waitcnt lgkmcnt(0)")
    for it in range(4):
        RA, RB = 16 + 4 * it, 32 + it
        p, r = it >> 1, it & 1
        a(f"s_mov_b64 exec, s[{S_MK+2*it}:{S_MK+2*it+1}]")
        a(f"s_cbranch_execz {lbl}_{it}")
        a(f"v_add3_u32 v44, v49, v{2+2*it}, v{3+2*it}")
        a(f"v_add_u32 v44, v44, v{OSL[r][0]}")
        if p: a("v_add_u32 v44, 16, v44")
        a(f"v_and_b32 v50, 0x3fff, v{RB}")
        a(f"v_cmp_gt_u32 vcc, s{t1}, v44")
        a("v_lshlrev_b32 v50, 9, v50")
        a("v_add_u32 v50, 512, v50")
        a("s_and_b64 exec, exec, vcc")
        a(f"s_cbranch_execz {lbl}_{it}")
        a("v_lshlrev_b32 v51, 2, v44")
        a(f"v_add_u32 v51, {L_SRC}, v51")
        a("ds_write_b32 v51, v50")
        a("v_lshrrev_b32 v52, 5, v44")
        a(f"v_mul_u32_u24 v52, {TILE}, v52")
        a("v_and_b32 v53, 31, v44")
        a("v_lshl_add_u32 v55, v53, 4, v52")
        a(f"ds_write_b128 v55, v[{RA}:{RA+3}] offset:2048")
        a(f"v_bfe_u32 v54, v{RB}, 14, 3")
        a("v_lshl_add_u32 v52, v53, 6, v52")
        a("v_lshl_add_u32 v52, v54, 1, v52")
        a("v_bfe_u32 v53, v53, 2, 2")
        a("v_lshl_add_u32 v54, v53, 4, v52")
        a("ds_write_b16 v54, v58")
        a("v_xor_b32 v55, 1, v53")
        a("v_lshl_add_u32 v55, v55, 4, v52")
        a(f"ds_write_b16_d16_hi v55, v{RA+2}")
        a("v_xor_b32 v56, 2, v53")
        a("v_lshl_add_u32 v56, v56, 4, v52")
        a(f"ds_write_b16 v56, v{RA+3}")
        a("v_xor_b32 v57, 3, v53")
        a("v_lshl_add_u32 v57, v57, 4, v52")
        a(f"ds_write_b16_d16_hi v57, v{RA+3}")
        a.label(f"{lbl}_{it}")
    a("s_mov_b64 exec, -1")

def poll(a, lbl, srdreg, voff, want, sleep):
    a(f"s_mov_b32 s{t1}, 0x8000")
    a("s_mov_b32 exec_lo, 1")
    a("s_mov_b32 exec_hi, 0")
    a.label(lbl)
    a(f"buffer_load_dword v10, v{voff}, s[{srdreg}:{srdreg+3}], 0 offen sc1")
    a("s_waitcnt vmcnt(0)")
    a(f"v_readfirstlane_b32 s{t0}, v10")
    a(f"s_and_b32 s{t0}, s{t0}, {want:#x}")
    a(f"s_cmp_eq_u32 s{t0}, {want:#x}")
    a(f"s_cbranch_scc1 {lbl}_ok")
    a(f"s_sub_u32 s{t1}, s{t1}, 1")
    a(f"s_cmp_eq_u32 s{t1}, 0")
    a(f"s_cbranch_scc1 {lbl}_ok")
    a(f"s_sleep {sleep}")
    a(f"s_branch {lbl}")
    a.label(f"{lbl}_ok")
    a("s_mov_b64 exec, -1")

def mailbox(a, word):
    srd(a, R4, P_WS, WS_MBX, 2048)
    a(f"s_and_b32 s{t2}, s2, 15")
    a(f"s_lshl_b32 s{t2}, s{t2}, 7")
    a(f"s_add_u32 s{t2}, s{t2}, {4*word}")
    a(f"v_mov_b32 v8, s{t2}")

def a_reads(u1):
    sl = u1 % 4
    return [f"ds_read_b128 v[{A0}:{A0+3}], v{vA0} offset:{sl*2048}",
            f"ds_read_b128 v[{A1}:{A1+3}], v{vA1} offset:{sl*2048}",
            f"ds_read_b128 v[{A2}:{A2+3}], v{vA2} offset:{u1*TILE}"]
def bp_reads(u):
    return [f"ds_read_b64_tr_b16 v[{BP}:{BP+1}], v{vB0} offset:{u*TILE}",
            f"ds_read_b64_tr_b16 v[{BP+2}:{BP+3}], v{vB1} offset:{u*TILE}",
            f"ds_read_b64_tr_b16 v[{BP+4}:{BP+5}], v{vB0} offset:{u*TILE+1024}",
            f"ds_read_b64_tr_b16 v[{BP+6}:{BP+7}], v{vB1} offset:{u*TILE+1024}"]
def seg_mfmas():
    return [mf32(ACC, M, BP, f"v[{ACC}:{ACC+15}]"), mf32(ACC, M + 4, BP + 4, f"v[{ACC}:{ACC+15}]")]

OOL = []
def OST():
    return " sc1" if "osc1" in EXP else " nt" if "ont" in EXP else " sc0 sc1" if "osc01" in EXP else ""

def first_pass_wait(a, lbl, u):
    a(f"s_cmp_eq_u32 s{S_WPH}, 0")
    a(f"s_cbranch_scc0 {lbl}")
    a(f"s_waitcnt vmcnt({4*u})")
    a.label(lbl)

def iteration(a, u):
    zc, zn = Z[u & 1], Z[(u + 1) & 1]
    sl = (u + 1) % 4
    a(f"s_setprio {3-u}")
    a("s_waitcnt lgkmcnt(0)")
    a(f"s_cmp_eq_u32 s{S_TG}, s{FB}")
    a(f"s_cbranch_scc1 L2_fl_{u}")
    a.label(f"L2_fl_{u}_r")
    OOL.append((f"L2_fl_{u}", lambda a, zn=zn, u=u: (first_pass_wait(a, f"L2_flw_{u}", u), flush(a, zn), a(f"s_branch L2_fl_{u}_r"))))
    a(f"s_cmp_eq_u32 s{S_TG}, s{ZB}")
    a(f"s_cbranch_scc1 L2_rt_{u}")
    a.label(f"L2_rt_{u}_r")
    def rt(a, u=u):
        first_pass_wait(a, f"L2_rtw_{u}", u)
        rotate_b2(a); shift_q(a, ZB)
        a(f"s_and_b32 s{S_HALF}, s{S_HF}, 1")
        a(f"s_lshr_b32 s{S_HF}, s{S_HF}, 1")
        a(f"s_cmp_eq_u32 s{S_HALF}, 1")
        a(f"s_cbranch_scc0 L2_rt_{u}_r")
        a(f"s_branch L2_ha_{u}")
    OOL.append((f"L2_rt_{u}", rt))
    zm = z_mfmas(zn); sm = seg_mfmas(); bp = bp_reads(u); ar = a_reads(u + 2)
    def run(a, op, regs, att):
        for i, k in enumerate(regs):
            a(f"{op} v{E+k}, v{(zc if op == 'v_exp_f32' else E)+k}")
            for x in att.get(i, []): a(x)
    def pk(a, op, lo, n=8):
        for k in range(lo, lo + n, 2):
            other = f"v[{ONE2}:{ONE2+1}]" if op == "v_pk_add_f32" else f"v[{zc+k}:{zc+k+1}]"
            a(f"{op} v[{E+k}:{E+k+1}], v[{E+k}:{E+k+1}], {other}")
    def cvt(a, lo, n=8):
        for k in range(lo, lo + n, 2): a(f"v_cvt_pk_bf16_f32 v{M+k//2}, v{E+k}, v{E+k+1}")
    def parts(a, x):
        dv0 = [f"v_add_u32 v{DV}, v{SR}, v{vLC}", f"s_add_u32 m0, s{S_STG}, {sl*2048}"]
        dm0 = [f"v_add_u32 v{DV+1}, v{SR+1}, v{vLC}", f"buffer_load_dwordx4 v{DV}, s[{SQ}:{SQ+3}], 0 offen lds"]
        m1 = [f"s_add_u32 m0, s{S_STG}, {sl*2048+1024}"]
        dm1 = [f"buffer_load_dwordx4 v{DV+1}, s[{SQ}:{SQ+3}], 0 offen lds"]
        wlc = [f"s_cmp_lt_u32 s{S_WPH}, 2", f"s_cbranch_scc1 L2_wl{x}_{u}", f"L2_wl{x}_{u}_r:"]
        cnt = [f"s_add_u32 s{S_T}, s{S_T}, 1", f"s_add_u32 s{S_TG}, s{S_TG}, 1"]
        wvc = [f"s_cmp_lt_u32 s{S_WPH}, 3", f"s_cbranch_scc1 L2_wv{x}_{u}", "s_waitcnt vmcnt(6)", f"L2_wv{x}_{u}_r:"]
        srr = [f"ds_read2_b32 v[{SR}:{SR+1}], v{vSR} offset0:{u*32} offset1:{u*32+16}"]
        def wl(a, u=u):
            a("v_lshlrev_b32 v5, 4, v1")
            a(f"s_lshl_b32 s{t0}, s{W}, 14")
            a(f"s_add_u32 s{t0}, s{t0}, {WS_WHP}")
            a(f"s_cmp_eq_u32 s{S_WPH}, 0")
            a(f"s_cbranch_scc0 L2_wl{x}_{u}_1")
            for ps in range(2):
                if ps: a.label(f"L2_wl{x}_{u}_1")
                a(f"s_add_u32 s{t0}, s{t0}, {(8*ps + 2*u)*1024}")
                for q in (8*ps + 2*u, 8*ps + 2*u + 1):
                    a(f"buffer_load_dwordx4 v[{WH+4*q}:{WH+4*q+3}], v5, s[{SWS}:{SWS+3}], s{t0} offen offset:{(q%2)*1024}")
                a(f"s_branch L2_wl{x}_{u}_r")
        OOL.append((f"L2_wl{x}_{u}", wl))
        def wv(a, u=u):
            a(f"s_cmp_eq_u32 s{S_WPH}, 0")
            a(f"s_cbranch_scc1 L2_wv{x}_{u}_0")
            a(f"s_cmp_eq_u32 s{S_WPH}, 1")
            a(f"s_cbranch_scc1 L2_wv{x}_{u}_1")
            a(f"s_waitcnt vmcnt({(12, 10, 8, 6)[u]})")
            a(f"s_branch L2_wv{x}_{u}_r")
            a.label(f"L2_wv{x}_{u}_1")
            a("s_waitcnt vmcnt(14)")
            a(f"s_branch L2_wv{x}_{u}_r")
            a.label(f"L2_wv{x}_{u}_0")
            a(f"s_waitcnt vmcnt({(14, 16, 18, 14)[u]})")
            a(f"s_branch L2_wv{x}_{u}_r")
        OOL.append((f"L2_wv{x}_{u}", wv))
        return dv0, dm0, m1, dm1, wlc, cnt, wvc, srr
    def first_half(a, n, x):
        dv0, dm0, m1, dm1, wlc, cnt, wvc, srr = parts(a, x)
        if n == 8:
            ae = {0: [sm[0]], 1: dv0, 2: dm0, 3: [bp[0], bp[1]], 4: [zm[0]], 5: m1, 6: dm1, 7: wlc}
            ar_ = {0: [zm[1]], 1: cnt, 4: [zm[2]], 5: wvc + [ar[0]], 6: [ar[1], ar[2]], 7: srr}
        else:
            ae = {0: [sm[0]] + dv0, 1: dm0 + [bp[0], bp[1]], 2: [zm[0]] + m1, 3: dm1 + wlc}
            ar_ = {0: [zm[1]] + cnt, 2: [zm[2]], 3: wvc + [ar[0], ar[1], ar[2]] + srr}
        run(a, "v_exp_f32", range(0, n), ae)
        pk(a, "v_pk_add_f32", 0, n)
        run(a, "v_rcp_f32", range(0, n), ar_)
        pk(a, "v_pk_mul_f32", 0, n)
        cvt(a, 0, n)
    def hf(a, u=u):
        a(sm[1]); a(f"s_mov_b32 s{S_HALF}, 0"); a(bp[2]); a(bp[3])
        a(f"s_branch L2_hf_{u}_r")
    OOL.append((f"L2_hf_{u}", hf))
    def ha(a, u=u):
        first_half(a, 8, "h")
        a(f"s_branch L2_hf_{u}")
    OOL.append((f"L2_ha_{u}", ha))
    dv0, dm0, m1, dm1, wlc, cnt, wvc, srr = parts(a, "")
    run(a, "v_exp_f32", range(0, 16), {0: [sm[0]], 4: [sm[1]]})
    for x in cnt: a(x)
    a(mf32(E, QQ, QQ, f"v[{E}:{E+15}]"))
    for x in [bp[0], bp[1]] + dv0 + dm0 + [bp[2], bp[3]] + m1 + srr + dm1 + wlc + [zm[0]] + wvc: a(x)
    run(a, "v_rcp_f32", range(0, 16), {2: [zm[1]], 6: [zm[2]], 7: [ar[0], ar[1], ar[2]]})
    pk(a, "v_pk_mul_f32", 0, 16)
    cvt(a, 0, 16)
    a.label(f"L2_hf_{u}_r")
    a(f"s_cmp_eq_u32 s{S_T}, s{S_N}")
    a("s_cbranch_scc1 L2_win_end")

def constants_a(a, b=44, mk=52):
    a(f"v_and_b32 v{b+0}, 31, v1")
    a(f"v_lshrrev_b32 v{b+1}, 5, v1")
    a(f"v_mov_b32 v{ONE2}, 1.0")
    a(f"v_mov_b32 v{ONE2+1}, 1.0")
    for q in range(4): a(f"v_mov_b32 v{ZQ+q}, 0")
    a(f"s_mov_b32 s{S_M8}, 0xff")
    a(f"s_mov_b32 s{S_M8+1}, 0xff")
    a(f"v_lshlrev_b32 v{b+2}, 3, v{b+1}")
    a(f"v_sub_u32 v{b+2}, v{b+0}, v{b+2}")
    a(f"v_mov_b32 v{b+4}, 0x3f80")
    a(f"v_mov_b32 v{b+5}, 0x3f800000")
    a(f"v_and_b32 v{b+3}, 1, v{b+2}")
    a(f"v_cmp_eq_u32 vcc, 1, v{b+3}")
    a(f"v_lshrrev_b32 v{b+6}, 1, v{b+2}")
    a(f"v_add_u32 v{b+7}, -8, v{b+6}")
    a(f"v_cndmask_b32 v{b+3}, v{b+4}, v{b+5}, vcc")
    for I, r in ((I0, b + 6), (I1, b + 7)):
        for q0 in (0, 2):
            a(f"v_cmp_eq_u32 s[{mk}:{mk+1}], {q0}, v{r}")
            a(f"v_cmp_eq_u32 s[{mk+2}:{mk+3}], {q0+1}, v{r}")
            a("s_nop 0")
            a(f"v_cndmask_b32 v{I+q0}, 0, v{b+3}, s[{mk}:{mk+1}]")
            a(f"v_cndmask_b32 v{I+q0+1}, 0, v{b+3}, s[{mk+2}:{mk+3}]")

def constants_b(a, b=44):
    a(f"v_and_b32 v{b+0}, 31, v1")
    a(f"v_lshrrev_b32 v{b+1}, 5, v1")
    a(f"s_lshl_b32 s{S_STG}, s{W}, 13")
    a(f"s_add_u32 s{S_STG}, s{S_STG}, {L_STAGE}")
    a(f"v_bfe_u32 v{b+2}, v{b+0}, 2, 2")
    a(f"v_xor_b32 v{b+3}, v{b+1}, v{b+2}")
    a(f"v_lshlrev_b32 v{b+4}, 6, v{b+0}")
    a(f"v_add_u32 v{b+5}, s{S_STG}, v{b+4}")
    a(f"v_lshl_add_u32 v{vA0}, v{b+3}, 4, v{b+5}")
    a(f"v_xor_b32 v{b+3}, 2, v{b+3}")
    a(f"v_lshl_add_u32 v{vA1}, v{b+3}, 4, v{b+5}")
    a(f"v_lshlrev_b32 v{b+3}, 4, v{b+0}")
    a(f"v_add_u32 v{b+3}, 2048, v{b+3}")
    a(f"v_lshl_add_u32 v{b+4}, v{b+2}, 4, v{b+4}")
    a(f"v_cmp_eq_u32 vcc, 1, v{b+1}")
    a(f"v_bfe_u32 v{b+2}, v1, 2, 2")
    a(f"v_lshl_add_u32 v{b+2}, v{b+1}, 2, v{b+2}")
    a(f"v_cndmask_b32 v{cA2}, v{b+3}, v{b+4}, vcc")
    a(f"v_lshlrev_b32 v{b+2}, 6, v{b+2}")
    a(f"v_and_b32 v{b+3}, 1, v1")
    a(f"v_lshl_add_u32 v{b+2}, v{b+3}, 3, v{b+2}")
    a(f"v_bfe_u32 v{b+3}, v1, 4, 1")
    a(f"v_lshlrev_b32 v{b+3}, 1, v{b+3}")
    a(f"v_bfe_u32 v{b+4}, v1, 1, 1")
    a(f"v_or_b32 v{b+3}, v{b+3}, v{b+4}")
    a(f"v_xor_b32 v{b+3}, v{b+3}, v{b+1}")
    a(f"v_lshl_add_u32 v{cB0}, v{b+3}, 4, v{b+2}")
    a(f"v_xor_b32 v{b+3}, 2, v{b+3}")
    a(f"v_lshl_add_u32 v{b+4}, v{b+3}, 4, v{b+2}")
    a(f"v_add_u32 v{cB1}, 512, v{b+4}")
    a(f"v_and_b32 v{b+2}, 3, v1")
    a(f"v_bfe_u32 v{b+3}, v1, 4, 2")
    a(f"v_xor_b32 v{b+2}, v{b+2}, v{b+3}")
    a(f"v_lshlrev_b32 v{b+2}, 4, v{b+2}")
    a(f"s_lshl_b32 s{t0}, s{W}, 6")
    a(f"s_sub_u32 s{t1}, s{t0}, 512")
    a(f"v_add_u32 v{vLC}, s{t1}, v{b+2}")
    a(f"v_and_b32 v{b+2}, 7, v1")
    a(f"v_mul_u32_u24 v{b+2}, {S_ROW}, v{b+2}")
    a(f"v_lshl_add_u32 v{b+2}, v{b+1}, 5, v{b+2}")
    a(f"s_add_u32 s{t0}, s{t0}, {L_S}")
    a(f"v_add_u32 v{vS}, s{t0}, v{b+2}")
    a(f"v_lshlrev_b32 v{b+2}, 2, v{b+0}")
    a(f"v_add_u32 v{vT}, {L_T}, v{b+2}")
    a(f"v_lshrrev_b32 v{b+2}, 2, v1")
    a(f"v_lshlrev_b32 v{b+2}, 2, v{b+2}")
    a(f"v_add_u32 v{cSR}, {L_SRC}, v{b+2}")

def phase2(a):
    def entry(a):
        a("v_and_b32 v1, 63, v0")
        a(f"s_cmp_eq_u32 s{W}, 0")
        a("s_cbranch_scc0 2f")
        p1.arrive_issue(a, f"s{p1.S_INC}")
        a.label("2")
        srd(a, SWS, P_WS, 0, WS_USED)
        a(f"s_mul_i32 s{S_G5}, s2, 5")
    def table_load(a):
        srd(a, STAB, P_WS, WS_TAB, NCH * TAB_STRIDE)
        a("v_lshlrev_b32 v2, 12, v1")
        a(f"s_lshl_b32 s{t0}, s2, 4")
        a(f"buffer_load_dwordx3 v[60:62], v2, s[{STAB}:{STAB+3}], s{t0} offen sc1")
    def t_zero(a):
        a(f"v_add_u32 v41, {L_T}, v40")
        a("s_mov_b32 exec_lo, -1")
        a("s_mov_b32 exec_hi, 0xff")
        a("ds_write_b128 v41, v[36:39]")
        a("s_mov_b64 exec, -1")
    a.label("L_phase2_fast")
    a.stamp(5)
    entry(a)
    table_load(a)
    a(f"s_cmp_eq_u32 s{W}, 0")
    a("s_cbranch_scc0 L2_tab")
    p1.arrive_finish(a, f"s{p1.S_INC}", "f")
    a("s_branch L2_tab")
    a.label("L_phase2")
    a.stamp(5)
    entry(a)
    a(f"s_cmp_eq_u32 s{W}, 0")
    a("s_cbranch_scc0 L2_w1")
    p1.arrive_finish(a, f"s{p1.S_INC}", "a")
    a("s_and_b32 s52, s85, 1")
    a("s_cmp_eq_u32 s52, 1")
    a("s_cbranch_scc1 L2_inited")
    srd(a, SDBG, P_DBG, 0, 256)
    a("v_mov_b32 v8, 0")
    poll(a, "L2_poll0", SDBG, 8, 1, 16)
    a("s_mov_b32 s85, 0")
    a.label("L2_inited")
    a("s_and_b32 s52, s85, 0xffff")
    a(f"s_cmp_eq_u32 s52, {K1:#x}")
    a("s_cbranch_scc1 L2_w1")
    mailbox(a, 0)
    poll(a, "L2_poll1", R4, 8, 1, 2)
    a.label("L2_w1")
    a("s_barrier")
    table_load(a)
    a.label("L2_tab")
    a.stamp(6)
    a(f"s_mov_b32 s{S_IB}, 0")
    a(f"s_mov_b32 s{S_TG0}, 0")
    a(f"s_mov_b32 s{S_FIRST}, 1")
    a(mf32(ACC, ZQ, ZQ, "0"))
    a("s_waitcnt vmcnt(0)")
    if "chain" in EXP: a.stamp(2)
    a(f"v_and_b32 v46, 0xffff, v60")
    a(f"v_lshrrev_b32 v47, 16, v62")
    a(f"v_sub_u32 v47, v47, v46")
    rec_consts(a)
    a("v_add_u32 v45, 128, v40")
    a(f"ds_bpermute_b32 v{vOS}, v40, v46")
    a(f"ds_bpermute_b32 v{vSL}, v40, v47")
    a(f"ds_bpermute_b32 v{vOS1}, v45, v46")
    a(f"ds_bpermute_b32 v{vSL1}, v45, v47")
    a("s_waitcnt lgkmcnt(0)")
    rec_loads(a, "L2_ld0")
    if "chain" in EXP: a.stamp(3)
    a(f"s_cmp_ge_u32 s{W}, 5")
    a("s_cbranch_scc1 L2_noscan")
    a(f"s_cmp_lt_u32 s{W}, 2")
    a("s_cbranch_scc1 L2_sel")
    a("v_mov_b32 v60, v61")
    a("v_mov_b32 v61, v62")
    a(f"s_cmp_lt_u32 s{W}, 4")
    a("s_cbranch_scc1 L2_sel")
    a("v_mov_b32 v60, v61")
    a.label("L2_sel")
    a(f"s_and_b32 s{t0}, s{W}, 1")
    a(f"s_lshl_b32 s{t0}, s{t0}, 4")
    a(f"v_alignbit_b32 v61, v61, v60, s{t0}")
    a("v_and_b32 v60, 0xffff, v61")
    a("v_lshrrev_b32 v61, 16, v61")
    a("v_sub_u32 v62, v61, v60")
    a("v_mov_b32 v63, v62")
    for sh in (1, 2, 4, 8):
        a("s_nop 1")
        a(f"v_add_u32_dpp v63, v63, v63 row_shr:{sh} row_mask:0xf bank_mask:0xf")
    a("s_nop 1")
    a("v_add_u32_dpp v63, v63, v63 row_bcast:15 row_mask:0xa bank_mask:0xf")
    a("s_nop 1")
    a("v_add_u32_dpp v63, v63, v63 row_bcast:31 row_mask:0xc bank_mask:0xf")
    a("v_sub_u32 v62, v63, v62")
    a("v_sub_u32 v62, v62, v60")
    a(f"s_lshl_b32 s{t0}, s{W}, 8")
    a(f"s_add_u32 s{t0}, s{t0}, {L_REL}")
    a("v_lshlrev_b32 v45, 2, v1")
    a(f"v_add_u32 v45, s{t0}, v45")
    a("ds_write_b32 v45, v62")
    a(f"s_lshl_b32 s{t0}, s{W}, 2")
    a(f"s_add_u32 s{t0}, s{t0}, {L_NG}")
    a(f"v_mov_b32 v45, s{t0}")
    a("s_mov_b32 exec_lo, 0")
    a("s_mov_b32 exec_hi, 0x80000000")
    a("ds_write_b32 v45, v63")
    a("s_mov_b64 exec, -1")
    a.label("L2_noscan")
    a.label("L2_round_bar")
    a("s_waitcnt lgkmcnt(0)")
    a("s_barrier")
    a.stamp(7)
    a(f"s_cmp_eq_u32 s{S_FIRST}, 0")
    a("s_cbranch_scc1 L2_have_tb")
    a("v_lshlrev_b32 v45, 2, v1")
    a(f"v_add_u32 v45, {L_NG}, v45")
    a("s_mov_b32 exec_lo, 0xff")
    a("s_mov_b32 exec_hi, 0")
    a("ds_read_b32 v46, v45")
    a("s_waitcnt lgkmcnt(0)")
    a("v_max_u32 v46, 1, v46")
    a("v_add_u32 v47, -1, v46")
    a("v_and_b32 v47, 31, v47")
    a("v_cmp_gt_u32 vcc, 16, v47")
    a("v_add_u32 v46, 31, v46")
    a("v_lshrrev_b32 v46, 5, v46")
    a(f"s_and_b32 s{S_HF}, vcc_lo, 0x1f")
    NTG = (T[0], T[1], T[2], T[3], 85)
    for g in range(5): a(f"v_readlane_b32 s{NTG[g]}, v46, {g}")
    a(f"s_mov_b32 s{ZB}, s{NTG[0]}")
    for g in range(1, 4): a(f"s_add_u32 s{ZB+g}, s{ZB+g-1}, s{NTG[g]}")
    a(f"s_add_u32 s{S_NT}, s{ZB+3}, s85")
    a(f"s_mov_b32 s{ZB+4}, s{S_NT}")
    a(f"s_mov_b32 s{S_HALF}, 0")
    a("v_mov_b32 v46, 0")
    for g in range(1, 5):
        a(f"s_lshl_b32 s{t0}, s{ZB+g-1}, 5")
        a(f"v_writelane_b32 v46, s{t0}, {g}")
    for k in range(4): a(f"s_add_u32 s{FB+k}, s{ZB+k}, 1")
    a(f"s_mov_b32 s{FB+4}, 0x7ffffff0")
    for k in range(5): a(f"s_sub_u32 s{ZB+k}, s{ZB+k}, 1")
    a(f"s_lshl_b32 s{t0}, s{W}, 5")
    a(f"s_add_u32 s{t0}, s{t0}, {L_TB}")
    a("v_lshlrev_b32 v45, 2, v1")
    a(f"v_add_u32 v45, s{t0}, v45")
    a("ds_write_b32 v45, v46")
    a("s_mov_b64 exec, -1")
    a.label("L2_have_tb")
    a(f"s_lshl_b32 s{t0}, s{W}, 5")
    a(f"s_add_u32 s{t0}, s{t0}, {L_TB}")
    a(f"v_mov_b32 v59, s{t0}")
    a("s_waitcnt lgkmcnt(0)")
    if "chain" in EXP: a.stamp(4)
    build_recs(a, "L2_b0")
    a.label("L2_more")
    a(f"s_add_u32 s{S_IB}, s{S_IB}, 32")
    a(f"v_cmp_lt_u32 vcc, s{S_IB}, v{vSL}")
    a(f"v_cmp_lt_u32 s[52:53], s{S_IB}, v{vSL1}")
    a("s_or_b64 vcc, vcc, s[52:53]")
    a("s_cbranch_vccz L2_built0")
    rec_loads(a, "L2_ld1")
    build_recs(a, "L2_b1")
    a("s_branch L2_more")
    a.label("L2_built0")
    if "chain" in EXP: a.stamp(11)
    a(f"s_cmp_eq_u32 s{W}, 7")
    a("s_cbranch_scc0 L2_built")
    a(f"s_cmp_eq_u32 s{S_FIRST}, 0")
    a("s_cbranch_scc1 L2_built")
    mailbox(a, 1)
    poll(a, "L2_poll2", R4, 8, 1, 2)
    a.label("L2_built")
    a("s_waitcnt vmcnt(0) lgkmcnt(0)")
    a("s_barrier")
    a.stamp(8)
    a("s_setprio 3")
    a(f"v_mov_b32 v{vSR}, v{cSR}")
    for k in range(4):
        a(f"ds_read2_b32 v[{E+2*k}:{E+2*k+1}], v{vSR} offset0:{k*32} offset1:{k*32+16}")
    a(f"ds_read2_b32 v[{SR}:{SR+1}], v{vSR} offset0:128 offset1:144")
    a(f"s_cmp_eq_u32 s{S_FIRST}, 0")
    a("s_cbranch_scc1 L2_nob2")
    srd(a, SQ, P_WS, WS_Q, MAT_BYTES)
    a("v_and_b32 v3, 31, v1")
    a("v_lshrrev_b32 v4, 5, v1")
    a(f"s_lshl_b32 s{t0}, s{W}, 9")
    a("v_lshlrev_b32 v5, 4, v3")
    a(f"v_add_u32 v5, s{t0}, v5")
    a(f"s_lshl_b32 s{t1}, s{S_G5}, 12")
    a(f"s_add_u32 s{t1}, s{t1}, {WS_P - WS_WX}")
    a(f"v_mul_lo_u32 v6, s{t1}, v4")
    a("v_add_u32 v5, v5, v6")
    a(f"v_add_u32 v5, {WS_WX}, v5")
    a("v_lshlrev_b32 v6, 12, v4")
    a(f"buffer_load_dwordx4 v[{B2}:{B2+3}], v5, s[{SWS}:{SWS+3}], 0 offen")
    a.label("L2_nob2")
    a("s_waitcnt lgkmcnt(1)")
    def dma_k(k):
        a(f"v_add_u32 v{E+k}, v{E+k}, v{vLC}")
        a(f"s_add_u32 m0, s{S_STG}, {k*1024}")
        a("s_nop 0")
        a(f"buffer_load_dwordx4 v{E+k}, s[{SQ}:{SQ+3}], 0 offen lds")
    for k in range(4): dma_k(k)
    a(f"s_sub_u32 s{S_N}, s{S_NT}, s{S_TG0}")
    a(f"s_min_u32 s{S_N}, s{S_N}, {CAP}")
    a(f"s_mov_b32 s{S_T}, 0")
    a(f"s_mov_b32 s{S_TG}, s{S_TG0}")
    a(f"v_mov_b32 v{vA2}, v{cA2}")
    a(f"v_mov_b32 v{vB0}, v{cB0}")
    a(f"v_mov_b32 v{vB1}, v{cB1}")
    for k in range(8): a(f"v_mov_b32 v{M+k}, 0")
    for k in range(4): a(f"v_mov_b32 v{QQ+k}, 0x3e803e80")
    for k in range(8): a(f"v_mov_b32 v{BP+k}, 0")
    a(f"s_cmp_eq_u32 s{S_FIRST}, 0")
    a(f"s_cselect_b32 s{S_WPH}, 3, 0")
    a("s_waitcnt vmcnt(2)")
    for x in a_reads(0): a(x)
    for k in range(4, 8): dma_k(k)
    a("s_waitcnt lgkmcnt(0)")
    dma(a, 0)
    for m in z_mfmas(Z[0]): a(m)
    a(f"ds_read2_b32 v[{SR}:{SR+1}], v{vSR} offset0:160 offset1:176")
    a(f"v_add_u32 v{vSR}, 768, v{vSR}")
    a(f"s_cmp_eq_u32 s{S_FIRST}, 0")
    a("s_cbranch_scc1 L2_nob3")
    for g in range(1, 5):
        d = B2Q + 4 * (g - 1)
        a("v_add_u32 v5, v5, v6")
        a(f"buffer_load_dwordx4 v[{d}:{d+3}], v5, s[{SWS}:{SWS+3}], 0 offen")
    a(f"s_lshl_b32 s{t0}, s{W}, 6")
    a(f"s_add_u32 s{t0}, s{t0}, {WS_WXP}")
    a("v_lshlrev_b32 v7, 4, v4")
    a(f"buffer_load_dwordx4 v[{WXA}:{WXA+3}], v7, s[{SWS}:{SWS+3}], s{t0} offen")
    a(f"buffer_load_dwordx4 v[{WXA+4}:{WXA+7}], v7, s[{SWS}:{SWS+3}], s{t0} offen offset:32")
    a("s_waitcnt vmcnt(12)")
    a("s_branch L2_pw3")
    a.label("L2_nob3")
    a("s_waitcnt vmcnt(6)")
    a.label("L2_pw3")
    a(f"s_mov_b32 s{S_FIRST}, 0")
    for x in a_reads(1): a(x)
    a("s_nop 7")
    a.stamp(9)
    if "cyc" in EXP: a.cstamp(2)
    a.label("L2_loop")
    OOL.clear()
    for u in range(4): iteration(a, u)
    a(f"v_add_u32 v{vA2}, {4*TILE}, v{vA2}")
    a(f"v_add_u32 v{vB0}, {4*TILE}, v{vB0}")
    a(f"v_add_u32 v{vB1}, {4*TILE}, v{vB1}")
    a(f"v_add_u32 v{vSR}, 512, v{vSR}")
    a(f"s_add_u32 s{S_WPH}, s{S_WPH}, 1")
    a(f"s_min_u32 s{S_WPH}, s{S_WPH}, 3")
    a("s_branch L2_loop")
    k = 0
    while k < len(OOL):
        lbl, fn = OOL[k]; k += 1
        a.label(lbl); fn(a)
    a.label("L2_win_end")
    a("s_setprio 0")
    a("s_waitcnt lgkmcnt(0)")
    a(f"s_cmp_eq_u32 s{S_TG}, s{FB}")
    a("s_cbranch_scc0 L2_we_nf")
    a("s_nop 3")
    flush(a, Z[0])
    a.label("L2_we_nf")
    for m in seg_mfmas(): a(m)
    a(f"s_add_u32 s{S_TG0}, s{S_TG0}, s{S_N}")
    a(f"s_cmp_ge_u32 s{S_TG0}, s{S_NT}")
    a("s_cbranch_scc1 L2_final")
    a("s_waitcnt vmcnt(0) lgkmcnt(0)")
    a("s_barrier")
    a(f"s_mov_b32 s{S_IB}, 0")
    zero_fill(a)
    rec_consts(a)
    rec_loads(a, "L2_ld2")
    a("s_branch L2_round_bar")

    a.label("L2_final")
    if "df" in EXP: a("s_sleep 64")
    if "df2" in EXP: a("s_sleep 64"); a("s_sleep 64")
    if "dv" in EXP:
        for k in range(512): a(f"v_exp_f32 v{48+k%8}, v{56+k%8}")
    a.stamp(10)
    if "cyc" in EXP:
        a.cstamp(3)
        a(f"s_mov_b32 s92, s{S_NT}")
    RQ, HQ, O, BR = 88, 120, 16, 40
    a(f"s_cmp_ge_u32 s{S_NT}, 12")
    a("s_cbranch_scc1 L2_wh_done")
    a(f"s_cmp_ge_u32 s{S_NT}, 8")
    a("s_cbranch_scc1 L2_wh_wait")
    a("v_lshlrev_b32 v5, 4, v1")
    a(f"s_lshl_b32 s{t0}, s{W}, 14")
    a(f"s_add_u32 s{t0}, s{t0}, {WS_WHP + 8192}")
    a("s_waitcnt vmcnt(0)")
    for q in range(8, 16):
        if q == 12: a(f"s_add_u32 s{t0}, s{t0}, 4096")
        a(f"buffer_load_dwordx4 v[{WH+4*q}:{WH+4*q+3}], v5, s[{SWS}:{SWS+3}], s{t0} offen offset:{(q%4)*1024}")
    a.label("L2_wh_wait")
    a("s_waitcnt vmcnt(0)")
    a.label("L2_wh_done")
    SP, SPO = R4, R5
    srd(a, SH, P_H, 0, MAT_BYTES)
    srd(a, SO, P_OUT, 0, MAT_BYTES)
    srd(a, SP, P_POS, 0, 60000)
    srd(a, SPO, P_OUT, MAT_BYTES, 60000)
    sR, sN, sTmp, sP = T[4], T[5], T[6], T[7]
    a("v_and_b32 v3, 15, v1")
    a("v_lshrrev_b32 v4, 4, v1")
    a("v_lshrrev_b32 v5, 3, v3")
    a("v_lshlrev_b32 v5, 12, v5")
    a("v_and_b32 v6, 7, v3")
    a("v_lshl_add_u32 v5, v6, 4, v5")
    a("v_lshl_add_u32 v5, v4, 7, v5")
    a(f"s_lshl_b32 s{t0}, s{W}, 9")
    a(f"v_add_u32 v5, s{t0}, v5")
    a(f"s_lshl_b32 s{sR}, s{S_G5}, 12")
    a(f"s_add_u32 s{sR}, s{sR}, {WS_R}")
    a("v_lshlrev_b32 v6, 9, v3")
    a("v_lshl_add_u32 v6, v4, 4, v6")
    a(f"s_lshl_b32 s{t0}, s{W}, 6")
    a(f"v_add_u32 v6, s{t0}, v6")
    a(f"s_mul_i32 s{sN}, s2, 20480")
    a("v_bfe_u32 v10, v1, 3, 1")
    a("v_mul_u32_u24 v10, 4088, v10")
    a("v_sub_u32 v11, v5, v10")
    a("v_sub_u32 v10, v6, v10")
    for nb in range(2):
        a(f"buffer_load_dwordx4 v[{RQ+4*nb}:{RQ+4*nb+3}], v5, s[{SWS}:{SWS+3}], s{sR} offen")
        a(f"s_add_u32 s{sR}, s{sR}, 8192")
    a(f"buffer_load_dwordx2 v[{RQ+8}:{RQ+9}], v11, s[{SWS}:{SWS+3}], s{sR} offen")
    for nb in range(2):
        a(f"s_add_u32 s{sTmp}, s{sN}, {nb*8192}")
        a(f"buffer_load_dwordx4 v[{HQ+4*nb}:{HQ+4*nb+3}], v6, s[{SH}:{SH+3}], s{sTmp} offen")
    a(f"s_add_u32 s{sTmp}, s{sN}, 16384")
    a(f"buffer_load_dwordx2 v[{HQ+8}:{HQ+9}], v10, s[{SH}:{SH+3}], s{sTmp} offen")
    a("v_lshlrev_b32 v7, 2, v1")
    a(f"s_mul_i32 s{sP}, s2, 240")
    a(f"buffer_load_dword v8, v7, s[{SP}:{SP+3}], s{sP} offen")
    flush(a, Z[1])
    a(f"v_mul_u32_u24 v9, {S_ROW}, v3")
    a("v_lshl_add_u32 v9, v4, 4, v9")
    a(f"v_add_u32 v9, {L_S}, v9")
    a("s_waitcnt lgkmcnt(0)")
    a("s_barrier")
    a.lds = []
    seq = [(nb, ks) for nb in range(3) for ks in range(8)]
    def bread(i):
        nb, ks = seq[i]; q = BR + 4 * (i % 6)
        a.ds(f"ds_read_b128 v[{q}:{q+3}], v9 offset:{nb*16*S_ROW + ks*64}", ("B", i))
    X, EE = 64, 72
    sM16, sLN2 = T[8], T[9]
    a(f"s_mov_b32 s{sM16}, 0xffff0000")
    a(f"s_mov_b32 s{sLN2}, {NLN2:#x}")
    def epilogue(nb):
        o = O + 8 * nb
        n = 4 if nb == 2 else 8
        ops = []
        if nb == 2:
            for k in range(4): ops.append(f"v_mov_b32_dpp v{o+k}, v{o+4+k} row_shr:8 row_mask:0xf bank_mask:0xc")
        for i in range(n // 2):
            ops.append(f"v_lshlrev_b32 v{X+2*i}, 16, v{RQ+4*nb+i}")
            ops.append(f"v_and_b32 v{X+2*i+1}, s{sM16}, v{RQ+4*nb+i}")
        for k in range(n): ops.append(f"v_add_f32 v{X+k}, v{X+k}, v{o+k}")
        for k in range(n): ops.append(f"v_exp_f32 v{EE+k}, v{X+k}")
        for k in range(n): ops.append(f"v_add_f32 v{EE+k}, 1.0, v{EE+k}")
        for k in range(n): ops.append(f"v_rcp_f32 v{EE+k}, v{EE+k}")
        for i in range(n // 2):
            ops.append(f"v_lshlrev_b32 v{o+2*i}, 16, v{HQ+4*nb+i}")
            ops.append(f"v_and_b32 v{o+2*i+1}, s{sM16}, v{HQ+4*nb+i}")
        for k in range(n): ops.append(f"v_mul_f32 v{X+k}, v{X+k}, v{EE+k}")
        for k in range(n): ops.append(f"v_fma_f32 v{X+k}, v{X+k}, s{sLN2}, v{o+k}")
        d = 100 + 4 * nb
        for i in range(n // 2): ops.append(f"v_cvt_pk_bf16_f32 v{d+i}, v{X+2*i}, v{X+2*i+1}")
        ops.append(f"s_add_u32 s{sTmp}, s{sN}, {nb*8192}")
        if nb == 2: ops.append(f"buffer_store_dwordx2 v[{d}:{d+1}], v10, s[{SO}:{SO+3}], s{sTmp} offen{OST()}")
        else: ops.append(f"buffer_store_dwordx4 v[{d}:{d+3}], v6, s[{SO}:{SO+3}], s{sTmp} offen{OST()}")
        return ops
    for i in range(5): bread(i)
    pend = []
    for i, (nb, ks) in enumerate(seq):
        q = BR + 4 * (i % 6)
        if ks == 3 and nb > 0:
            if nb == 1: a("s_waitcnt vmcnt(0)")
            pend = epilogue(nb - 1)
        a.wait_lds(("B", i))
        for cb in range(2):
            o = O + 8 * nb + 4 * cb; w = WH + 4 * (cb * 8 + ks)
            c = "0" if ks == 0 else f"v[{o}:{o+3}]"
            a(f"v_mfma_f32_16x16x32_bf16 v[{o}:{o+3}], v[{w}:{w+3}], v[{q}:{q+3}], {c}")
        if i + 5 < len(seq): bread(i + 5)
        left = 7 - ks if ks >= 3 else None
        if pend:
            k = -(-len(pend) // (8 - ks + 2))
            for op in pend[:k]: a(op)
            pend = pend[k:]
        if ks == 2:
            for op in pend: a(op)
            pend = []
    for op in pend: a(op)
    a.stamp(11)
    a("s_nop 7")
    for op in epilogue(2): a(op)
    a("s_mov_b64 exec, -1")
    a(f"s_cmp_lg_u32 s{W}, 0")
    a("s_cbranch_scc1 L2_done")
    a("s_mov_b32 exec_hi, 0x0fffffff")
    for k in range(2):
        a(f"v_lshlrev_b32 v10, 1, v1")
        if k: a("v_add_u32 v10, 1, v10")
        a("v_mul_u32_u24 v11, 171, v10")
        a("v_lshrrev_b32 v11, 9, v11")
        a("v_mul_u32_u24 v12, 3, v11")
        a("v_sub_u32 v12, v10, v12")
        a("v_lshrrev_b32 v13, 3, v11")
        a("v_lshlrev_b32 v13, 5, v13")
        a("v_lshl_add_u32 v13, v12, 3, v13")
        a("v_and_b32 v11, 7, v11")
        a("v_add3_u32 v13, v13, v11, 8")
        a("v_lshlrev_b32 v13, 2, v13")
        a(f"v_add_u32 v13, {L_T}, v13")
        a(f"ds_read_b32 v{14+k}, v13")
    a("v_lshlrev_b32 v10, 16, v8")
    a(f"v_and_b32 v11, s{sM16}, v8")
    a("s_waitcnt lgkmcnt(0)")
    a(f"v_fma_f32 v10, v14, s{sLN2}, v10")
    a(f"v_fma_f32 v11, v15, s{sLN2}, v11")
    a("v_cvt_pk_bf16_f32 v10, v10, v11")
    a(f"buffer_store_dword v10, v7, s[{SPO}:{SPO+3}], s{sP} offen")
    a.label("L2_done")
    if a.diag:
        a("s_waitcnt vmcnt(0)")
        a("s_memrealtime s[100:101]")
        a("s_waitcnt lgkmcnt(0)")
        a("s_mov_b32 s89, s100")
        a.dump_stamps(P_WS, WS_DIAG, W)
```

```python
from asmlib import *
from common import *
import p1

EXP = set()
CAP = 27
TILE = 2560
L_SRC = CAP * TILE
L_STAGE = L_SRC + 32 * 128
L_S = L_STAGE + 65536
S_ROW = 544
L_T = L_S + 40 * S_ROW
L_REL = L_T + 640
L_NG = L_REL + 1280
L_TB = L_NG + 32
W = S_WAVE
NRW = 7

SWS, SQ, SH, SO, STAB, SDBG = R0, R1, R2, R3, R4, R5
S_T, S_N, S_TG0, S_NT, S_WIN, S_TG = 64, 65, 66, 67, 68, 69
ZB, FB = 70, 75
S_STG, S_G5, S_IB, S_FIRST, S_WPH, S_M8 = 80, 81, 82, 83, 84, 86
S_RA, S_RB = 26, 27
S_HALF, S_HF = 85, 68
S_MK = 56
t0, t1, t2, t3 = T[0], T[1], T[2], T[3]

Z = (16, 32); E = 48; ACC = 64; M = 80; A0 = 88; A1 = 92; A2 = 96; BP = 100
I0 = 200; I1 = 204; B2 = 116; B2Q = 120; WXA = 108; WH = 136
ONE2 = 208; SR = 210; DV = 212
vA0, vA1, vA2, vB0, vB1, vSR, vLC, vS, vT = 214, 215, 216, 217, 218, 219, 220, 221, 222
vOS, vSL = 223, 224
vOS1, vSL1 = 12, 13
cA2, cB0, cB1 = 225, 226, 227
FL = 228
ZQ = 236
cSR = 240
NV = 241
QQ = 244

def zero_fill(a):
    for k in range(4): a(f"v_mov_b32 v{36+k}, 0")
    a("v_lshlrev_b32 v40, 4, v0")
    a("v_add_u32 v41, 0x10000, v40")
    for k in range(8): a(f"ds_write_b128 v40, v[36:39] offset:{k*8192}")
    a("ds_write_b128 v41, v[36:39]")

def fill_tables(a):
    zero_fill(a)
    a(f"s_cmp_eq_u32 s{W}, 0")
    a("s_cbranch_scc0 1f")
    a(f"v_add_u32 v41, {L_T}, v40")
    a("s_mov_b32 exec_lo, -1")
    a("s_mov_b32 exec_hi, 0xff")
    a("ds_write_b128 v41, v[36:39]")
    a("s_mov_b64 exec, -1")
    a.label("1")

def mf32(d, x, y, c): return f"v_mfma_f32_32x32x16_bf16 v[{d}:{d+15}], v[{x}:{x+3}], v[{y}:{y+3}], {c}"
def z_mfmas(zn):
    return [mf32(zn, A0, I0, "0"), mf32(zn, A1, I1, f"v[{zn}:{zn+15}]"), mf32(zn, A2, B2, f"v[{zn}:{zn+15}]")]

def dma(a, slot):
    a(f"v_add_u32 v{DV}, v{SR}, v{vLC}")
    a(f"v_add_u32 v{DV+1}, v{SR+1}, v{vLC}")
    a(f"s_add_u32 m0, s{S_STG}, {slot*2048}")
    a("s_nop 0")
    a(f"buffer_load_dwordx4 v{DV}, s[{SQ}:{SQ+3}], 0 offen lds")
    a(f"s_add_u32 m0, s{S_STG}, {slot*2048+1024}")
    a("s_nop 0")
    a(f"buffer_load_dwordx4 v{DV+1}, s[{SQ}:{SQ+3}], 0 offen lds")

def shift_q(a, base):
    for k in range(4): a(f"s_mov_b32 s{base+k}, s{base+k+1}")

def flush(a, tmp):
    for q in range(8): a(f"v_cvt_pk_bf16_f32 v{FL+q}, v{ACC+2*q}, v{ACC+2*q+1}")
    a(f"s_mov_b64 exec, s[{S_M8}:{S_M8+1}]")
    a(f"ds_write_b128 v{vS}, v[{FL}:{FL+3}]")
    a(f"ds_write_b128 v{vS}, v[{FL+4}:{FL+7}] offset:16")
    a("s_mov_b64 exec, -1")
    a(mf32(tmp, WXA, FL, "0"))
    a(mf32(tmp, WXA + 4, FL + 4, f"v[{tmp}:{tmp+15}]"))
    a(mf32(ACC, ZQ, ZQ, "0"))
    a(f"v_add_u32 v{vS}, {8*S_ROW}, v{vS}")
    shift_q(a, FB)
    a("s_nop 6")
    a("s_mov_b32 exec_hi, 0")
    a(f"ds_add_f32 v{vT}, v{tmp}")
    a("s_mov_b64 exec, -1")
    a(f"v_add_u32 v{vT}, 128, v{vT}")

def rotate_b2(a):
    if "oldrot" in EXP:
        for q in range(4): a(f"v_mov_b32 v{B2+q}, v{B2Q+q}")
        for q in range(12): a(f"v_mov_b32 v{B2Q+q}, v{B2Q+4+q}")
        return
    for q in range(0, 4, 2): a(f"v_pk_mov_b32 v[{B2+q}:{B2+q+1}], v[{B2Q+q}:{B2Q+q+1}], v[{B2Q+q}:{B2Q+q+1}] op_sel:[0,1]")
    for q in range(0, 12, 2): a(f"v_pk_mov_b32 v[{B2Q+q}:{B2Q+q+1}], v[{B2Q+4+q}:{B2Q+4+q+1}], v[{B2Q+4+q}:{B2Q+4+q+1}] op_sel:[0,1]")

def rec_consts(a):
    a("v_lshrrev_b32 v44, 4, v1")
    a(f"s_lshl_b32 s{t0}, s{W}, 2")
    a(f"v_add_u32 v44, s{t0}, v44")
    a(f"s_mov_b32 s{t0}, {CH_STRIDE*16}")
    a(f"v_mul_lo_u32 v42, s{t0}, v44")
    a(f"s_movk_i32 s{t0}, {CH_STRIDE*4}")
    a(f"v_mul_lo_u32 v43, s{t0}, v44")
    a("v_lshlrev_b32 v40, 2, v44")
    a("v_and_b32 v41, 15, v1")

OSL = ((vOS, vSL), (vOS1, vSL1))

def rec_loads(a, lbl):
    for it in range(4):
        p, r = it >> 1, it & 1
        os_, sl_ = OSL[r]
        a(f"v_add_u32 v36, s{S_IB}, v41")
        if p: a("v_add_u32 v36, 16, v36")
        a(f"v_cmp_lt_u32 s[{S_MK+2*it}:{S_MK+2*it+1}], v36, v{sl_}")
        a(f"v_add_u32 v36, v36, v{os_}")
        a(f"v_lshl_add_u32 v37, v36, 4, v42")
        a(f"v_lshl_add_u32 v38, v36, 2, v43")
        a(f"s_mov_b32 s{S_RA}, {WS_RECA + r*32*CH_STRIDE*16}")
        a(f"s_mov_b32 s{S_RB}, {WS_RECB + r*32*CH_STRIDE*4}")
        a(f"s_mov_b64 exec, s[{S_MK+2*it}:{S_MK+2*it+1}]")
        a(f"s_cbranch_execz {lbl}_{it}")
        a(f"buffer_load_dwordx4 v[{16+4*it}:{19+4*it}], v37, s[{SWS}:{SWS+3}], s{S_RA} offen sc1")
        a(f"buffer_load_dword v{32+it}, v38, s[{SWS}:{SWS+3}], s{S_RB} offen sc1")
        a.label(f"{lbl}_{it}")
        a("s_mov_b64 exec, -1")

def build_recs(a, lbl):
    a("s_waitcnt vmcnt(0)")
    if "chain" in EXP and lbl == "L2_b0": a.stamp(0)
    a("v_mov_b32 v58, 0x3f80")
    for it in range(4):
        RB = 32 + it
        r = it & 1
        a(f"s_mov_b64 exec, s[{S_MK+2*it}:{S_MK+2*it+1}]")
        a(f"s_cbranch_execz {lbl}_a{it}")
        a(f"v_lshrrev_b32 v44, 17, v{RB}")
        a(f"v_subrev_u32 v44, s{S_G5}, v44")
        a(f"v_lshl_add_u32 v45, v44, 8, v40")
        a(f"v_add_u32 v45, {L_REL + 128*r}, v45")
        a(f"ds_read_b32 v{2+2*it}, v45")
        a(f"v_lshl_add_u32 v47, v44, 2, v59")
        a(f"ds_read_b32 v{3+2*it}, v47")
        a.label(f"{lbl}_a{it}")
    a("s_mov_b64 exec, -1")
    a(f"s_lshl_b32 s{t1}, s{S_TG0}, 5")
    a(f"s_sub_u32 s{t0}, s{S_IB}, s{t1}")
    a(f"v_add_u32 v49, s{t0}, v41")
    a(f"s_movk_i32 s{t1}, {CAP*32}")
    a("s_waitcnt lgkmcnt(0)")
    for it in range(4):
        RA, RB = 16 + 4 * it, 32 + it
        p, r = it >> 1, it & 1
        a(f"s_mov_b64 exec, s[{S_MK+2*it}:{S_MK+2*it+1}]")
        a(f"s_cbranch_execz {lbl}_{it}")
        a(f"v_add3_u32 v44, v49, v{2+2*it}, v{3+2*it}")
        a(f"v_add_u32 v44, v44, v{OSL[r][0]}")
        if p: a("v_add_u32 v44, 16, v44")
        a(f"v_and_b32 v50, 0x3fff, v{RB}")
        a(f"v_cmp_gt_u32 vcc, s{t1}, v44")
        a("v_lshlrev_b32 v50, 9, v50")
        a("v_add_u32 v50, 512, v50")
        a("s_and_b64 exec, exec, vcc")
        a(f"s_cbranch_execz {lbl}_{it}")
        a("v_lshlrev_b32 v51, 2, v44")
        a(f"v_add_u32 v51, {L_SRC}, v51")
        a("ds_write_b32 v51, v50")
        a("v_lshrrev_b32 v52, 5, v44")
        a(f"v_mul_u32_u24 v52, {TILE}, v52")
        a("v_and_b32 v53, 31, v44")
        a("v_lshl_add_u32 v55, v53, 4, v52")
        a(f"ds_write_b128 v55, v[{RA}:{RA+3}] offset:2048")
        a(f"v_bfe_u32 v54, v{RB}, 14, 3")
        a("v_lshl_add_u32 v52, v53, 6, v52")
        a("v_lshl_add_u32 v52, v54, 1, v52")
        a("v_bfe_u32 v53, v53, 2, 2")
        a("v_lshl_add_u32 v54, v53, 4, v52")
        a("ds_write_b16 v54, v58")
        a("v_xor_b32 v55, 1, v53")
        a("v_lshl_add_u32 v55, v55, 4, v52")
        a(f"ds_write_b16_d16_hi v55, v{RA+2}")
        a("v_xor_b32 v56, 2, v53")
        a("v_lshl_add_u32 v56, v56, 4, v52")
        a(f"ds_write_b16 v56, v{RA+3}")
        a("v_xor_b32 v57, 3, v53")
        a("v_lshl_add_u32 v57, v57, 4, v52")
        a(f"ds_write_b16_d16_hi v57, v{RA+3}")
        a.label(f"{lbl}_{it}")
    a("s_mov_b64 exec, -1")

def poll(a, lbl, srdreg, voff, want, sleep):
    a(f"s_mov_b32 s{t1}, 0x8000")
    a("s_mov_b32 exec_lo, 1")
    a("s_mov_b32 exec_hi, 0")
    a.label(lbl)
    a(f"buffer_load_dword v10, v{voff}, s[{srdreg}:{srdreg+3}], 0 offen sc1")
    a("s_waitcnt vmcnt(0)")
    a(f"v_readfirstlane_b32 s{t0}, v10")
    a(f"s_and_b32 s{t0}, s{t0}, {want:#x}")
    a(f"s_cmp_eq_u32 s{t0}, {want:#x}")
    a(f"s_cbranch_scc1 {lbl}_ok")
    a(f"s_sub_u32 s{t1}, s{t1}, 1")
    a(f"s_cmp_eq_u32 s{t1}, 0")
    a(f"s_cbranch_scc1 {lbl}_ok")
    a(f"s_sleep {sleep}")
    a(f"s_branch {lbl}")
    a.label(f"{lbl}_ok")
    a("s_mov_b64 exec, -1")

def mailbox(a, word):
    srd(a, R4, P_WS, WS_MBX, 2048)
    a(f"s_and_b32 s{t2}, s2, 15")
    a(f"s_lshl_b32 s{t2}, s{t2}, 7")
    a(f"s_add_u32 s{t2}, s{t2}, {4*word}")
    a(f"v_mov_b32 v8, s{t2}")

def a_reads(u1):
    sl = u1 % 4
    return [f"ds_read_b128 v[{A0}:{A0+3}], v{vA0} offset:{sl*2048}",
            f"ds_read_b128 v[{A1}:{A1+3}], v{vA1} offset:{sl*2048}",
            f"ds_read_b128 v[{A2}:{A2+3}], v{vA2} offset:{u1*TILE}"]
def bp_reads(u):
    return [f"ds_read_b64_tr_b16 v[{BP}:{BP+1}], v{vB0} offset:{u*TILE}",
            f"ds_read_b64_tr_b16 v[{BP+2}:{BP+3}], v{vB1} offset:{u*TILE}",
            f"ds_read_b64_tr_b16 v[{BP+4}:{BP+5}], v{vB0} offset:{u*TILE+1024}",
            f"ds_read_b64_tr_b16 v[{BP+6}:{BP+7}], v{vB1} offset:{u*TILE+1024}"]
def seg_mfmas():
    return [mf32(ACC, M, BP, f"v[{ACC}:{ACC+15}]"), mf32(ACC, M + 4, BP + 4, f"v[{ACC}:{ACC+15}]")]

OOL = []
def OST():
    return " sc1" if "osc1" in EXP else " nt" if "ont" in EXP else " sc0 sc1" if "osc01" in EXP else ""

def first_pass_wait(a, lbl, u):
    a(f"s_cmp_eq_u32 s{S_WPH}, 0")
    a(f"s_cbranch_scc0 {lbl}")
    a(f"s_waitcnt vmcnt({2*u})")
    a.label(lbl)

def iteration(a, u):
    zc, zn = Z[u & 1], Z[(u + 1) & 1]
    sl = (u + 1) % 4
    a(f"s_setprio {3-u}")
    a("s_waitcnt lgkmcnt(0)")
    a(f"s_cmp_eq_u32 s{S_TG}, s{FB}")
    a(f"s_cbranch_scc1 L2_fl_{u}")
    a.label(f"L2_fl_{u}_r")
    OOL.append((f"L2_fl_{u}", lambda a, zn=zn, u=u: (first_pass_wait(a, f"L2_flw_{u}", u), flush(a, zn), a(f"s_branch L2_fl_{u}_r"))))
    a(f"s_cmp_eq_u32 s{S_TG}, s{ZB}")
    a(f"s_cbranch_scc1 L2_rt_{u}")
    a.label(f"L2_rt_{u}_r")
    def rt(a, u=u):
        first_pass_wait(a, f"L2_rtw_{u}", u)
        rotate_b2(a); shift_q(a, ZB)
        a(f"s_and_b32 s{S_HALF}, s{S_HF}, 1")
        a(f"s_lshr_b32 s{S_HF}, s{S_HF}, 1")
        a(f"s_cmp_eq_u32 s{S_HALF}, 1")
        a(f"s_cbranch_scc0 L2_rt_{u}_r")
        a(f"s_branch L2_ha_{u}")
    OOL.append((f"L2_rt_{u}", rt))
    zm = z_mfmas(zn); sm = seg_mfmas(); bp = bp_reads(u); ar = a_reads(u + 2)
    def run(a, op, regs, att):
        for i, k in enumerate(regs):
            a(f"{op} v{E+k}, v{(zc if op == 'v_exp_f32' else E)+k}")
            for x in att.get(i, []): a(x)
    def pk(a, op, lo, n=8):
        for k in range(lo, lo + n, 2):
            other = f"v[{ONE2}:{ONE2+1}]" if op == "v_pk_add_f32" else f"v[{zc+k}:{zc+k+1}]"
            a(f"{op} v[{E+k}:{E+k+1}], v[{E+k}:{E+k+1}], {other}")
    def cvt(a, lo, n=8):
        for k in range(lo, lo + n, 2): a(f"v_cvt_pk_bf16_f32 v{M+k//2}, v{E+k}, v{E+k+1}")
    def parts(a, x):
        dv0 = [f"v_add_u32 v{DV}, v{SR}, v{vLC}", f"s_add_u32 m0, s{S_STG}, {sl*2048}"]
        dm0 = [f"v_add_u32 v{DV+1}, v{SR+1}, v{vLC}", f"buffer_load_dwordx4 v{DV}, s[{SQ}:{SQ+3}], 0 offen lds"]
        m1 = [f"s_add_u32 m0, s{S_STG}, {sl*2048+1024}"]
        dm1 = [f"buffer_load_dwordx4 v{DV+1}, s[{SQ}:{SQ+3}], 0 offen lds"]
        wlc = [f"s_cmp_lt_u32 s{S_WPH}, 3", f"s_cbranch_scc1 L2_wl{x}_{u}", f"L2_wl{x}_{u}_r:"]
        cnt = [f"s_add_u32 s{S_T}, s{S_T}, 1", f"s_add_u32 s{S_TG}, s{S_TG}, 1"]
        wvc = [f"s_cmp_lt_u32 s{S_WPH}, 4", f"s_cbranch_scc1 L2_wv{x}_{u}", "s_waitcnt vmcnt(6)", f"L2_wv{x}_{u}_r:"]
        srr = [f"ds_read2_b32 v[{SR}:{SR+1}], v{vSR} offset0:{u*32} offset1:{u*32+16}"]
        def wl(a, u=u):
            a(f"s_cmp_eq_u32 s{S_WPH}, 0")
            a(f"s_cbranch_scc1 L2_wl{x}_{u}_r")
            a("v_lshlrev_b32 v5, 4, v1")
            a(f"s_lshl_b32 s{t0}, s{W}, 14")
            a(f"s_add_u32 s{t0}, s{t0}, {WS_WHP}")
            a(f"s_cmp_eq_u32 s{S_WPH}, 1")
            a(f"s_cbranch_scc0 L2_wl{x}_{u}_1")
            for ps in range(2):
                if ps: a.label(f"L2_wl{x}_{u}_1")
                a(f"s_add_u32 s{t0}, s{t0}, {(8*ps + 2*u)*1024}")
                for q in (8*ps + 2*u, 8*ps + 2*u + 1):
                    a(f"buffer_load_dwordx4 v[{WH+4*q}:{WH+4*q+3}], v5, s[{SWS}:{SWS+3}], s{t0} offen offset:{(q%2)*1024}")
                a(f"s_branch L2_wl{x}_{u}_r")
        OOL.append((f"L2_wl{x}_{u}", wl))
        def wv(a, u=u):
            cnts = ((12, 12, 12, 6), (8, 10, 12, 14), (14, 14, 14, 14), (12, 10, 8, 6))
            for ps in range(3):
                a(f"s_cmp_eq_u32 s{S_WPH}, {ps}")
                a(f"s_cbranch_scc1 L2_wv{x}_{u}_{ps}")
            for ps in (3, 2, 1, 0):
                if ps < 3: a.label(f"L2_wv{x}_{u}_{ps}")
                a(f"s_waitcnt vmcnt({cnts[ps][u]})")
                a(f"s_branch L2_wv{x}_{u}_r")
        OOL.append((f"L2_wv{x}_{u}", wv))
        return dv0, dm0, m1, dm1, wlc, cnt, wvc, srr
    def first_half(a, n, x):
        dv0, dm0, m1, dm1, wlc, cnt, wvc, srr = parts(a, x)
        if n == 8:
            ae = {0: [sm[0]], 1: dv0, 2: dm0, 3: [bp[0], bp[1]], 4: [zm[0]], 5: m1, 6: dm1, 7: wlc}
            ar_ = {0: [zm[1]], 1: cnt, 4: [zm[2]], 5: wvc + [ar[0]], 6: [ar[1], ar[2]], 7: srr}
        else:
            ae = {0: [sm[0]] + dv0, 1: dm0 + [bp[0], bp[1]], 2: [zm[0]] + m1, 3: dm1 + wlc}
            ar_ = {0: [zm[1]] + cnt, 2: [zm[2]], 3: wvc + [ar[0], ar[1], ar[2]] + srr}
        run(a, "v_exp_f32", range(0, n), ae)
        pk(a, "v_pk_add_f32", 0, n)
        run(a, "v_rcp_f32", range(0, n), ar_)
        pk(a, "v_pk_mul_f32", 0, n)
        cvt(a, 0, n)
    def hf(a, u=u):
        a(sm[1]); a(f"s_mov_b32 s{S_HALF}, 0"); a(bp[2]); a(bp[3])
        a(f"s_branch L2_hf_{u}_r")
    OOL.append((f"L2_hf_{u}", hf))
    def ha(a, u=u):
        first_half(a, 8, "h")
        a(f"s_branch L2_hf_{u}")
    OOL.append((f"L2_ha_{u}", ha))
    dv0, dm0, m1, dm1, wlc, cnt, wvc, srr = parts(a, "")
    run(a, "v_exp_f32", range(0, 16), {0: [sm[0]], 4: [sm[1]]})
    for x in cnt: a(x)
    a(mf32(E, QQ, QQ, f"v[{E}:{E+15}]"))
    for x in [bp[0], bp[1]] + dv0 + dm0 + [bp[2], bp[3]] + m1 + srr + dm1 + wlc + [zm[0]] + wvc: a(x)
    run(a, "v_rcp_f32", range(0, 16), {2: [zm[1]], 6: [zm[2]], 7: [ar[0], ar[1], ar[2]]})
    pk(a, "v_pk_mul_f32", 0, 16)
    cvt(a, 0, 16)
    a.label(f"L2_hf_{u}_r")
    a(f"s_cmp_eq_u32 s{S_T}, s{S_N}")
    a("s_cbranch_scc1 L2_win_end")

def constants_a(a, b=44, mk=52):
    a(f"v_and_b32 v{b+0}, 31, v1")
    a(f"v_lshrrev_b32 v{b+1}, 5, v1")
    a(f"v_mov_b32 v{ONE2}, 1.0")
    a(f"v_mov_b32 v{ONE2+1}, 1.0")
    for q in range(4): a(f"v_mov_b32 v{ZQ+q}, 0")
    a(f"s_mov_b32 s{S_M8}, 0xff")
    a(f"s_mov_b32 s{S_M8+1}, 0xff")
    a(f"v_lshlrev_b32 v{b+2}, 3, v{b+1}")
    a(f"v_sub_u32 v{b+2}, v{b+0}, v{b+2}")
    a(f"v_mov_b32 v{b+4}, 0x3f80")
    a(f"v_mov_b32 v{b+5}, 0x3f800000")
    a(f"v_and_b32 v{b+3}, 1, v{b+2}")
    a(f"v_cmp_eq_u32 vcc, 1, v{b+3}")
    a(f"v_lshrrev_b32 v{b+6}, 1, v{b+2}")
    a(f"v_add_u32 v{b+7}, -8, v{b+6}")
    a(f"v_cndmask_b32 v{b+3}, v{b+4}, v{b+5}, vcc")
    for I, r in ((I0, b + 6), (I1, b + 7)):
        for q0 in (0, 2):
            a(f"v_cmp_eq_u32 s[{mk}:{mk+1}], {q0}, v{r}")
            a(f"v_cmp_eq_u32 s[{mk+2}:{mk+3}], {q0+1}, v{r}")
            a("s_nop 0")
            a(f"v_cndmask_b32 v{I+q0}, 0, v{b+3}, s[{mk}:{mk+1}]")
            a(f"v_cndmask_b32 v{I+q0+1}, 0, v{b+3}, s[{mk+2}:{mk+3}]")

def constants_b(a, b=44):
    a(f"v_and_b32 v{b+0}, 31, v1")
    a(f"v_lshrrev_b32 v{b+1}, 5, v1")
    a(f"s_lshl_b32 s{S_STG}, s{W}, 13")
    a(f"s_add_u32 s{S_STG}, s{S_STG}, {L_STAGE}")
    a(f"v_bfe_u32 v{b+2}, v{b+0}, 2, 2")
    a(f"v_xor_b32 v{b+3}, v{b+1}, v{b+2}")
    a(f"v_lshlrev_b32 v{b+4}, 6, v{b+0}")
    a(f"v_add_u32 v{b+5}, s{S_STG}, v{b+4}")
    a(f"v_lshl_add_u32 v{vA0}, v{b+3}, 4, v{b+5}")
    a(f"v_xor_b32 v{b+3}, 2, v{b+3}")
    a(f"v_lshl_add_u32 v{vA1}, v{b+3}, 4, v{b+5}")
    a(f"v_lshlrev_b32 v{b+3}, 4, v{b+0}")
    a(f"v_add_u32 v{b+3}, 2048, v{b+3}")
    a(f"v_lshl_add_u32 v{b+4}, v{b+2}, 4, v{b+4}")
    a(f"v_cmp_eq_u32 vcc, 1, v{b+1}")
    a(f"v_bfe_u32 v{b+2}, v1, 2, 2")
    a(f"v_lshl_add_u32 v{b+2}, v{b+1}, 2, v{b+2}")
    a(f"v_cndmask_b32 v{cA2}, v{b+3}, v{b+4}, vcc")
    a(f"v_lshlrev_b32 v{b+2}, 6, v{b+2}")
    a(f"v_and_b32 v{b+3}, 1, v1")
    a(f"v_lshl_add_u32 v{b+2}, v{b+3}, 3, v{b+2}")
    a(f"v_bfe_u32 v{b+3}, v1, 4, 1")
    a(f"v_lshlrev_b32 v{b+3}, 1, v{b+3}")
    a(f"v_bfe_u32 v{b+4}, v1, 1, 1")
    a(f"v_or_b32 v{b+3}, v{b+3}, v{b+4}")
    a(f"v_xor_b32 v{b+3}, v{b+3}, v{b+1}")
    a(f"v_lshl_add_u32 v{cB0}, v{b+3}, 4, v{b+2}")
    a(f"v_xor_b32 v{b+3}, 2, v{b+3}")
    a(f"v_lshl_add_u32 v{b+4}, v{b+3}, 4, v{b+2}")
    a(f"v_add_u32 v{cB1}, 512, v{b+4}")
    a(f"v_and_b32 v{b+2}, 3, v1")
    a(f"v_bfe_u32 v{b+3}, v1, 4, 2")
    a(f"v_xor_b32 v{b+2}, v{b+2}, v{b+3}")
    a(f"v_lshlrev_b32 v{b+2}, 4, v{b+2}")
    a(f"s_lshl_b32 s{t0}, s{W}, 6")
    a(f"s_sub_u32 s{t1}, s{t0}, 512")
    a(f"v_add_u32 v{vLC}, s{t1}, v{b+2}")
    a(f"v_and_b32 v{b+2}, 7, v1")
    a(f"v_mul_u32_u24 v{b+2}, {S_ROW}, v{b+2}")
    a(f"v_lshl_add_u32 v{b+2}, v{b+1}, 5, v{b+2}")
    a(f"s_add_u32 s{t0}, s{t0}, {L_S}")
    a(f"v_add_u32 v{vS}, s{t0}, v{b+2}")
    a(f"v_lshlrev_b32 v{b+2}, 2, v{b+0}")
    a(f"v_add_u32 v{vT}, {L_T}, v{b+2}")
    a(f"v_lshrrev_b32 v{b+2}, 2, v1")
    a(f"v_lshlrev_b32 v{b+2}, 2, v{b+2}")
    a(f"v_add_u32 v{cSR}, {L_SRC}, v{b+2}")

def phase2(a):
    def entry(a):
        a("v_and_b32 v1, 63, v0")
        a(f"s_cmp_eq_u32 s{W}, 0")
        a("s_cbranch_scc0 2f")
        p1.arrive_issue(a, f"s{p1.S_INC}")
        a.label("2")
        srd(a, SWS, P_WS, 0, WS_USED)
        a(f"s_mul_i32 s{S_G5}, s2, 5")
    def table_load(a):
        srd(a, STAB, P_WS, WS_TAB, NCH * TAB_STRIDE)
        a("v_lshlrev_b32 v2, 12, v1")
        a(f"s_lshl_b32 s{t0}, s2, 4")
        a(f"buffer_load_dwordx3 v[60:62], v2, s[{STAB}:{STAB+3}], s{t0} offen sc1")
    def t_zero(a):
        a(f"v_add_u32 v41, {L_T}, v40")
        a("s_mov_b32 exec_lo, -1")
        a("s_mov_b32 exec_hi, 0xff")
        a("ds_write_b128 v41, v[36:39]")
        a("s_mov_b64 exec, -1")
    a.label("L_phase2_fast")
    a.stamp(5)
    entry(a)
    table_load(a)
    a(f"s_cmp_eq_u32 s{W}, 0")
    a("s_cbranch_scc0 L2_tab")
    p1.arrive_finish(a, f"s{p1.S_INC}", "f")
    a("s_branch L2_tab")
    a.label("L_phase2")
    a.stamp(5)
    entry(a)
    a(f"s_cmp_eq_u32 s{W}, 0")
    a("s_cbranch_scc0 L2_w1")
    p1.arrive_finish(a, f"s{p1.S_INC}", "a")
    a("s_and_b32 s52, s85, 1")
    a("s_cmp_eq_u32 s52, 1")
    a("s_cbranch_scc1 L2_inited")
    srd(a, SDBG, P_DBG, 0, 256)
    a("v_mov_b32 v8, 0")
    poll(a, "L2_poll0", SDBG, 8, 1, 16)
    a("s_mov_b32 s85, 0")
    a.label("L2_inited")
    a("s_and_b32 s52, s85, 0xffff")
    a(f"s_cmp_eq_u32 s52, {K1:#x}")
    a("s_cbranch_scc1 L2_w1")
    mailbox(a, 0)
    poll(a, "L2_poll1", R4, 8, 1, 2)
    a.label("L2_w1")
    a("s_barrier")
    table_load(a)
    a.label("L2_tab")
    a.stamp(6)
    a(f"s_mov_b32 s{S_IB}, 0")
    a(f"s_mov_b32 s{S_TG0}, 0")
    a(f"s_mov_b32 s{S_FIRST}, 1")
    a(mf32(ACC, ZQ, ZQ, "0"))
    a("s_waitcnt vmcnt(0)")
    if "chain" in EXP: a.stamp(2)
    a(f"v_and_b32 v46, 0xffff, v60")
    a(f"v_lshrrev_b32 v47, 16, v62")
    a(f"v_sub_u32 v47, v47, v46")
    rec_consts(a)
    a("v_add_u32 v45, 128, v40")
    a(f"ds_bpermute_b32 v{vOS}, v40, v46")
    a(f"ds_bpermute_b32 v{vSL}, v40, v47")
    a(f"ds_bpermute_b32 v{vOS1}, v45, v46")
    a(f"ds_bpermute_b32 v{vSL1}, v45, v47")
    a("s_waitcnt lgkmcnt(0)")
    rec_loads(a, "L2_ld0")
    if "chain" in EXP: a.stamp(3)
    a(f"s_cmp_ge_u32 s{W}, 5")
    a("s_cbranch_scc1 L2_noscan")
    a(f"s_cmp_lt_u32 s{W}, 2")
    a("s_cbranch_scc1 L2_sel")
    a("v_mov_b32 v60, v61")
    a("v_mov_b32 v61, v62")
    a(f"s_cmp_lt_u32 s{W}, 4")
    a("s_cbranch_scc1 L2_sel")
    a("v_mov_b32 v60, v61")
    a.label("L2_sel")
    a(f"s_and_b32 s{t0}, s{W}, 1")
    a(f"s_lshl_b32 s{t0}, s{t0}, 4")
    a(f"v_alignbit_b32 v61, v61, v60, s{t0}")
    a("v_and_b32 v60, 0xffff, v61")
    a("v_lshrrev_b32 v61, 16, v61")
    a("v_sub_u32 v62, v61, v60")
    a("v_mov_b32 v63, v62")
    for sh in (1, 2, 4, 8):
        a("s_nop 1")
        a(f"v_add_u32_dpp v63, v63, v63 row_shr:{sh} row_mask:0xf bank_mask:0xf")
    a("s_nop 1")
    a("v_add_u32_dpp v63, v63, v63 row_bcast:15 row_mask:0xa bank_mask:0xf")
    a("s_nop 1")
    a("v_add_u32_dpp v63, v63, v63 row_bcast:31 row_mask:0xc bank_mask:0xf")
    a("v_sub_u32 v62, v63, v62")
    a("v_sub_u32 v62, v62, v60")
    a(f"s_lshl_b32 s{t0}, s{W}, 8")
    a(f"s_add_u32 s{t0}, s{t0}, {L_REL}")
    a("v_lshlrev_b32 v45, 2, v1")
    a(f"v_add_u32 v45, s{t0}, v45")
    a("ds_write_b32 v45, v62")
    a(f"s_lshl_b32 s{t0}, s{W}, 2")
    a(f"s_add_u32 s{t0}, s{t0}, {L_NG}")
    a(f"v_mov_b32 v45, s{t0}")
    a("s_mov_b32 exec_lo, 0")
    a("s_mov_b32 exec_hi, 0x80000000")
    a("ds_write_b32 v45, v63")
    a("s_mov_b64 exec, -1")
    a.label("L2_noscan")
    a.label("L2_round_bar")
    a("s_waitcnt lgkmcnt(0)")
    a("s_barrier")
    a.stamp(7)
    a(f"s_cmp_eq_u32 s{S_FIRST}, 0")
    a("s_cbranch_scc1 L2_have_tb")
    a("v_lshlrev_b32 v45, 2, v1")
    a(f"v_add_u32 v45, {L_NG}, v45")
    a("s_mov_b32 exec_lo, 0xff")
    a("s_mov_b32 exec_hi, 0")
    a("ds_read_b32 v46, v45")
    a("s_waitcnt lgkmcnt(0)")
    a("v_max_u32 v46, 1, v46")
    a("v_add_u32 v47, -1, v46")
    a("v_and_b32 v47, 31, v47")
    a("v_cmp_gt_u32 vcc, 16, v47")
    a("v_add_u32 v46, 31, v46")
    a("v_lshrrev_b32 v46, 5, v46")
    a(f"s_and_b32 s{S_HF}, vcc_lo, 0x1f")
    NTG = (T[0], T[1], T[2], T[3], 85)
    for g in range(5): a(f"v_readlane_b32 s{NTG[g]}, v46, {g}")
    a(f"s_mov_b32 s{ZB}, s{NTG[0]}")
    for g in range(1, 4): a(f"s_add_u32 s{ZB+g}, s{ZB+g-1}, s{NTG[g]}")
    a(f"s_add_u32 s{S_NT}, s{ZB+3}, s85")
    a(f"s_mov_b32 s{ZB+4}, s{S_NT}")
    a(f"s_mov_b32 s{S_HALF}, 0")
    a("v_mov_b32 v46, 0")
    for g in range(1, 5):
        a(f"s_lshl_b32 s{t0}, s{ZB+g-1}, 5")
        a(f"v_writelane_b32 v46, s{t0}, {g}")
    for k in range(4): a(f"s_add_u32 s{FB+k}, s{ZB+k}, 1")
    a(f"s_mov_b32 s{FB+4}, 0x7ffffff0")
    for k in range(5): a(f"s_sub_u32 s{ZB+k}, s{ZB+k}, 1")
    a(f"s_lshl_b32 s{t0}, s{W}, 5")
    a(f"s_add_u32 s{t0}, s{t0}, {L_TB}")
    a("v_lshlrev_b32 v45, 2, v1")
    a(f"v_add_u32 v45, s{t0}, v45")
    a("ds_write_b32 v45, v46")
    a("s_mov_b64 exec, -1")
    a.label("L2_have_tb")
    a(f"s_lshl_b32 s{t0}, s{W}, 5")
    a(f"s_add_u32 s{t0}, s{t0}, {L_TB}")
    a(f"v_mov_b32 v59, s{t0}")
    a("s_waitcnt lgkmcnt(0)")
    if "chain" in EXP: a.stamp(4)
    build_recs(a, "L2_b0")
    a.label("L2_more")
    a(f"s_add_u32 s{S_IB}, s{S_IB}, 32")
    a(f"v_cmp_lt_u32 vcc, s{S_IB}, v{vSL}")
    a(f"v_cmp_lt_u32 s[52:53], s{S_IB}, v{vSL1}")
    a("s_or_b64 vcc, vcc, s[52:53]")
    a("s_cbranch_vccz L2_built0")
    rec_loads(a, "L2_ld1")
    build_recs(a, "L2_b1")
    a("s_branch L2_more")
    a.label("L2_built0")
    if "chain" in EXP: a.stamp(11)
    a(f"s_cmp_eq_u32 s{W}, 7")
    a("s_cbranch_scc0 L2_built")
    a(f"s_cmp_eq_u32 s{S_FIRST}, 0")
    a("s_cbranch_scc1 L2_built")
    mailbox(a, 1)
    poll(a, "L2_poll2", R4, 8, 1, 2)
    a.label("L2_built")
    a("s_waitcnt vmcnt(0) lgkmcnt(0)")
    a("s_barrier")
    a.stamp(8)
    a("s_setprio 3")
    a(f"v_mov_b32 v{vSR}, v{cSR}")
    for k in range(4):
        a(f"ds_read2_b32 v[{E+2*k}:{E+2*k+1}], v{vSR} offset0:{k*32} offset1:{k*32+16}")
    a(f"ds_read2_b32 v[{SR}:{SR+1}], v{vSR} offset0:128 offset1:144")
    a(f"s_cmp_eq_u32 s{S_FIRST}, 0")
    a("s_cbranch_scc1 L2_nob2")
    srd(a, SQ, P_WS, WS_Q, MAT_BYTES)
    a("v_and_b32 v3, 31, v1")
    a("v_lshrrev_b32 v4, 5, v1")
    a(f"s_lshl_b32 s{t0}, s{W}, 9")
    a("v_lshlrev_b32 v5, 4, v3")
    a(f"v_add_u32 v5, s{t0}, v5")
    a(f"s_lshl_b32 s{t1}, s{S_G5}, 12")
    a(f"s_add_u32 s{t1}, s{t1}, {WS_P - WS_WX}")
    a(f"v_mul_lo_u32 v6, s{t1}, v4")
    a("v_add_u32 v5, v5, v6")
    a(f"v_add_u32 v5, {WS_WX}, v5")
    a("v_lshlrev_b32 v6, 12, v4")
    a(f"buffer_load_dwordx4 v[{B2}:{B2+3}], v5, s[{SWS}:{SWS+3}], 0 offen")
    a.label("L2_nob2")
    a("s_waitcnt lgkmcnt(1)")
    def dma_k(k):
        a(f"v_add_u32 v{E+k}, v{E+k}, v{vLC}")
        a(f"s_add_u32 m0, s{S_STG}, {k*1024}")
        a("s_nop 0")
        a(f"buffer_load_dwordx4 v{E+k}, s[{SQ}:{SQ+3}], 0 offen lds")
    for k in range(4): dma_k(k)
    a(f"s_sub_u32 s{S_N}, s{S_NT}, s{S_TG0}")
    a(f"s_min_u32 s{S_N}, s{S_N}, {CAP}")
    a(f"s_mov_b32 s{S_T}, 0")
    a(f"s_mov_b32 s{S_TG}, s{S_TG0}")
    a(f"v_mov_b32 v{vA2}, v{cA2}")
    a(f"v_mov_b32 v{vB0}, v{cB0}")
    a(f"v_mov_b32 v{vB1}, v{cB1}")
    for k in range(8): a(f"v_mov_b32 v{M+k}, 0")
    for k in range(4): a(f"v_mov_b32 v{QQ+k}, 0x3e803e80")
    for k in range(8): a(f"v_mov_b32 v{BP+k}, 0")
    a(f"s_cmp_eq_u32 s{S_FIRST}, 0")
    a(f"s_cselect_b32 s{S_WPH}, 4, 0")
    a("s_waitcnt vmcnt(2)")
    for x in a_reads(0): a(x)
    for k in range(4, 8): dma_k(k)
    a("s_waitcnt lgkmcnt(0)")
    dma(a, 0)
    for m in z_mfmas(Z[0]): a(m)
    a(f"ds_read2_b32 v[{SR}:{SR+1}], v{vSR} offset0:160 offset1:176")
    a(f"v_add_u32 v{vSR}, 768, v{vSR}")
    a(f"s_cmp_eq_u32 s{S_FIRST}, 0")
    a("s_cbranch_scc1 L2_nob3")
    for g in range(1, 5):
        d = B2Q + 4 * (g - 1)
        a("v_add_u32 v5, v5, v6")
        a(f"buffer_load_dwordx4 v[{d}:{d+3}], v5, s[{SWS}:{SWS+3}], 0 offen")
    a(f"s_lshl_b32 s{t0}, s{W}, 6")
    a(f"s_add_u32 s{t0}, s{t0}, {WS_WXP}")
    a("v_lshlrev_b32 v7, 4, v4")
    a(f"buffer_load_dwordx4 v[{WXA}:{WXA+3}], v7, s[{SWS}:{SWS+3}], s{t0} offen")
    a(f"buffer_load_dwordx4 v[{WXA+4}:{WXA+7}], v7, s[{SWS}:{SWS+3}], s{t0} offen offset:32")
    a("s_waitcnt vmcnt(12)")
    a("s_branch L2_pw3")
    a.label("L2_nob3")
    a("s_waitcnt vmcnt(6)")
    a.label("L2_pw3")
    a(f"s_mov_b32 s{S_FIRST}, 0")
    for x in a_reads(1): a(x)
    a("s_nop 7")
    a.stamp(9)
    if "cyc" in EXP: a.cstamp(2)
    a.label("L2_loop")
    OOL.clear()
    for u in range(4): iteration(a, u)
    a(f"v_add_u32 v{vA2}, {4*TILE}, v{vA2}")
    a(f"v_add_u32 v{vB0}, {4*TILE}, v{vB0}")
    a(f"v_add_u32 v{vB1}, {4*TILE}, v{vB1}")
    a(f"v_add_u32 v{vSR}, 512, v{vSR}")
    a(f"s_add_u32 s{S_WPH}, s{S_WPH}, 1")
    a(f"s_min_u32 s{S_WPH}, s{S_WPH}, 4")
    a("s_branch L2_loop")
    k = 0
    while k < len(OOL):
        lbl, fn = OOL[k]; k += 1
        a.label(lbl); fn(a)
    a.label("L2_win_end")
    a("s_setprio 0")
    a("s_waitcnt lgkmcnt(0)")
    a(f"s_cmp_eq_u32 s{S_TG}, s{FB}")
    a("s_cbranch_scc0 L2_we_nf")
    a("s_nop 3")
    flush(a, Z[0])
    a.label("L2_we_nf")
    for m in seg_mfmas(): a(m)
    a(f"s_add_u32 s{S_TG0}, s{S_TG0}, s{S_N}")
    a(f"s_cmp_ge_u32 s{S_TG0}, s{S_NT}")
    a("s_cbranch_scc1 L2_final")
    a("s_waitcnt vmcnt(0) lgkmcnt(0)")
    a("s_barrier")
    a(f"s_mov_b32 s{S_IB}, 0")
    zero_fill(a)
    rec_consts(a)
    rec_loads(a, "L2_ld2")
    a("s_branch L2_round_bar")

    a.label("L2_final")
    if "df" in EXP: a("s_sleep 64")
    if "df2" in EXP: a("s_sleep 64"); a("s_sleep 64")
    if "dv" in EXP:
        for k in range(512): a(f"v_exp_f32 v{48+k%8}, v{56+k%8}")
    a.stamp(10)
    if "cyc" in EXP:
        a.cstamp(3)
        a(f"s_mov_b32 s92, s{S_NT}")
    RQ, HQ, O, BR = 88, 120, 16, 40
    a(f"s_cmp_ge_u32 s{S_NT}, 16")
    a("s_cbranch_scc1 L2_wh_done")
    a(f"s_cmp_ge_u32 s{S_NT}, 12")
    a("s_cbranch_scc1 L2_wh_wait")
    a("v_lshlrev_b32 v5, 4, v1")
    a(f"s_lshl_b32 s{t0}, s{W}, 14")
    a(f"s_add_u32 s{t0}, s{t0}, {WS_WHP}")
    a("s_waitcnt vmcnt(0)")
    for q in range(16):
        if q and q % 4 == 0: a(f"s_add_u32 s{t0}, s{t0}, 4096")
        a(f"buffer_load_dwordx4 v[{WH+4*q}:{WH+4*q+3}], v5, s[{SWS}:{SWS+3}], s{t0} offen offset:{(q%4)*1024}")
    a.label("L2_wh_wait")
    a("s_waitcnt vmcnt(0)")
    a.label("L2_wh_done")
    SP, SPO = R4, R5
    srd(a, SH, P_H, 0, MAT_BYTES)
    srd(a, SO, P_OUT, 0, MAT_BYTES)
    srd(a, SP, P_POS, 0, 60000)
    srd(a, SPO, P_OUT, MAT_BYTES, 60000)
    sR, sN, sTmp, sP = T[4], T[5], T[6], T[7]
    a("v_and_b32 v3, 15, v1")
    a("v_lshrrev_b32 v4, 4, v1")
    a("v_lshrrev_b32 v5, 3, v3")
    a("v_lshlrev_b32 v5, 12, v5")
    a("v_and_b32 v6, 7, v3")
    a("v_lshl_add_u32 v5, v6, 4, v5")
    a("v_lshl_add_u32 v5, v4, 7, v5")
    a(f"s_lshl_b32 s{t0}, s{W}, 9")
    a(f"v_add_u32 v5, s{t0}, v5")
    a(f"s_lshl_b32 s{sR}, s{S_G5}, 12")
    a(f"s_add_u32 s{sR}, s{sR}, {WS_R}")
    a("v_lshlrev_b32 v6, 9, v3")
    a("v_lshl_add_u32 v6, v4, 4, v6")
    a(f"s_lshl_b32 s{t0}, s{W}, 6")
    a(f"v_add_u32 v6, s{t0}, v6")
    a(f"s_mul_i32 s{sN}, s2, 20480")
    a("v_bfe_u32 v10, v1, 3, 1")
    a("v_mul_u32_u24 v10, 4088, v10")
    a("v_sub_u32 v11, v5, v10")
    a("v_sub_u32 v10, v6, v10")
    for nb in range(2):
        a(f"buffer_load_dwordx4 v[{RQ+4*nb}:{RQ+4*nb+3}], v5, s[{SWS}:{SWS+3}], s{sR} offen")
        a(f"s_add_u32 s{sR}, s{sR}, 8192")
    a(f"buffer_load_dwordx2 v[{RQ+8}:{RQ+9}], v11, s[{SWS}:{SWS+3}], s{sR} offen")
    for nb in range(2):
        a(f"s_add_u32 s{sTmp}, s{sN}, {nb*8192}")
        a(f"buffer_load_dwordx4 v[{HQ+4*nb}:{HQ+4*nb+3}], v6, s[{SH}:{SH+3}], s{sTmp} offen")
    a(f"s_add_u32 s{sTmp}, s{sN}, 16384")
    a(f"buffer_load_dwordx2 v[{HQ+8}:{HQ+9}], v10, s[{SH}:{SH+3}], s{sTmp} offen")
    a("v_lshlrev_b32 v7, 2, v1")
    a(f"s_mul_i32 s{sP}, s2, 240")
    a(f"buffer_load_dword v8, v7, s[{SP}:{SP+3}], s{sP} offen")
    flush(a, Z[1])
    a(f"v_mul_u32_u24 v9, {S_ROW}, v3")
    a("v_lshl_add_u32 v9, v4, 4, v9")
    a(f"v_add_u32 v9, {L_S}, v9")
    a("s_waitcnt lgkmcnt(0)")
    a("s_barrier")
    a.lds = []
    seq = [(nb, ks) for nb in range(3) for ks in range(8)]
    def bread(i):
        nb, ks = seq[i]; q = BR + 4 * (i % 6)
        a.ds(f"ds_read_b128 v[{q}:{q+3}], v9 offset:{nb*16*S_ROW + ks*64}", ("B", i))
    X, EE = 64, 72
    sM16, sLN2 = T[8], T[9]
    a(f"s_mov_b32 s{sM16}, 0xffff0000")
    a(f"s_mov_b32 s{sLN2}, {NLN2:#x}")
    def epilogue(nb):
        o = O + 8 * nb
        n = 4 if nb == 2 else 8
        ops = []
        if nb == 2:
            for k in range(4): ops.append(f"v_mov_b32_dpp v{o+k}, v{o+4+k} row_shr:8 row_mask:0xf bank_mask:0xc")
        for i in range(n // 2):
            ops.append(f"v_lshlrev_b32 v{X+2*i}, 16, v{RQ+4*nb+i}")
            ops.append(f"v_and_b32 v{X+2*i+1}, s{sM16}, v{RQ+4*nb+i}")
        for k in range(n): ops.append(f"v_add_f32 v{X+k}, v{X+k}, v{o+k}")
        for k in range(n): ops.append(f"v_exp_f32 v{EE+k}, v{X+k}")
        for k in range(n): ops.append(f"v_add_f32 v{EE+k}, 1.0, v{EE+k}")
        for k in range(n): ops.append(f"v_rcp_f32 v{EE+k}, v{EE+k}")
        for i in range(n // 2):
            ops.append(f"v_lshlrev_b32 v{o+2*i}, 16, v{HQ+4*nb+i}")
            ops.append(f"v_and_b32 v{o+2*i+1}, s{sM16}, v{HQ+4*nb+i}")
        for k in range(n): ops.append(f"v_mul_f32 v{X+k}, v{X+k}, v{EE+k}")
        for k in range(n): ops.append(f"v_fma_f32 v{X+k}, v{X+k}, s{sLN2}, v{o+k}")
        d = 100 + 4 * nb
        for i in range(n // 2): ops.append(f"v_cvt_pk_bf16_f32 v{d+i}, v{X+2*i}, v{X+2*i+1}")
        ops.append(f"s_add_u32 s{sTmp}, s{sN}, {nb*8192}")
        if nb == 2: ops.append(f"buffer_store_dwordx2 v[{d}:{d+1}], v10, s[{SO}:{SO+3}], s{sTmp} offen{OST()}")
        else: ops.append(f"buffer_store_dwordx4 v[{d}:{d+3}], v6, s[{SO}:{SO+3}], s{sTmp} offen{OST()}")
        return ops
    for i in range(5): bread(i)
    pend = []
    for i, (nb, ks) in enumerate(seq):
        q = BR + 4 * (i % 6)
        if ks == 3 and nb > 0:
            if nb == 1: a("s_waitcnt vmcnt(0)")
            pend = epilogue(nb - 1)
        a.wait_lds(("B", i))
        for cb in range(2):
            o = O + 8 * nb + 4 * cb; w = WH + 4 * (cb * 8 + ks)
            c = "0" if ks == 0 else f"v[{o}:{o+3}]"
            a(f"v_mfma_f32_16x16x32_bf16 v[{o}:{o+3}], v[{w}:{w+3}], v[{q}:{q+3}], {c}")
        if i + 5 < len(seq): bread(i + 5)
        left = 7 - ks if ks >= 3 else None
        if pend:
            k = -(-len(pend) // (8 - ks + 2))
            for op in pend[:k]: a(op)
            pend = pend[k:]
        if ks == 2:
            for op in pend: a(op)
            pend = []
    for op in pend: a(op)
    a.stamp(11)
    a("s_nop 7")
    for op in epilogue(2): a(op)
    a("s_mov_b64 exec, -1")
    a(f"s_cmp_lg_u32 s{W}, 0")
    a("s_cbranch_scc1 L2_done")
    a("s_mov_b32 exec_hi, 0x0fffffff")
    for k in range(2):
        a(f"v_lshlrev_b32 v10, 1, v1")
        if k: a("v_add_u32 v10, 1, v10")
        a("v_mul_u32_u24 v11, 171, v10")
        a("v_lshrrev_b32 v11, 9, v11")
        a("v_mul_u32_u24 v12, 3, v11")
        a("v_sub_u32 v12, v10, v12")
        a("v_lshrrev_b32 v13, 3, v11")
        a("v_lshlrev_b32 v13, 5, v13")
        a("v_lshl_add_u32 v13, v12, 3, v13")
        a("v_and_b32 v11, 7, v11")
        a("v_add3_u32 v13, v13, v11, 8")
        a("v_lshlrev_b32 v13, 2, v13")
        a(f"v_add_u32 v13, {L_T}, v13")
        a(f"ds_read_b32 v{14+k}, v13")
    a("v_lshlrev_b32 v10, 16, v8")
    a(f"v_and_b32 v11, s{sM16}, v8")
    a("s_waitcnt lgkmcnt(0)")
    a(f"v_fma_f32 v10, v14, s{sLN2}, v10")
    a(f"v_fma_f32 v11, v15, s{sLN2}, v11")
    a("v_cvt_pk_bf16_f32 v10, v10, v11")
    a(f"buffer_store_dword v10, v7, s[{SPO}:{SPO+3}], s{sP} offen")
    a.label("L2_done")
    if a.diag:
        a("s_waitcnt vmcnt(0)")
        a("s_memrealtime s[100:101]")
        a("s_waitcnt lgkmcnt(0)")
        a("s_mov_b32 s89, s100")
        a.dump_stamps(P_WS, WS_DIAG, W)
```

```python
from asmlib import *
from common import *
import p1

EXP = set()
CAP = 27
TILE = 2560
L_SRC = CAP * TILE
L_STAGE = L_SRC + 32 * 128
L_S = L_STAGE + 65536
S_ROW = 544
L_T = L_S + 40 * S_ROW
L_REL = L_T + 640
L_NG = L_REL + 1280
L_TB = L_NG + 32
W = S_WAVE
NRW = 7

SWS, SQ, SH, SO, STAB, SDBG = R0, R1, R2, R3, R4, R5
S_T, S_N, S_TG0, S_NT, S_WIN, S_TG = 64, 65, 66, 67, 68, 69
ZB, FB = 70, 75
S_STG, S_G5, S_IB, S_FIRST, S_WPH, S_M8 = 80, 81, 82, 83, 84, 86
S_RA, S_RB = 26, 27
S_HALF, S_HF = 85, 68
S_MK = 56
t0, t1, t2, t3 = T[0], T[1], T[2], T[3]

Z = (16, 32); E = 48; ACC = 64; M = 80; A0 = 88; A1 = 92; A2 = 96; BP = 100
I0 = 200; I1 = 204; B2 = 116; B2Q = 120; WXA = 108; WH = 136
ONE2 = 208; SR = 210; DV = 212
vA0, vA1, vA2, vB0, vB1, vSR, vLC, vS, vT = 214, 215, 216, 217, 218, 219, 220, 221, 222
vOS, vSL = 223, 224
vOS1, vSL1 = 12, 13
cA2, cB0, cB1 = 225, 226, 227
FL = 228
ZQ = 236
cSR = 240
NV = 241
QQ = 244

def zero_fill(a):
    for k in range(4): a(f"v_mov_b32 v{36+k}, 0")
    a("v_lshlrev_b32 v40, 4, v0")
    a("v_add_u32 v41, 0x10000, v40")
    for k in range(8): a(f"ds_write_b128 v40, v[36:39] offset:{k*8192}")
    a("ds_write_b128 v41, v[36:39]")

def fill_tables(a):
    zero_fill(a)
    a(f"s_cmp_eq_u32 s{W}, 0")
    a("s_cbranch_scc0 1f")
    a(f"v_add_u32 v41, {L_T}, v40")
    a("s_mov_b32 exec_lo, -1")
    a("s_mov_b32 exec_hi, 0xff")
    a("ds_write_b128 v41, v[36:39]")
    a("s_mov_b64 exec, -1")
    a.label("1")

def mf32(d, x, y, c): return f"v_mfma_f32_32x32x16_bf16 v[{d}:{d+15}], v[{x}:{x+3}], v[{y}:{y+3}], {c}"
def z_mfmas(zn):
    return [mf32(zn, A0, I0, "0"), mf32(zn, A1, I1, f"v[{zn}:{zn+15}]"), mf32(zn, A2, B2, f"v[{zn}:{zn+15}]")]

def dma(a, slot):
    a(f"v_add_u32 v{DV}, v{SR}, v{vLC}")
    a(f"v_add_u32 v{DV+1}, v{SR+1}, v{vLC}")
    a(f"s_add_u32 m0, s{S_STG}, {slot*2048}")
    a("s_nop 0")
    a(f"buffer_load_dwordx4 v{DV}, s[{SQ}:{SQ+3}], 0 offen lds")
    a(f"s_add_u32 m0, s{S_STG}, {slot*2048+1024}")
    a("s_nop 0")
    a(f"buffer_load_dwordx4 v{DV+1}, s[{SQ}:{SQ+3}], 0 offen lds")

def shift_q(a, base):
    for k in range(4): a(f"s_mov_b32 s{base+k}, s{base+k+1}")

def flush(a, tmp):
    for q in range(8): a(f"v_cvt_pk_bf16_f32 v{FL+q}, v{ACC+2*q}, v{ACC+2*q+1}")
    a(f"s_mov_b64 exec, s[{S_M8}:{S_M8+1}]")
    a(f"ds_write_b128 v{vS}, v[{FL}:{FL+3}]")
    a(f"ds_write_b128 v{vS}, v[{FL+4}:{FL+7}] offset:16")
    a("s_mov_b64 exec, -1")
    a(mf32(tmp, WXA, FL, "0"))
    a(mf32(tmp, WXA + 4, FL + 4, f"v[{tmp}:{tmp+15}]"))
    a(mf32(ACC, ZQ, ZQ, "0"))
    a(f"v_add_u32 v{vS}, {8*S_ROW}, v{vS}")
    shift_q(a, FB)
    a("s_nop 6")
    a("s_mov_b32 exec_hi, 0")
    a(f"ds_add_f32 v{vT}, v{tmp}")
    a("s_mov_b64 exec, -1")
    a(f"v_add_u32 v{vT}, 128, v{vT}")

def rotate_b2(a):
    if "oldrot" in EXP:
        for q in range(4): a(f"v_mov_b32 v{B2+q}, v{B2Q+q}")
        for q in range(12): a(f"v_mov_b32 v{B2Q+q}, v{B2Q+4+q}")
        return
    for q in range(0, 4, 2): a(f"v_pk_mov_b32 v[{B2+q}:{B2+q+1}], v[{B2Q+q}:{B2Q+q+1}], v[{B2Q+q}:{B2Q+q+1}] op_sel:[0,1]")
    for q in range(0, 12, 2): a(f"v_pk_mov_b32 v[{B2Q+q}:{B2Q+q+1}], v[{B2Q+4+q}:{B2Q+4+q+1}], v[{B2Q+4+q}:{B2Q+4+q+1}] op_sel:[0,1]")

def rec_consts(a):
    a("v_lshrrev_b32 v44, 4, v1")
    a(f"s_lshl_b32 s{t0}, s{W}, 2")
    a(f"v_add_u32 v44, s{t0}, v44")
    a(f"s_mov_b32 s{t0}, {CH_STRIDE*16}")
    a(f"v_mul_lo_u32 v42, s{t0}, v44")
    a(f"s_movk_i32 s{t0}, {CH_STRIDE*4}")
    a(f"v_mul_lo_u32 v43, s{t0}, v44")
    a("v_lshlrev_b32 v40, 2, v44")
    a("v_and_b32 v41, 15, v1")

OSL = ((vOS, vSL), (vOS1, vSL1))

def rec_loads(a, lbl):
    for it in range(4):
        p, r = it >> 1, it & 1
        os_, sl_ = OSL[r]
        a(f"v_add_u32 v36, s{S_IB}, v41")
        if p: a("v_add_u32 v36, 16, v36")
        a(f"v_cmp_lt_u32 s[{S_MK+2*it}:{S_MK+2*it+1}], v36, v{sl_}")
        a(f"v_add_u32 v36, v36, v{os_}")
        a(f"v_lshl_add_u32 v37, v36, 4, v42")
        a(f"v_lshl_add_u32 v38, v36, 2, v43")
        a(f"s_mov_b32 s{S_RA}, {WS_RECA + r*32*CH_STRIDE*16}")
        a(f"s_mov_b32 s{S_RB}, {WS_RECB + r*32*CH_STRIDE*4}")
        a(f"s_mov_b64 exec, s[{S_MK+2*it}:{S_MK+2*it+1}]")
        a(f"s_cbranch_execz {lbl}_{it}")
        a(f"buffer_load_dwordx4 v[{16+4*it}:{19+4*it}], v37, s[{SWS}:{SWS+3}], s{S_RA} offen sc1")
        a(f"buffer_load_dword v{32+it}, v38, s[{SWS}:{SWS+3}], s{S_RB} offen sc1")
        a.label(f"{lbl}_{it}")
        a("s_mov_b64 exec, -1")

def build_recs(a, lbl):
    a("s_waitcnt vmcnt(0)")
    if "chain" in EXP and lbl == "L2_b0": a.stamp(0)
    a("v_mov_b32 v58, 0x3f80")
    for it in range(4):
        RB = 32 + it
        r = it & 1
        a(f"s_mov_b64 exec, s[{S_MK+2*it}:{S_MK+2*it+1}]")
        a(f"s_cbranch_execz {lbl}_a{it}")
        a(f"v_lshrrev_b32 v44, 17, v{RB}")
        a(f"v_subrev_u32 v44, s{S_G5}, v44")
        a(f"v_lshl_add_u32 v45, v44, 8, v40")
        a(f"v_add_u32 v45, {L_REL + 128*r}, v45")
        a(f"ds_read_b32 v{2+2*it}, v45")
        a(f"v_lshl_add_u32 v47, v44, 2, v59")
        a(f"ds_read_b32 v{3+2*it}, v47")
        a.label(f"{lbl}_a{it}")
    a("s_mov_b64 exec, -1")
    a(f"s_lshl_b32 s{t1}, s{S_TG0}, 5")
    a(f"s_sub_u32 s{t0}, s{S_IB}, s{t1}")
    a(f"v_add_u32 v49, s{t0}, v41")
    a(f"s_movk_i32 s{t1}, {CAP*32}")
    a("s_waitcnt lgkmcnt(0)")
    for it in range(4):
        RA, RB = 16 + 4 * it, 32 + it
        p, r = it >> 1, it & 1
        a(f"s_mov_b64 exec, s[{S_MK+2*it}:{S_MK+2*it+1}]")
        a(f"s_cbranch_execz {lbl}_{it}")
        a(f"v_add3_u32 v44, v49, v{2+2*it}, v{3+2*it}")
        a(f"v_add_u32 v44, v44, v{OSL[r][0]}")
        if p: a("v_add_u32 v44, 16, v44")
        a(f"v_and_b32 v50, 0x3fff, v{RB}")
        a(f"v_cmp_gt_u32 vcc, s{t1}, v44")
        a("v_lshlrev_b32 v50, 9, v50")
        a("v_add_u32 v50, 512, v50")
        a("s_and_b64 exec, exec, vcc")
        a(f"s_cbranch_execz {lbl}_{it}")
        a("v_lshlrev_b32 v51, 2, v44")
        a(f"v_add_u32 v51, {L_SRC}, v51")
        a("ds_write_b32 v51, v50")
        a("v_lshrrev_b32 v52, 5, v44")
        a(f"v_mul_u32_u24 v52, {TILE}, v52")
        a("v_and_b32 v53, 31, v44")
        a("v_lshl_add_u32 v55, v53, 4, v52")
        a(f"ds_write_b128 v55, v[{RA}:{RA+3}] offset:2048")
        a(f"v_bfe_u32 v54, v{RB}, 14, 3")
        a("v_lshl_add_u32 v52, v53, 6, v52")
        a("v_lshl_add_u32 v52, v54, 1, v52")
        a("v_bfe_u32 v53, v53, 2, 2")
        a("v_lshl_add_u32 v54, v53, 4, v52")
        a("ds_write_b16 v54, v58")
        a("v_xor_b32 v55, 1, v53")
        a("v_lshl_add_u32 v55, v55, 4, v52")
        a(f"ds_write_b16_d16_hi v55, v{RA+2}")
        a("v_xor_b32 v56, 2, v53")
        a("v_lshl_add_u32 v56, v56, 4, v52")
        a(f"ds_write_b16 v56, v{RA+3}")
        a("v_xor_b32 v57, 3, v53")
        a("v_lshl_add_u32 v57, v57, 4, v52")
        a(f"ds_write_b16_d16_hi v57, v{RA+3}")
        a.label(f"{lbl}_{it}")
    a("s_mov_b64 exec, -1")

def poll(a, lbl, srdreg, voff, want, sleep):
    a(f"s_mov_b32 s{t1}, 0x8000")
    a("s_mov_b32 exec_lo, 1")
    a("s_mov_b32 exec_hi, 0")
    a.label(lbl)
    a(f"buffer_load_dword v10, v{voff}, s[{srdreg}:{srdreg+3}], 0 offen sc1")
    a("s_waitcnt vmcnt(0)")
    a(f"v_readfirstlane_b32 s{t0}, v10")
    a(f"s_and_b32 s{t0}, s{t0}, {want:#x}")
    a(f"s_cmp_eq_u32 s{t0}, {want:#x}")
    a(f"s_cbranch_scc1 {lbl}_ok")
    a(f"s_sub_u32 s{t1}, s{t1}, 1")
    a(f"s_cmp_eq_u32 s{t1}, 0")
    a(f"s_cbranch_scc1 {lbl}_ok")
    a(f"s_sleep {sleep}")
    a(f"s_branch {lbl}")
    a.label(f"{lbl}_ok")
    a("s_mov_b64 exec, -1")

def mailbox(a, word):
    srd(a, R4, P_WS, WS_MBX, 2048)
    a(f"s_and_b32 s{t2}, s2, 15")
    a(f"s_lshl_b32 s{t2}, s{t2}, 7")
    a(f"s_add_u32 s{t2}, s{t2}, {4*word}")
    a(f"v_mov_b32 v8, s{t2}")

def a_reads(u1):
    sl = u1 % 4
    return [f"ds_read_b128 v[{A0}:{A0+3}], v{vA0} offset:{sl*2048}",
            f"ds_read_b128 v[{A1}:{A1+3}], v{vA1} offset:{sl*2048}",
            f"ds_read_b128 v[{A2}:{A2+3}], v{vA2} offset:{u1*TILE}"]
def bp_reads(u):
    return [f"ds_read_b64_tr_b16 v[{BP}:{BP+1}], v{vB0} offset:{u*TILE}",
            f"ds_read_b64_tr_b16 v[{BP+2}:{BP+3}], v{vB1} offset:{u*TILE}",
            f"ds_read_b64_tr_b16 v[{BP+4}:{BP+5}], v{vB0} offset:{u*TILE+1024}",
            f"ds_read_b64_tr_b16 v[{BP+6}:{BP+7}], v{vB1} offset:{u*TILE+1024}"]
def seg_mfmas():
    return [mf32(ACC, M, BP, f"v[{ACC}:{ACC+15}]"), mf32(ACC, M + 4, BP + 4, f"v[{ACC}:{ACC+15}]")]

OOL = []
def OST():
    return " sc1" if "osc1" in EXP else " nt" if "ont" in EXP else " sc0 sc1" if "osc01" in EXP else ""

def first_pass_wait(a, lbl):
    a(f"s_cmp_eq_u32 s{S_WPH}, 0")
    a(f"s_cbranch_scc0 {lbl}")
    a("s_waitcnt vmcnt(0)")
    a.label(lbl)

def iteration(a, u):
    zc, zn = Z[u & 1], Z[(u + 1) & 1]
    sl = (u + 1) % 4
    a(f"s_setprio {3-u}")
    a("s_waitcnt lgkmcnt(0)")
    a(f"s_cmp_eq_u32 s{S_TG}, s{FB}")
    a(f"s_cbranch_scc1 L2_fl_{u}")
    a.label(f"L2_fl_{u}_r")
    OOL.append((f"L2_fl_{u}", lambda a, zn=zn, u=u: (first_pass_wait(a, f"L2_flw_{u}"), flush(a, zn), a(f"s_branch L2_fl_{u}_r"))))
    a(f"s_cmp_eq_u32 s{S_TG}, s{ZB}")
    a(f"s_cbranch_scc1 L2_rt_{u}")
    a.label(f"L2_rt_{u}_r")
    def rt(a, u=u):
        first_pass_wait(a, f"L2_rtw_{u}")
        rotate_b2(a); shift_q(a, ZB)
        a(f"s_and_b32 s{S_HALF}, s{S_HF}, 1")
        a(f"s_lshr_b32 s{S_HF}, s{S_HF}, 1")
        a(f"s_cmp_eq_u32 s{S_HALF}, 1")
        a(f"s_cbranch_scc0 L2_rt_{u}_r")
        a(f"s_branch L2_ha_{u}")
    OOL.append((f"L2_rt_{u}", rt))
    zm = z_mfmas(zn); sm = seg_mfmas(); bp = bp_reads(u); ar = a_reads(u + 2)
    def run(a, op, regs, att):
        for i, k in enumerate(regs):
            a(f"{op} v{E+k}, v{(zc if op == 'v_exp_f32' else E)+k}")
            for x in att.get(i, []): a(x)
    def pk(a, op, lo, n=8):
        for k in range(lo, lo + n, 2):
            other = f"v[{ONE2}:{ONE2+1}]" if op == "v_pk_add_f32" else f"v[{zc+k}:{zc+k+1}]"
            a(f"{op} v[{E+k}:{E+k+1}], v[{E+k}:{E+k+1}], {other}")
    def cvt(a, lo, n=8):
        for k in range(lo, lo + n, 2): a(f"v_cvt_pk_bf16_f32 v{M+k//2}, v{E+k}, v{E+k+1}")
    def parts(a, x):
        dv0 = [f"v_add_u32 v{DV}, v{SR}, v{vLC}", f"s_add_u32 m0, s{S_STG}, {sl*2048}"]
        dm0 = [f"v_add_u32 v{DV+1}, v{SR+1}, v{vLC}", f"buffer_load_dwordx4 v{DV}, s[{SQ}:{SQ+3}], 0 offen lds"]
        m1 = [f"s_add_u32 m0, s{S_STG}, {sl*2048+1024}"]
        dm1 = [f"buffer_load_dwordx4 v{DV+1}, s[{SQ}:{SQ+3}], 0 offen lds"]
        wlc = [f"s_cmp_eq_u32 s{S_WPH}, 0", f"s_cbranch_scc1 L2_wl{x}_{u}", f"L2_wl{x}_{u}_r:"]
        cnt = [f"s_add_u32 s{S_T}, s{S_T}, 1", f"s_add_u32 s{S_TG}, s{S_TG}, 1"]
        wvc = [f"s_cmp_lt_u32 s{S_WPH}, 2", f"s_cbranch_scc1 L2_wv{x}_{u}", "s_waitcnt vmcnt(6)", f"L2_wv{x}_{u}_r:"]
        srr = [f"ds_read2_b32 v[{SR}:{SR+1}], v{vSR} offset0:{u*32} offset1:{u*32+16}"]
        def wl(a, u=u):
            a("v_lshlrev_b32 v5, 4, v1")
            a(f"s_lshl_b32 s{t0}, s{W}, 14")
            a(f"s_add_u32 s{t0}, s{t0}, {WS_WHP + u*4096}")
            for q in range(4 * u, 4 * u + 4):
                a(f"buffer_load_dwordx4 v[{WH+4*q}:{WH+4*q+3}], v5, s[{SWS}:{SWS+3}], s{t0} offen offset:{(q%4)*1024}")
            a(f"s_branch L2_wl{x}_{u}_r")
        OOL.append((f"L2_wl{x}_{u}", wl))
        def wv(a, u=u):
            a(f"s_cmp_eq_u32 s{S_WPH}, 0")
            a(f"s_cbranch_scc1 L2_wv{x}_{u}_0")
            a(f"s_waitcnt vmcnt({(18, 14, 10, 6)[u]})")
            a(f"s_branch L2_wv{x}_{u}_r")
            a.label(f"L2_wv{x}_{u}_0")
            a(f"s_waitcnt vmcnt({(16, 20, 24, 22)[u]})")
            a(f"s_branch L2_wv{x}_{u}_r")
        OOL.append((f"L2_wv{x}_{u}", wv))
        return dv0, dm0, m1, dm1, wlc, cnt, wvc, srr
    def first_half(a, n, x):
        dv0, dm0, m1, dm1, wlc, cnt, wvc, srr = parts(a, x)
        if n == 8:
            ae = {0: [sm[0]], 1: dv0, 2: dm0, 3: [bp[0], bp[1]], 4: [zm[0]], 5: m1, 6: dm1, 7: wlc}
            ar_ = {0: [zm[1]], 1: cnt, 4: [zm[2]], 5: wvc + [ar[0]], 6: [ar[1], ar[2]], 7: srr}
        else:
            ae = {0: [sm[0]] + dv0, 1: dm0 + [bp[0], bp[1]], 2: [zm[0]] + m1, 3: dm1 + wlc}
            ar_ = {0: [zm[1]] + cnt, 2: [zm[2]], 3: wvc + [ar[0], ar[1], ar[2]] + srr}
        run(a, "v_exp_f32", range(0, n), ae)
        pk(a, "v_pk_add_f32", 0, n)
        run(a, "v_rcp_f32", range(0, n), ar_)
        pk(a, "v_pk_mul_f32", 0, n)
        cvt(a, 0, n)
    def hf(a, u=u):
        a(sm[1]); a(f"s_mov_b32 s{S_HALF}, 0"); a(bp[2]); a(bp[3])
        a(f"s_branch L2_hf_{u}_r")
    OOL.append((f"L2_hf_{u}", hf))
    def ha(a, u=u):
        first_half(a, 8, "h")
        a(f"s_branch L2_hf_{u}")
    OOL.append((f"L2_ha_{u}", ha))
    dv0, dm0, m1, dm1, wlc, cnt, wvc, srr = parts(a, "")
    run(a, "v_exp_f32", range(0, 16), {0: [sm[0]], 4: [sm[1]]})
    for x in cnt: a(x)
    a(mf32(E, QQ, QQ, f"v[{E}:{E+15}]"))
    for x in [bp[0], bp[1]] + dv0 + dm0 + [bp[2], bp[3]] + m1 + srr + dm1 + wlc + [zm[0]] + wvc: a(x)
    run(a, "v_rcp_f32", range(0, 16), {2: [zm[1]], 6: [zm[2]], 7: [ar[0], ar[1], ar[2]]})
    pk(a, "v_pk_mul_f32", 0, 16)
    cvt(a, 0, 16)
    a.label(f"L2_hf_{u}_r")
    a(f"s_cmp_eq_u32 s{S_T}, s{S_N}")
    a("s_cbranch_scc1 L2_win_end")

def constants_a(a, b=44, mk=52):
    a(f"v_and_b32 v{b+0}, 31, v1")
    a(f"v_lshrrev_b32 v{b+1}, 5, v1")
    a(f"v_mov_b32 v{ONE2}, 1.0")
    a(f"v_mov_b32 v{ONE2+1}, 1.0")
    for q in range(4): a(f"v_mov_b32 v{ZQ+q}, 0")
    a(f"s_mov_b32 s{S_M8}, 0xff")
    a(f"s_mov_b32 s{S_M8+1}, 0xff")
    a(f"v_lshlrev_b32 v{b+2}, 3, v{b+1}")
    a(f"v_sub_u32 v{b+2}, v{b+0}, v{b+2}")
    a(f"v_mov_b32 v{b+4}, 0x3f80")
    a(f"v_mov_b32 v{b+5}, 0x3f800000")
    a(f"v_and_b32 v{b+3}, 1, v{b+2}")
    a(f"v_cmp_eq_u32 vcc, 1, v{b+3}")
    a(f"v_lshrrev_b32 v{b+6}, 1, v{b+2}")
    a(f"v_add_u32 v{b+7}, -8, v{b+6}")
    a(f"v_cndmask_b32 v{b+3}, v{b+4}, v{b+5}, vcc")
    for I, r in ((I0, b + 6), (I1, b + 7)):
        for q0 in (0, 2):
            a(f"v_cmp_eq_u32 s[{mk}:{mk+1}], {q0}, v{r}")
            a(f"v_cmp_eq_u32 s[{mk+2}:{mk+3}], {q0+1}, v{r}")
            a("s_nop 0")
            a(f"v_cndmask_b32 v{I+q0}, 0, v{b+3}, s[{mk}:{mk+1}]")
            a(f"v_cndmask_b32 v{I+q0+1}, 0, v{b+3}, s[{mk+2}:{mk+3}]")

def constants_b(a, b=44):
    a(f"v_and_b32 v{b+0}, 31, v1")
    a(f"v_lshrrev_b32 v{b+1}, 5, v1")
    a(f"s_lshl_b32 s{S_STG}, s{W}, 13")
    a(f"s_add_u32 s{S_STG}, s{S_STG}, {L_STAGE}")
    a(f"v_bfe_u32 v{b+2}, v{b+0}, 2, 2")
    a(f"v_xor_b32 v{b+3}, v{b+1}, v{b+2}")
    a(f"v_lshlrev_b32 v{b+4}, 6, v{b+0}")
    a(f"v_add_u32 v{b+5}, s{S_STG}, v{b+4}")
    a(f"v_lshl_add_u32 v{vA0}, v{b+3}, 4, v{b+5}")
    a(f"v_xor_b32 v{b+3}, 2, v{b+3}")
    a(f"v_lshl_add_u32 v{vA1}, v{b+3}, 4, v{b+5}")
    a(f"v_lshlrev_b32 v{b+3}, 4, v{b+0}")
    a(f"v_add_u32 v{b+3}, 2048, v{b+3}")
    a(f"v_lshl_add_u32 v{b+4}, v{b+2}, 4, v{b+4}")
    a(f"v_cmp_eq_u32 vcc, 1, v{b+1}")
    a(f"v_bfe_u32 v{b+2}, v1, 2, 2")
    a(f"v_lshl_add_u32 v{b+2}, v{b+1}, 2, v{b+2}")
    a(f"v_cndmask_b32 v{cA2}, v{b+3}, v{b+4}, vcc")
    a(f"v_lshlrev_b32 v{b+2}, 6, v{b+2}")
    a(f"v_and_b32 v{b+3}, 1, v1")
    a(f"v_lshl_add_u32 v{b+2}, v{b+3}, 3, v{b+2}")
    a(f"v_bfe_u32 v{b+3}, v1, 4, 1")
    a(f"v_lshlrev_b32 v{b+3}, 1, v{b+3}")
    a(f"v_bfe_u32 v{b+4}, v1, 1, 1")
    a(f"v_or_b32 v{b+3}, v{b+3}, v{b+4}")
    a(f"v_xor_b32 v{b+3}, v{b+3}, v{b+1}")
    a(f"v_lshl_add_u32 v{cB0}, v{b+3}, 4, v{b+2}")
    a(f"v_xor_b32 v{b+3}, 2, v{b+3}")
    a(f"v_lshl_add_u32 v{b+4}, v{b+3}, 4, v{b+2}")
    a(f"v_add_u32 v{cB1}, 512, v{b+4}")
    a(f"v_and_b32 v{b+2}, 3, v1")
    a(f"v_bfe_u32 v{b+3}, v1, 4, 2")
    a(f"v_xor_b32 v{b+2}, v{b+2}, v{b+3}")
    a(f"v_lshlrev_b32 v{b+2}, 4, v{b+2}")
    a(f"s_lshl_b32 s{t0}, s{W}, 6")
    a(f"s_sub_u32 s{t1}, s{t0}, 512")
    a(f"v_add_u32 v{vLC}, s{t1}, v{b+2}")
    a(f"v_and_b32 v{b+2}, 7, v1")
    a(f"v_mul_u32_u24 v{b+2}, {S_ROW}, v{b+2}")
    a(f"v_lshl_add_u32 v{b+2}, v{b+1}, 5, v{b+2}")
    a(f"s_add_u32 s{t0}, s{t0}, {L_S}")
    a(f"v_add_u32 v{vS}, s{t0}, v{b+2}")
    a(f"v_lshlrev_b32 v{b+2}, 2, v{b+0}")
    a(f"v_add_u32 v{vT}, {L_T}, v{b+2}")
    a(f"v_lshrrev_b32 v{b+2}, 2, v1")
    a(f"v_lshlrev_b32 v{b+2}, 2, v{b+2}")
    a(f"v_add_u32 v{cSR}, {L_SRC}, v{b+2}")

def phase2(a):
    def entry(a):
        a("v_and_b32 v1, 63, v0")
        a(f"s_cmp_eq_u32 s{W}, 0")
        a("s_cbranch_scc0 2f")
        p1.arrive_issue(a, f"s{p1.S_INC}")
        a.label("2")
        srd(a, SWS, P_WS, 0, WS_USED)
        a(f"s_mul_i32 s{S_G5}, s2, 5")
    def table_load(a):
        srd(a, STAB, P_WS, WS_TAB, NCH * TAB_STRIDE)
        a("v_lshlrev_b32 v2, 12, v1")
        a(f"s_lshl_b32 s{t0}, s2, 4")
        a(f"buffer_load_dwordx3 v[60:62], v2, s[{STAB}:{STAB+3}], s{t0} offen sc1")
    def t_zero(a):
        a(f"v_add_u32 v41, {L_T}, v40")
        a("s_mov_b32 exec_lo, -1")
        a("s_mov_b32 exec_hi, 0xff")
        a("ds_write_b128 v41, v[36:39]")
        a("s_mov_b64 exec, -1")
    a.label("L_phase2_fast")
    a.stamp(5)
    entry(a)
    table_load(a)
    a(f"s_cmp_eq_u32 s{W}, 0")
    a("s_cbranch_scc0 L2_tab")
    p1.arrive_finish(a, f"s{p1.S_INC}", "f")
    a("s_branch L2_tab")
    a.label("L_phase2")
    a.stamp(5)
    entry(a)
    a(f"s_cmp_eq_u32 s{W}, 0")
    a("s_cbranch_scc0 L2_w1")
    p1.arrive_finish(a, f"s{p1.S_INC}", "a")
    a("s_and_b32 s52, s85, 1")
    a("s_cmp_eq_u32 s52, 1")
    a("s_cbranch_scc1 L2_inited")
    srd(a, SDBG, P_DBG, 0, 256)
    a("v_mov_b32 v8, 0")
    poll(a, "L2_poll0", SDBG, 8, 1, 16)
    a("s_mov_b32 s85, 0")
    a.label("L2_inited")
    a("s_and_b32 s52, s85, 0xffff")
    a(f"s_cmp_eq_u32 s52, {K1:#x}")
    a("s_cbranch_scc1 L2_w1")
    mailbox(a, 0)
    poll(a, "L2_poll1", R4, 8, 1, 2)
    a.label("L2_w1")
    a("s_barrier")
    table_load(a)
    a.label("L2_tab")
    a.stamp(6)
    a(f"s_mov_b32 s{S_IB}, 0")
    a(f"s_mov_b32 s{S_TG0}, 0")
    a(f"s_mov_b32 s{S_FIRST}, 1")
    a(mf32(ACC, ZQ, ZQ, "0"))
    a("s_waitcnt vmcnt(0)")
    if "chain" in EXP: a.stamp(2)
    a(f"v_and_b32 v46, 0xffff, v60")
    a(f"v_lshrrev_b32 v47, 16, v62")
    a(f"v_sub_u32 v47, v47, v46")
    rec_consts(a)
    a("v_add_u32 v45, 128, v40")
    a(f"ds_bpermute_b32 v{vOS}, v40, v46")
    a(f"ds_bpermute_b32 v{vSL}, v40, v47")
    a(f"ds_bpermute_b32 v{vOS1}, v45, v46")
    a(f"ds_bpermute_b32 v{vSL1}, v45, v47")
    a("s_waitcnt lgkmcnt(0)")
    rec_loads(a, "L2_ld0")
    if "chain" in EXP: a.stamp(3)
    a(f"s_cmp_ge_u32 s{W}, 5")
    a("s_cbranch_scc1 L2_noscan")
    a(f"s_cmp_lt_u32 s{W}, 2")
    a("s_cbranch_scc1 L2_sel")
    a("v_mov_b32 v60, v61")
    a("v_mov_b32 v61, v62")
    a(f"s_cmp_lt_u32 s{W}, 4")
    a("s_cbranch_scc1 L2_sel")
    a("v_mov_b32 v60, v61")
    a.label("L2_sel")
    a(f"s_and_b32 s{t0}, s{W}, 1")
    a(f"s_lshl_b32 s{t0}, s{t0}, 4")
    a(f"v_alignbit_b32 v61, v61, v60, s{t0}")
    a("v_and_b32 v60, 0xffff, v61")
    a("v_lshrrev_b32 v61, 16, v61")
    a("v_sub_u32 v62, v61, v60")
    a("v_mov_b32 v63, v62")
    for sh in (1, 2, 4, 8):
        a("s_nop 1")
        a(f"v_add_u32_dpp v63, v63, v63 row_shr:{sh} row_mask:0xf bank_mask:0xf")
    a("s_nop 1")
    a("v_add_u32_dpp v63, v63, v63 row_bcast:15 row_mask:0xa bank_mask:0xf")
    a("s_nop 1")
    a("v_add_u32_dpp v63, v63, v63 row_bcast:31 row_mask:0xc bank_mask:0xf")
    a("v_sub_u32 v62, v63, v62")
    a("v_sub_u32 v62, v62, v60")
    a(f"s_lshl_b32 s{t0}, s{W}, 8")
    a(f"s_add_u32 s{t0}, s{t0}, {L_REL}")
    a("v_lshlrev_b32 v45, 2, v1")
    a(f"v_add_u32 v45, s{t0}, v45")
    a("ds_write_b32 v45, v62")
    a(f"s_lshl_b32 s{t0}, s{W}, 2")
    a(f"s_add_u32 s{t0}, s{t0}, {L_NG}")
    a(f"v_mov_b32 v45, s{t0}")
    a("s_mov_b32 exec_lo, 0")
    a("s_mov_b32 exec_hi, 0x80000000")
    a("ds_write_b32 v45, v63")
    a("s_mov_b64 exec, -1")
    a.label("L2_noscan")
    a.label("L2_round_bar")
    a("s_waitcnt lgkmcnt(0)")
    a("s_barrier")
    a.stamp(7)
    a(f"s_cmp_eq_u32 s{S_FIRST}, 0")
    a("s_cbranch_scc1 L2_have_tb")
    a("v_lshlrev_b32 v45, 2, v1")
    a(f"v_add_u32 v45, {L_NG}, v45")
    a("s_mov_b32 exec_lo, 0xff")
    a("s_mov_b32 exec_hi, 0")
    a("ds_read_b32 v46, v45")
    a("s_waitcnt lgkmcnt(0)")
    a("v_max_u32 v46, 1, v46")
    a("v_add_u32 v47, -1, v46")
    a("v_and_b32 v47, 31, v47")
    a("v_cmp_gt_u32 vcc, 16, v47")
    a("v_add_u32 v46, 31, v46")
    a("v_lshrrev_b32 v46, 5, v46")
    a(f"s_and_b32 s{S_HF}, vcc_lo, 0x1f")
    NTG = (T[0], T[1], T[2], T[3], 85)
    for g in range(5): a(f"v_readlane_b32 s{NTG[g]}, v46, {g}")
    a(f"s_mov_b32 s{ZB}, s{NTG[0]}")
    for g in range(1, 4): a(f"s_add_u32 s{ZB+g}, s{ZB+g-1}, s{NTG[g]}")
    a(f"s_add_u32 s{S_NT}, s{ZB+3}, s85")
    a(f"s_mov_b32 s{ZB+4}, s{S_NT}")
    a(f"s_mov_b32 s{S_HALF}, 0")
    a("v_mov_b32 v46, 0")
    for g in range(1, 5):
        a(f"s_lshl_b32 s{t0}, s{ZB+g-1}, 5")
        a(f"v_writelane_b32 v46, s{t0}, {g}")
    for k in range(4): a(f"s_add_u32 s{FB+k}, s{ZB+k}, 1")
    a(f"s_mov_b32 s{FB+4}, 0x7ffffff0")
    for k in range(5): a(f"s_sub_u32 s{ZB+k}, s{ZB+k}, 1")
    a(f"s_lshl_b32 s{t0}, s{W}, 5")
    a(f"s_add_u32 s{t0}, s{t0}, {L_TB}")
    a("v_lshlrev_b32 v45, 2, v1")
    a(f"v_add_u32 v45, s{t0}, v45")
    a("ds_write_b32 v45, v46")
    a("s_mov_b64 exec, -1")
    a.label("L2_have_tb")
    a(f"s_lshl_b32 s{t0}, s{W}, 5")
    a(f"s_add_u32 s{t0}, s{t0}, {L_TB}")
    a(f"v_mov_b32 v59, s{t0}")
    a("s_waitcnt lgkmcnt(0)")
    if "chain" in EXP: a.stamp(4)
    build_recs(a, "L2_b0")
    a.label("L2_more")
    a(f"s_add_u32 s{S_IB}, s{S_IB}, 32")
    a(f"v_cmp_lt_u32 vcc, s{S_IB}, v{vSL}")
    a(f"v_cmp_lt_u32 s[52:53], s{S_IB}, v{vSL1}")
    a("s_or_b64 vcc, vcc, s[52:53]")
    a("s_cbranch_vccz L2_built0")
    rec_loads(a, "L2_ld1")
    build_recs(a, "L2_b1")
    a("s_branch L2_more")
    a.label("L2_built0")
    if "chain" in EXP: a.stamp(11)
    a(f"s_cmp_eq_u32 s{W}, 7")
    a("s_cbranch_scc0 L2_built")
    a(f"s_cmp_eq_u32 s{S_FIRST}, 0")
    a("s_cbranch_scc1 L2_built")
    mailbox(a, 1)
    poll(a, "L2_poll2", R4, 8, 1, 2)
    a.label("L2_built")
    a("s_waitcnt vmcnt(0) lgkmcnt(0)")
    a("s_barrier")
    a.stamp(8)
    a("s_setprio 3")
    a(f"v_mov_b32 v{vSR}, v{cSR}")
    for k in range(4):
        a(f"ds_read2_b32 v[{E+2*k}:{E+2*k+1}], v{vSR} offset0:{k*32} offset1:{k*32+16}")
    a(f"ds_read2_b32 v[{SR}:{SR+1}], v{vSR} offset0:128 offset1:144")
    a(f"s_cmp_eq_u32 s{S_FIRST}, 0")
    a("s_cbranch_scc1 L2_nob2")
    srd(a, SQ, P_WS, WS_Q, MAT_BYTES)
    a("v_and_b32 v3, 31, v1")
    a("v_lshrrev_b32 v4, 5, v1")
    a(f"s_lshl_b32 s{t0}, s{W}, 9")
    a("v_lshlrev_b32 v5, 4, v3")
    a(f"v_add_u32 v5, s{t0}, v5")
    a(f"s_lshl_b32 s{t1}, s{S_G5}, 12")
    a(f"s_add_u32 s{t1}, s{t1}, {WS_P - WS_WX}")
    a(f"v_mul_lo_u32 v6, s{t1}, v4")
    a("v_add_u32 v5, v5, v6")
    a(f"v_add_u32 v5, {WS_WX}, v5")
    a("v_lshlrev_b32 v6, 12, v4")
    a(f"buffer_load_dwordx4 v[{B2}:{B2+3}], v5, s[{SWS}:{SWS+3}], 0 offen")
    a.label("L2_nob2")
    a("s_waitcnt lgkmcnt(1)")
    def dma_k(k):
        a(f"v_add_u32 v{E+k}, v{E+k}, v{vLC}")
        a(f"s_add_u32 m0, s{S_STG}, {k*1024}")
        a("s_nop 0")
        a(f"buffer_load_dwordx4 v{E+k}, s[{SQ}:{SQ+3}], 0 offen lds")
    for k in range(4): dma_k(k)
    a(f"s_sub_u32 s{S_N}, s{S_NT}, s{S_TG0}")
    a(f"s_min_u32 s{S_N}, s{S_N}, {CAP}")
    a(f"s_mov_b32 s{S_T}, 0")
    a(f"s_mov_b32 s{S_TG}, s{S_TG0}")
    a(f"v_mov_b32 v{vA2}, v{cA2}")
    a(f"v_mov_b32 v{vB0}, v{cB0}")
    a(f"v_mov_b32 v{vB1}, v{cB1}")
    for k in range(8): a(f"v_mov_b32 v{M+k}, 0")
    for k in range(4): a(f"v_mov_b32 v{QQ+k}, 0x3e803e80")
    for k in range(8): a(f"v_mov_b32 v{BP+k}, 0")
    a(f"s_cmp_eq_u32 s{S_FIRST}, 0")
    a(f"s_cselect_b32 s{S_WPH}, 2, 0")
    a("s_waitcnt vmcnt(2)")
    for x in a_reads(0): a(x)
    for k in range(4, 8): dma_k(k)
    a("s_waitcnt lgkmcnt(0)")
    dma(a, 0)
    for m in z_mfmas(Z[0]): a(m)
    a(f"ds_read2_b32 v[{SR}:{SR+1}], v{vSR} offset0:160 offset1:176")
    a(f"v_add_u32 v{vSR}, 768, v{vSR}")
    a(f"s_cmp_eq_u32 s{S_FIRST}, 0")
    a("s_cbranch_scc1 L2_nob3")
    for g in range(1, 5):
        d = B2Q + 4 * (g - 1)
        a("v_add_u32 v5, v5, v6")
        a(f"buffer_load_dwordx4 v[{d}:{d+3}], v5, s[{SWS}:{SWS+3}], 0 offen")
    a(f"s_lshl_b32 s{t0}, s{W}, 6")
    a(f"s_add_u32 s{t0}, s{t0}, {WS_WXP}")
    a("v_lshlrev_b32 v7, 4, v4")
    a(f"buffer_load_dwordx4 v[{WXA}:{WXA+3}], v7, s[{SWS}:{SWS+3}], s{t0} offen")
    a(f"buffer_load_dwordx4 v[{WXA+4}:{WXA+7}], v7, s[{SWS}:{SWS+3}], s{t0} offen offset:32")
    a("s_waitcnt vmcnt(12)")
    a("s_branch L2_pw3")
    a.label("L2_nob3")
    a("s_waitcnt vmcnt(6)")
    a.label("L2_pw3")
    a(f"s_mov_b32 s{S_FIRST}, 0")
    for x in a_reads(1): a(x)
    a("s_nop 7")
    a.stamp(9)
    if "cyc" in EXP: a.cstamp(2)
    a.label("L2_loop")
    OOL.clear()
    for u in range(4): iteration(a, u)
    a(f"v_add_u32 v{vA2}, {4*TILE}, v{vA2}")
    a(f"v_add_u32 v{vB0}, {4*TILE}, v{vB0}")
    a(f"v_add_u32 v{vB1}, {4*TILE}, v{vB1}")
    a(f"v_add_u32 v{vSR}, 512, v{vSR}")
    a(f"s_add_u32 s{S_WPH}, s{S_WPH}, 1")
    a(f"s_min_u32 s{S_WPH}, s{S_WPH}, 2")
    a("s_branch L2_loop")
    k = 0
    while k < len(OOL):
        lbl, fn = OOL[k]; k += 1
        a.label(lbl); fn(a)
    a.label("L2_win_end")
    a("s_setprio 0")
    a("s_waitcnt lgkmcnt(0)")
    a(f"s_cmp_eq_u32 s{S_TG}, s{FB}")
    a("s_cbranch_scc0 L2_we_nf")
    a("s_nop 3")
    flush(a, Z[0])
    a.label("L2_we_nf")
    for m in seg_mfmas(): a(m)
    a(f"s_add_u32 s{S_TG0}, s{S_TG0}, s{S_N}")
    a(f"s_cmp_ge_u32 s{S_TG0}, s{S_NT}")
    a("s_cbranch_scc1 L2_final")
    a("s_waitcnt vmcnt(0) lgkmcnt(0)")
    a("s_barrier")
    a(f"s_mov_b32 s{S_IB}, 0")
    zero_fill(a)
    rec_consts(a)
    rec_loads(a, "L2_ld2")
    a("s_branch L2_round_bar")

    a.label("L2_final")
    if "df" in EXP: a("s_sleep 64")
    if "df2" in EXP: a("s_sleep 64"); a("s_sleep 64")
    if "dv" in EXP:
        for k in range(512): a(f"v_exp_f32 v{48+k%8}, v{56+k%8}")
    a.stamp(10)
    if "cyc" in EXP:
        a.cstamp(3)
        a(f"s_mov_b32 s92, s{S_NT}")
    RQ, HQ, O, BR = 88, 120, 16, 40
    a(f"s_cmp_ge_u32 s{S_NT}, 8")
    a("s_cbranch_scc1 L2_wh_done")
    a("s_waitcnt vmcnt(0)")
    a.label("L2_wh_done")
    SP, SPO = R4, R5
    srd(a, SH, P_H, 0, MAT_BYTES)
    srd(a, SO, P_OUT, 0, MAT_BYTES)
    srd(a, SP, P_POS, 0, 60000)
    srd(a, SPO, P_OUT, MAT_BYTES, 60000)
    sR, sN, sTmp, sP = T[4], T[5], T[6], T[7]
    a("v_and_b32 v3, 15, v1")
    a("v_lshrrev_b32 v4, 4, v1")
    a("v_lshrrev_b32 v5, 3, v3")
    a("v_lshlrev_b32 v5, 12, v5")
    a("v_and_b32 v6, 7, v3")
    a("v_lshl_add_u32 v5, v6, 4, v5")
    a("v_lshl_add_u32 v5, v4, 7, v5")
    a(f"s_lshl_b32 s{t0}, s{W}, 9")
    a(f"v_add_u32 v5, s{t0}, v5")
    a(f"s_lshl_b32 s{sR}, s{S_G5}, 12")
    a(f"s_add_u32 s{sR}, s{sR}, {WS_R}")
    a("v_lshlrev_b32 v6, 9, v3")
    a("v_lshl_add_u32 v6, v4, 4, v6")
    a(f"s_lshl_b32 s{t0}, s{W}, 6")
    a(f"v_add_u32 v6, s{t0}, v6")
    a(f"s_mul_i32 s{sN}, s2, 20480")
    a("v_bfe_u32 v10, v1, 3, 1")
    a("v_mul_u32_u24 v10, 4088, v10")
    a("v_sub_u32 v11, v5, v10")
    a("v_sub_u32 v10, v6, v10")
    for nb in range(2):
        a(f"buffer_load_dwordx4 v[{RQ+4*nb}:{RQ+4*nb+3}], v5, s[{SWS}:{SWS+3}], s{sR} offen")
        a(f"s_add_u32 s{sR}, s{sR}, 8192")
    a(f"buffer_load_dwordx2 v[{RQ+8}:{RQ+9}], v11, s[{SWS}:{SWS+3}], s{sR} offen")
    for nb in range(2):
        a(f"s_add_u32 s{sTmp}, s{sN}, {nb*8192}")
        a(f"buffer_load_dwordx4 v[{HQ+4*nb}:{HQ+4*nb+3}], v6, s[{SH}:{SH+3}], s{sTmp} offen")
    a(f"s_add_u32 s{sTmp}, s{sN}, 16384")
    a(f"buffer_load_dwordx2 v[{HQ+8}:{HQ+9}], v10, s[{SH}:{SH+3}], s{sTmp} offen")
    a("v_lshlrev_b32 v7, 2, v1")
    a(f"s_mul_i32 s{sP}, s2, 240")
    a(f"buffer_load_dword v8, v7, s[{SP}:{SP+3}], s{sP} offen")
    flush(a, Z[1])
    a(f"v_mul_u32_u24 v9, {S_ROW}, v3")
    a("v_lshl_add_u32 v9, v4, 4, v9")
    a(f"v_add_u32 v9, {L_S}, v9")
    a("s_waitcnt lgkmcnt(0)")
    a("s_barrier")
    a.lds = []
    seq = [(nb, ks) for nb in range(3) for ks in range(8)]
    def bread(i):
        nb, ks = seq[i]; q = BR + 4 * (i % 6)
        a.ds(f"ds_read_b128 v[{q}:{q+3}], v9 offset:{nb*16*S_ROW + ks*64}", ("B", i))
    X, EE = 64, 72
    sM16, sLN2 = T[8], T[9]
    a(f"s_mov_b32 s{sM16}, 0xffff0000")
    a(f"s_mov_b32 s{sLN2}, {NLN2:#x}")
    def epilogue(nb):
        o = O + 8 * nb
        n = 4 if nb == 2 else 8
        ops = []
        if nb == 2:
            for k in range(4): ops.append(f"v_mov_b32_dpp v{o+k}, v{o+4+k} row_shr:8 row_mask:0xf bank_mask:0xc")
        for i in range(n // 2):
            ops.append(f"v_lshlrev_b32 v{X+2*i}, 16, v{RQ+4*nb+i}")
            ops.append(f"v_and_b32 v{X+2*i+1}, s{sM16}, v{RQ+4*nb+i}")
        for k in range(n): ops.append(f"v_add_f32 v{X+k}, v{X+k}, v{o+k}")
        for k in range(n): ops.append(f"v_exp_f32 v{EE+k}, v{X+k}")
        for k in range(n): ops.append(f"v_add_f32 v{EE+k}, 1.0, v{EE+k}")
        for k in range(n): ops.append(f"v_rcp_f32 v{EE+k}, v{EE+k}")
        for i in range(n // 2):
            ops.append(f"v_lshlrev_b32 v{o+2*i}, 16, v{HQ+4*nb+i}")
            ops.append(f"v_and_b32 v{o+2*i+1}, s{sM16}, v{HQ+4*nb+i}")
        for k in range(n): ops.append(f"v_mul_f32 v{X+k}, v{X+k}, v{EE+k}")
        for k in range(n): ops.append(f"v_fma_f32 v{X+k}, v{X+k}, s{sLN2}, v{o+k}")
        d = 100 + 4 * nb
        for i in range(n // 2): ops.append(f"v_cvt_pk_bf16_f32 v{d+i}, v{X+2*i}, v{X+2*i+1}")
        ops.append(f"s_add_u32 s{sTmp}, s{sN}, {nb*8192}")
        if nb == 2: ops.append(f"buffer_store_dwordx2 v[{d}:{d+1}], v10, s[{SO}:{SO+3}], s{sTmp} offen{OST()}")
        else: ops.append(f"buffer_store_dwordx4 v[{d}:{d+3}], v6, s[{SO}:{SO+3}], s{sTmp} offen{OST()}")
        return ops
    for i in range(5): bread(i)
    pend = []
    for i, (nb, ks) in enumerate(seq):
        q = BR + 4 * (i % 6)
        if ks == 3 and nb > 0:
            if nb == 1: a("s_waitcnt vmcnt(0)")
            pend = epilogue(nb - 1)
        a.wait_lds(("B", i))
        for cb in range(2):
            o = O + 8 * nb + 4 * cb; w = WH + 4 * (cb * 8 + ks)
            c = "0" if ks == 0 else f"v[{o}:{o+3}]"
            a(f"v_mfma_f32_16x16x32_bf16 v[{o}:{o+3}], v[{w}:{w+3}], v[{q}:{q+3}], {c}")
        if i + 5 < len(seq): bread(i + 5)
        left = 7 - ks if ks >= 3 else None
        if pend:
            k = -(-len(pend) // (8 - ks + 2))
            for op in pend[:k]: a(op)
            pend = pend[k:]
        if ks == 2:
            for op in pend: a(op)
            pend = []
    for op in pend: a(op)
    a.stamp(11)
    a("s_nop 7")
    for op in epilogue(2): a(op)
    a("s_mov_b64 exec, -1")
    a(f"s_cmp_lg_u32 s{W}, 0")
    a("s_cbranch_scc1 L2_done")
    a("s_mov_b32 exec_hi, 0x0fffffff")
    for k in range(2):
        a(f"v_lshlrev_b32 v10, 1, v1")
        if k: a("v_add_u32 v10, 1, v10")
        a("v_mul_u32_u24 v11, 171, v10")
        a("v_lshrrev_b32 v11, 9, v11")
        a("v_mul_u32_u24 v12, 3, v11")
        a("v_sub_u32 v12, v10, v12")
        a("v_lshrrev_b32 v13, 3, v11")
        a("v_lshlrev_b32 v13, 5, v13")
        a("v_lshl_add_u32 v13, v12, 3, v13")
        a("v_and_b32 v11, 7, v11")
        a("v_add3_u32 v13, v13, v11, 8")
        a("v_lshlrev_b32 v13, 2, v13")
        a(f"v_add_u32 v13, {L_T}, v13")
        a(f"ds_read_b32 v{14+k}, v13")
    a("v_lshlrev_b32 v10, 16, v8")
    a(f"v_and_b32 v11, s{sM16}, v8")
    a("s_waitcnt lgkmcnt(0)")
    a(f"v_fma_f32 v10, v14, s{sLN2}, v10")
    a(f"v_fma_f32 v11, v15, s{sLN2}, v11")
    a("v_cvt_pk_bf16_f32 v10, v10, v11")
    a(f"buffer_store_dword v10, v7, s[{SPO}:{SPO+3}], s{sP} offen")
    a.label("L2_done")
    if a.diag:
        a("s_waitcnt vmcnt(0)")
        a("s_memrealtime s[100:101]")
        a("s_waitcnt lgkmcnt(0)")
        a("s_mov_b32 s89, s100")
        a.dump_stamps(P_WS, WS_DIAG, W)
```
